```python
import torch

def _softmax(x, axis=-1):
    return torch.softmax(x, dim=axis)

def _gelu(x):
    return torch.nn.functional.gelu(x, approximate='tanh')

def _silu(x):
    return torch.nn.functional.silu(x)

def _sigmoid(x):
    return torch.sigmoid(x)

def _layernorm(x, axis=-1, eps=1e-05):
    m = x.mean(dim=axis, keepdim=True)
    v = x.var(dim=axis, keepdim=True, unbiased=False)
    return (x - m) / torch.sqrt(v + eps)

def _scatter_add(tgt, idx, src, axis=0):
    return tgt.clone().index_add_(axis, idx, src)

def _segment_sum(src, seg, n):
    out = torch.zeros((n,) + src.shape[1:], dtype=src.dtype)
    return out.index_add_(0, seg, src)

def _pad(x, pw):
    flat = tuple((v for pair in reversed(pw) for v in pair))
    return torch.nn.functional.pad(x, flat)
kernel_name = 'adaLN_cond__gqa_block_cached__dense_activation_relu__decode'

def setup_inputs():

    _w = lambda a: (lambda t: t.to(torch.bfloat16) if t.is_floating_point() else t)(torch.as_tensor(a))

    def _A_setup():
        B, Sq, D = (1, 1, 512)
        Hq, Hkv, Sk, Dh = (32, 8, 32768, 128)
        assert Hq % Hkv == 0, (Hq, Hkv)
        return {'x': _w((lambda *s: torch.randn(*s, dtype=torch.bfloat16) * 0.1)(B, Sq, D)), 'k_cache': _w((lambda *s: torch.randn(*s, dtype=torch.bfloat16) * 0.8)(B, Hkv, Sk, Dh)), 'v_cache': _w((lambda *s: torch.randn(*s, dtype=torch.bfloat16) * 1.6)(B, Hkv, Sk, Dh)), 'wq': _w((lambda *s: torch.randn(*s, dtype=torch.bfloat16) * 0.8)(D, Hq * Dh) * D ** (-0.5)), 'wo': _w((lambda *s: torch.randn(*s, dtype=torch.bfloat16) * 1.6)(Hq * Dh, D) * (Hq * Dh) ** (-0.5))}
    _A_in = _A_setup()

    def _B_setup():
        B, S, D, Dff = (1, 1, 512, 1792)
        return {'x': _w((lambda *s: torch.randn(*s, dtype=torch.bfloat16) * 0.1)(B, S, D)), 'w1': _w((lambda *s: torch.randn(*s, dtype=torch.bfloat16) * 0.1)(D, Dff)), 'w2': _w((lambda *s: torch.randn(*s, dtype=torch.bfloat16) * 0.1)(Dff, D))}
    _B_in = _B_setup()
    return {'A_x': _A_in['x'], 'A_k_cache': _A_in['k_cache'], 'A_v_cache': _A_in['v_cache'], 'A_wq': _A_in['wq'], 'A_wo': _A_in['wo'], 'B_x': _B_in['x'], 'B_w1': _B_in['w1'], 'B_w2': _B_in['w2'], 'c': _w((lambda *s: torch.randn(*s, dtype=torch.bfloat16) * 0.2)(1, 512) * 8.0), 'w_mod': _w((lambda *s: torch.randn(*s, dtype=torch.bfloat16) * 0.2)(512, 6 * 512) * 512 ** (-0.5) * 8.0)}

def reference(A_x, A_k_cache, A_v_cache, A_wq, A_wo, B_x, B_w1, B_w2, c, w_mod):

    def _A_ref(x, k_cache, v_cache, wq, wo):
        B, Sq, D = x.shape
        Hq, Dh = (32, 128)
        Hkv = k_cache.shape[1]
        rep = Hq // Hkv
        q = (lambda x, *d: x.permute(*d))((x @ wq).reshape(B, Sq, Hq, Dh), 0, 2, 1, 3)
        k = (lambda x, n, axis: torch.repeat_interleave(x, n, dim=axis))(k_cache, rep, axis=1)
        v = (lambda x, n, axis: torch.repeat_interleave(x, n, dim=axis))(v_cache, rep, axis=1)
        scores = torch.einsum('bhqd,bhkd->bhqk', q, k) * Dh ** (-0.5)
        p = _softmax(scores, axis=-1)
        o = torch.einsum('bhqk,bhkd->bhqd', p, v)
        return (lambda x, *d: x.permute(*d))(o, 0, 2, 1, 3).reshape(B, Sq, Hq * Dh) @ wo

    def _B_ref(x, w1, w2):
        h = torch.einsum('bsd,df->bsf', x, w1)
        zero = torch.zeros_like(h)
        h = torch.maximum(h, zero)
        return torch.einsum('bsf,fd->bsd', h, w2)
    x = A_x
    mod = (_silu(c) @ w_mod).reshape(c.shape[0], 6, 1, -1)
    sa, ca, ga, sb, cb, gb = (mod[:, 0].clone(), mod[:, 1].clone(), mod[:, 2].clone(), mod[:, 3].clone(), mod[:, 4].clone(), mod[:, 5].clone())
    h = _layernorm(x, axis=-1) * (1 + ca) + sa
    x = x + ga * _A_ref(h, A_k_cache, A_v_cache, A_wq, A_wo)
    h = _layernorm(x, axis=-1) * (1 + cb) + sb
    x = x + gb * _B_ref(h, B_w1, B_w2)
    return x
```

```python
import re

TRANS = ("v_exp_f32","v_log_f32","v_rcp_f32","v_rsq_f32","v_sqrt_f32","v_sin_f32","v_cos_f32")

def regs_of(tok):
    tok = tok.strip()
    tok = tok.lstrip('-')
    m = re.fullmatch(r"abs\((.*)\)", tok)
    if m: tok = m.group(1)
    tok = tok.strip('|')
    m = re.fullmatch(r"([vsa])(\d+)", tok)
    if m: return {(m.group(1), int(m.group(2)))}
    m = re.fullmatch(r"([vsa])\[(\d+):(\d+)\]", tok)
    if m: return {(m.group(1), i) for i in range(int(m.group(2)), int(m.group(3))+1)}
    if tok in ("vcc","vcc_lo","vcc_hi"): return {("vcc",0)}
    if tok in ("exec","exec_lo","exec_hi"): return {("exec",0)}
    if tok == "m0": return {("m0",0)}
    return set()

class Emit:
    def __init__(self):
        self.L = []
        self.hist = []
    def raw(self, s): self.L.append(s)
    def comment(self, s): self.L.append("    ; " + s)
    def _push(self, e, n=1):
        self.hist.append(e)
        for _ in range(n-1): self.hist.append(None)
        self.hist = self.hist[-24:]
    def nop(self, n):
        while n > 0:
            k = min(n, 16)
            self.L.append(f"    s_nop {k-1}")
            self._push(None, k)
            n -= k
    def flush(self):
        need = 0
        for d, e in enumerate(reversed(self.hist)):
            if e is None: continue
            mx = {"mfma":8, "mfma8":12, "valu":5 if any(x[0] == "s" for x in e["w"]) else (1 if all(x[0] == "vcc" for x in e["w"]) else 2), "trans":2, "store":2}.get(e["kind"], 0)
            need = max(need, mx - d)
        if need > 0: self.nop(need)
        self.hist = []
    def label(self, name):
        self.flush(); self.L.append(name + ":")
    def __call__(self, text):
        for line in text.split("\n"):
            line = line.strip()
            if not line: continue
            self.ins(line)
    def ins(self, line):
        code = line.split(";")[0].strip()
        sp = code.split(None, 1)
        mn = sp[0]; rest = sp[1] if len(sp) > 1 else ""
        ops = [o.strip() for o in re.split(r",(?![^\[]*\])", rest)] if rest else []
        if ops:
            last = ops[-1].split()
            ops[-1] = last[0] if last else ""
            mods = " ".join(last[1:])
        else: mods = ""
        if mn.startswith("s_cbranch") or mn == "s_branch" or mn == "s_endpgm" or mn == "s_setpc_b64":
            if mn in ("s_cbranch_vccz","s_cbranch_vccnz","s_cbranch_scc0","s_cbranch_scc1","s_cbranch_execz","s_cbranch_execnz","s_branch"):
                self.flush()
            self.L.append("    " + line); self._push(None); return
        if mn == "s_nop":
            self.L.append("    " + line); self._push(None, int(ops[0], 0)+1); return
        kind = None; w=set(); r=set(); c=set()
        isv = mn.startswith("v_")
        dpp = "_dpp" in mn
        if mn.startswith("v_mfma"):
            kind = "mfma8" if "32x32" in mn else "mfma"
            w = regs_of(ops[0]); r = regs_of(ops[1]) | regs_of(ops[2]); c = regs_of(ops[3])
        elif isv:
            base = mn.replace("_dpp","").replace("_e32","").replace("_e64","").replace("_sdwa","")
            kind = "trans" if base in TRANS else "valu"
            if base.startswith("v_cmp"):
                w = regs_of(ops[0]); r = set().union(*[regs_of(o) for o in ops[1:]])
            elif base.startswith("v_permlane"):
                w = regs_of(ops[0]) | regs_of(ops[1]); r = set(w)
            elif base in ("v_add_co_u32","v_addc_co_u32","v_sub_co_u32"):
                w = regs_of(ops[0]) | regs_of(ops[1]); r = set().union(*[regs_of(o) for o in ops[2:]])
            else:
                w = regs_of(ops[0]); r = set().union(*[regs_of(o) for o in ops[1:]]) if len(ops) > 1 else set()
                if base in ("v_fmac_f32","v_dot2c_f32_bf16","v_writelane_b32") : r |= w
                if dpp: r |= set()
        elif mn.startswith("buffer_") or mn.startswith("global_") or mn.startswith("ds_"):
            allr = set().union(*[regs_of(o) for o in ops]) if ops else set()
            isload = ("load" in mn and "lds" not in mods.split()) or mn.startswith("ds_read") or "_rtn" in mn or "permute" in mn or "swizzle" in mn
            if isload:
                w = regs_of(ops[0]); r = set().union(*[regs_of(o) for o in ops[1:]])
                kind = "mem"
            else:
                r = allr
                kind = "store" if ("store" in mn and ("x4" in mn or "x3" in mn)) else "mem"
                if kind == "store":
                    c = regs_of(ops[0]) if mn.startswith("buffer_") else regs_of(ops[1])
        elif mn.startswith("s_"):
            kind = "salu"
            w = regs_of(ops[0]) if ops else set()
            r = set().union(*[regs_of(o) for o in ops[1:]]) if len(ops) > 1 else set()
        need = 0
        base = mn.replace("_dpp","").replace("_e32","").replace("_e64","")
        for d, e in enumerate(reversed(self.hist)):
            if e is None: continue
            k = e["kind"]; ew = e["w"]
            req = 0
            vw = {x for x in ew if x[0] in ("v","a")}
            sw = {x for x in ew if x[0] in ("s","vcc")}
            if k in ("valu","trans"):
                if kind in ("valu","trans"):
                    if dpp and ops and (regs_of(ops[1]) & vw): req = max(req, 2)
                    if base.startswith("v_permlane") and (r & vw): req = max(req, 2)
                    if base in ("v_readlane_b32","v_readfirstlane_b32") and (r & vw): req = max(req, 1)
                    if k == "trans" and (r & vw): req = max(req, 1)
                    if r & sw: req = max(req, 4 if base in ("v_readlane_b32","v_writelane_b32") else 2)
                    if base.startswith("v_cndmask") and ("vcc",0) in sw: req = max(req, 2)
                    if e.get("dot") and ((r|w) & vw) and not (base == e["dot"]): req = max(req, 3)
                    if e.get("dot") and base == e["dot"] and len(ops) > 2 and ((regs_of(ops[1])|regs_of(ops[2])) & vw): req = max(req, 3)
                if kind in ("mfma","mfma8") and ((r|c) & vw): req = max(req, 2)
                if kind in ("mem","store") and (r & sw): req = max(req, 5)
                if kind in ("mem","store") and e.get("dot") and (r & vw): req = max(req, 3)
                if kind == "salu" and (r & sw): req = max(req, 1)
            if k in ("mfma","mfma8"):
                n_rw = 8 if k == "mfma" else 12
                if kind in ("valu","trans","mem","store") and ((r|w) & vw): req = max(req, n_rw)
                if kind in ("mfma","mfma8"):
                    if r & vw: req = max(req, n_rw)
                    if (c & vw) and c != vw: req = max(req, n_rw-2)
                    if (w & vw) and not (c == vw): req = max(req, n_rw)
                if kind in ("valu","trans") and (w & e["c"]): req = max(req, 3 if k == "mfma" else 7)
            if k == "store":
                if kind in ("valu","trans","mfma","mfma8") and (w & e["c"]): req = max(req, 2)
                elif kind == "mem" and (w & e["c"]): req = max(req, 1)
            if k == "salu" and ("m0",0) in ew and kind in ("mem",) and "lds" in mods.split(): req = max(req, 1)
            need = max(need, req - d)
        if need > 0: self.nop(need)
        self.L.append("    " + line)
        ent = dict(kind=kind, w=w, r=r, c=c)
        if base.startswith("v_dot2"): ent["dot"] = base
        self._push(ent)
    def text(self): return "\n".join(self.L) + "\n"
```

```python
import sys, math, struct
from emit import Emit
KN = "adaLN_cond__gqa_block_cached__dense_activation_relu__decode_kernel"

WS_EPOCH = 0x0
WS_MODG  = 0x1000
WS_QG    = 0x8000
WS_CLR   = 0xC000
WS_STAT  = 0x10000
WS_PART  = 0x20000
WS_AO    = 0x80000
WS_MO    = 0x90000
WS_STAMP = 0x8000000
L_STATS = 0
L_CNT   = 256
L_FAC   = 384
L_WB    = 512
L_X2    = 2048
L_RED   = 4096
L_ACT   = 6144
L_ORED  = 8192
L_SC    = 24576
L_WT    = 28672
LDS_BYTES = L_WT + 65536
J_WQ, J_WO, J_MLP, J_NONE = 6, 14, 22, 29

DPPM = "row_mask:0xf bank_mask:0xf"
def f32bits(x): return struct.unpack("<I", struct.pack("<f", x))[0]

def gen(depth=6, depth0=12, kvflags="nt", wflags="nt", stamps=None, swave=0, tailpos=1, slp=2, slpq=16, slpb=2, codepf=2, dbg="",
        kpre=4, prio=1):
    E = Emit()
    sW, sG, sJ, sTAG, sSPIN = "s3", "s4", "s5", "s6", "s7"
    rK, rV, rWS, rWT, rW2, rX, rC, rOUT = [f"s[{i}:{i+3}]" for i in range(8, 40, 4)]
    sSELLO, sSELHI, sC, sBASE, sM, sT0, sT1, sT2 = "s78", "s79", "s80", "s81", "s82", "s83", "s100", "s101"
    sWOFF, sWSTR, sPUB, sLAST, sU, sU16, sT3, sT4, sEP = "s40", "s41", "s42", "s95", "s98", "s99", "s96", "s97", "s93"
    sPP, sGA0, sGA1, sLD = "s43", "s44", "s45", "s46"
    vLANE, vK, vV = "v1", "v2", "v3"
    QP = 8; Q0 = 16
    T0, T1, T2, T3 = 28, 29, 30, 31
    S = [32 + 32*i for i in range(7)]
    def stamp(i):
        if stamps and str(i) in stamps:
            k = stamps.index(str(i))
            E(f"s_memrealtime s[{52+2*k}:{53+2*k}]")
    vm = []
    def vmop(tag, text):
        E(text); vm.append(tag)
    def vmwait(tag):
        idx = [i for i, t in enumerate(vm) if t == tag][-1]
        E(f"s_waitcnt vmcnt({min(len(vm) - 1 - idx, 62)})")
    def spin_check(lbl_loop):
        E(f"s_sub_u32 {sSPIN}, {sSPIN}, 1")
        E(f"s_cbranch_scc0 {lbl_loop}")
        E(f"s_branch L_end")
    def load_tile(kind, T, slot, dep, tag, mid=None, lo=0, hi=8, setp=True):
        srd = rK if kind == "k" else rV
        va = vK if kind == "k" else vV
        if prio and setp and lo == 0 and T % 2 == 0: E(f"s_setprio {(3 if kind == 'k' else 1) - T//2}")
        for i in range(lo, hi):
            if i == 4 and mid: mid()
            if i == 0 or i == 4: E(f"s_add_u32 {sLD}, {sBASE}, {T*0x200000 + (i//4)*4096}")
            if dep and len(vm) >= dep: E(f"s_waitcnt vmcnt({dep-1})")
            r = S[slot] + i*4
            vmop(tag, f"buffer_load_dwordx4 v[{r}:{r+3}], {va}, {srd}, {sLD} offen offset:{(i%4)*1024} {kvflags}")
    def red_rows(op, regs, tmp):
        for sw in ("v_permlane16_swap_b32", "v_permlane32_swap_b32"):
            for i, r in enumerate(regs): E(f"v_mov_b32 v{tmp+i}, v{r}")
            for i, r in enumerate(regs): E(f"{sw} v{r}, v{tmp+i}")
            for i, r in enumerate(regs): E(f"{op} v{r}, v{r}, v{tmp+i}")
    def red_ror(op, regs, rors):
        for k in rors:
            for r in regs: E(f"{op}_dpp v{r}, v{r}, v{r} row_ror:{k} {DPPM}")
    def rb1(dst, src):
        E(f"v_cvt_pk_bf16_f32 v{dst}, v{src}, v{src}")
        E(f"v_lshlrev_b32 v{dst}, 16, v{dst}")
    def rb2(d0, d1, s0, s1, t):
        E(f"v_cvt_pk_bf16_f32 v{t}, v{s0}, v{s1}")
        E(f"v_lshlrev_b32 v{d0}, 16, v{t}")
        E(f"v_and_b32 v{d1}, 0xffff0000, v{t}")
    def tagcheck(regs, t):
        regs = [f"v{r}" for r in regs] + [sTAG]
        if len(regs) % 2 == 0: regs.insert(0, regs[0])
        E(f"v_max3_u32 v{t}, {regs[0]}, {regs[1]}, {regs[2]}")
        E(f"v_min3_u32 v{t+1}, {regs[0]}, {regs[1]}, {regs[2]}")
        for i in range(3, len(regs), 2):
            E(f"v_max3_u32 v{t}, v{t}, {regs[i]}, {regs[i+1]}")
            E(f"v_min3_u32 v{t+1}, v{t+1}, {regs[i]}, {regs[i+1]}")
        E(f"v_cmp_ne_u32 vcc, v{t}, v{t+1}")
    def mktag():
        E("s_waitcnt lgkmcnt(0)")
        E(f"s_mul_i32 {sTAG}, {sEP}, 0x9E3779B1")
        E(f"s_add_u32 {sTAG}, {sTAG}, 0x7F4A7C15")
    def wide_dma():
        E(f"v_lshrrev_b32 v{T0}, 3, {vLANE}")
        E(f"v_and_b32 v{T1}, 2, v{T0}")
        E(f"v_and_b32 v{T2}, 7, {vLANE}")
        E(f"v_xor_b32 v{T2}, v{T2}, v{T1}")
        E(f"v_mul_lo_u32 v{T0}, v{T0}, {sWSTR}")
        E(f"v_lshl_add_u32 v{T2}, v{T2}, 4, v{T0}")
        E(f"v_xor_b32 v{T3}, 64, v{T2}")
        E(f"s_lshl_b32 {sT1}, {sWSTR}, 3")
        E(f"s_mul_i32 {sT0}, {sT1}, {sW}")
        E(f"s_lshl_b32 {sT0}, {sT0}, 3")
        E(f"s_add_u32 {sT0}, {sT0}, {sWOFF}")
        E(f"s_lshl_b32 {sT3}, {sW}, 13")
        E(f"s_add_u32 m0, {sT3}, {L_WT}")
        for i in range(8):
            E(f"buffer_load_dwordx4 v{T2 + i%2}, {rWT}, {sT0} offen {wflags} lds")
            if i < 7:
                E(f"s_add_u32 {sT0}, {sT0}, {sT1}")
                E(f"s_add_u32 m0, m0, 1024")
    def wide_traddr(dst, wavebase):
        E(f"v_lshrrev_b32 v{T0}, 4, {vLANE}")
        E(f"v_bfe_u32 v{T1}, {vLANE}, 2, 2")
        E(f"v_lshl_add_u32 v{T2}, v{T0}, 3, v{T1}")
        E(f"v_lshlrev_b32 v{T2}, 7, v{T2}")
        E(f"v_and_b32 v{T3}, 3, {vLANE}")
        E(f"v_lshl_add_u32 v{T2}, v{T3}, 3, v{T2}")
        E(f"v_lshrrev_b32 v{T1}, 1, v{T1}")
        E(f"v_and_b32 v{T0}, 1, v{T0}")
        E(f"v_lshl_add_u32 v{T1}, v{T0}, 1, v{T1}")
        E(f"v_lshl_add_u32 v{T2}, v{T1}, 5, v{T2}")
        if wavebase:
            E(f"s_lshl_b32 {sT3}, {sW}, 13")
            E(f"s_add_u32 {sT3}, {sT3}, {L_WT}")
            E(f"v_add_u32 v{dst}, {sT3}, v{T2}")
        else:
            E(f"v_add_u32 v{dst}, {L_WT}, v{T2}")
        for nt in range(1, 4): E(f"v_xor_b32 v{dst+nt}, {nt*32}, v{dst}")

    hdr = []
    hdr.append(f"; @launch grid=(256,1,1) block=(512,1,1) lds={LDS_BYTES}")
    hdr.append('.amdgcn_target "amdgcn-amd-amdhsa--gfx950"\n.text')
    hdr.append(f".globl {KN}\n.p2align 8\n.type {KN},@function\n{KN}:")
    E.raw("\n".join(hdr))
    E("s_cmp_ge_u32 s2, 256")
    E("s_cbranch_scc1 L_end")
    E("s_load_dwordx16 s[52:67], s[0:1], 0")
    E("s_load_dwordx8 s[68:75], s[0:1], 64")
    E("s_load_dwordx2 s[76:77], s[0:1], 96")
    E(f"v_lshrrev_b32 v4, 6, v0")
    E(f"v_and_b32 {vLANE}, 63, v0")
    E(f"v_readfirstlane_b32 {sW}, v4")
    E(f"s_and_b32 {sG}, s2, 7")
    E(f"s_lshr_b32 {sJ}, s2, 3")
    if codepf:
        E(f"s_cmp_lt_u32 {sJ}, {32-codepf}")
        E("s_cbranch_scc1 L_nopf")
        E("s_getpc_b64 s[84:85]")
        E.raw("L_pc:")
        E(f"v_lshlrev_b32 v6, 4, v0")
        E(f"v_mov_b32 v9, s85")
        E(f"v_add_co_u32 v8, vcc, s84, v6")
        E(f"v_addc_co_u32 v9, vcc, 0, v9, vcc")
        for i in range(3):
            E(f"v_cmp_gt_i32 vcc, L_end-L_pc-{8192*i}-16, v6")
            E(f"s_and_b64 exec, exec, vcc")
            E(f"s_cbranch_execz L_pfdone")
            E(f"global_load_dwordx4 v[12:15], v[8:9], off")
            if i < 2:
                E(f"v_add_co_u32 v8, vcc, 0x2000, v8")
                E(f"v_addc_co_u32 v9, vcc, 0, v9, vcc")
        E.label("L_pfdone")
        E("s_mov_b64 exec, -1")
        E.label("L_nopf")
    E(f"v_lshlrev_b32 {vV}, 4, {vLANE}")
    E(f"v_and_b32 v4, 12, {vLANE}")
    E(f"v_lshlrev_b32 {vK}, 6, v4")
    E(f"v_lshrrev_b32 v4, 4, {vLANE}")
    E(f"v_lshl_add_u32 {vK}, v4, 6, {vK}")
    E(f"v_and_b32 v4, 3, {vLANE}")
    E(f"v_lshl_add_u32 {vK}, v4, 4, {vK}")
    E(f"v_lshlrev_b32 v5, 1, {vK}")
    E(f"s_lshl_b32 {sBASE}, {sG}, 23")
    E(f"s_lshl_b32 {sT0}, {sJ}, 3")
    E(f"s_add_u32 {sT0}, {sT0}, {sW}")
    E(f"s_lshl_b32 {sT0}, {sT0}, 13")
    E(f"s_add_u32 {sBASE}, {sBASE}, {sT0}")
    E(f"s_mov_b32 {sSELLO}, 0x05040100")
    E(f"s_mov_b32 {sSELHI}, 0x07060302")
    E(f"s_mov_b32 {sC}, {f32bits(math.log2(math.e)):#x}")
    E(f"s_mov_b32 {sSPIN}, 0x40000")
    for d, z in ((8, 0x4000000), (12, 0x4000000), (16, 0x10000000), (24, 512*1792*2), (28, 1024), (32, 1024), (36, 1024)):
        E(f"s_mov_b32 s{d+2}, {z:#x}")
    for d in range(8, 40, 4): E(f"s_mov_b32 s{d+3}, 0x20000")
    E(f"v_mov_b32 v18, {L_CNT}")
    E(f"v_mov_b32 v20, 0")
    E(f"v_mov_b32 v21, 0")
    E(f"ds_write_b64 v18, v[20:21]")
    E(f"s_mul_i32 {sM}, {sG}, 7")
    E(f"s_add_u32 {sM}, {sM}, {sJ}")
    E(f"s_sub_u32 {sM}, {sM}, {J_MLP}")
    E("s_waitcnt lgkmcnt(0)")
    E("s_mov_b64 s[8:9], s[54:55]")
    E(f"s_cmp_ge_u32 {sJ}, {J_WO}")
    E("s_cbranch_scc1 L_role2")
    E(f"s_cmp_ge_u32 {sJ}, {J_WQ}")
    E("s_cbranch_scc1 L_roleq")
    E("s_mov_b64 s[20:21], s[70:71]")
    E(f"s_mov_b32 s22, {512*3072*2}")
    E(f"s_lshl_b32 {sWOFF}, s2, 7")
    E(f"s_mov_b32 {sWSTR}, 6144")
    E(f"s_lshl_b32 {sPUB}, s2, 8")
    E(f"s_add_u32 {sPUB}, {sPUB}, {WS_MODG}")
    E("s_mov_b64 s[32:33], s[68:69]")
    E(f"buffer_load_dwordx4 v[8:11], {vV}, {rC}, 0 offen")
    E("s_branch L_early")
    E.label("L_roleq")
    E("s_mov_b64 s[20:21], s[58:59]")
    E(f"s_mov_b32 s22, {512*4096*2}")
    E(f"s_lshl_b32 {sT0}, {sG}, 3")
    E(f"s_add_u32 {sT0}, {sT0}, {sJ}")
    E(f"s_sub_u32 {sT0}, {sT0}, {J_WQ}")
    E(f"s_lshl_b32 {sWOFF}, {sT0}, 7")
    E(f"s_mov_b32 {sWSTR}, 8192")
    E(f"s_lshl_b32 {sPUB}, {sT0}, 8")
    E(f"s_add_u32 {sPUB}, {sPUB}, {WS_QG}")
    E("s_mov_b64 s[28:29], s[52:53]")
    E(f"buffer_load_dwordx4 v[8:11], {vV}, {rX}, 0 offen")
    E.label("L_early")
    wide_dma()
    E("s_branch L_roled")
    E.label("L_role2")
    E("s_mov_b64 s[20:21], s[60:61]")
    E(f"s_mov_b32 s22, {512*4096*2}")
    E(f"s_lshl_b32 {sWOFF}, {sG}, 19")
    E(f"s_sub_u32 {sT0}, {sJ}, {J_WO}")
    E(f"s_lshl_b32 {sT1}, {sT0}, 7")
    E(f"s_add_u32 {sWOFF}, {sWOFF}, {sT1}")
    E(f"s_mov_b32 {sWSTR}, 1024")
    E(f"s_lshl_b32 {sPUB}, {sG}, 12")
    E(f"s_lshl_b32 {sT1}, {sT0}, 9")
    E(f"s_add_u32 {sPUB}, {sPUB}, {sT1}")
    E(f"s_add_u32 {sPUB}, {sPUB}, {WS_AO}")
    E(f"s_cmp_lt_u32 {sJ}, {J_MLP}")
    E("s_cbranch_scc1 L_roled")
    E("s_mov_b64 s[20:21], s[64:65]")
    E(f"s_mov_b32 s22, {512*1792*2}")
    E(f"s_lshl_b32 {sPUB}, {sM}, 11")
    E(f"s_add_u32 {sPUB}, {sPUB}, {WS_MO}")
    E.label("L_roled")
    E(f"s_load_dword {sEP}, s[76:77], {WS_EPOCH}")
    for d, sr in ((16, 76), (12, 56), (24, 66), (28, 52), (32, 68), (36, 72)):
        E(f"s_mov_b64 s[{d}:{d+1}], s[{sr}:{sr+1}]")
    E(f"s_lshl_b32 {sT2}, {sG}, 11")
    E(f"s_add_u32 {sT2}, {sT2}, {WS_QG}")
    stamp(0)
    E("s_barrier")
    E(f"s_cmp_ge_u32 {sJ}, {J_WO}")
    E("s_cbranch_scc1 L_stream")
    E(f"s_cmp_eq_u32 {sW}, 0")
    E("s_cbranch_scc1 L_aux")
    NPRE = 4
    load_tile("k", 0, 0, 0, "K0", hi=NPRE)
    E(f"v_mov_b32 v19, 1")
    E("s_mov_b64 exec, 1")
    E(f"s_waitcnt vmcnt({NPRE})")
    E(f"ds_add_u32 v18, v19 offset:4")
    E("s_mov_b64 exec, -1")
    E("s_branch L_stream2")

    def qpoll(first=True):
        if first:
            E(f"v_and_b32 v19, 31, {vLANE}")
            E(f"v_lshlrev_b32 v19, 2, v19")
            E(f"v_add_u32 v19, {WS_CLR - WS_QG}, v19")
        f = (lambda t: vmop("Q", t)) if first else E
        f(f"buffer_load_dwordx4 v[{QP}:{QP+3}], v5, {rWS}, {sT2} offen sc1")
        f(f"buffer_load_dwordx4 v[{QP+4}:{QP+7}], v5, {rWS}, {sT2} offen offset:16 sc1")
        f(f"buffer_load_dword v4, v19, {rWS}, {sT2} offen sc1")
    def tail_dma():
        if "t" in dbg: return
        u = len(E.L)
        E(f"s_cmp_lt_u32 {sJ}, {J_WO}")
        E(f"s_cbranch_scc1 L_td{u}")
        E(f"s_cmp_ge_u32 {sJ}, {J_MLP}")
        E(f"s_cbranch_scc1 L_tm{u}")
        wide_dma()
        E(f"s_branch L_td{u}")
        E.label(f"L_tm{u}")
        E(f"s_cmp_ge_u32 {sJ}, {J_NONE}")
        E(f"s_cbranch_scc1 L_td{u}")
        E(f"v_lshrrev_b32 v{T0}, 2, {vLANE}")
        E(f"v_mul_u32_u24 v{T0}, 3584, v{T0}")
        E(f"v_and_b32 v{T1}, 3, {vLANE}")
        E(f"v_lshl_add_u32 v{T0}, v{T1}, 4, v{T0}")
        E(f"s_mul_i32 {sT0}, {sW}, {16*3584}")
        E(f"s_lshl_b32 {sT1}, {sM}, 6")
        E(f"s_add_u32 {sT0}, {sT0}, {sT1}")
        E(f"s_lshl_b32 {sT3}, {sW}, 13")
        E(f"s_add_u32 m0, {sT3}, {L_WT}")
        for i in range(4):
            E(f"buffer_load_dwordx4 v{T0}, {rWT}, {sT0} offen {wflags} lds")
            E(f"s_add_u32 {sT0}, {sT0}, {128*3584}")
            E(f"s_add_u32 m0, m0, 1024")
        E(f"v_lshrrev_b32 v{T0}, 3, {vLANE}")
        E(f"v_and_b32 v{T1}, 7, {vLANE}")
        E(f"v_lshlrev_b32 v{T1}, 4, v{T1}")
        E(f"v_lshl_add_u32 v{T0}, v{T0}, 10, v{T1}")
        E(f"s_lshl_b32 {sT0}, {sM}, 15")
        E(f"s_lshl_b32 {sT1}, {sW}, 7")
        E(f"s_add_u32 {sT0}, {sT0}, {sT1}")
        for i in range(4):
            E(f"buffer_load_dwordx4 v{T0}, {rW2}, {sT0} offen {wflags} lds")
            if i < 3:
                E(f"s_add_u32 {sT0}, {sT0}, 8192")
                E(f"s_add_u32 m0, m0, 1024")
        E.label(f"L_td{u}")

    E.label("L_aux")
    E("s_setprio 3")
    CR = 8; TRA = 12; XF = 20
    MG = S[6]; AD = S[6] + 16
    wide_traddr(TRA, False)
    E(f"v_lshrrev_b32 v4, 4, {vLANE}")
    E(f"v_lshlrev_b32 v6, 4, v4")
    E(f"v_lshlrev_b32 v7, 5, {vLANE}")
    E(f"v_lshlrev_b32 v4, 2, {vLANE}")
    E("s_waitcnt vmcnt(8)")
    mktag()
    stamp("a0")
    for p in range(4):
        E(f"v_lshlrev_b32 v{XF+2*p}, 16, v{CR+p}")
        E(f"v_and_b32 v{XF+2*p+1}, 0xffff0000, v{CR+p}")
    E(f"s_cmp_ge_u32 {sJ}, {J_WQ}")
    E("s_cbranch_scc1 L_auxq")
    E(f"s_mov_b32 {sT0}, {f32bits(-math.log2(math.e)):#x}")
    for i in range(8): E(f"v_mul_f32 v{MG+i}, {sT0}, v{XF+i}")
    for i in range(8): E(f"v_exp_f32 v{MG+i}, v{MG+i}")
    for i in range(8): E(f"v_add_f32 v{MG+i}, 1.0, v{MG+i}")
    for i in range(8): E(f"v_rcp_f32 v{MG+i}, v{MG+i}")
    for i in range(8): E(f"v_mul_f32 v{XF+i}, v{XF+i}, v{MG+i}")
    for p in range(4): E(f"v_cvt_pk_bf16_f32 v{CR+p}, v{XF+2*p}, v{XF+2*p+1}")
    E("s_branch L_gemv")
    E.label("L_auxq")
    for T in range(kpre): load_tile("k", T, T, 0, f"K{T}", setp=False)
    m, v, t = T0, T1, T2
    vals = list(range(XF, XF+8))
    E(f"v_add_f32 v{m}, v{vals[0]}, v{vals[1]}")
    for r in vals[2:]: E(f"v_add_f32 v{m}, v{m}, v{r}")
    red_ror("v_add_f32", [m], (1, 2, 4, 8)); red_rows("v_add_f32", [m], t)
    E(f"v_mul_f32 v{m}, {f32bits(1.0/512):#x}, v{m}")
    for i, r in enumerate(vals):
        E(f"v_sub_f32 v{t}, v{r}, v{m}")
        E(f"v_mul_f32 v{v}, v{t}, v{t}" if i == 0 else f"v_fmac_f32 v{v}, v{t}, v{t}")
    red_ror("v_add_f32", [v], (1, 2, 4, 8)); red_rows("v_add_f32", [v], t)
    E(f"v_mul_f32 v{v}, {f32bits(1.0/512):#x}, v{v}")
    rb2(m, v, m, v, t)
    E(f"v_add_f32 v{v}, {f32bits(1e-5):#x}, v{v}")
    rb1(v, v)
    E(f"v_sqrt_f32 v{v}, v{v}")
    rb1(v, v)
    E(f"v_rcp_f32 v{v}, v{v}")
    for p in range(4):
        a, b = XF+2*p, XF+2*p+1
        E(f"v_sub_f32 v{a}, v{a}, v{m}")
        E(f"v_sub_f32 v{b}, v{b}, v{m}")
        rb2(a, b, a, b, T3)
        E(f"v_mul_f32 v{a}, v{a}, v{v}")
        E(f"v_mul_f32 v{b}, v{b}, v{v}")
        rb2(a, b, a, b, T3)
    E(f"s_mov_b32 {sT4}, {WS_MODG}")
    E.label("L_pollmod")
    for i in range(4):
        E(f"buffer_load_dwordx4 v[{MG+4*i}:{MG+4*i+3}], v7, {rWS}, {sT4} offen offset:{(i//2)*2048 + (i%2)*16} sc1")
    E("s_waitcnt vmcnt(0)")
    tagcheck([MG+1+2*i for i in range(8)], T0)
    E("s_branch L_gotmod" if "m" in dbg else "s_cbranch_vccz L_gotmod")
    if slp: E(f"s_sleep {slp}")
    spin_check("L_pollmod")
    E.label("L_gotmod")
    stamp(2)
    for p in range(4):
        n0, n1 = XF+2*p, XF+2*p+1
        s0, s1, c0, c1, t = T0, T1, T2, T3, 16
        E(f"v_lshlrev_b32 v{c0}, 16, v{MG+8+2*p}")
        E(f"v_and_b32 v{c1}, 0xffff0000, v{MG+8+2*p}")
        E(f"v_lshlrev_b32 v{s0}, 16, v{MG+2*p}")
        E(f"v_and_b32 v{s1}, 0xffff0000, v{MG+2*p}")
        E(f"v_add_f32 v{c0}, 1.0, v{c0}")
        E(f"v_add_f32 v{c1}, 1.0, v{c1}")
        rb2(c0, c1, c0, c1, t)
        E(f"v_mul_f32 v{n0}, v{n0}, v{c0}")
        E(f"v_mul_f32 v{n1}, v{n1}, v{c1}")
        rb2(n0, n1, n0, n1, t)
        E(f"v_add_f32 v{n0}, v{n0}, v{s0}")
        E(f"v_add_f32 v{n1}, v{n1}, v{s1}")
        E(f"v_cvt_pk_bf16_f32 v{CR+p}, v{n0}, v{n1}")
    E.label("L_gemv")
    E(f"ds_write_b128 {vV}, v[{CR}:{CR+3}] offset:{L_ACT}")
    stamp("a1")
    E("s_waitcnt vmcnt(0)")
    E.label("L_wtwait")
    E(f"ds_read_b32 v16, v18 offset:4")
    E("s_waitcnt lgkmcnt(0)")
    E(f"v_readfirstlane_b32 {sT1}, v16")
    E(f"s_cmp_lg_u32 {sT1}, 7")
    E(f"s_cbranch_scc1 L_wtwait")
    stamp("a2")
    if stamps: E("s_waitcnt lgkmcnt(0)")
    def g_reads(st):
        b = S[4] + (st % 3)*20
        E(f"ds_read_b128 v[{b}:{b+3}], v6 offset:{L_ACT + st*64}")
        for nt in range(4):
            for q in range(2):
                r = b + 4 + nt*4 + q*2
                E(f"ds_read_b64_tr_b16 v[{r}:{r+1}], v{TRA+nt} offset:{st*4096 + q*512}")
    g_reads(0); g_reads(1)
    for st in range(16):
        E(f"s_waitcnt lgkmcnt({9 if st < 15 else 0})")
        if st + 2 < 16: g_reads(st+2)
        b = S[4] + (st % 3)*20
        for nt in range(4):
            d = AD + 4*nt
            c = "0" if st == 0 else f"v[{d}:{d+3}]"
            E(f"v_mfma_f32_16x16x32_bf16 v[{d}:{d+3}], v[{b}:{b+3}], v[{b+4+4*nt}:{b+7+4*nt}], {c}")
    E(f"v_mov_b32 v{T1}, {sTAG}")
    for nt in range(1, 4):
        E(f"v_mov_b32_dpp v{AD}, v{AD+4*nt} quad_perm:[0,1,2,3] row_mask:{1<<nt:#x} bank_mask:0xf")
    E(f"v_mov_b32_dpp v{AD+1}, v{AD} quad_perm:[1,1,3,3] {DPPM}")
    E(f"v_cvt_pk_bf16_f32 v{T0}, v{AD}, v{AD+1}")
    E(f"s_mov_b32 exec_lo, 0x55555555")
    E(f"s_mov_b32 exec_hi, 0x55555555")
    E(f"buffer_store_dwordx2 v[{T0}:{T1}], v4, {rWS}, {sPUB} offen sc1")
    E(f"s_mov_b64 exec, -1")
    stamp(3)
    if not prio: E("s_setprio 0")
    vm.clear()
    E(f"s_cmp_ge_u32 {sJ}, {J_WQ}")
    E(f"s_cbranch_scc1 L_sk{kpre}")
    for T in range(2): load_tile("k", T, T, depth0, f"K{T}")
    E("s_branch L_sk2")

    E.label("L_stream")
    vm.clear()
    load_tile("k", 0, 0, depth, "K0", hi=NPRE)
    E.label("L_stream2")
    load_tile("k", 0, 0, depth, "K0", lo=NPRE)
    for r in range(20, 24): E(f"v_mov_b32 v{r}, -1")
    E(f"s_cmp_lg_u32 {sW}, {99 if 'c' in dbg else 1}")
    E("s_cbranch_scc1 L_noclr1")
    E(f"v_lshrrev_b32 v18, 4, {vLANE}")
    E(f"v_lshlrev_b32 v18, 13, v18")
    E(f"v_and_b32 v19, 15, {vLANE}")
    E(f"v_lshl_add_u32 v18, v19, 4, v18")
    E(f"s_lshl_b32 {sT0}, {sG}, 15")
    E(f"s_lshl_b32 {sT1}, {sJ}, 8")
    E(f"s_add_u32 {sT0}, {sT0}, {sT1}")
    E(f"s_add_u32 {sT0}, {sT0}, {WS_PART}")
    E(f"buffer_store_dwordx4 v[20:23], v18, {rWS}, {sT0} offen sc1")
    E(f"s_sub_u32 {sT0}, {sJ}, {J_MLP}")
    E(f"s_cmp_ge_u32 {sT0}, {J_NONE-J_MLP}")
    E("s_cbranch_scc1 L_noclr1")
    for i in range(2):
        E(f"buffer_store_dwordx4 v[20:23], {vV}, {rWS}, {sPUB} offen offset:{1024*i} sc1")
    E.label("L_noclr1")
    if tailpos == 0: tail_dma()
    load_tile("k", 1, 1, depth, "K1")
    mktag()
    E(f"s_cmp_lg_u32 {sW}, 1")
    E("s_cbranch_scc1 L_noflag")
    E(f"s_lshl_b32 {sT0}, {sJ}, 2")
    E(f"s_add_u32 {sT0}, {sT0}, {sT2}")
    E(f"v_mov_b32 v18, {WS_CLR - WS_QG}")
    E(f"v_mov_b32 v19, {sTAG}")
    E("s_mov_b64 exec, 1")
    E("s_waitcnt vmcnt(8)")
    E(f"buffer_store_dword v19, v18, {rWS}, {sT0} offen sc1")
    E("s_mov_b64 exec, -1")
    E.label("L_noflag")
    if tailpos == 1: tail_dma()
    E.label("L_sk2")
    load_tile("k", 2, 2, depth, "K2")
    load_tile("k", 3, 3, depth, "K3")
    E.label("L_sk4")
    if tailpos == 2: tail_dma()
    load_tile("v", 0, 4, depth, "V0")
    load_tile("v", 1, 5, depth, "V1", mid=qpoll)
    load_tile("v", 2, 6, depth, "V2", hi=2)
    stamp("q0")
    vmwait("Q")
    E.label("L_checkq2")
    tagcheck([QP+1, QP+3, QP+5, QP+7, 4], 6)
    E("s_branch L_gotq" if "q" in dbg else "s_cbranch_vccz L_gotq")
    if slpq: E(f"s_sleep {slpq}")
    qpoll(False)
    E("s_waitcnt vmcnt(0)")
    spin_check("L_checkq2")
    E.label("L_gotq")
    stamp(4)
    for i in range(4): E(f"v_mov_b32 v{Q0+i}, v{QP+2*i}")
    def sc(T, i): return 20 + i if T == 0 else S[1] + 4*i + (T-1)
    SCR = [sc(T, i) for T in range(4) for i in range(8)]
    def s_tile(T):
        for i in range(8):
            r = S[T] + 4*i
            E(f"v_mfma_f32_16x16x32_bf16 v[{r}:{r+3}], v[{r}:{r+3}], v[{Q0}:{Q0+3}], 0")
        for c in range(4):
            for i in range(8):
                r = S[T] + 4*i; d = sc(T, i)
                if c == 0: E(f"v_mov_b32_dpp v{d}, v{r} quad_perm:[0,0,0,0] {DPPM}")
                else: E(f"v_add_f32_dpp v{d}, v{r+c}, v{d} quad_perm:[{c},{c},{c},{c}] {DPPM}")
    def s_round(T):
        rs = SCR[8*T:8*T+8]
        for i in range(0, 8, 2): rb2(rs[i], rs[i+1], rs[i], rs[i+1], T0 + i//2)
        for r in rs: E(f"v_mul_f32 v{r}, {sT1}, v{r}")
        for i in range(0, 8, 2): rb2(rs[i], rs[i+1], rs[i], rs[i+1], T0 + i//2)
    E(f"s_mov_b32 {sT1}, {f32bits(128.0**-0.5):#x}")
    nxt = [("v", 2, 6, i) for i in range(2, 8)] + [("v", 3, 0, i) for i in range(8)]
    def more(n, mid=None):
        for _ in range(n):
            if not nxt: return
            k, T, sl, i = nxt.pop(0)
            load_tile(k, T, sl, depth, f"V{T}", lo=i, hi=i+1, mid=mid)
    for T in range(4):
        s_tile(T); more(1)
        s_round(T); more(1 if T < 2 else 0)
    stamp("c0")
    MX, LS = 6, 7
    E(f"v_max3_f32 v{MX}, v{SCR[0]}, v{SCR[1]}, v{SCR[2]}")
    for i in range(3, 31, 2): E(f"v_max3_f32 v{MX}, v{MX}, v{SCR[i]}, v{SCR[i+1]}")
    E(f"v_max_f32 v{MX}, v{MX}, v{SCR[31]}")
    red_rows("v_max_f32", [MX], T0)
    E(f"v_mul_f32 v{MX}, {sC}, v{MX}")
    more(1)
    for r in SCR: E(f"v_fma_f32 v{r}, v{r}, {sC}, -v{MX}")
    more(1)
    for r in SCR: E(f"v_exp_f32 v{r}, v{r}")
    more(1)
    E(f"v_add_f32 v{LS}, v{SCR[0]}, v{SCR[1]}")
    E(f"v_add_f32 v{T0}, v{SCR[2]}, v{SCR[3]}")
    for i in range(4, 32, 2):
        E(f"v_add_f32 v{LS}, v{LS}, v{SCR[i]}")
        E(f"v_add_f32 v{T0}, v{T0}, v{SCR[i+1]}")
    E(f"v_add_f32 v{LS}, v{LS}, v{T0}")
    red_rows("v_add_f32", [LS], T0)
    E(f"v_and_b32 v{T0}, 12, {vLANE}")
    E(f"v_lshlrev_b32 v{T0}, 1, v{T0}")
    E(f"s_lshl_b32 {sT0}, {sW}, 5")
    E(f"v_add_u32 v{T0}, {sT0}, v{T0}")
    E(f"ds_write_b64 v{T0}, v[{MX}:{LS}] offset:{L_STATS}")
    E(f"v_mov_b32 v{T1}, {L_CNT}")
    E(f"v_mov_b32 v{T2}, 1")
    E("s_waitcnt lgkmcnt(0)")
    E("s_mov_b64 exec, 1")
    E(f"ds_add_rtn_u32 v{T2}, v{T1}, v{T2}")
    E("s_mov_b64 exec, -1")
    PR = [8, 12, 20, 24]
    for T in range(4):
        for i in range(4): E(f"v_cvt_pk_bf16_f32 v{PR[T]+i}, v{SCR[8*T+2*i]}, v{SCR[8*T+2*i+1]}")
    more(1)
    E("s_waitcnt lgkmcnt(0)")
    E(f"v_readfirstlane_b32 {sLAST}, v{T2}")
    X = S[1]
    E(f"s_cmp_lg_u32 {sLAST}, 7")
    E("s_cbranch_scc1 L_nostat")
    E(f"v_and_b32 v{T0}, 31, {vLANE}")
    E(f"v_lshlrev_b32 v{T1}, 3, v{T0}")
    E(f"ds_read_b64 v[6:7], v{T1} offset:{L_STATS}")
    E(f"v_and_b32 v{T1}, 3, v{T0}")
    E(f"v_and_b32 v{T0}, 28, v{T0}")
    E(f"v_lshl_add_u32 v{T0}, v{T1}, 5, v{T0}")
    E(f"v_lshlrev_b32 v{T1}, 9, v{T1}")
    E("s_waitcnt lgkmcnt(0)")
    E(f"v_mov_b32 v16, v6")
    red_ror("v_max_f32", [16], (4, 8))
    E(f"v_mov_b32 v17, v16")
    E(f"v_permlane16_swap_b32 v16, v17")
    E(f"v_max_f32 v16, v16, v17")
    E(f"v_sub_f32 v6, v6, v16")
    E(f"v_exp_f32 v6, v6")
    E(f"v_mul_f32 v18, v6, v7")
    E(f"ds_write_b32 v{T0}, v6 offset:{L_FAC}")
    red_ror("v_add_f32", [18], (4, 8))
    E(f"v_mov_b32 v17, v18")
    E(f"v_permlane16_swap_b32 v18, v17")
    E(f"v_add_f32 v18, v17, v18")
    E(f"v_mov_b32 v17, {sTAG}")
    E(f"v_mov_b32 v19, {sTAG}")
    E(f"s_lshl_b32 {sT0}, {sG}, 11")
    E(f"s_lshl_b32 {sT1}, {sJ}, 4")
    E(f"s_add_u32 {sT0}, {sT0}, {sT1}")
    E(f"s_add_u32 {sT0}, {sT0}, {WS_STAT}")
    E("s_mov_b64 exec, 15")
    E(f"buffer_store_dwordx4 v[16:19], v{T1}, {rWS}, {sT0} offen sc1")
    E("s_mov_b64 exec, -1")
    E.label("L_nostat")
    stamp("c1")
    vGQ, vN, vT2, vGAA, vCH, vU16, vOW, vT8, vL4, vGATH, vRR, vRW, vFR, vSTA, vWBW, vWBR = [X+i for i in range(16)]
    TRB = X+16; GA = X+20; SBG = X+22; GB = X+24; SP = X+24; CBG = X+28; XT = X+30
    E(f"v_lshrrev_b32 v{vGQ}, 4, {vLANE}")
    E(f"v_and_b32 v{vN}, 15, {vLANE}")
    E(f"s_sub_u32 {sT4}, {sJ}, {J_MLP}")
    E(f"s_cmp_ge_u32 {sT4}, {J_NONE-J_MLP}")
    E("s_cbranch_scc1 L_nomd")
    E(f"v_lshlrev_b32 v{vT2}, 1, v0")
    E(f"v_and_b32 v{vGAA}, 0x1fe, v0")
    E(f"v_lshlrev_b32 v{vGAA}, 2, v{vGAA}")
    E(f"s_mul_i32 {sU}, {sW}, 56")
    E(f"s_add_u32 {sU}, {sU}, {sM}")
    E(f"s_lshl_b32 {sU16}, {sU}, 4")
    E(f"s_and_b32 {sU16}, {sU16}, 0x7ff")
    E(f"v_mov_b32 v{vU16}, {sU16}")
    def modloads():
        E(f"s_mov_b32 {sT0}, {WS_MODG + 1024*4}")
        E(f"buffer_load_dwordx2 v[{GA}:{GA+1}], v{vGAA}, {rWS}, {sT0} offen sc1")
        E(f"buffer_load_dwordx2 v[{SBG}:{SBG+1}], v{vGAA}, {rWS}, {sT0} offen offset:2048 sc1")
        E(f"s_mov_b32 {sT0}, {WS_MODG + 2048*4}")
        E(f"buffer_load_dwordx2 v[{CBG}:{CBG+1}], v{vGAA}, {rWS}, {sT0} offen sc1")
        E(f"buffer_load_dwordx4 v[{GB}:{GB+3}], v{vU16}, {rWS}, {sT0} offen offset:2048 sc1")
    E(f"buffer_load_ushort v{XT}, v{vT2}, {rX}, 0 offen")
    modloads()
    E.label("L_nomd")
    assert len(nxt) == 4, len(nxt)
    ACCO = S[2]; TP = S[3]
    first = [True]
    def pv_perm(slot, mm):
        for dw in range(4):
            a = S[slot] + (2*mm)*4 + dw; b = S[slot] + (2*mm+1)*4 + dw
            E(f"v_perm_b32 v{TP + (2*dw)*4 + mm}, v{b}, v{a}, {sSELLO}")
            E(f"v_perm_b32 v{TP + (2*dw+1)*4 + mm}, v{b}, v{a}, {sSELHI}")
    def pv_mfma(T):
        for e in range(8):
            c = "0" if first[0] else f"v[{ACCO+4*e}:{ACCO+4*e+3}]"
            E(f"v_mfma_f32_16x16x32_bf16 v[{ACCO+4*e}:{ACCO+4*e+3}], v[{PR[T]}:{PR[T]+3}], v[{TP+4*e}:{TP+4*e+3}], {c}")
        first[0] = False
    def pv(slot, T):
        for mm in range(4): pv_perm(slot, mm)
        pv_mfma(T)
    more(1)
    vmwait("V0"); pv(4, 0)
    more(1)
    vmwait("V1"); pv(5, 1)
    more(2)
    stamp("c3")
    vmwait("V2"); pv(6, 2)
    WB = S[4]; SCF = S[5]; WT8 = S[5]; PK = S[5]+16; GBF = S[6]
    W1 = WB; W2 = WB+16
    E(f"s_lshl_b32 {sT0}, {sW}, 11")
    E(f"v_lshlrev_b32 v{vOW}, 5, {vLANE}")
    E(f"v_add_u32 v{vOW}, {sT0}, v{vOW}")
    E(f"v_lshlrev_b32 v{vT8}, 3, v0")
    E(f"v_lshlrev_b32 v{vL4}, 2, {vLANE}")
    E(f"s_lshl_b32 {sT1}, {sW}, 5")
    E(f"v_mov_b32 v{vFR}, {sT1}")
    E(f"s_lshl_b32 {sT0}, {sG}, 2")
    E(f"s_add_u32 {sPP}, {sT0}, {sW}")
    E(f"s_lshl_b32 {sPP}, {sPP}, 13")
    E(f"s_lshl_b32 {sT1}, {sJ}, 8")
    E(f"s_add_u32 {sPP}, {sPP}, {sT1}")
    E(f"s_add_u32 {sPP}, {sPP}, {WS_PART}")
    E("s_waitcnt vmcnt(4)")
    pv_perm(0, 0); pv_perm(0, 1)
    stamp("c7")
    E(f"s_cmp_lt_u32 {sT4}, {J_NONE-J_MLP}")
    E("s_cbranch_scc1 L_prepm")
    E(f"s_sub_u32 {sT1}, {sJ}, {J_WO}")
    E(f"s_cmp_ge_u32 {sT1}, {J_MLP-J_WO}")
    E("s_cbranch_scc1 L_prepd")
    E(f"s_lshr_b32 {sT1}, {sW}, 1")
    E(f"s_add_u32 {sGA0}, {sT0}, {sT1}")
    E(f"s_lshl_b32 {sT2}, {sGA0}, 9")
    E(f"s_add_u32 {sT2}, {sT2}, {WS_STAT}")
    E(f"s_lshl_b32 {sGA0}, {sGA0}, 13")
    E(f"s_and_b32 {sT1}, {sW}, 1")
    E(f"s_lshl_b32 {sT1}, {sT1}, 7")
    E(f"s_add_u32 {sGA0}, {sGA0}, {sT1}")
    E(f"s_add_u32 {sGA0}, {sGA0}, {WS_PART}")
    E(f"s_add_u32 {sGA1}, {sGA0}, 4096")
    E(f"v_and_b32 v{vSTA}, 31, {vLANE}")
    E(f"s_lshl_b32 {sT1}, {sW}, 7")
    E(f"v_lshl_add_u32 v{vWBW}, v{vSTA}, 2, {sT1}")
    E(f"v_lshl_add_u32 v{vWBR}, v{vGQ}, 4, {sT1}")
    E(f"v_lshlrev_b32 v{vSTA}, 4, v{vSTA}")
    E(f"v_lshlrev_b32 v{vGATH}, 8, v{vN}")
    E(f"v_lshl_add_u32 v{vGATH}, v{vGQ}, 4, v{vGATH}")
    wide_traddr(TRB, True)
    for nt in range(4):
        for tq in range(4):
            r = WB + nt*8 + tq*2
            E(f"ds_read_b64_tr_b16 v[{r}:{r+1}], v{TRB+nt} offset:{(tq>>1)*4096 + (tq&1)*512}")
    E(f"v_lshlrev_b32 v{vRR}, 5, {vLANE}")
    E(f"s_lshl_b32 {sT1}, {sW}, 2")
    E(f"v_add_u32 v{vRW}, {sT1}, v{vRR}")
    E("s_branch L_prepd")
    E.label("L_prepm")
    E(f"s_lshl_b32 {sT3}, {sW}, 13")
    E(f"s_add_u32 {sT3}, {sT3}, {L_WT}")
    E(f"v_bfe_u32 v{T0}, {vLANE}, 2, 2")
    E(f"v_and_b32 v{T1}, 3, {vLANE}")
    E(f"v_lshlrev_b32 v{T1}, 3, v{T1}")
    E(f"v_lshl_add_u32 v{T2}, v{T0}, 6, v{T1}")
    E(f"v_lshl_add_u32 v{T2}, v{vGQ}, 10, v{T2}")
    E(f"v_add_u32 v{T2}, {sT3}, v{T2}")
    E(f"v_lshl_add_u32 v{T0}, v{T0}, 7, v{T1}")
    E(f"v_lshl_add_u32 v{T0}, v{vGQ}, 5, v{T0}")
    E(f"v_add_u32 v{T0}, {sT3}, v{T0}")
    for nt in range(2):
        for q in range(4):
            r = W1 + nt*8 + q*2
            E(f"ds_read_b64_tr_b16 v[{r}:{r+1}], v{T2} offset:{q*256 + nt*32}")
    for q in range(8):
        E(f"ds_read_b64_tr_b16 v[{W2+2*q}:{W2+2*q+1}], v{T0} offset:{4096 + q*512}")
    E(f"v_lshlrev_b32 v{vRR}, 6, v{vN}")
    E(f"v_lshlrev_b32 v{vRW}, 5, v{vN}")
    E(f"s_lshl_b32 {sT1}, {sW}, 2")
    E(f"v_add_u32 v{vRW}, {sT1}, v{vRW}")
    E(f"s_lshl_b32 {sT0}, {sW}, 1")
    E(f"v_add_u32 v{vCH}, {sT0}, v{vN}")
    E(f"v_and_b32 v{vCH}, 15, v{vCH}")
    E(f"v_lshl_add_u32 v{vCH}, v{vGQ}, 4, v{vCH}")
    E(f"v_lshlrev_b32 v{vCH}, 5, v{vCH}")
    E.label("L_modchk")
    tagcheck([GA+1, GB+1, GB+3, SBG+1, CBG+1], 6)
    E("s_cbranch_vccz L_gotmd")
    modloads()
    E("s_waitcnt vmcnt(0)")
    spin_check("L_modchk")
    E.label("L_gotmd")
    E(f"v_and_b32 v6, 1, v0")
    E(f"v_cmp_eq_u32 vcc, 0, v6")
    for r, dst in ((GA, GA), (SBG, CBG+1), (CBG, CBG)):
        E(f"v_lshlrev_b32 v6, 16, v{r}")
        E(f"v_and_b32 v7, 0xffff0000, v{r}")
        E(f"v_cndmask_b32 v{dst}, v7, v6, vcc")
    E(f"v_lshlrev_b32 v{XT}, 16, v{XT}")
    E(f"v_add_f32 v{CBG}, 1.0, v{CBG}")
    rb1(CBG, CBG)
    E(f"ds_write_b64 v{vT8}, v[{CBG}:{CBG+1}] offset:{L_SC}")
    E(f"v_lshlrev_b32 v{GBF}, 16, v{GB}")
    E(f"v_and_b32 v{GBF+1}, 0xffff0000, v{GB}")
    E(f"v_lshlrev_b32 v{GBF+2}, 16, v{GB+2}")
    E(f"v_and_b32 v{GBF+3}, 0xffff0000, v{GB+2}")
    for g in range(8): E(f"s_mov_b32 s{84+g}, {WS_AO + 4096*g}")
    E(f"v_lshlrev_b32 v{vGATH}, 2, v0")
    E(f"v_mov_b32 v{vWBR}, 0")
    E.label("L_prepd")
    E("s_waitcnt vmcnt(2)")
    pv_perm(0, 2)
    E("s_waitcnt vmcnt(0)")
    stamp(5)
    pv_perm(0, 3)
    pv_mfma(3)
    for e in range(8): E(f"v_mov_b32 v{PK+e}, v{ACCO+4*e}")
    E(f"ds_write_b128 v{vOW}, v[{PK}:{PK+3}] offset:{L_ORED}")
    E(f"ds_write_b128 v{vOW}, v[{PK+4}:{PK+7}] offset:{L_ORED+16}")
    E("s_waitcnt lgkmcnt(0)")
    E("s_barrier")
    E(f"s_cmp_ge_u32 {sW}, 4")
    E("s_cbranch_scc1 L_nopart")
    R0 = S[2]; FC = S[2]+16
    E(f"ds_read_b128 v[{FC}:{FC+3}], v{vFR} offset:{L_FAC}")
    E(f"ds_read_b128 v[{FC+4}:{FC+7}], v{vFR} offset:{L_FAC+16}")
    for w in range(8): E(f"ds_read_b64 v[{R0+2*w}:{R0+2*w+1}], v{vT8} offset:{L_ORED + w*2048}")
    for w in range(8):
        if w % 2 == 0: E(f"s_waitcnt lgkmcnt({6-w})")
        a = PK + 2*(w % 2)
        op = "v_mul_f32" if w < 2 else "v_fmac_f32"
        E(f"{op} v{a}, v{R0+2*w}, v{FC+w}")
        E(f"{op} v{a+1}, v{R0+2*w+1}, v{FC+w}")
    E(f"v_pk_add_f32 v[{PK}:{PK+1}], v[{PK}:{PK+1}], v[{PK+2}:{PK+3}]")
    E(f"v_cvt_pk_bf16_f32 v{PK}, v{PK}, v{PK+1}")
    E(f"v_min_u32 v{PK}, -2, v{PK}")
    E(f"buffer_store_dword v{PK}, v{vL4}, {rWS}, {sPP} offen sc1")
    E.label("L_nopart")
    stamp(6)
    if "e" in dbg: E("s_branch L_fin")
    E(f"s_cmp_lt_u32 {sT4}, {J_NONE-J_MLP}")
    E("s_cbranch_scc1 L_stageb")
    E(f"s_sub_u32 {sT1}, {sJ}, {J_WO}")
    E(f"s_cmp_ge_u32 {sT1}, {J_MLP-J_WO}")
    E("s_cbranch_scc1 L_fin")
    GA_ = S[3]
    def a_loads(half):
        so = sGA0 if half == 0 else sGA1
        E(f"buffer_load_dwordx4 v[{GA_+8*half}:{GA_+8*half+3}], v{vGATH}, {rWS}, {so} offen sc1")
        E(f"buffer_load_dwordx4 v[{GA_+8*half+4}:{GA_+8*half+7}], v{vGATH}, {rWS}, {so} offen offset:64 sc1")
    E(f"buffer_load_dwordx4 v[{SP}:{SP+3}], v{vSTA}, {rWS}, {sT2} offen sc1")
    a_loads(0); a_loads(1)
    E("s_waitcnt vmcnt(4)")
    E.label("L_statchk")
    tagcheck([SP+1, SP+3], 6)
    E("s_cbranch_vccz L_gotstat")
    if slp: E(f"s_sleep {slp}")
    E(f"buffer_load_dwordx4 v[{SP}:{SP+3}], v{vSTA}, {rWS}, {sT2} offen sc1")
    E("s_waitcnt vmcnt(0)")
    spin_check("L_statchk")
    E.label("L_gotstat")
    E(f"v_mov_b32 v{T0}, v{SP}")
    red_ror("v_max_f32", [T0], (1, 2, 4, 8))
    E(f"v_mov_b32 v{T1}, v{T0}")
    E(f"v_permlane16_swap_b32 v{T0}, v{T1}")
    E(f"v_max_f32 v{T0}, v{T0}, v{T1}")
    E(f"v_sub_f32 v{SP}, v{SP}, v{T0}")
    E(f"v_exp_f32 v{SP}, v{SP}")
    E(f"v_mul_f32 v{T0}, v{SP}, v{SP+2}")
    red_ror("v_add_f32", [T0], (1, 2, 4, 8))
    E(f"v_mov_b32 v{T1}, v{T0}")
    E(f"v_permlane16_swap_b32 v{T0}, v{T1}")
    E(f"v_add_f32 v{T0}, v{T0}, v{T1}")
    E(f"v_rcp_f32 v{T0}, v{T0}")
    E(f"v_mul_f32 v{T0}, v{T0}, v{SP}")
    E(f"ds_write_b32 v{vWBW}, v{T0} offset:{L_WB}")
    E("s_waitcnt lgkmcnt(0)")
    E(f"ds_read_b128 v[{WT8}:{WT8+3}], v{vWBR} offset:{L_WB}")
    E(f"ds_read_b128 v[{WT8+4}:{WT8+7}], v{vWBR} offset:{L_WB+64}")
    E.label("L_polla")
    E("s_waitcnt vmcnt(0)")
    for half in range(2):
        b = GA_ + 8*half; t = T0 + half
        E(f"v_max3_u32 v{t}, v{b}, v{b+1}, v{b+2}")
        E(f"v_max3_u32 v{t}, v{t}, v{b+3}, v{b+4}")
        E(f"v_max3_u32 v{t}, v{t}, v{b+5}, v{b+6}")
        E(f"v_max_u32 v{t}, v{t}, v{b+7}")
    E(f"v_max_u32 v6, v{T0}, v{T1}")
    E(f"v_cmp_eq_u32 vcc, -1, v6")
    E("s_cbranch_vccz L_gota")
    if slp: E(f"s_sleep {slp}")
    for half in range(2):
        E(f"v_cmp_eq_u32 vcc, -1, v{T0+half}")
        E(f"s_mov_b64 exec, vcc")
        a_loads(half)
        E("s_mov_b64 exec, -1")
    spin_check("L_polla")
    E.label("L_gota")
    stamp(7)
    D = S[2]
    for half in range(2):
        for tp in range(2):
            for nt in range(4):
                d = D + half*16 + 4*nt
                c = "0" if tp == 0 else f"v[{d}:{d+3}]"
                b = WB + nt*8 + tp*4; a = GA_ + half*8 + tp*4
                E(f"v_mfma_f32_16x16x32_bf16 v[{d}:{d+3}], v[{a}:{a+3}], v[{b}:{b+3}], {c}")
    E("s_waitcnt lgkmcnt(0)")
    for nt in range(4): E(f"v_pk_mul_f32 v[{D+4*nt}:{D+4*nt+1}], v[{D+4*nt}:{D+4*nt+1}], v[{WT8}:{WT8+1}]")
    for nt in range(4): E(f"v_pk_fma_f32 v[{D+4*nt}:{D+4*nt+1}], v[{D+4*nt+2}:{D+4*nt+3}], v[{WT8+2}:{WT8+3}], v[{D+4*nt}:{D+4*nt+1}]")
    for nt in range(4): E(f"v_pk_fma_f32 v[{D+4*nt}:{D+4*nt+1}], v[{D+16+4*nt}:{D+16+4*nt+1}], v[{WT8+4}:{WT8+5}], v[{D+4*nt}:{D+4*nt+1}]")
    for nt in range(4): E(f"v_pk_fma_f32 v[{D+4*nt}:{D+4*nt+1}], v[{D+16+4*nt+2}:{D+16+4*nt+3}], v[{WT8+6}:{WT8+7}], v[{D+4*nt}:{D+4*nt+1}]")
    for nt in range(4): E(f"v_add_f32 v{D+4*nt}, v{D+4*nt}, v{D+4*nt+1}")
    a0, a1, a2, a3 = D, D+4, D+8, D+12
    E(f"v_permlane16_swap_b32 v{a0}, v{a1}")
    E(f"v_permlane16_swap_b32 v{a2}, v{a3}")
    E(f"v_add_f32 v{a0}, v{a0}, v{a1}")
    E(f"v_add_f32 v{a2}, v{a2}, v{a3}")
    E(f"v_permlane32_swap_b32 v{a0}, v{a2}")
    E(f"v_add_f32 v{a0}, v{a0}, v{a2}")
    E(f"ds_write_b32 v{vRW}, v{a0} offset:{L_RED}")
    E("s_waitcnt lgkmcnt(0)")
    E("s_barrier")
    E(f"s_cmp_lg_u32 {sW}, 0")
    E("s_cbranch_scc1 L_fin")
    D = PK
    E(f"ds_read_b128 v[{D}:{D+3}], v{vRR} offset:{L_RED}")
    E(f"ds_read_b128 v[{D+4}:{D+7}], v{vRR} offset:{L_RED+16}")
    E("s_waitcnt lgkmcnt(0)")
    E(f"v_pk_add_f32 v[{D}:{D+1}], v[{D}:{D+1}], v[{D+4}:{D+5}]")
    E(f"v_pk_add_f32 v[{D+2}:{D+3}], v[{D+2}:{D+3}], v[{D+6}:{D+7}]")
    E(f"v_pk_add_f32 v[{D}:{D+1}], v[{D}:{D+1}], v[{D+2}:{D+3}]")
    E(f"v_add_f32 v{D}, v{D}, v{D+1}")
    E(f"v_mov_b32 v{D+1}, {sTAG}")
    E(f"buffer_store_dwordx2 v[{D}:{D+1}], v{vT8}, {rWS}, {sPUB} offen sc1")
    stamp(8)
    E("s_branch L_fin")
    E.label("L_stageb")
    GBR = S[3]
    def b_load(g): E(f"buffer_load_dwordx2 v[{GBR+2*g}:{GBR+2*g+1}], v{vT8}, {rWS}, s{84+g} offen sc1")
    for g in range(8): b_load(g)
    E(f"v_lshlrev_b32 v{T0}, 1, v{vCH}")
    for i in range(4): E(f"ds_read_b128 v[{SCF+4*i}:{SCF+4*i+3}], v{T0} offset:{L_SC+16*i}")
    E.label("L_pollb")
    E("s_waitcnt vmcnt(0)")
    tagcheck([GBR+2*g+1 for g in range(8)], 6)
    E("s_cbranch_vccz L_gotb")
    if slpb: E(f"s_sleep {slpb}")
    for g in range(8):
        E(f"v_cmp_ne_u32 vcc, {sTAG}, v{GBR+2*g+1}")
        E(f"s_mov_b64 exec, vcc")
        b_load(g)
        E(f"s_mov_b64 exec, -1")
    spin_check("L_pollb")
    E.label("L_gotb")
    stamp(9)
    E(f"v_add_f32 v{GBR}, v{GBR}, v{GBR+2}")
    E(f"v_add_f32 v{GBR+4}, v{GBR+4}, v{GBR+6}")
    E(f"v_add_f32 v{GBR+8}, v{GBR+8}, v{GBR+10}")
    E(f"v_add_f32 v{GBR+12}, v{GBR+12}, v{GBR+14}")
    E(f"v_add_f32 v{GBR}, v{GBR}, v{GBR+4}")
    E(f"v_add_f32 v{GBR+8}, v{GBR+8}, v{GBR+12}")
    E(f"v_add_f32 v{GBR}, v{GBR}, v{GBR+8}")
    rb1(GBR, GBR)
    E(f"v_mul_f32 v{GBR}, v{GBR}, v{GA}")
    rb1(GBR, GBR)
    E(f"v_add_f32 v{GBR}, v{GBR}, v{XT}")
    rb1(GBR, GBR)
    E(f"ds_write_b32 v{vGATH}, v{GBR} offset:{L_X2}")
    E("s_waitcnt lgkmcnt(0)")
    E("s_barrier")
    stamp("b1")
    X2 = S[2]; X2F = S[2]+8; KS = S[2]+12
    E(f"ds_read_b32 v{KS}, v{vWBR} offset:{L_X2}")
    E(f"ds_read_b128 v[{X2}:{X2+3}], v{vCH} offset:{L_X2}")
    E(f"ds_read_b128 v[{X2+4}:{X2+7}], v{vCH} offset:{L_X2+16}")
    E(f"ds_read_b128 v[{X2F}:{X2F+3}], v{vU16} offset:{L_X2}")
    E("s_waitcnt lgkmcnt(0)" if (stamps and "b1" in stamps) else "s_waitcnt lgkmcnt(1)")
    DD = S[2]+16
    for i in range(8): E(f"v_sub_f32 v{DD+i}, v{X2+i}, v{KS}")
    s1, s2, s3 = 16, 18, T0
    E(f"v_pk_add_f32 v[{s1}:{s1+1}], v[{DD}:{DD+1}], v[{DD+2}:{DD+3}]")
    E(f"v_pk_mul_f32 v[{s2}:{s2+1}], v[{DD}:{DD+1}], v[{DD}:{DD+1}]")
    E(f"v_pk_add_f32 v[{s3}:{s3+1}], v[{DD+4}:{DD+5}], v[{DD+6}:{DD+7}]")
    E(f"v_pk_fma_f32 v[{s2}:{s2+1}], v[{DD+2}:{DD+3}], v[{DD+2}:{DD+3}], v[{s2}:{s2+1}]")
    E(f"v_pk_add_f32 v[{s1}:{s1+1}], v[{s1}:{s1+1}], v[{s3}:{s3+1}]")
    E(f"v_pk_fma_f32 v[{s2}:{s2+1}], v[{DD+4}:{DD+5}], v[{DD+4}:{DD+5}], v[{s2}:{s2+1}]")
    E(f"v_add_f32 v{s1}, v{s1}, v{s1+1}")
    E(f"v_pk_fma_f32 v[{s2}:{s2+1}], v[{DD+6}:{DD+7}], v[{DD+6}:{DD+7}], v[{s2}:{s2+1}]")
    E(f"v_add_f32 v{s2}, v{s2}, v{s2+1}")
    red_ror("v_add_f32", [s1, s2], (1, 2, 4, 8))
    red_rows("v_add_f32", [s1, s2], s3)
    E(f"v_mul_f32 v{s1}, {f32bits(1.0/512):#x}, v{s1}")
    E(f"v_mul_f32 v{s2}, {f32bits(1.0/512):#x}, v{s2}")
    E(f"v_fma_f32 v{s2}, -v{s1}, v{s1}, v{s2}")
    E(f"v_add_f32 v{s1}, v{s1}, v{KS}")
    E(f"v_max_f32 v{s2}, 0, v{s2}")
    rb2(s1, s2, s1, s2, s3)
    E(f"v_add_f32 v{s2}, {f32bits(1e-5):#x}, v{s2}")
    for i in range(0, 4): E(f"v_sub_f32 v{X2+i}, v{X2+i}, v{s1}")
    rb1(s2, s2)
    E(f"v_sqrt_f32 v{s2}, v{s2}")
    for i in range(4, 8): E(f"v_sub_f32 v{X2+i}, v{X2+i}, v{s1}")
    for i in range(0, 4): E(f"v_mul_f32 v{X2+i}, v{X2+i}, v{SCF+2*i}")
    rb1(s2, s2)
    E(f"v_rcp_f32 v{s2}, v{s2}")
    for i in range(4, 8): E(f"v_mul_f32 v{X2+i}, v{X2+i}, v{SCF+2*i}")
    for i in range(8): E(f"v_fma_f32 v{X2+i}, v{X2+i}, v{s2}, v{SCF+2*i+1}")
    H2 = PK
    for p in range(4): E(f"v_cvt_pk_bf16_f32 v{H2+p}, v{X2+2*p}, v{X2+2*p+1}")
    DM = S[2]+16
    for nt in range(2):
        for s_ in range(2):
            d = DM + (nt*2+s_)*4; b = W1 + nt*8 + s_*4
            E(f"v_mfma_f32_16x16x32_bf16 v[{d}:{d+3}], v[{H2}:{H2+3}], v[{b}:{b+3}], 0")
    E("s_mov_b64 exec, 0xffff")
    E(f"v_add_f32 v{DM}, v{DM}, v{DM+5}")
    E(f"v_add_f32 v{DM+8}, v{DM+8}, v{DM+13}")
    E(f"ds_write2st64_b32 v{vRW}, v{DM}, v{DM+8} offset0:{L_RED//256} offset1:{L_RED//256+2}")
    E("s_mov_b64 exec, -1")
    E("s_waitcnt lgkmcnt(0)")
    E("s_barrier")
    stamp("b2")
    D = S[3]
    for i in range(4): E(f"ds_read_b128 v[{D+4*i}:{D+4*i+3}], v{vRR} offset:{L_RED+16*i}")
    E(f"v_mov_b32 v{T0}, 0")
    E(f"v_mov_b32 v{T1}, 0")
    E("s_waitcnt lgkmcnt(0)")
    for h in range(2):
        b = D + 8*h
        E(f"v_pk_add_f32 v[{b}:{b+1}], v[{b}:{b+1}], v[{b+4}:{b+5}]")
        E(f"v_pk_add_f32 v[{b+2}:{b+3}], v[{b+2}:{b+3}], v[{b+6}:{b+7}]")
    for h in range(2):
        b = D + 8*h
        E(f"v_pk_add_f32 v[{b}:{b+1}], v[{b}:{b+1}], v[{b+2}:{b+3}]")
    for h in range(2):
        b = D + 8*h
        E(f"v_add_f32 v{b}, v{b}, v{b+1}")
    E(f"v_max_f32 v{D}, 0, v{D}")
    E(f"v_max_f32 v{D+8}, 0, v{D+8}")
    E(f"v_cvt_pk_bf16_f32 v{D}, v{D}, v{D+8}")
    for k in range(16):
        E(f"v_dot2c_f32_bf16_dpp v{T0+(k&1)}, v{D}, v{W2+k} row_newbcast:{k} {DPPM}")
    E(f"v_add_f32 v{T0}, v{T0}, v{T1}")
    E(f"v_min_u32 v{T0}, -2, v{T0}")
    E(f"buffer_store_dword v{T0}, v{vGATH}, {rWS}, {sPUB} offen sc1")
    stamp(10)
    E(f"s_cmp_ge_u32 {sU}, 128")
    E("s_cbranch_scc1 L_fin")
    C0 = S[3]+16
    E(f"v_lshlrev_b32 v{vSTA}, 11, {vLANE}")
    E(f"s_add_u32 {sT2}, {sU16}, {WS_MO}")
    for i in range(4): E(f"v_mov_b32 v{C0+i}, 0")
    E(f"s_mov_b32 exec_hi, 0xffffff")
    E(f"buffer_load_dwordx4 v[{C0}:{C0+3}], v{vSTA}, {rWS}, {sT2} offen sc1")
    E(f"s_mov_b64 exec, -1")
    E(f"s_lshl_b32 {sT0}, {sU}, 3")
    E(f"v_mov_b32 v6, 0")
    E(f"v_mov_b32 v7, {sTAG}")
    E.label("L_pollc")
    E("s_waitcnt vmcnt(0)")
    E(f"v_max3_u32 v{T2}, v{C0}, v{C0+1}, v{C0+2}")
    E(f"v_max_u32 v{T2}, v{T2}, v{C0+3}")
    E(f"v_cmp_eq_u32 vcc, -1, v{T2}")
    E("s_cbranch_vccz L_gotc")
    E(f"s_mov_b64 exec, vcc")
    E(f"buffer_load_dwordx4 v[{C0}:{C0+3}], v{vSTA}, {rWS}, {sT2} offen sc1")
    E("s_mov_b64 exec, -1")
    spin_check("L_pollc")
    E.label("L_gotc")
    stamp(11)
    cs = [C0+i for i in range(4)]
    red_ror("v_add_f32", cs, (1, 2, 4, 8))
    red_rows("v_add_f32", cs, C0+4)
    rb2(C0, C0+1, C0, C0+1, T2); rb2(C0+2, C0+3, C0+2, C0+3, T3)
    for i in range(4): E(f"v_mul_f32 v{C0+i}, v{C0+i}, v{GBF+i}")
    rb2(C0, C0+1, C0, C0+1, T2); rb2(C0+2, C0+3, C0+2, C0+3, T3)
    for i in range(4): E(f"v_add_f32 v{C0+i}, v{C0+i}, v{X2F+i}")
    E(f"v_cvt_pk_bf16_f32 v{C0}, v{C0}, v{C0+1}")
    E(f"v_cvt_pk_bf16_f32 v{C0+1}, v{C0+2}, v{C0+3}")
    E("s_mov_b64 exec, 1")
    E(f"buffer_store_dwordx2 v[{C0}:{C0+1}], v6, {rOUT}, {sT0} offen")
    E(f"s_cmp_lg_u32 {sU}, 0")
    E("s_cbranch_scc1 L_fin")
    E(f"buffer_store_dword v7, v6, {rWS}, 0 offen sc1")
    E.label("L_fin")
    if stamps:
        stamp(12)
        E(f"s_cmp_lg_u32 {sW}, {swave}")
        E("s_cbranch_scc1 L_end")
        E("s_mov_b64 exec, 1")
        E("s_waitcnt lgkmcnt(0)")
        E(f"s_lshl_b32 {sT0}, s2, 7")
        E(f"s_add_u32 {sT0}, {sT0}, {WS_STAMP}")
        E("v_mov_b32 v6, 0")
        for i in range(13):
            E(f"v_mov_b32 v8, s{52+2*i}")
            E(f"v_mov_b32 v9, s{53+2*i}")
            E(f"buffer_store_dwordx2 v[8:9], v6, {rWS}, {sT0} offen offset:{8*i}")
            E("s_nop 1")
    E.label("L_end")
    E("s_endpgm")
    E.raw(f'.section .rodata,"a"\n.p2align 6\n.amdhsa_kernel {KN}')
    E.raw("  .amdhsa_next_free_vgpr 256\n  .amdhsa_next_free_sgpr 102\n  .amdhsa_accum_offset 256\n  .amdhsa_group_segment_fixed_size 0\n  .amdhsa_kernarg_size 104\n  .amdhsa_user_sgpr_count 2\n  .amdhsa_user_sgpr_kernarg_segment_ptr 1\n  .amdhsa_system_sgpr_workgroup_id_x 1\n  .amdhsa_float_denorm_mode_32 3\n.end_amdhsa_kernel")
    return E.text()

if __name__ == "__main__":
    import argparse, inspect
    ap = argparse.ArgumentParser()
    ap.add_argument("out")
    for n, p in inspect.signature(gen).parameters.items():
        if n == "stamps": ap.add_argument("--stamps", default="")
        else: ap.add_argument("--"+n, type=type(p.default), default=p.default)
    a = vars(ap.parse_args())
    out = a.pop("out")
    a["stamps"] = a["stamps"].split(",") if a["stamps"] else None
    open(out, "w").write(gen(**a))
```

```python
import sys, math, struct
from emit import Emit
KN = "adaLN_cond__gqa_block_cached__dense_activation_relu__decode_kernel"

WS_EPOCH = 0x0
WS_MODG  = 0x1000
WS_QG    = 0x8000
WS_CLR   = 0xC000
WS_STAT  = 0x10000
WS_PART  = 0x20000
WS_AO    = 0x80000
WS_MO    = 0x90000
WS_STAMP = 0x8000000
L_STATS = 0
L_CNT   = 256
L_FAC   = 384
L_WB    = 512
L_X2    = 2048
L_RED   = 4096
L_ACT   = 6144
L_ORED  = 8192
L_SC    = 24576
L_WT    = 28672
LDS_BYTES = L_WT + 65536
J_WQ, J_WO, J_MLP, J_NONE = 6, 14, 22, 29

DPPM = "row_mask:0xf bank_mask:0xf"
def f32bits(x): return struct.unpack("<I", struct.pack("<f", x))[0]

def gen(depth=6, depth0=12, kvflags="nt", wflags="nt", stamps=None, swave=0, tailpos=1, slp=2, slpq=16, slpb=2, codepf=2, dbg="",
        kpre=4, prio=1, dstamp=0):
    E = Emit()
    sW, sG, sJ, sTAG, sSPIN = "s3", "s4", "s5", "s6", "s7"
    rK, rV, rWS, rWT, rW2, rX, rC, rOUT = [f"s[{i}:{i+3}]" for i in range(8, 40, 4)]
    sSELLO, sSELHI, sC, sBASE, sM, sT0, sT1, sT2 = "s78", "s79", "s80", "s81", "s82", "s83", "s100", "s101"
    sWOFF, sWSTR, sPUB, sLAST, sU, sU16, sT3, sT4, sEP = "s40", "s41", "s42", "s95", "s98", "s99", "s96", "s97", "s93"
    sPP, sGA0, sGA1, sLD = "s43", "s44", "s45", "s46"
    vLANE, vK, vV = "v1", "v2", "v3"
    QP = 8; Q0 = 16
    T0, T1, T2, T3 = 28, 29, 30, 31
    S = [32 + 32*i for i in range(7)]
    def stamp(i):
        if stamps and str(i) in stamps:
            k = stamps.index(str(i))
            E(f"s_memrealtime s[{52+2*k}:{53+2*k}]")
    vm = []
    def vmop(tag, text):
        E(text); vm.append(tag)
    def vmwait(tag):
        idx = [i for i, t in enumerate(vm) if t == tag][-1]
        E(f"s_waitcnt vmcnt({min(len(vm) - 1 - idx, 62)})")
    def spin_check(lbl_loop):
        E(f"s_sub_u32 {sSPIN}, {sSPIN}, 1")
        E(f"s_cbranch_scc0 {lbl_loop}")
        E(f"s_branch L_end")
    def load_tile(kind, T, slot, dep, tag, mid=None, lo=0, hi=8, setp=True):
        srd = rK if kind == "k" else rV
        va = vK if kind == "k" else vV
        if prio and setp and lo == 0 and T % 2 == 0: E(f"s_setprio {(3 if kind == 'k' else 1) - T//2}")
        for i in range(lo, hi):
            if i == 4 and mid: mid()
            if i == 0 or i == 4: E(f"s_add_u32 {sLD}, {sBASE}, {T*0x200000 + (i//4)*4096}")
            if dep and len(vm) >= dep: E(f"s_waitcnt vmcnt({dep-1})")
            r = S[slot] + i*4
            vmop(tag, f"buffer_load_dwordx4 v[{r}:{r+3}], {va}, {srd}, {sLD} offen offset:{(i%4)*1024} {kvflags}")
    def red_rows(op, regs, tmp):
        for sw in ("v_permlane16_swap_b32", "v_permlane32_swap_b32"):
            for i, r in enumerate(regs): E(f"v_mov_b32 v{tmp+i}, v{r}")
            for i, r in enumerate(regs): E(f"{sw} v{r}, v{tmp+i}")
            for i, r in enumerate(regs): E(f"{op} v{r}, v{r}, v{tmp+i}")
    def red_ror(op, regs, rors):
        for k in rors:
            for r in regs: E(f"{op}_dpp v{r}, v{r}, v{r} row_ror:{k} {DPPM}")
    def rb1(dst, src):
        E(f"v_cvt_pk_bf16_f32 v{dst}, v{src}, v{src}")
        E(f"v_lshlrev_b32 v{dst}, 16, v{dst}")
    def rb2(d0, d1, s0, s1, t):
        E(f"v_cvt_pk_bf16_f32 v{t}, v{s0}, v{s1}")
        E(f"v_lshlrev_b32 v{d0}, 16, v{t}")
        E(f"v_and_b32 v{d1}, 0xffff0000, v{t}")
    def tagcheck(regs, t):
        regs = [f"v{r}" for r in regs] + [sTAG]
        if len(regs) % 2 == 0: regs.insert(0, regs[0])
        E(f"v_max3_u32 v{t}, {regs[0]}, {regs[1]}, {regs[2]}")
        E(f"v_min3_u32 v{t+1}, {regs[0]}, {regs[1]}, {regs[2]}")
        for i in range(3, len(regs), 2):
            E(f"v_max3_u32 v{t}, v{t}, {regs[i]}, {regs[i+1]}")
            E(f"v_min3_u32 v{t+1}, v{t+1}, {regs[i]}, {regs[i+1]}")
        E(f"v_cmp_ne_u32 vcc, v{t}, v{t+1}")
    def mktag():
        E("s_waitcnt lgkmcnt(0)")
        E(f"s_mul_i32 {sTAG}, {sEP}, 0x9E3779B1")
        E(f"s_add_u32 {sTAG}, {sTAG}, 0x7F4A7C15")
    def wide_dma():
        E(f"v_lshrrev_b32 v{T0}, 3, {vLANE}")
        E(f"v_and_b32 v{T1}, 2, v{T0}")
        E(f"v_and_b32 v{T2}, 7, {vLANE}")
        E(f"v_xor_b32 v{T2}, v{T2}, v{T1}")
        E(f"v_mul_lo_u32 v{T0}, v{T0}, {sWSTR}")
        E(f"v_lshl_add_u32 v{T2}, v{T2}, 4, v{T0}")
        E(f"v_xor_b32 v{T3}, 64, v{T2}")
        E(f"s_lshl_b32 {sT1}, {sWSTR}, 3")
        E(f"s_mul_i32 {sT0}, {sT1}, {sW}")
        E(f"s_lshl_b32 {sT0}, {sT0}, 3")
        E(f"s_add_u32 {sT0}, {sT0}, {sWOFF}")
        E(f"s_lshl_b32 {sT3}, {sW}, 13")
        E(f"s_add_u32 m0, {sT3}, {L_WT}")
        for i in range(8):
            E(f"buffer_load_dwordx4 v{T2 + i%2}, {rWT}, {sT0} offen {wflags} lds")
            if i < 7:
                E(f"s_add_u32 {sT0}, {sT0}, {sT1}")
                E(f"s_add_u32 m0, m0, 1024")
    def wide_traddr(dst, wavebase):
        E(f"v_lshrrev_b32 v{T0}, 4, {vLANE}")
        E(f"v_bfe_u32 v{T1}, {vLANE}, 2, 2")
        E(f"v_lshl_add_u32 v{T2}, v{T0}, 3, v{T1}")
        E(f"v_lshlrev_b32 v{T2}, 7, v{T2}")
        E(f"v_and_b32 v{T3}, 3, {vLANE}")
        E(f"v_lshl_add_u32 v{T2}, v{T3}, 3, v{T2}")
        E(f"v_lshrrev_b32 v{T1}, 1, v{T1}")
        E(f"v_and_b32 v{T0}, 1, v{T0}")
        E(f"v_lshl_add_u32 v{T1}, v{T0}, 1, v{T1}")
        E(f"v_lshl_add_u32 v{T2}, v{T1}, 5, v{T2}")
        if wavebase:
            E(f"s_lshl_b32 {sT3}, {sW}, 13")
            E(f"s_add_u32 {sT3}, {sT3}, {L_WT}")
            E(f"v_add_u32 v{dst}, {sT3}, v{T2}")
        else:
            E(f"v_add_u32 v{dst}, {L_WT}, v{T2}")
        for nt in range(1, 4): E(f"v_xor_b32 v{dst+nt}, {nt*32}, v{dst}")

    hdr = []
    hdr.append(f"; @launch grid=(256,1,1) block=(512,1,1) lds={LDS_BYTES}")
    hdr.append('.amdgcn_target "amdgcn-amd-amdhsa--gfx950"\n.text')
    hdr.append(f".globl {KN}\n.p2align 8\n.type {KN},@function\n{KN}:")
    E.raw("\n".join(hdr))
    E("s_cmp_ge_u32 s2, 256")
    E("s_cbranch_scc1 L_end")
    if dstamp: E("s_memrealtime s[48:49]")
    E("s_load_dwordx16 s[52:67], s[0:1], 0")
    E("s_load_dwordx8 s[68:75], s[0:1], 64")
    E("s_load_dwordx2 s[76:77], s[0:1], 96")
    E(f"v_lshrrev_b32 v4, 6, v0")
    E(f"v_and_b32 {vLANE}, 63, v0")
    E(f"v_readfirstlane_b32 {sW}, v4")
    E(f"s_and_b32 {sG}, s2, 7")
    E(f"s_lshr_b32 {sJ}, s2, 3")
    if codepf:
        E(f"s_cmp_lt_u32 {sJ}, {32-codepf}")
        E("s_cbranch_scc1 L_nopf")
        E("s_getpc_b64 s[84:85]")
        E.raw("L_pc:")
        E(f"v_lshlrev_b32 v6, 4, v0")
        E(f"v_mov_b32 v9, s85")
        E(f"v_add_co_u32 v8, vcc, s84, v6")
        E(f"v_addc_co_u32 v9, vcc, 0, v9, vcc")
        for i in range(3):
            E(f"v_cmp_gt_i32 vcc, L_end-L_pc-{8192*i}-16, v6")
            E(f"s_and_b64 exec, exec, vcc")
            E(f"s_cbranch_execz L_pfdone")
            E(f"global_load_dwordx4 v[12:15], v[8:9], off")
            if i < 2:
                E(f"v_add_co_u32 v8, vcc, 0x2000, v8")
                E(f"v_addc_co_u32 v9, vcc, 0, v9, vcc")
        E.label("L_pfdone")
        E("s_mov_b64 exec, -1")
        E.label("L_nopf")
    E(f"v_lshlrev_b32 {vV}, 4, {vLANE}")
    E(f"v_and_b32 v4, 12, {vLANE}")
    E(f"v_lshlrev_b32 {vK}, 6, v4")
    E(f"v_lshrrev_b32 v4, 4, {vLANE}")
    E(f"v_lshl_add_u32 {vK}, v4, 6, {vK}")
    E(f"v_and_b32 v4, 3, {vLANE}")
    E(f"v_lshl_add_u32 {vK}, v4, 4, {vK}")
    E(f"v_lshlrev_b32 v5, 1, {vK}")
    E(f"s_lshl_b32 {sBASE}, {sG}, 23")
    E(f"s_lshl_b32 {sT0}, {sJ}, 3")
    E(f"s_add_u32 {sT0}, {sT0}, {sW}")
    E(f"s_lshl_b32 {sT0}, {sT0}, 13")
    E(f"s_add_u32 {sBASE}, {sBASE}, {sT0}")
    E(f"s_mov_b32 {sSELLO}, 0x05040100")
    E(f"s_mov_b32 {sSELHI}, 0x07060302")
    E(f"s_mov_b32 {sC}, {f32bits(math.log2(math.e)):#x}")
    E(f"s_mov_b32 {sSPIN}, 0x40000")
    for d, z in ((8, 0x4000000), (12, 0x4000000), (16, 0x10000000), (24, 512*1792*2), (28, 1024), (32, 1024), (36, 1024)):
        E(f"s_mov_b32 s{d+2}, {z:#x}")
    for d in range(8, 40, 4): E(f"s_mov_b32 s{d+3}, 0x20000")
    E(f"v_mov_b32 v18, {L_CNT}")
    E(f"v_mov_b32 v20, 0")
    E(f"v_mov_b32 v21, 0")
    E(f"ds_write_b64 v18, v[20:21]")
    E(f"s_mul_i32 {sM}, {sG}, 7")
    E(f"s_add_u32 {sM}, {sM}, {sJ}")
    E(f"s_sub_u32 {sM}, {sM}, {J_MLP}")
    E("s_waitcnt lgkmcnt(0)")
    E("s_mov_b64 s[8:9], s[54:55]")
    E(f"s_cmp_ge_u32 {sJ}, {J_WO}")
    E("s_cbranch_scc1 L_role2")
    E(f"s_cmp_ge_u32 {sJ}, {J_WQ}")
    E("s_cbranch_scc1 L_roleq")
    E("s_mov_b64 s[20:21], s[70:71]")
    E(f"s_mov_b32 s22, {512*3072*2}")
    E(f"s_lshl_b32 {sWOFF}, s2, 7")
    E(f"s_mov_b32 {sWSTR}, 6144")
    E(f"s_lshl_b32 {sPUB}, s2, 8")
    E(f"s_add_u32 {sPUB}, {sPUB}, {WS_MODG}")
    E("s_mov_b64 s[32:33], s[68:69]")
    E(f"buffer_load_dwordx4 v[8:11], {vV}, {rC}, 0 offen")
    E("s_branch L_early")
    E.label("L_roleq")
    E("s_mov_b64 s[20:21], s[58:59]")
    E(f"s_mov_b32 s22, {512*4096*2}")
    E(f"s_lshl_b32 {sT0}, {sG}, 3")
    E(f"s_add_u32 {sT0}, {sT0}, {sJ}")
    E(f"s_sub_u32 {sT0}, {sT0}, {J_WQ}")
    E(f"s_lshl_b32 {sWOFF}, {sT0}, 7")
    E(f"s_mov_b32 {sWSTR}, 8192")
    E(f"s_lshl_b32 {sPUB}, {sT0}, 8")
    E(f"s_add_u32 {sPUB}, {sPUB}, {WS_QG}")
    E("s_mov_b64 s[28:29], s[52:53]")
    E(f"buffer_load_dwordx4 v[8:11], {vV}, {rX}, 0 offen")
    E.label("L_early")
    wide_dma()
    E("s_branch L_roled")
    E.label("L_role2")
    E("s_mov_b64 s[20:21], s[60:61]")
    E(f"s_mov_b32 s22, {512*4096*2}")
    E(f"s_lshl_b32 {sWOFF}, {sG}, 19")
    E(f"s_sub_u32 {sT0}, {sJ}, {J_WO}")
    E(f"s_lshl_b32 {sT1}, {sT0}, 7")
    E(f"s_add_u32 {sWOFF}, {sWOFF}, {sT1}")
    E(f"s_mov_b32 {sWSTR}, 1024")
    E(f"s_lshl_b32 {sPUB}, {sG}, 12")
    E(f"s_lshl_b32 {sT1}, {sT0}, 9")
    E(f"s_add_u32 {sPUB}, {sPUB}, {sT1}")
    E(f"s_add_u32 {sPUB}, {sPUB}, {WS_AO}")
    E(f"s_cmp_lt_u32 {sJ}, {J_MLP}")
    E("s_cbranch_scc1 L_roled")
    E("s_mov_b64 s[20:21], s[64:65]")
    E(f"s_mov_b32 s22, {512*1792*2}")
    E(f"s_lshl_b32 {sPUB}, {sM}, 11")
    E(f"s_add_u32 {sPUB}, {sPUB}, {WS_MO}")
    E.label("L_roled")
    E(f"s_load_dword {sEP}, s[76:77], {WS_EPOCH}")
    for d, sr in ((16, 76), (12, 56), (24, 66), (28, 52), (32, 68), (36, 72)):
        E(f"s_mov_b64 s[{d}:{d+1}], s[{sr}:{sr+1}]")
    E(f"s_lshl_b32 {sT2}, {sG}, 11")
    E(f"s_add_u32 {sT2}, {sT2}, {WS_QG}")
    if dstamp:
        for k in range(13): E(f"s_mov_b64 s[{52+2*k}:{53+2*k}], 0")
    stamp(0)
    E("s_barrier")
    E(f"s_cmp_ge_u32 {sJ}, {J_WO}")
    E("s_cbranch_scc1 L_stream")
    E(f"s_cmp_eq_u32 {sW}, 0")
    E("s_cbranch_scc1 L_aux")
    NPRE = 4
    load_tile("k", 0, 0, 0, "K0", hi=NPRE)
    E(f"v_mov_b32 v19, 1")
    E("s_mov_b64 exec, 1")
    E(f"s_waitcnt vmcnt({NPRE})")
    E(f"ds_add_u32 v18, v19 offset:4")
    E("s_mov_b64 exec, -1")
    E("s_branch L_stream2")

    def qpoll(first=True):
        if first:
            E(f"v_and_b32 v19, 31, {vLANE}")
            E(f"v_lshlrev_b32 v19, 2, v19")
            E(f"v_add_u32 v19, {WS_CLR - WS_QG}, v19")
        f = (lambda t: vmop("Q", t)) if first else E
        f(f"buffer_load_dwordx4 v[{QP}:{QP+3}], v5, {rWS}, {sT2} offen sc1")
        f(f"buffer_load_dwordx4 v[{QP+4}:{QP+7}], v5, {rWS}, {sT2} offen offset:16 sc1")
        f(f"buffer_load_dword v4, v19, {rWS}, {sT2} offen sc1")
    def tail_dma():
        if "t" in dbg: return
        u = len(E.L)
        E(f"s_cmp_lt_u32 {sJ}, {J_WO}")
        E(f"s_cbranch_scc1 L_td{u}")
        E(f"s_cmp_ge_u32 {sJ}, {J_MLP}")
        E(f"s_cbranch_scc1 L_tm{u}")
        wide_dma()
        E(f"s_branch L_td{u}")
        E.label(f"L_tm{u}")
        E(f"s_cmp_ge_u32 {sJ}, {J_NONE}")
        E(f"s_cbranch_scc1 L_td{u}")
        E(f"v_lshrrev_b32 v{T0}, 2, {vLANE}")
        E(f"v_mul_u32_u24 v{T0}, 3584, v{T0}")
        E(f"v_and_b32 v{T1}, 3, {vLANE}")
        E(f"v_lshl_add_u32 v{T0}, v{T1}, 4, v{T0}")
        E(f"s_mul_i32 {sT0}, {sW}, {16*3584}")
        E(f"s_lshl_b32 {sT1}, {sM}, 6")
        E(f"s_add_u32 {sT0}, {sT0}, {sT1}")
        E(f"s_lshl_b32 {sT3}, {sW}, 13")
        E(f"s_add_u32 m0, {sT3}, {L_WT}")
        for i in range(4):
            E(f"buffer_load_dwordx4 v{T0}, {rWT}, {sT0} offen {wflags} lds")
            E(f"s_add_u32 {sT0}, {sT0}, {128*3584}")
            E(f"s_add_u32 m0, m0, 1024")
        E(f"v_lshrrev_b32 v{T0}, 3, {vLANE}")
        E(f"v_and_b32 v{T1}, 7, {vLANE}")
        E(f"v_lshlrev_b32 v{T1}, 4, v{T1}")
        E(f"v_lshl_add_u32 v{T0}, v{T0}, 10, v{T1}")
        E(f"s_lshl_b32 {sT0}, {sM}, 15")
        E(f"s_lshl_b32 {sT1}, {sW}, 7")
        E(f"s_add_u32 {sT0}, {sT0}, {sT1}")
        for i in range(4):
            E(f"buffer_load_dwordx4 v{T0}, {rW2}, {sT0} offen {wflags} lds")
            if i < 3:
                E(f"s_add_u32 {sT0}, {sT0}, 8192")
                E(f"s_add_u32 m0, m0, 1024")
        E.label(f"L_td{u}")

    E.label("L_aux")
    E("s_setprio 3")
    CR = 8; TRA = 12; XF = 20
    MG = S[6]; AD = S[6] + 16
    wide_traddr(TRA, False)
    E(f"v_lshrrev_b32 v4, 4, {vLANE}")
    E(f"v_lshlrev_b32 v6, 4, v4")
    E(f"v_lshlrev_b32 v7, 5, {vLANE}")
    E(f"v_lshlrev_b32 v4, 2, {vLANE}")
    E("s_waitcnt vmcnt(8)")
    mktag()
    stamp("a0")
    for p in range(4):
        E(f"v_lshlrev_b32 v{XF+2*p}, 16, v{CR+p}")
        E(f"v_and_b32 v{XF+2*p+1}, 0xffff0000, v{CR+p}")
    E(f"s_cmp_ge_u32 {sJ}, {J_WQ}")
    E("s_cbranch_scc1 L_auxq")
    E(f"s_mov_b32 {sT0}, {f32bits(-math.log2(math.e)):#x}")
    for i in range(8): E(f"v_mul_f32 v{MG+i}, {sT0}, v{XF+i}")
    for i in range(8): E(f"v_exp_f32 v{MG+i}, v{MG+i}")
    for i in range(8): E(f"v_add_f32 v{MG+i}, 1.0, v{MG+i}")
    for i in range(8): E(f"v_rcp_f32 v{MG+i}, v{MG+i}")
    for i in range(8): E(f"v_mul_f32 v{XF+i}, v{XF+i}, v{MG+i}")
    for p in range(4): E(f"v_cvt_pk_bf16_f32 v{CR+p}, v{XF+2*p}, v{XF+2*p+1}")
    E("s_branch L_gemv")
    E.label("L_auxq")
    for T in range(kpre): load_tile("k", T, T, 0, f"K{T}", setp=False)
    m, v, t = T0, T1, T2
    vals = list(range(XF, XF+8))
    E(f"v_add_f32 v{m}, v{vals[0]}, v{vals[1]}")
    for r in vals[2:]: E(f"v_add_f32 v{m}, v{m}, v{r}")
    red_ror("v_add_f32", [m], (1, 2, 4, 8)); red_rows("v_add_f32", [m], t)
    E(f"v_mul_f32 v{m}, {f32bits(1.0/512):#x}, v{m}")
    for i, r in enumerate(vals):
        E(f"v_sub_f32 v{t}, v{r}, v{m}")
        E(f"v_mul_f32 v{v}, v{t}, v{t}" if i == 0 else f"v_fmac_f32 v{v}, v{t}, v{t}")
    red_ror("v_add_f32", [v], (1, 2, 4, 8)); red_rows("v_add_f32", [v], t)
    E(f"v_mul_f32 v{v}, {f32bits(1.0/512):#x}, v{v}")
    rb2(m, v, m, v, t)
    E(f"v_add_f32 v{v}, {f32bits(1e-5):#x}, v{v}")
    rb1(v, v)
    E(f"v_sqrt_f32 v{v}, v{v}")
    rb1(v, v)
    E(f"v_rcp_f32 v{v}, v{v}")
    for p in range(4):
        a, b = XF+2*p, XF+2*p+1
        E(f"v_sub_f32 v{a}, v{a}, v{m}")
        E(f"v_sub_f32 v{b}, v{b}, v{m}")
        rb2(a, b, a, b, T3)
        E(f"v_mul_f32 v{a}, v{a}, v{v}")
        E(f"v_mul_f32 v{b}, v{b}, v{v}")
        rb2(a, b, a, b, T3)
    E(f"s_mov_b32 {sT4}, {WS_MODG}")
    E.label("L_pollmod")
    for i in range(4):
        E(f"buffer_load_dwordx4 v[{MG+4*i}:{MG+4*i+3}], v7, {rWS}, {sT4} offen offset:{(i//2)*2048 + (i%2)*16} sc1")
    E("s_waitcnt vmcnt(0)")
    tagcheck([MG+1+2*i for i in range(8)], T0)
    E("s_branch L_gotmod" if "m" in dbg else "s_cbranch_vccz L_gotmod")
    if slp: E(f"s_sleep {slp}")
    spin_check("L_pollmod")
    E.label("L_gotmod")
    stamp(2)
    for p in range(4):
        n0, n1 = XF+2*p, XF+2*p+1
        s0, s1, c0, c1, t = T0, T1, T2, T3, 16
        E(f"v_lshlrev_b32 v{c0}, 16, v{MG+8+2*p}")
        E(f"v_and_b32 v{c1}, 0xffff0000, v{MG+8+2*p}")
        E(f"v_lshlrev_b32 v{s0}, 16, v{MG+2*p}")
        E(f"v_and_b32 v{s1}, 0xffff0000, v{MG+2*p}")
        E(f"v_add_f32 v{c0}, 1.0, v{c0}")
        E(f"v_add_f32 v{c1}, 1.0, v{c1}")
        rb2(c0, c1, c0, c1, t)
        E(f"v_mul_f32 v{n0}, v{n0}, v{c0}")
        E(f"v_mul_f32 v{n1}, v{n1}, v{c1}")
        rb2(n0, n1, n0, n1, t)
        E(f"v_add_f32 v{n0}, v{n0}, v{s0}")
        E(f"v_add_f32 v{n1}, v{n1}, v{s1}")
        E(f"v_cvt_pk_bf16_f32 v{CR+p}, v{n0}, v{n1}")
    E.label("L_gemv")
    E(f"ds_write_b128 {vV}, v[{CR}:{CR+3}] offset:{L_ACT}")
    stamp("a1")
    E("s_waitcnt vmcnt(0)")
    E.label("L_wtwait")
    E(f"ds_read_b32 v16, v18 offset:4")
    E("s_waitcnt lgkmcnt(0)")
    E(f"v_readfirstlane_b32 {sT1}, v16")
    E(f"s_cmp_lg_u32 {sT1}, 7")
    E(f"s_cbranch_scc1 L_wtwait")
    stamp("a2")
    if stamps: E("s_waitcnt lgkmcnt(0)")
    def g_reads(st):
        b = S[4] + (st % 3)*20
        E(f"ds_read_b128 v[{b}:{b+3}], v6 offset:{L_ACT + st*64}")
        for nt in range(4):
            for q in range(2):
                r = b + 4 + nt*4 + q*2
                E(f"ds_read_b64_tr_b16 v[{r}:{r+1}], v{TRA+nt} offset:{st*4096 + q*512}")
    g_reads(0); g_reads(1)
    for st in range(16):
        E(f"s_waitcnt lgkmcnt({9 if st < 15 else 0})")
        if st + 2 < 16: g_reads(st+2)
        b = S[4] + (st % 3)*20
        for nt in range(4):
            d = AD + 4*nt
            c = "0" if st == 0 else f"v[{d}:{d+3}]"
            E(f"v_mfma_f32_16x16x32_bf16 v[{d}:{d+3}], v[{b}:{b+3}], v[{b+4+4*nt}:{b+7+4*nt}], {c}")
    E(f"v_mov_b32 v{T1}, {sTAG}")
    for nt in range(1, 4):
        E(f"v_mov_b32_dpp v{AD}, v{AD+4*nt} quad_perm:[0,1,2,3] row_mask:{1<<nt:#x} bank_mask:0xf")
    E(f"v_mov_b32_dpp v{AD+1}, v{AD} quad_perm:[1,1,3,3] {DPPM}")
    E(f"v_cvt_pk_bf16_f32 v{T0}, v{AD}, v{AD+1}")
    E(f"s_mov_b32 exec_lo, 0x55555555")
    E(f"s_mov_b32 exec_hi, 0x55555555")
    E(f"buffer_store_dwordx2 v[{T0}:{T1}], v4, {rWS}, {sPUB} offen sc1")
    E(f"s_mov_b64 exec, -1")
    stamp(3)
    if not prio: E("s_setprio 0")
    vm.clear()
    E(f"s_cmp_ge_u32 {sJ}, {J_WQ}")
    E(f"s_cbranch_scc1 L_sk{kpre}")
    for T in range(2): load_tile("k", T, T, depth0, f"K{T}")
    E("s_branch L_sk2")

    E.label("L_stream")
    vm.clear()
    load_tile("k", 0, 0, depth, "K0", hi=NPRE)
    E.label("L_stream2")
    load_tile("k", 0, 0, depth, "K0", lo=NPRE)
    for r in range(20, 24): E(f"v_mov_b32 v{r}, -1")
    E(f"s_cmp_lg_u32 {sW}, {99 if 'c' in dbg else 1}")
    E("s_cbranch_scc1 L_noclr1")
    E(f"v_lshrrev_b32 v18, 4, {vLANE}")
    E(f"v_lshlrev_b32 v18, 13, v18")
    E(f"v_and_b32 v19, 15, {vLANE}")
    E(f"v_lshl_add_u32 v18, v19, 4, v18")
    E(f"s_lshl_b32 {sT0}, {sG}, 15")
    E(f"s_lshl_b32 {sT1}, {sJ}, 8")
    E(f"s_add_u32 {sT0}, {sT0}, {sT1}")
    E(f"s_add_u32 {sT0}, {sT0}, {WS_PART}")
    E(f"buffer_store_dwordx4 v[20:23], v18, {rWS}, {sT0} offen sc1")
    E(f"s_sub_u32 {sT0}, {sJ}, {J_MLP}")
    E(f"s_cmp_ge_u32 {sT0}, {J_NONE-J_MLP}")
    E("s_cbranch_scc1 L_noclr1")
    for i in range(2):
        E(f"buffer_store_dwordx4 v[20:23], {vV}, {rWS}, {sPUB} offen offset:{1024*i} sc1")
    E.label("L_noclr1")
    if tailpos == 0: tail_dma()
    load_tile("k", 1, 1, depth, "K1")
    mktag()
    E(f"s_cmp_lg_u32 {sW}, 1")
    E("s_cbranch_scc1 L_noflag")
    E(f"s_lshl_b32 {sT0}, {sJ}, 2")
    E(f"s_add_u32 {sT0}, {sT0}, {sT2}")
    E(f"v_mov_b32 v18, {WS_CLR - WS_QG}")
    E(f"v_mov_b32 v19, {sTAG}")
    E("s_mov_b64 exec, 1")
    E("s_waitcnt vmcnt(8)")
    E(f"buffer_store_dword v19, v18, {rWS}, {sT0} offen sc1")
    E("s_mov_b64 exec, -1")
    E.label("L_noflag")
    if tailpos == 1: tail_dma()
    E.label("L_sk2")
    load_tile("k", 2, 2, depth, "K2")
    load_tile("k", 3, 3, depth, "K3")
    E.label("L_sk4")
    if tailpos == 2: tail_dma()
    load_tile("v", 0, 4, depth, "V0")
    load_tile("v", 1, 5, depth, "V1", mid=qpoll)
    load_tile("v", 2, 6, depth, "V2", hi=2)
    stamp("q0")
    vmwait("Q")
    E.label("L_checkq2")
    tagcheck([QP+1, QP+3, QP+5, QP+7, 4], 6)
    E("s_branch L_gotq" if "q" in dbg else "s_cbranch_vccz L_gotq")
    if slpq: E(f"s_sleep {slpq}")
    qpoll(False)
    E("s_waitcnt vmcnt(0)")
    spin_check("L_checkq2")
    E.label("L_gotq")
    stamp(4)
    for i in range(4): E(f"v_mov_b32 v{Q0+i}, v{QP+2*i}")
    def sc(T, i): return 20 + i if T == 0 else S[1] + 4*i + (T-1)
    SCR = [sc(T, i) for T in range(4) for i in range(8)]
    def s_tile(T):
        for i in range(8):
            r = S[T] + 4*i
            E(f"v_mfma_f32_16x16x32_bf16 v[{r}:{r+3}], v[{r}:{r+3}], v[{Q0}:{Q0+3}], 0")
        for c in range(4):
            for i in range(8):
                r = S[T] + 4*i; d = sc(T, i)
                if c == 0: E(f"v_mov_b32_dpp v{d}, v{r} quad_perm:[0,0,0,0] {DPPM}")
                else: E(f"v_add_f32_dpp v{d}, v{r+c}, v{d} quad_perm:[{c},{c},{c},{c}] {DPPM}")
    def s_round(T):
        rs = SCR[8*T:8*T+8]
        for i in range(0, 8, 2): rb2(rs[i], rs[i+1], rs[i], rs[i+1], T0 + i//2)
        for r in rs: E(f"v_mul_f32 v{r}, {sT1}, v{r}")
        for i in range(0, 8, 2): rb2(rs[i], rs[i+1], rs[i], rs[i+1], T0 + i//2)
    E(f"s_mov_b32 {sT1}, {f32bits(128.0**-0.5):#x}")
    nxt = [("v", 2, 6, i) for i in range(2, 8)] + [("v", 3, 0, i) for i in range(8)]
    def more(n, mid=None):
        for _ in range(n):
            if not nxt: return
            k, T, sl, i = nxt.pop(0)
            load_tile(k, T, sl, depth, f"V{T}", lo=i, hi=i+1, mid=mid)
    for T in range(4):
        s_tile(T); more(1)
        s_round(T); more(1 if T < 2 else 0)
    stamp("c0")
    MX, LS = 6, 7
    E(f"v_max3_f32 v{MX}, v{SCR[0]}, v{SCR[1]}, v{SCR[2]}")
    for i in range(3, 31, 2): E(f"v_max3_f32 v{MX}, v{MX}, v{SCR[i]}, v{SCR[i+1]}")
    E(f"v_max_f32 v{MX}, v{MX}, v{SCR[31]}")
    red_rows("v_max_f32", [MX], T0)
    E(f"v_mul_f32 v{MX}, {sC}, v{MX}")
    more(1)
    for r in SCR: E(f"v_fma_f32 v{r}, v{r}, {sC}, -v{MX}")
    more(1)
    for r in SCR: E(f"v_exp_f32 v{r}, v{r}")
    more(1)
    E(f"v_add_f32 v{LS}, v{SCR[0]}, v{SCR[1]}")
    E(f"v_add_f32 v{T0}, v{SCR[2]}, v{SCR[3]}")
    for i in range(4, 32, 2):
        E(f"v_add_f32 v{LS}, v{LS}, v{SCR[i]}")
        E(f"v_add_f32 v{T0}, v{T0}, v{SCR[i+1]}")
    E(f"v_add_f32 v{LS}, v{LS}, v{T0}")
    red_rows("v_add_f32", [LS], T0)
    E(f"v_and_b32 v{T0}, 12, {vLANE}")
    E(f"v_lshlrev_b32 v{T0}, 1, v{T0}")
    E(f"s_lshl_b32 {sT0}, {sW}, 5")
    E(f"v_add_u32 v{T0}, {sT0}, v{T0}")
    E(f"ds_write_b64 v{T0}, v[{MX}:{LS}] offset:{L_STATS}")
    E(f"v_mov_b32 v{T1}, {L_CNT}")
    E(f"v_mov_b32 v{T2}, 1")
    E("s_waitcnt lgkmcnt(0)")
    E("s_mov_b64 exec, 1")
    E(f"ds_add_rtn_u32 v{T2}, v{T1}, v{T2}")
    E("s_mov_b64 exec, -1")
    PR = [8, 12, 20, 24]
    for T in range(4):
        for i in range(4): E(f"v_cvt_pk_bf16_f32 v{PR[T]+i}, v{SCR[8*T+2*i]}, v{SCR[8*T+2*i+1]}")
    more(1)
    E("s_waitcnt lgkmcnt(0)")
    E(f"v_readfirstlane_b32 {sLAST}, v{T2}")
    X = S[1]
    E(f"s_cmp_lg_u32 {sLAST}, 7")
    E("s_cbranch_scc1 L_nostat")
    E(f"v_and_b32 v{T0}, 31, {vLANE}")
    E(f"v_lshlrev_b32 v{T1}, 3, v{T0}")
    E(f"ds_read_b64 v[6:7], v{T1} offset:{L_STATS}")
    E(f"v_and_b32 v{T1}, 3, v{T0}")
    E(f"v_and_b32 v{T0}, 28, v{T0}")
    E(f"v_lshl_add_u32 v{T0}, v{T1}, 5, v{T0}")
    E(f"v_lshlrev_b32 v{T1}, 9, v{T1}")
    E("s_waitcnt lgkmcnt(0)")
    E(f"v_mov_b32 v16, v6")
    red_ror("v_max_f32", [16], (4, 8))
    E(f"v_mov_b32 v17, v16")
    E(f"v_permlane16_swap_b32 v16, v17")
    E(f"v_max_f32 v16, v16, v17")
    E(f"v_sub_f32 v6, v6, v16")
    E(f"v_exp_f32 v6, v6")
    E(f"v_mul_f32 v18, v6, v7")
    E(f"ds_write_b32 v{T0}, v6 offset:{L_FAC}")
    red_ror("v_add_f32", [18], (4, 8))
    E(f"v_mov_b32 v17, v18")
    E(f"v_permlane16_swap_b32 v18, v17")
    E(f"v_add_f32 v18, v17, v18")
    E(f"v_mov_b32 v17, {sTAG}")
    E(f"v_mov_b32 v19, {sTAG}")
    E(f"s_lshl_b32 {sT0}, {sG}, 11")
    E(f"s_lshl_b32 {sT1}, {sJ}, 4")
    E(f"s_add_u32 {sT0}, {sT0}, {sT1}")
    E(f"s_add_u32 {sT0}, {sT0}, {WS_STAT}")
    E("s_mov_b64 exec, 15")
    E(f"buffer_store_dwordx4 v[16:19], v{T1}, {rWS}, {sT0} offen sc1")
    E("s_mov_b64 exec, -1")
    E.label("L_nostat")
    stamp("c1")
    vGQ, vN, vT2, vGAA, vCH, vU16, vOW, vT8, vL4, vGATH, vRR, vRW, vFR, vSTA, vWBW, vWBR = [X+i for i in range(16)]
    TRB = X+16; GA = X+20; SBG = X+22; GB = X+24; SP = X+24; CBG = X+28; XT = X+30
    E(f"v_lshrrev_b32 v{vGQ}, 4, {vLANE}")
    E(f"v_and_b32 v{vN}, 15, {vLANE}")
    E(f"s_sub_u32 {sT4}, {sJ}, {J_MLP}")
    E(f"s_cmp_ge_u32 {sT4}, {J_NONE-J_MLP}")
    E("s_cbranch_scc1 L_nomd")
    E(f"v_lshlrev_b32 v{vT2}, 1, v0")
    E(f"v_and_b32 v{vGAA}, 0x1fe, v0")
    E(f"v_lshlrev_b32 v{vGAA}, 2, v{vGAA}")
    E(f"s_mul_i32 {sU}, {sW}, 56")
    E(f"s_add_u32 {sU}, {sU}, {sM}")
    E(f"s_lshl_b32 {sU16}, {sU}, 4")
    E(f"s_and_b32 {sU16}, {sU16}, 0x7ff")
    E(f"v_mov_b32 v{vU16}, {sU16}")
    def modloads():
        E(f"s_mov_b32 {sT0}, {WS_MODG + 1024*4}")
        E(f"buffer_load_dwordx2 v[{GA}:{GA+1}], v{vGAA}, {rWS}, {sT0} offen sc1")
        E(f"buffer_load_dwordx2 v[{SBG}:{SBG+1}], v{vGAA}, {rWS}, {sT0} offen offset:2048 sc1")
        E(f"s_mov_b32 {sT0}, {WS_MODG + 2048*4}")
        E(f"buffer_load_dwordx2 v[{CBG}:{CBG+1}], v{vGAA}, {rWS}, {sT0} offen sc1")
        E(f"buffer_load_dwordx4 v[{GB}:{GB+3}], v{vU16}, {rWS}, {sT0} offen offset:2048 sc1")
    E(f"buffer_load_ushort v{XT}, v{vT2}, {rX}, 0 offen")
    modloads()
    E.label("L_nomd")
    assert len(nxt) == 4, len(nxt)
    ACCO = S[2]; TP = S[3]
    first = [True]
    def pv_perm(slot, mm):
        for dw in range(4):
            a = S[slot] + (2*mm)*4 + dw; b = S[slot] + (2*mm+1)*4 + dw
            E(f"v_perm_b32 v{TP + (2*dw)*4 + mm}, v{b}, v{a}, {sSELLO}")
            E(f"v_perm_b32 v{TP + (2*dw+1)*4 + mm}, v{b}, v{a}, {sSELHI}")
    def pv_mfma(T):
        for e in range(8):
            c = "0" if first[0] else f"v[{ACCO+4*e}:{ACCO+4*e+3}]"
            E(f"v_mfma_f32_16x16x32_bf16 v[{ACCO+4*e}:{ACCO+4*e+3}], v[{PR[T]}:{PR[T]+3}], v[{TP+4*e}:{TP+4*e+3}], {c}")
        first[0] = False
    def pv(slot, T):
        for mm in range(4): pv_perm(slot, mm)
        pv_mfma(T)
    more(1)
    vmwait("V0"); pv(4, 0)
    more(1)
    vmwait("V1"); pv(5, 1)
    more(2)
    stamp("c3")
    vmwait("V2"); pv(6, 2)
    WB = S[4]; SCF = S[5]; WT8 = S[5]; PK = S[5]+16; GBF = S[6]
    W1 = WB; W2 = WB+16
    E(f"s_lshl_b32 {sT0}, {sW}, 11")
    E(f"v_lshlrev_b32 v{vOW}, 5, {vLANE}")
    E(f"v_add_u32 v{vOW}, {sT0}, v{vOW}")
    E(f"v_lshlrev_b32 v{vT8}, 3, v0")
    E(f"v_lshlrev_b32 v{vL4}, 2, {vLANE}")
    E(f"s_lshl_b32 {sT1}, {sW}, 5")
    E(f"v_mov_b32 v{vFR}, {sT1}")
    E(f"s_lshl_b32 {sT0}, {sG}, 2")
    E(f"s_add_u32 {sPP}, {sT0}, {sW}")
    E(f"s_lshl_b32 {sPP}, {sPP}, 13")
    E(f"s_lshl_b32 {sT1}, {sJ}, 8")
    E(f"s_add_u32 {sPP}, {sPP}, {sT1}")
    E(f"s_add_u32 {sPP}, {sPP}, {WS_PART}")
    E("s_waitcnt vmcnt(4)")
    pv_perm(0, 0); pv_perm(0, 1)
    stamp("c7")
    E(f"s_cmp_lt_u32 {sT4}, {J_NONE-J_MLP}")
    E("s_cbranch_scc1 L_prepm")
    E(f"s_sub_u32 {sT1}, {sJ}, {J_WO}")
    E(f"s_cmp_ge_u32 {sT1}, {J_MLP-J_WO}")
    E("s_cbranch_scc1 L_prepd")
    E(f"s_lshr_b32 {sT1}, {sW}, 1")
    E(f"s_add_u32 {sGA0}, {sT0}, {sT1}")
    E(f"s_lshl_b32 {sT2}, {sGA0}, 9")
    E(f"s_add_u32 {sT2}, {sT2}, {WS_STAT}")
    E(f"s_lshl_b32 {sGA0}, {sGA0}, 13")
    E(f"s_and_b32 {sT1}, {sW}, 1")
    E(f"s_lshl_b32 {sT1}, {sT1}, 7")
    E(f"s_add_u32 {sGA0}, {sGA0}, {sT1}")
    E(f"s_add_u32 {sGA0}, {sGA0}, {WS_PART}")
    E(f"s_add_u32 {sGA1}, {sGA0}, 4096")
    E(f"v_and_b32 v{vSTA}, 31, {vLANE}")
    E(f"s_lshl_b32 {sT1}, {sW}, 7")
    E(f"v_lshl_add_u32 v{vWBW}, v{vSTA}, 2, {sT1}")
    E(f"v_lshl_add_u32 v{vWBR}, v{vGQ}, 4, {sT1}")
    E(f"v_lshlrev_b32 v{vSTA}, 4, v{vSTA}")
    E(f"v_lshlrev_b32 v{vGATH}, 8, v{vN}")
    E(f"v_lshl_add_u32 v{vGATH}, v{vGQ}, 4, v{vGATH}")
    wide_traddr(TRB, True)
    for nt in range(4):
        for tq in range(4):
            r = WB + nt*8 + tq*2
            E(f"ds_read_b64_tr_b16 v[{r}:{r+1}], v{TRB+nt} offset:{(tq>>1)*4096 + (tq&1)*512}")
    E(f"v_lshlrev_b32 v{vRR}, 5, {vLANE}")
    E(f"s_lshl_b32 {sT1}, {sW}, 2")
    E(f"v_add_u32 v{vRW}, {sT1}, v{vRR}")
    E("s_branch L_prepd")
    E.label("L_prepm")
    E(f"s_lshl_b32 {sT3}, {sW}, 13")
    E(f"s_add_u32 {sT3}, {sT3}, {L_WT}")
    E(f"v_bfe_u32 v{T0}, {vLANE}, 2, 2")
    E(f"v_and_b32 v{T1}, 3, {vLANE}")
    E(f"v_lshlrev_b32 v{T1}, 3, v{T1}")
    E(f"v_lshl_add_u32 v{T2}, v{T0}, 6, v{T1}")
    E(f"v_lshl_add_u32 v{T2}, v{vGQ}, 10, v{T2}")
    E(f"v_add_u32 v{T2}, {sT3}, v{T2}")
    E(f"v_lshl_add_u32 v{T0}, v{T0}, 7, v{T1}")
    E(f"v_lshl_add_u32 v{T0}, v{vGQ}, 5, v{T0}")
    E(f"v_add_u32 v{T0}, {sT3}, v{T0}")
    for nt in range(2):
        for q in range(4):
            r = W1 + nt*8 + q*2
            E(f"ds_read_b64_tr_b16 v[{r}:{r+1}], v{T2} offset:{q*256 + nt*32}")
    for q in range(8):
        E(f"ds_read_b64_tr_b16 v[{W2+2*q}:{W2+2*q+1}], v{T0} offset:{4096 + q*512}")
    E(f"v_lshlrev_b32 v{vRR}, 6, v{vN}")
    E(f"v_lshlrev_b32 v{vRW}, 5, v{vN}")
    E(f"s_lshl_b32 {sT1}, {sW}, 2")
    E(f"v_add_u32 v{vRW}, {sT1}, v{vRW}")
    E(f"s_lshl_b32 {sT0}, {sW}, 1")
    E(f"v_add_u32 v{vCH}, {sT0}, v{vN}")
    E(f"v_and_b32 v{vCH}, 15, v{vCH}")
    E(f"v_lshl_add_u32 v{vCH}, v{vGQ}, 4, v{vCH}")
    E(f"v_lshlrev_b32 v{vCH}, 5, v{vCH}")
    E.label("L_modchk")
    tagcheck([GA+1, GB+1, GB+3, SBG+1, CBG+1], 6)
    E("s_cbranch_vccz L_gotmd")
    modloads()
    E("s_waitcnt vmcnt(0)")
    spin_check("L_modchk")
    E.label("L_gotmd")
    E(f"v_and_b32 v6, 1, v0")
    E(f"v_cmp_eq_u32 vcc, 0, v6")
    for r, dst in ((GA, GA), (SBG, CBG+1), (CBG, CBG)):
        E(f"v_lshlrev_b32 v6, 16, v{r}")
        E(f"v_and_b32 v7, 0xffff0000, v{r}")
        E(f"v_cndmask_b32 v{dst}, v7, v6, vcc")
    E(f"v_lshlrev_b32 v{XT}, 16, v{XT}")
    E(f"v_add_f32 v{CBG}, 1.0, v{CBG}")
    rb1(CBG, CBG)
    E(f"ds_write_b64 v{vT8}, v[{CBG}:{CBG+1}] offset:{L_SC}")
    E(f"v_lshlrev_b32 v{GBF}, 16, v{GB}")
    E(f"v_and_b32 v{GBF+1}, 0xffff0000, v{GB}")
    E(f"v_lshlrev_b32 v{GBF+2}, 16, v{GB+2}")
    E(f"v_and_b32 v{GBF+3}, 0xffff0000, v{GB+2}")
    for g in range(8): E(f"s_mov_b32 s{84+g}, {WS_AO + 4096*g}")
    E(f"v_lshlrev_b32 v{vGATH}, 2, v0")
    E(f"v_mov_b32 v{vWBR}, 0")
    E.label("L_prepd")
    E("s_waitcnt vmcnt(2)")
    pv_perm(0, 2)
    E("s_waitcnt vmcnt(0)")
    stamp(5)
    pv_perm(0, 3)
    pv_mfma(3)
    for e in range(8): E(f"v_mov_b32 v{PK+e}, v{ACCO+4*e}")
    E(f"ds_write_b128 v{vOW}, v[{PK}:{PK+3}] offset:{L_ORED}")
    E(f"ds_write_b128 v{vOW}, v[{PK+4}:{PK+7}] offset:{L_ORED+16}")
    E("s_waitcnt lgkmcnt(0)")
    E("s_barrier")
    E(f"s_cmp_ge_u32 {sW}, 4")
    E("s_cbranch_scc1 L_nopart")
    R0 = S[2]; FC = S[2]+16
    E(f"ds_read_b128 v[{FC}:{FC+3}], v{vFR} offset:{L_FAC}")
    E(f"ds_read_b128 v[{FC+4}:{FC+7}], v{vFR} offset:{L_FAC+16}")
    for w in range(8): E(f"ds_read_b64 v[{R0+2*w}:{R0+2*w+1}], v{vT8} offset:{L_ORED + w*2048}")
    for w in range(8):
        if w % 2 == 0: E(f"s_waitcnt lgkmcnt({6-w})")
        a = PK + 2*(w % 2)
        op = "v_mul_f32" if w < 2 else "v_fmac_f32"
        E(f"{op} v{a}, v{R0+2*w}, v{FC+w}")
        E(f"{op} v{a+1}, v{R0+2*w+1}, v{FC+w}")
    E(f"v_pk_add_f32 v[{PK}:{PK+1}], v[{PK}:{PK+1}], v[{PK+2}:{PK+3}]")
    E(f"v_cvt_pk_bf16_f32 v{PK}, v{PK}, v{PK+1}")
    E(f"v_min_u32 v{PK}, -2, v{PK}")
    E(f"buffer_store_dword v{PK}, v{vL4}, {rWS}, {sPP} offen sc1")
    E.label("L_nopart")
    stamp(6)
    if "e" in dbg: E("s_branch L_fin")
    E(f"s_cmp_lt_u32 {sT4}, {J_NONE-J_MLP}")
    E("s_cbranch_scc1 L_stageb")
    E(f"s_sub_u32 {sT1}, {sJ}, {J_WO}")
    E(f"s_cmp_ge_u32 {sT1}, {J_MLP-J_WO}")
    E("s_cbranch_scc1 L_fin")
    GA_ = S[3]
    def a_loads(half):
        so = sGA0 if half == 0 else sGA1
        E(f"buffer_load_dwordx4 v[{GA_+8*half}:{GA_+8*half+3}], v{vGATH}, {rWS}, {so} offen sc1")
        E(f"buffer_load_dwordx4 v[{GA_+8*half+4}:{GA_+8*half+7}], v{vGATH}, {rWS}, {so} offen offset:64 sc1")
    E(f"buffer_load_dwordx4 v[{SP}:{SP+3}], v{vSTA}, {rWS}, {sT2} offen sc1")
    a_loads(0); a_loads(1)
    E("s_waitcnt vmcnt(4)")
    E.label("L_statchk")
    tagcheck([SP+1, SP+3], 6)
    E("s_cbranch_vccz L_gotstat")
    if slp: E(f"s_sleep {slp}")
    E(f"buffer_load_dwordx4 v[{SP}:{SP+3}], v{vSTA}, {rWS}, {sT2} offen sc1")
    E("s_waitcnt vmcnt(0)")
    spin_check("L_statchk")
    E.label("L_gotstat")
    E(f"v_mov_b32 v{T0}, v{SP}")
    red_ror("v_max_f32", [T0], (1, 2, 4, 8))
    E(f"v_mov_b32 v{T1}, v{T0}")
    E(f"v_permlane16_swap_b32 v{T0}, v{T1}")
    E(f"v_max_f32 v{T0}, v{T0}, v{T1}")
    E(f"v_sub_f32 v{SP}, v{SP}, v{T0}")
    E(f"v_exp_f32 v{SP}, v{SP}")
    E(f"v_mul_f32 v{T0}, v{SP}, v{SP+2}")
    red_ror("v_add_f32", [T0], (1, 2, 4, 8))
    E(f"v_mov_b32 v{T1}, v{T0}")
    E(f"v_permlane16_swap_b32 v{T0}, v{T1}")
    E(f"v_add_f32 v{T0}, v{T0}, v{T1}")
    E(f"v_rcp_f32 v{T0}, v{T0}")
    E(f"v_mul_f32 v{T0}, v{T0}, v{SP}")
    E(f"ds_write_b32 v{vWBW}, v{T0} offset:{L_WB}")
    E("s_waitcnt lgkmcnt(0)")
    E(f"ds_read_b128 v[{WT8}:{WT8+3}], v{vWBR} offset:{L_WB}")
    E(f"ds_read_b128 v[{WT8+4}:{WT8+7}], v{vWBR} offset:{L_WB+64}")
    E.label("L_polla")
    E("s_waitcnt vmcnt(0)")
    for half in range(2):
        b = GA_ + 8*half; t = T0 + half
        E(f"v_max3_u32 v{t}, v{b}, v{b+1}, v{b+2}")
        E(f"v_max3_u32 v{t}, v{t}, v{b+3}, v{b+4}")
        E(f"v_max3_u32 v{t}, v{t}, v{b+5}, v{b+6}")
        E(f"v_max_u32 v{t}, v{t}, v{b+7}")
    E(f"v_max_u32 v6, v{T0}, v{T1}")
    E(f"v_cmp_eq_u32 vcc, -1, v6")
    E("s_cbranch_vccz L_gota")
    if slp: E(f"s_sleep {slp}")
    for half in range(2):
        E(f"v_cmp_eq_u32 vcc, -1, v{T0+half}")
        E(f"s_mov_b64 exec, vcc")
        a_loads(half)
        E("s_mov_b64 exec, -1")
    spin_check("L_polla")
    E.label("L_gota")
    stamp(7)
    D = S[2]
    for half in range(2):
        for tp in range(2):
            for nt in range(4):
                d = D + half*16 + 4*nt
                c = "0" if tp == 0 else f"v[{d}:{d+3}]"
                b = WB + nt*8 + tp*4; a = GA_ + half*8 + tp*4
                E(f"v_mfma_f32_16x16x32_bf16 v[{d}:{d+3}], v[{a}:{a+3}], v[{b}:{b+3}], {c}")
    E("s_waitcnt lgkmcnt(0)")
    for nt in range(4): E(f"v_pk_mul_f32 v[{D+4*nt}:{D+4*nt+1}], v[{D+4*nt}:{D+4*nt+1}], v[{WT8}:{WT8+1}]")
    for nt in range(4): E(f"v_pk_fma_f32 v[{D+4*nt}:{D+4*nt+1}], v[{D+4*nt+2}:{D+4*nt+3}], v[{WT8+2}:{WT8+3}], v[{D+4*nt}:{D+4*nt+1}]")
    for nt in range(4): E(f"v_pk_fma_f32 v[{D+4*nt}:{D+4*nt+1}], v[{D+16+4*nt}:{D+16+4*nt+1}], v[{WT8+4}:{WT8+5}], v[{D+4*nt}:{D+4*nt+1}]")
    for nt in range(4): E(f"v_pk_fma_f32 v[{D+4*nt}:{D+4*nt+1}], v[{D+16+4*nt+2}:{D+16+4*nt+3}], v[{WT8+6}:{WT8+7}], v[{D+4*nt}:{D+4*nt+1}]")
    for nt in range(4): E(f"v_add_f32 v{D+4*nt}, v{D+4*nt}, v{D+4*nt+1}")
    a0, a1, a2, a3 = D, D+4, D+8, D+12
    E(f"v_permlane16_swap_b32 v{a0}, v{a1}")
    E(f"v_permlane16_swap_b32 v{a2}, v{a3}")
    E(f"v_add_f32 v{a0}, v{a0}, v{a1}")
    E(f"v_add_f32 v{a2}, v{a2}, v{a3}")
    E(f"v_permlane32_swap_b32 v{a0}, v{a2}")
    E(f"v_add_f32 v{a0}, v{a0}, v{a2}")
    E(f"ds_write_b32 v{vRW}, v{a0} offset:{L_RED}")
    E("s_waitcnt lgkmcnt(0)")
    E("s_barrier")
    E(f"s_cmp_lg_u32 {sW}, 0")
    E("s_cbranch_scc1 L_fin")
    D = PK
    E(f"ds_read_b128 v[{D}:{D+3}], v{vRR} offset:{L_RED}")
    E(f"ds_read_b128 v[{D+4}:{D+7}], v{vRR} offset:{L_RED+16}")
    E("s_waitcnt lgkmcnt(0)")
    E(f"v_pk_add_f32 v[{D}:{D+1}], v[{D}:{D+1}], v[{D+4}:{D+5}]")
    E(f"v_pk_add_f32 v[{D+2}:{D+3}], v[{D+2}:{D+3}], v[{D+6}:{D+7}]")
    E(f"v_pk_add_f32 v[{D}:{D+1}], v[{D}:{D+1}], v[{D+2}:{D+3}]")
    E(f"v_add_f32 v{D}, v{D}, v{D+1}")
    E(f"v_mov_b32 v{D+1}, {sTAG}")
    E(f"buffer_store_dwordx2 v[{D}:{D+1}], v{vT8}, {rWS}, {sPUB} offen sc1")
    stamp(8)
    E("s_branch L_fin")
    E.label("L_stageb")
    GBR = S[3]
    def b_load(g): E(f"buffer_load_dwordx2 v[{GBR+2*g}:{GBR+2*g+1}], v{vT8}, {rWS}, s{84+g} offen sc1")
    for g in range(8): b_load(g)
    E(f"v_lshlrev_b32 v{T0}, 1, v{vCH}")
    for i in range(4): E(f"ds_read_b128 v[{SCF+4*i}:{SCF+4*i+3}], v{T0} offset:{L_SC+16*i}")
    E.label("L_pollb")
    E("s_waitcnt vmcnt(0)")
    tagcheck([GBR+2*g+1 for g in range(8)], 6)
    E("s_cbranch_vccz L_gotb")
    if slpb: E(f"s_sleep {slpb}")
    for g in range(8):
        E(f"v_cmp_ne_u32 vcc, {sTAG}, v{GBR+2*g+1}")
        E(f"s_mov_b64 exec, vcc")
        b_load(g)
        E(f"s_mov_b64 exec, -1")
    spin_check("L_pollb")
    E.label("L_gotb")
    stamp(9)
    E(f"v_add_f32 v{GBR}, v{GBR}, v{GBR+2}")
    E(f"v_add_f32 v{GBR+4}, v{GBR+4}, v{GBR+6}")
    E(f"v_add_f32 v{GBR+8}, v{GBR+8}, v{GBR+10}")
    E(f"v_add_f32 v{GBR+12}, v{GBR+12}, v{GBR+14}")
    E(f"v_add_f32 v{GBR}, v{GBR}, v{GBR+4}")
    E(f"v_add_f32 v{GBR+8}, v{GBR+8}, v{GBR+12}")
    E(f"v_add_f32 v{GBR}, v{GBR}, v{GBR+8}")
    rb1(GBR, GBR)
    E(f"v_mul_f32 v{GBR}, v{GBR}, v{GA}")
    rb1(GBR, GBR)
    E(f"v_add_f32 v{GBR}, v{GBR}, v{XT}")
    rb1(GBR, GBR)
    E(f"ds_write_b32 v{vGATH}, v{GBR} offset:{L_X2}")
    E("s_waitcnt lgkmcnt(0)")
    E("s_barrier")
    stamp("b1")
    X2 = S[2]; X2F = S[2]+8; KS = S[2]+12
    E(f"ds_read_b32 v{KS}, v{vWBR} offset:{L_X2}")
    E(f"ds_read_b128 v[{X2}:{X2+3}], v{vCH} offset:{L_X2}")
    E(f"ds_read_b128 v[{X2+4}:{X2+7}], v{vCH} offset:{L_X2+16}")
    E(f"ds_read_b128 v[{X2F}:{X2F+3}], v{vU16} offset:{L_X2}")
    E("s_waitcnt lgkmcnt(0)" if (stamps and "b1" in stamps) else "s_waitcnt lgkmcnt(1)")
    DD = S[2]+16
    for i in range(8): E(f"v_sub_f32 v{DD+i}, v{X2+i}, v{KS}")
    s1, s2, s3 = 16, 18, T0
    E(f"v_pk_add_f32 v[{s1}:{s1+1}], v[{DD}:{DD+1}], v[{DD+2}:{DD+3}]")
    E(f"v_pk_mul_f32 v[{s2}:{s2+1}], v[{DD}:{DD+1}], v[{DD}:{DD+1}]")
    E(f"v_pk_add_f32 v[{s3}:{s3+1}], v[{DD+4}:{DD+5}], v[{DD+6}:{DD+7}]")
    E(f"v_pk_fma_f32 v[{s2}:{s2+1}], v[{DD+2}:{DD+3}], v[{DD+2}:{DD+3}], v[{s2}:{s2+1}]")
    E(f"v_pk_add_f32 v[{s1}:{s1+1}], v[{s1}:{s1+1}], v[{s3}:{s3+1}]")
    E(f"v_pk_fma_f32 v[{s2}:{s2+1}], v[{DD+4}:{DD+5}], v[{DD+4}:{DD+5}], v[{s2}:{s2+1}]")
    E(f"v_add_f32 v{s1}, v{s1}, v{s1+1}")
    E(f"v_pk_fma_f32 v[{s2}:{s2+1}], v[{DD+6}:{DD+7}], v[{DD+6}:{DD+7}], v[{s2}:{s2+1}]")
    E(f"v_add_f32 v{s2}, v{s2}, v{s2+1}")
    red_ror("v_add_f32", [s1, s2], (1, 2, 4, 8))
    red_rows("v_add_f32", [s1, s2], s3)
    E(f"v_mul_f32 v{s1}, {f32bits(1.0/512):#x}, v{s1}")
    E(f"v_mul_f32 v{s2}, {f32bits(1.0/512):#x}, v{s2}")
    E(f"v_fma_f32 v{s2}, -v{s1}, v{s1}, v{s2}")
    E(f"v_add_f32 v{s1}, v{s1}, v{KS}")
    E(f"v_max_f32 v{s2}, 0, v{s2}")
    rb2(s1, s2, s1, s2, s3)
    E(f"v_add_f32 v{s2}, {f32bits(1e-5):#x}, v{s2}")
    for i in range(0, 4): E(f"v_sub_f32 v{X2+i}, v{X2+i}, v{s1}")
    rb1(s2, s2)
    E(f"v_sqrt_f32 v{s2}, v{s2}")
    for i in range(4, 8): E(f"v_sub_f32 v{X2+i}, v{X2+i}, v{s1}")
    for i in range(0, 4): E(f"v_mul_f32 v{X2+i}, v{X2+i}, v{SCF+2*i}")
    rb1(s2, s2)
    E(f"v_rcp_f32 v{s2}, v{s2}")
    for i in range(4, 8): E(f"v_mul_f32 v{X2+i}, v{X2+i}, v{SCF+2*i}")
    for i in range(8): E(f"v_fma_f32 v{X2+i}, v{X2+i}, v{s2}, v{SCF+2*i+1}")
    H2 = PK
    for p in range(4): E(f"v_cvt_pk_bf16_f32 v{H2+p}, v{X2+2*p}, v{X2+2*p+1}")
    DM = S[2]+16
    for nt in range(2):
        for s_ in range(2):
            d = DM + (nt*2+s_)*4; b = W1 + nt*8 + s_*4
            E(f"v_mfma_f32_16x16x32_bf16 v[{d}:{d+3}], v[{H2}:{H2+3}], v[{b}:{b+3}], 0")
    E("s_mov_b64 exec, 0xffff")
    E(f"v_add_f32 v{DM}, v{DM}, v{DM+5}")
    E(f"v_add_f32 v{DM+8}, v{DM+8}, v{DM+13}")
    E(f"ds_write2st64_b32 v{vRW}, v{DM}, v{DM+8} offset0:{L_RED//256} offset1:{L_RED//256+2}")
    E("s_mov_b64 exec, -1")
    E("s_waitcnt lgkmcnt(0)")
    E("s_barrier")
    stamp("b2")
    D = S[3]
    for i in range(4): E(f"ds_read_b128 v[{D+4*i}:{D+4*i+3}], v{vRR} offset:{L_RED+16*i}")
    E(f"v_mov_b32 v{T0}, 0")
    E(f"v_mov_b32 v{T1}, 0")
    E("s_waitcnt lgkmcnt(0)")
    for h in range(2):
        b = D + 8*h
        E(f"v_pk_add_f32 v[{b}:{b+1}], v[{b}:{b+1}], v[{b+4}:{b+5}]")
        E(f"v_pk_add_f32 v[{b+2}:{b+3}], v[{b+2}:{b+3}], v[{b+6}:{b+7}]")
    for h in range(2):
        b = D + 8*h
        E(f"v_pk_add_f32 v[{b}:{b+1}], v[{b}:{b+1}], v[{b+2}:{b+3}]")
    for h in range(2):
        b = D + 8*h
        E(f"v_add_f32 v{b}, v{b}, v{b+1}")
    E(f"v_max_f32 v{D}, 0, v{D}")
    E(f"v_max_f32 v{D+8}, 0, v{D+8}")
    E(f"v_cvt_pk_bf16_f32 v{D}, v{D}, v{D+8}")
    for k in range(16):
        E(f"v_dot2c_f32_bf16_dpp v{T0+(k&1)}, v{D}, v{W2+k} row_newbcast:{k} {DPPM}")
    E(f"v_add_f32 v{T0}, v{T0}, v{T1}")
    E(f"v_min_u32 v{T0}, -2, v{T0}")
    E(f"buffer_store_dword v{T0}, v{vGATH}, {rWS}, {sPUB} offen sc1")
    stamp(10)
    E(f"s_cmp_ge_u32 {sU}, 128")
    E("s_cbranch_scc1 L_fin")
    C0 = S[3]+16
    E(f"v_lshlrev_b32 v{vSTA}, 11, {vLANE}")
    E(f"s_add_u32 {sT2}, {sU16}, {WS_MO}")
    for i in range(4): E(f"v_mov_b32 v{C0+i}, 0")
    E(f"s_mov_b32 exec_hi, 0xffffff")
    E(f"buffer_load_dwordx4 v[{C0}:{C0+3}], v{vSTA}, {rWS}, {sT2} offen sc1")
    E(f"s_mov_b64 exec, -1")
    E(f"s_lshl_b32 {sT0}, {sU}, 3")
    E(f"v_mov_b32 v6, 0")
    E(f"v_mov_b32 v7, {sTAG}")
    E.label("L_pollc")
    E("s_waitcnt vmcnt(0)")
    E(f"v_max3_u32 v{T2}, v{C0}, v{C0+1}, v{C0+2}")
    E(f"v_max_u32 v{T2}, v{T2}, v{C0+3}")
    E(f"v_cmp_eq_u32 vcc, -1, v{T2}")
    E("s_cbranch_vccz L_gotc")
    E(f"s_mov_b64 exec, vcc")
    E(f"buffer_load_dwordx4 v[{C0}:{C0+3}], v{vSTA}, {rWS}, {sT2} offen sc1")
    E("s_mov_b64 exec, -1")
    spin_check("L_pollc")
    E.label("L_gotc")
    stamp(11)
    cs = [C0+i for i in range(4)]
    red_ror("v_add_f32", cs, (1, 2, 4, 8))
    red_rows("v_add_f32", cs, C0+4)
    rb2(C0, C0+1, C0, C0+1, T2); rb2(C0+2, C0+3, C0+2, C0+3, T3)
    for i in range(4): E(f"v_mul_f32 v{C0+i}, v{C0+i}, v{GBF+i}")
    rb2(C0, C0+1, C0, C0+1, T2); rb2(C0+2, C0+3, C0+2, C0+3, T3)
    for i in range(4): E(f"v_add_f32 v{C0+i}, v{C0+i}, v{X2F+i}")
    E(f"v_cvt_pk_bf16_f32 v{C0}, v{C0}, v{C0+1}")
    E(f"v_cvt_pk_bf16_f32 v{C0+1}, v{C0+2}, v{C0+3}")
    E("s_mov_b64 exec, 1")
    E(f"buffer_store_dwordx2 v[{C0}:{C0+1}], v6, {rOUT}, {sT0} offen")
    E(f"s_cmp_lg_u32 {sU}, 0")
    E("s_cbranch_scc1 L_fin")
    E(f"buffer_store_dword v7, v6, {rWS}, 0 offen sc1")
    E.label("L_fin")
    if stamps:
        stamp(12)
        E(f"s_cmp_lg_u32 {sW}, {swave}")
        E("s_cbranch_scc1 L_end")
        E("s_mov_b64 exec, 1")
        E("s_waitcnt lgkmcnt(0)")
        if dstamp:
            E("s_load_dwordx2 s[88:89], s[0:1], 88")
            E("s_mov_b32 s90, 256\ns_mov_b32 s91, 0x20000\ns_waitcnt lgkmcnt(0)")
            E("v_mov_b32 v6, 0")
            for i in range(13):
                E(f"v_mov_b32 v8, s{52+2*i}")
                E(f"buffer_atomic_umax v8, v6, s[88:91], 0 offen offset:{4*i} sc1")
                E("s_nop 1")
            E("s_not_b32 s48, s48")
            E("v_mov_b32 v8, s48")
            E(f"buffer_atomic_umax v8, v6, s[88:91], 0 offen offset:60 sc1")
            E("s_branch L_end")
        E(f"s_lshl_b32 {sT0}, s2, 7")
        E(f"s_add_u32 {sT0}, {sT0}, {WS_STAMP}")
        E("v_mov_b32 v6, 0")
        for i in range(13):
            E(f"v_mov_b32 v8, s{52+2*i}")
            E(f"v_mov_b32 v9, s{53+2*i}")
            E(f"buffer_store_dwordx2 v[8:9], v6, {rWS}, {sT0} offen offset:{8*i}")
            E("s_nop 1")
    E.label("L_end")
    E("s_endpgm")
    E.raw(f'.section .rodata,"a"\n.p2align 6\n.amdhsa_kernel {KN}')
    E.raw("  .amdhsa_next_free_vgpr 256\n  .amdhsa_next_free_sgpr 102\n  .amdhsa_accum_offset 256\n  .amdhsa_group_segment_fixed_size 0\n  .amdhsa_kernarg_size 104\n  .amdhsa_user_sgpr_count 2\n  .amdhsa_user_sgpr_kernarg_segment_ptr 1\n  .amdhsa_system_sgpr_workgroup_id_x 1\n  .amdhsa_float_denorm_mode_32 3\n.end_amdhsa_kernel")
    return E.text()

if __name__ == "__main__":
    import argparse, inspect
    ap = argparse.ArgumentParser()
    ap.add_argument("out")
    for n, p in inspect.signature(gen).parameters.items():
        if n == "stamps": ap.add_argument("--stamps", default="")
        else: ap.add_argument("--"+n, type=type(p.default), default=p.default)
    a = vars(ap.parse_args())
    out = a.pop("out")
    a["stamps"] = a["stamps"].split(",") if a["stamps"] else None
    open(out, "w").write(gen(**a))
```

```python
import sys, math, struct
from emit import Emit
KN = "adaLN_cond__gqa_block_cached__dense_activation_relu__decode_kernel"

WS_EPOCH = 0x0
WS_MODG  = 0x1000
WS_CLR   = 0xC000
WS_STAT  = 0x8000
WS_AO    = 0x10000
WS_PART  = 0x20000
WS_MO    = 0xA0000
WS_EP    = 0xC0000
WS_QG    = WS_MODG + 48*256
WS_STAMP = 0x8000000
L_STATS = 0
L_CNT   = 256
L_FAC   = 384
L_WB    = 512
L_WE    = 1536
L_X2    = 2048
L_RED   = 4096
L_ACT   = 6144
L_ORED  = 8192
L_MOD   = 24576
L_WM    = 32768
L_WT    = 65536

DPPM = "row_mask:0xf bank_mask:0xf"
def f32bits(x): return struct.unpack("<I", struct.pack("<f", x))[0]

def gen(depth=6, kvflags="nt", wflags="", stamps=None, swave=0, tpwo=4, mlearly=2, slp=2, slpa=0, slpb=0, codepf=2, dbg="",
        k1=2, k2=3, slpq=4, prio=3, fixt=0, jml=24, fast=1, rate=1, cdelay=14, ewt=1, reclr=0, perm=1):
    E = Emit()
    L_WO = L_WT + 65536
    LDS_BYTES = max(L_WT + 65536, L_WO + 32768)
    sW, sG, sJ, sTAG, sSPIN = "s3", "s4", "s5", "s6", "s7"
    rK, rV, rWS, rWT, rW2, rX, rC, rOUT = [f"s[{i}:{i+3}]" for i in range(8, 40, 4)]
    rWO = "s[84:87]"
    sSELLO, sSELHI, sC, sBASE, sM, sT0, sT1, sT2 = "s78", "s79", "s80", "s81", "s82", "s83", "s100", "s101"
    sA, sPL, sPUB, sLAST, sU, sU16, sT3, sT4, sEP = "s40", "s41", "s42", "s95", "s98", "s99", "s96", "s97", "s93"
    sPP, sGA0, sGA1, sLD, sML, sXCC, sAOP = "s43", "s44", "s45", "s46", "s47", "s91", "s92"
    vLANE, vK, vV = "v1", "v2", "v3"
    Q0 = 16
    T0, T1, T2, T3 = 28, 29, 30, 31
    S = [32 + 32*i for i in range(7)]
    def stamp(i):
        if stamps and str(i) in stamps:
            k = stamps.index(str(i))
            E(f"s_memrealtime s[{52+2*k}:{53+2*k}]")
    vm = []
    def vmop(tag, text):
        E(text); vm.append(tag)
    def vmwait(tag):
        idx = [i for i, t in enumerate(vm) if t == tag][-1]
        E(f"s_waitcnt vmcnt({min(len(vm) - 1 - idx, 62)})")
    def spin_check(lbl_loop):
        E(f"s_sub_u32 {sSPIN}, {sSPIN}, 1")
        E(f"s_cbranch_scc0 {lbl_loop}")
        E(f"s_branch L_end")
    PRI = {1: {("k",0):3, ("k",2):2, ("v",0):1, ("v",2):0}, 2: {("k",0):3, ("v",0):2, ("v",2):1}, 3: {("k",0):3, ("k",3):2, ("v",2):1}, 0: {}}[prio]
    def load_tile(kind, T, slot, dep, tag, mid=None, lo=0, hi=8, setp=True):
        srd = rK if kind == "k" else rV
        va = vK if kind == "k" else vV
        if setp and lo == 0 and (kind, T) in PRI: E(f"s_setprio {PRI[(kind, T)]}")
        for i in range(lo, hi):
            if i == 4 and mid: mid()
            if i == 0 or i == 4: E(f"s_add_u32 {sLD}, {sBASE}, {T*0x200000 + (i//4)*4096}")
            if dep and len(vm) >= dep: E(f"s_waitcnt vmcnt({dep-1})")
            r = S[slot] + i*4
            vmop(tag, f"buffer_load_dwordx4 v[{r}:{r+3}], {va}, {srd}, {sLD} offen offset:{(i%4)*1024} {kvflags}")
    def red_rows(op, regs, tmp):
        for sw in ("v_permlane16_swap_b32", "v_permlane32_swap_b32"):
            for i, r in enumerate(regs): E(f"v_mov_b32 v{tmp+i}, v{r}")
            for i, r in enumerate(regs): E(f"{sw} v{r}, v{tmp+i}")
            for i, r in enumerate(regs): E(f"{op} v{r}, v{r}, v{tmp+i}")
    def red_ror(op, regs, rors):
        for k in rors:
            for r in regs: E(f"{op}_dpp v{r}, v{r}, v{r} row_ror:{k} {DPPM}")
    def tred4(a0, a1, a2, a3):
        E(f"v_permlane16_swap_b32 v{a0}, v{a1}")
        E(f"v_permlane16_swap_b32 v{a2}, v{a3}")
        E(f"v_add_f32 v{a0}, v{a0}, v{a1}")
        E(f"v_add_f32 v{a2}, v{a2}, v{a3}")
        E(f"v_permlane32_swap_b32 v{a0}, v{a2}")
        E(f"v_add_f32 v{a0}, v{a0}, v{a2}")
    def rb1(dst, src):
        E(f"v_cvt_pk_bf16_f32 v{dst}, v{src}, v{src}")
        E(f"v_lshlrev_b32 v{dst}, 16, v{dst}")
    def rb2(d0, d1, s0, s1, t):
        E(f"v_cvt_pk_bf16_f32 v{t}, v{s0}, v{s1}")
        E(f"v_lshlrev_b32 v{d0}, 16, v{t}")
        E(f"v_and_b32 v{d1}, 0xffff0000, v{t}")
    def tagcheck(regs, t):
        regs = [f"v{r}" for r in regs] + [sTAG]
        if len(regs) % 2 == 0: regs.insert(0, regs[0])
        E(f"v_max3_u32 v{t}, {regs[0]}, {regs[1]}, {regs[2]}")
        E(f"v_min3_u32 v{t+1}, {regs[0]}, {regs[1]}, {regs[2]}")
        for i in range(3, len(regs), 2):
            E(f"v_max3_u32 v{t}, v{t}, {regs[i]}, {regs[i+1]}")
            E(f"v_min3_u32 v{t+1}, v{t+1}, {regs[i]}, {regs[i+1]}")
        E(f"v_cmp_ne_u32 vcc, v{t}, v{t+1}")
    def maxall(regs, t):
        regs = list(regs)
        E(f"v_max3_u32 v{t}, v{regs[0]}, v{regs[1]}, v{regs[2]}")
        i = 3
        while i + 1 < len(regs):
            E(f"v_max3_u32 v{t}, v{t}, v{regs[i]}, v{regs[i+1]}"); i += 2
        if i < len(regs): E(f"v_max_u32 v{t}, v{t}, v{regs[i]}")
    def pollloop(name, load1, groups, tmp, sl):
        n = len(groups)
        E.label(f"L_poll{name}")
        E(f"s_waitcnt vmcnt(0)")
        for i, g in enumerate(groups): maxall(g, tmp+i)
        if n == 2: E(f"v_max_u32 v6, v{tmp}, v{tmp+1}")
        else: maxall(range(tmp, tmp+n), 6)
        E(f"v_cmp_eq_u32 vcc, -1, v6")
        E(f"s_cbranch_vccz L_got{name}")
        if sl: E(f"s_sleep {sl}")
        for i in range(n):
            E(f"v_cmp_eq_u32 vcc, -1, v{tmp+i}")
            E(f"s_mov_b64 exec, vcc")
            load1(i)
            E("s_mov_b64 exec, -1")
        spin_check(f"L_poll{name}")
        E.label(f"L_got{name}")
    def mktag():
        E("s_waitcnt lgkmcnt(0)")
        E(f"s_mul_i32 {sTAG}, {sEP}, 0x9E3779B1")
        E(f"s_add_u32 {sTAG}, {sTAG}, 0x7F4A7C15")
    def slice_dma(srd, rowb, soff, lds, n=2):
        if rowb & (rowb-1) == 0: E(f"v_lshl_add_u32 v{T2}, v{T0}, {rowb.bit_length()-1}, v{T1}")
        else:
            E(f"v_mul_u32_u24 v{T2}, {rowb}, v{T0}")
            E(f"v_add_u32 v{T2}, v{T2}, v{T1}")
        E(f"v_xor_b32 v{T3}, 64, v{T2}")
        E(f"s_mul_i32 {sT1}, {sW}, {8*n*rowb}")
        E(f"s_add_u32 {soff}, {soff}, {sT1}")
        E(f"s_mul_i32 {sT1}, {sW}, {1024*n}")
        E(f"s_add_u32 m0, {sT1}, {lds}")
        for i in range(n):
            E(f"buffer_load_dwordx4 v{T2 + i%2}, {srd}, {soff} offen {wflags} lds")
            if i < n-1:
                E(f"s_add_u32 {soff}, {soff}, {8*rowb}")
                E(f"s_add_u32 m0, m0, 1024")
    def part_rows(va, vt):
        E(f"v_lshrrev_b32 v{vt}, 4, {vLANE}")
        E(f"v_lshlrev_b32 v{va}, 13, v{vt}")
        if perm: E(f"v_xor_b32 v{vt}, {sJ}, v{vt}")
        else: E(f"v_mov_b32 v{vt}, {sJ}")
        E(f"v_lshl_add_u32 v{va}, v{vt}, 8, v{va}")
        E(f"v_and_b32 v{vt}, 15, {vLANE}")
        E(f"v_lshl_add_u32 v{va}, v{vt}, 4, v{va}")
        E(f"s_lshl_b32 {sT0}, {sG}, 15")
        E(f"s_add_u32 {sT0}, {sT0}, {WS_PART}")
    def slice_prep():
        E(f"v_lshrrev_b32 v{T0}, 3, {vLANE}")
        E(f"v_and_b32 v{T1}, 2, v{T0}")
        E(f"v_and_b32 v{T2}, 7, {vLANE}")
        E(f"v_xor_b32 v{T1}, v{T2}, v{T1}")
        E(f"v_lshlrev_b32 v{T1}, 4, v{T1}")

    hdr = []
    hdr.append(f"; @launch grid=(256,1,1) block=(512,1,1) lds={LDS_BYTES}")
    hdr.append('.amdgcn_target "amdgcn-amd-amdhsa--gfx950"\n.text')
    hdr.append(f".globl {KN}\n.p2align 8\n.type {KN},@function\n{KN}:")
    E.raw("\n".join(hdr))
    E("s_cmp_ge_u32 s2, 256")
    E("s_cbranch_scc1 L_end")
    if fixt: E("s_memrealtime s[48:49]")
    E("s_load_dwordx16 s[52:67], s[0:1], 0")
    E("s_load_dwordx8 s[68:75], s[0:1], 64")
    E("s_load_dwordx2 s[76:77], s[0:1], 96")
    E(f"v_lshrrev_b32 v4, 6, v0")
    E(f"v_and_b32 {vLANE}, 63, v0")
    E(f"v_readfirstlane_b32 {sW}, v4")
    E(f"s_and_b32 {sG}, s2, 7")
    E(f"s_lshr_b32 {sJ}, s2, 3")
    if codepf:
        E(f"s_cmp_lt_u32 {sJ}, {32-codepf}")
        E("s_cbranch_scc1 L_nopf")
        E("s_getpc_b64 s[88:89]")
        E.raw("L_pc:")
        E(f"v_lshlrev_b32 v6, 4, v0")
        E(f"v_mov_b32 v9, s89")
        E(f"v_add_co_u32 v8, vcc, s88, v6")
        E(f"v_addc_co_u32 v9, vcc, 0, v9, vcc")
        for i in range(3):
            E(f"v_cmp_gt_i32 vcc, L_end-L_pc-{8192*i}-16, v6")
            E(f"s_and_b64 exec, exec, vcc")
            E(f"s_cbranch_execz L_pfdone")
            E(f"global_load_dwordx4 v[24:27], v[8:9], off")
            if i < 2:
                E(f"v_add_co_u32 v8, vcc, 0x2000, v8")
                E(f"v_addc_co_u32 v9, vcc, 0, v9, vcc")
        E.label("L_pfdone")
        E("s_mov_b64 exec, -1")
        E.label("L_nopf")
    slice_prep()
    E(f"s_lshr_b32 {sA}, {sG}, 1")
    E(f"s_lshl_b32 {sT0}, {sJ}, 2")
    E(f"s_add_u32 {sA}, {sA}, {sT0}")
    E(f"s_add_u32 {sT0}, {sA}, 128")
    E(f"s_bitcmp1_b32 {sG}, 0")
    E(f"s_cselect_b32 {sA}, {sT0}, {sA}")
    E(f"s_mov_b32 s23, 0x20000")
    E(f"s_lshr_b32 {sT3}, {sA}, 1")
    E(f"s_lshl_b32 {sT3}, {sT3}, 7")
    E(f"s_and_b32 {sT2}, {sA}, 1")
    E(f"v_lshlrev_b32 {vV}, 4, {vLANE}")
    E(f"v_and_b32 v4, 12, {vLANE}")
    E(f"v_lshlrev_b32 {vK}, 6, v4")
    E(f"v_lshrrev_b32 v4, 4, {vLANE}")
    E(f"v_lshl_add_u32 {vK}, v4, 6, {vK}")
    E(f"v_and_b32 v4, 3, {vLANE}")
    E(f"v_lshl_add_u32 {vK}, v4, 4, {vK}")
    E(f"s_lshl_b32 {sBASE}, {sG}, 23")
    E(f"s_lshl_b32 {sT0}, {sJ}, 3")
    E(f"s_add_u32 {sT0}, {sT0}, {sW}")
    E(f"s_lshl_b32 {sT0}, {sT0}, 13")
    E(f"s_add_u32 {sBASE}, {sBASE}, {sT0}")
    for d, z in ((8, 0x4000000), (12, 0x4000000), (16, 0x10000000), (24, 512*1792*2), (28, 1024), (32, 1024), (36, 1024)):
        E(f"s_mov_b32 s{d+2}, {z:#x}")
    for d in (8, 12, 16, 24, 28, 32, 36): E(f"s_mov_b32 s{d+3}, 0x20000")
    E(f"v_mov_b32 v5, {L_CNT}")
    for r in range(20, 24): E(f"v_mov_b32 v{r}, 0")
    E(f"ds_write_b128 v5, v[20:23]")
    E("s_setprio 3")
    E("s_waitcnt lgkmcnt(0)")
    E("s_mov_b64 s[8:9], s[54:55]")
    E(f"s_cmp_ge_u32 {sA}, 96")
    E("s_cbranch_scc1 L_eq")
    E("s_mov_b64 s[20:21], s[70:71]")
    E(f"s_mov_b32 s22, {512*3072*2}")
    E(f"s_mul_i32 {sT0}, {sT2}, {256*6144}")
    E(f"s_add_u32 {sT3}, {sT3}, {sT0}")
    slice_dma(rWT, 6144, sT3, L_WM, 4)
    E("s_branch L_ed")
    E.label("L_eq")
    E(f"s_cmp_ge_u32 {sA}, 224")
    E("s_cbranch_scc1 L_ed")
    E("s_mov_b64 s[20:21], s[58:59]")
    E(f"s_mov_b32 s22, {512*4096*2}")
    E(f"s_lshl_b32 {sT0}, {sT2}, 21")
    E(f"s_add_u32 {sT3}, {sT3}, {sT0}")
    E(f"s_sub_u32 {sT3}, {sT3}, {48*128}")
    slice_dma(rWT, 8192, sT3, L_WM, 4)
    E.label("L_ed")
    E(f"s_load_dword {sEP}, s[76:77], {WS_EPOCH}")
    for d, sr in ((28, 52), (32, 68), (16, 76), (12, 56), (24, 66), (36, 72), (84, 60), (20, 64)):
        E(f"s_mov_b64 s[{d}:{d+1}], s[{sr}:{sr+1}]")
    E(f"s_mov_b32 s22, {512*1792*2}")
    stamp(0)
    E("s_barrier")
    def late_setup():
        E(f"s_mov_b32 {sSELLO}, 0x05040100")
        E(f"s_mov_b32 {sSELHI}, 0x07060302")
        E(f"s_mov_b32 {sC}, {f32bits(math.log2(math.e)):#x}")
        E(f"s_mov_b32 {sSPIN}, 0x40000")
        E(f"s_getreg_b32 {sXCC}, hwreg(HW_REG_XCC_ID)")
        E(f"s_sub_u32 {sT0}, {sJ}, {jml}")
        E(f"s_cmp_lt_u32 {sT0}, 7")
        E(f"s_cselect_b32 {sML}, 1, 0")
        E(f"s_mul_i32 {sM}, {sG}, 7")
        E(f"s_add_u32 {sM}, {sM}, {sT0}")
        E(f"s_lshl_b32 {sPUB}, {sM}, 11")
        E(f"s_add_u32 {sPUB}, {sPUB}, {WS_MO}")
        E(f"s_cmp_lt_u32 {sJ}, 16")
        E(f"s_cselect_b32 s86, {512*4096*2}, 0")
        E(f"s_mov_b32 s87, 0x20000")
        E(f"s_lshl_b32 {sAOP}, {sG}, 12")
        E(f"s_lshl_b32 {sT0}, {sJ}, 8")
        E(f"s_add_u32 {sAOP}, {sAOP}, {sT0}")
        E(f"s_add_u32 {sAOP}, {sAOP}, {WS_AO}")
    E(f"s_cmp_lt_u32 {sA}, 224")
    E(f"s_cselect_b32 {sT0}, {sW}, 1")
    E(f"s_cmp_eq_u32 {sT0}, 0")
    E("s_cbranch_scc1 L_aux")
    NPRE = 4
    load_tile("k", 0, 0, 0, "K0", hi=NPRE)
    late_setup()
    E(f"v_mov_b32 v19, 1")
    E("s_mov_b64 exec, 1")
    E(f"s_waitcnt vmcnt({NPRE})")
    E(f"ds_add_u32 v5, v19 offset:4")
    E("s_mov_b64 exec, -1")
    E("s_branch L_stream")

    def w1_dma():
        E(f"v_lshrrev_b32 v{T0}, 2, {vLANE}")
        E(f"v_mul_u32_u24 v{T0}, 3584, v{T0}")
        E(f"v_and_b32 v{T1}, 3, {vLANE}")
        E(f"v_lshl_add_u32 v{T0}, v{T1}, 4, v{T0}")
        E(f"s_mul_i32 {sT0}, {sW}, {16*3584}")
        E(f"s_lshl_b32 {sT1}, {sM}, 6")
        E(f"s_add_u32 {sT0}, {sT0}, {sT1}")
        E(f"s_lshl_b32 {sT3}, {sW}, 13")
        E(f"s_add_u32 m0, {sT3}, {L_WT}")
        for i in range(4):
            E(f"buffer_load_dwordx4 v{T0}, {rWT}, {sT0} offen {wflags} lds")
            if i < 3:
                E(f"s_add_u32 {sT0}, {sT0}, {128*3584}")
                E(f"s_add_u32 m0, m0, 1024")
    def w2_dma():
        E(f"v_lshrrev_b32 v{T0}, 3, {vLANE}")
        E(f"v_and_b32 v{T1}, 7, {vLANE}")
        E(f"v_lshlrev_b32 v{T1}, 4, v{T1}")
        E(f"v_lshl_add_u32 v{T0}, v{T0}, 10, v{T1}")
        E(f"s_lshl_b32 {sT0}, {sM}, 15")
        E(f"s_lshl_b32 {sT1}, {sW}, 7")
        E(f"s_add_u32 {sT0}, {sT0}, {sT1}")
        E(f"s_lshl_b32 {sT3}, {sW}, 13")
        E(f"s_add_u32 m0, {sT3}, {L_WT + 4096}")
        for i in range(4):
            E(f"buffer_load_dwordx4 v{T0}, {rW2}, {sT0} offen {wflags} lds")
            if i < 3:
                E(f"s_add_u32 {sT0}, {sT0}, 8192")
                E(f"s_add_u32 m0, m0, 1024")
    def tail_dma(pos):
        if tpwo != pos: return
        u = len(E.L)
        if mlearly:
            E(f"s_cmp_eq_u32 {sML}, 0")
            E(f"s_cbranch_scc1 L_ta{u}")
            (w1_dma if mlearly == 1 else w2_dma)()
            E(f"s_branch L_tb{u}")
            E.label(f"L_ta{u}")
        slice_prep()
        E(f"s_lshl_b32 {sT0}, {sG}, 19")
        E(f"s_lshr_b32 {sT1}, {sJ}, 3")
        E(f"s_lshl_b32 {sT1}, {sT1}, 18")
        E(f"s_add_u32 {sT0}, {sT0}, {sT1}")
        E(f"s_and_b32 {sT1}, {sJ}, 7")
        E(f"s_lshl_b32 {sT1}, {sT1}, 7")
        E(f"s_add_u32 {sT0}, {sT0}, {sT1}")
        slice_dma(rWO, 1024, sT0, L_WO, 4)
        E.label(f"L_tb{u}")
        vm.extend(["WO"]*4)

    E.label("L_aux")
    CR = 8; XQ = 12; TRA = 16; XF = 20
    G6 = S[6]; AD = S[6] + 16
    E(f"v_and_b32 v4, 31, {vLANE}")
    E(f"v_lshlrev_b32 v4, 4, v4")
    E(f"v_lshlrev_b32 v6, 2, {vLANE}")
    E(f"s_lshl_b32 {sT0}, {sT2}, 9")
    E(f"s_cmp_ge_u32 {sA}, 96")
    E("s_cbranch_scc1 L_ax")
    E(f"buffer_load_dwordx4 v[{CR}:{CR+3}], v4, {rC}, {sT0} offen")
    E("s_branch L_ay")
    E.label("L_ax")
    E(f"buffer_load_dwordx4 v[{CR}:{CR+3}], {vV}, {rX}, 0 offen")
    E(f"buffer_load_dword v{XQ}, v6, {rX}, {sT0} offen")
    E(f"buffer_load_dword v{XQ+1}, v6, {rX}, {sT0} offen offset:256")
    E.label("L_ay")
    late_setup()
    E(f"v_lshrrev_b32 v{T0}, 4, {vLANE}")
    E(f"v_bfe_u32 v{T1}, {vLANE}, 2, 2")
    E(f"v_lshl_add_u32 v{T2}, v{T0}, 3, v{T1}")
    E(f"v_lshlrev_b32 v{T2}, 7, v{T2}")
    E(f"v_and_b32 v{T3}, 3, {vLANE}")
    E(f"v_lshl_add_u32 v{T2}, v{T3}, 3, v{T2}")
    E(f"v_bfe_u32 v{T1}, {vLANE}, 3, 2")
    E(f"v_lshl_add_u32 v{TRA}, v{T1}, 5, v{T2}")
    for nt in range(1, 4): E(f"v_xor_b32 v{TRA+nt}, {nt*32}, v{TRA}")
    vAR = 7
    E(f"v_lshlrev_b32 v{vAR}, 4, v{T0}")
    E("s_waitcnt vmcnt(0)")
    mktag()
    stamp("a0")
    for p in range(4):
        E(f"v_lshlrev_b32 v{XF+2*p}, 16, v{CR+p}")
        E(f"v_and_b32 v{XF+2*p+1}, 0xffff0000, v{CR+p}")
    E(f"s_cmp_ge_u32 {sA}, 96")
    E("s_cbranch_scc1 L_auxq")
    E(f"s_mov_b32 {sT0}, {f32bits(-math.log2(math.e)):#x}")
    for i in range(8): E(f"v_mul_f32 v{G6+i}, {sT0}, v{XF+i}")
    for i in range(8): E(f"v_exp_f32 v{G6+i}, v{G6+i}")
    for i in range(8): E(f"v_add_f32 v{G6+i}, 1.0, v{G6+i}")
    for i in range(8): E(f"v_rcp_f32 v{G6+i}, v{G6+i}")
    for i in range(8): E(f"v_mul_f32 v{XF+i}, v{XF+i}, v{G6+i}")
    for p in range(4): E(f"v_cvt_pk_bf16_f32 v{CR+p}, v{XF+2*p}, v{XF+2*p+1}")
    E(f"ds_write_b128 v4, v[{CR}:{CR+3}] offset:{L_ACT}")
    E("s_branch L_gemv")
    E.label("L_auxq")
    for T in range(k1): load_tile("k", T, T, 0, f"K{T}", setp=False)
    m, v, t = 8, 9, 10
    vals = list(range(XF, XF+8))
    E(f"v_add_f32 v{m}, v{vals[0]}, v{vals[1]}")
    for r in vals[2:]: E(f"v_add_f32 v{m}, v{m}, v{r}")
    red_ror("v_add_f32", [m], (1, 2, 4, 8)); red_rows("v_add_f32", [m], t)
    E(f"v_mul_f32 v{m}, {f32bits(1.0/512):#x}, v{m}")
    for i, r in enumerate(vals):
        E(f"v_sub_f32 v{t}, v{r}, v{m}")
        E(f"v_mul_f32 v{v}, v{t}, v{t}" if i == 0 else f"v_fmac_f32 v{v}, v{t}, v{t}")
    red_ror("v_add_f32", [v], (1, 2, 4, 8)); red_rows("v_add_f32", [v], t)
    E(f"v_mul_f32 v{v}, {f32bits(1.0/512):#x}, v{v}")
    rb2(m, v, m, v, t)
    E(f"v_add_f32 v{v}, {f32bits(1e-5):#x}, v{v}")
    rb1(v, v)
    E(f"v_sqrt_f32 v{v}, v{v}")
    rb1(v, v)
    E(f"v_rcp_f32 v{v}, v{v}")
    for u in range(2):
        n0, n1 = XF+2*u, XF+2*u+1
        E(f"v_lshlrev_b32 v{n0}, 16, v{XQ+u}")
        E(f"v_and_b32 v{n1}, 0xffff0000, v{XQ+u}")
        E(f"v_sub_f32 v{n0}, v{n0}, v{m}")
        E(f"v_sub_f32 v{n1}, v{n1}, v{m}")
        rb2(n0, n1, n0, n1, t)
        E(f"v_mul_f32 v{n0}, v{n0}, v{v}")
        E(f"v_mul_f32 v{n1}, v{n1}, v{v}")
        rb2(n0, n1, n0, n1, t)
    E(f"v_lshrrev_b32 v{T0}, 5, {vLANE}")
    E(f"v_lshl_add_u32 v4, v{T0}, 10, v4")
    E(f"s_lshl_b32 {sT4}, {sT2}, 12")
    E(f"s_add_u32 {sT4}, {sT4}, {WS_EP}")
    E(f"s_add_u32 {sT3}, {sT4}, 8192")
    E.label("L_pollmod")
    for arr in range(2):
        for u in range(2):
            for part in range(2):
                r = G6 + (arr*4 + u*2 + part)*4
                E(f"buffer_load_dwordx4 v[{r}:{r+3}], v4, {rWS}, {sT3 if arr else sT4} offen offset:{u*2048 + part*512} sc1")
    E("s_waitcnt vmcnt(0)")
    tagcheck([G6+1+2*i for i in range(16)], T0)
    E("s_cbranch_vccz L_gotmod")
    if slp: E(f"s_sleep {slp}")
    spin_check("L_pollmod")
    E.label("L_gotmod")
    stamp(2)
    for u in range(2):
        n0, n1 = XF+2*u, XF+2*u+1
        s0 = G6 + u*8; s1 = s0+2; c0 = G6 + 16 + u*8; c1 = c0+2
        for r in (s0, s1, c0, c1): E(f"v_add_f32 v{r}, v{r}, v{r+4}")
        rb2(s0, s1, s0, s1, t); rb2(c0, c1, c0, c1, t)
        E(f"v_add_f32 v{c0}, 1.0, v{c0}")
        E(f"v_add_f32 v{c1}, 1.0, v{c1}")
        rb2(c0, c1, c0, c1, t)
        E(f"v_mul_f32 v{n0}, v{n0}, v{c0}")
        E(f"v_mul_f32 v{n1}, v{n1}, v{c1}")
        rb2(n0, n1, n0, n1, t)
        E(f"v_add_f32 v{n0}, v{n0}, v{s0}")
        E(f"v_add_f32 v{n1}, v{n1}, v{s1}")
        E(f"v_cvt_pk_bf16_f32 v{n0}, v{n0}, v{n1}")
        E(f"ds_write_b32 v6, v{n0} offset:{L_ACT + u*256}")
    E.label("L_gemv")
    E(f"ds_read_b32 v{T0}, v5 offset:4")
    E("s_waitcnt lgkmcnt(0)")
    E(f"v_readfirstlane_b32 {sT1}, v{T0}")
    E(f"s_cmp_lg_u32 {sT1}, 7")
    E(f"s_cbranch_scc1 L_gemv")
    stamp("a2")
    if stamps: E("s_waitcnt lgkmcnt(0)")
    def g_reads(st):
        b = S[4] + (st % 3)*20
        E(f"ds_read_b128 v[{b}:{b+3}], v{vAR} offset:{L_ACT + st*64}")
        for nt in range(4):
            for q in range(2):
                r = b + 4 + nt*4 + q*2
                E(f"ds_read_b64_tr_b16 v[{r}:{r+1}], v{TRA+nt} offset:{L_WM + st*4096 + q*512}")
    g_reads(0); g_reads(1)
    E(f"s_lshl_b32 {sT4}, {sA}, 9")
    E(f"s_add_u32 {sT4}, {sT4}, {WS_EP}")
    E(f"v_lshlrev_b32 v4, 3, {vLANE}")
    for st in range(8):
        E(f"s_waitcnt lgkmcnt({9 if st < 7 else 0})")
        if st + 2 < 8: g_reads(st+2)
        b = S[4] + (st % 3)*20
        for nt in range(4):
            d = AD + 4*nt
            c = "0" if st == 0 else f"v[{d}:{d+3}]"
            E(f"v_mfma_f32_16x16x32_bf16 v[{d}:{d+3}], v[{b}:{b+3}], v[{b+4+4*nt}:{b+7+4*nt}], {c}")
    E(f"v_mov_b32 v9, {sTAG}")
    for nt in range(1, 4):
        E(f"v_mov_b32_dpp v{AD}, v{AD+4*nt} quad_perm:[0,1,2,3] row_mask:{1<<nt:#x} bank_mask:0xf")
    E(f"v_mov_b32 v8, v{AD}")
    E(f"s_cmp_lt_u32 {sA}, 32")
    E(f"s_cselect_b32 {sT2}, 1, {sT2}")
    E(f"s_cmp_eq_u32 {sT2}, 0")
    E("s_cbranch_scc1 L_owner")
    E(f"buffer_store_dwordx2 v[8:9], v4, {rWS}, {sT4} offen sc1")
    stamp(1)
    E(f"s_cmp_ge_u32 {sA}, 96")
    E(f"s_cbranch_scc1 L_sk{k1}")
    E("s_branch L_sk0")
    E.label("L_owner")
    E(f"s_cmp_ge_u32 {sA}, 96")
    E(f"s_cbranch_scc1 L_own2")
    for T in range(k1): load_tile("k", T, T, 0, f"K{T}", setp=False)
    E.label("L_own2")
    for T in range(k1, k2): load_tile("k", T, T, 0, f"K{T}", setp=False)
    E.label("L_pollred")
    E(f"buffer_load_dwordx2 v[10:11], v4, {rWS}, {sT4} offen offset:512 sc1")
    E("s_waitcnt vmcnt(0)")
    E(f"v_cmp_ne_u32 vcc, {sTAG}, v11")
    E("s_cbranch_vccz L_gotred")
    spin_check("L_pollred")
    E.label("L_gotred")
    E(f"v_add_f32 v8, v8, v10")
    E(f"s_lshl_b32 {sT0}, {sA}, 7")
    E(f"s_add_u32 {sT0}, {sT0}, {WS_MODG}")
    E(f"v_mov_b32_dpp v10, v8 quad_perm:[1,1,3,3] {DPPM}")
    E(f"v_cvt_pk_bf16_f32 v8, v8, v10")
    E(f"s_mov_b32 exec_lo, 0x55555555")
    E(f"s_mov_b32 exec_hi, 0x55555555")
    E(f"buffer_store_dwordx2 v[8:9], v6, {rWS}, {sT0} offen sc1")
    E(f"s_mov_b64 exec, -1")
    stamp(3)
    E(f"s_branch L_sk{k2}")
    E.label("L_sk0")
    vm.clear()
    load_tile("k", 0, 0, 0, "K0", hi=NPRE)

    vm[:] = ["K0"]*NPRE
    E.label("L_stream")
    load_tile("k", 0, 0, depth, "K0", lo=NPRE)
    for r in range(20, 24): E(f"v_mov_b32 v{r}, -1")
    E(f"s_cmp_lg_u32 {sW}, 1")
    E("s_cbranch_scc1 L_noclr1")
    part_rows(18, 19)
    E(f"buffer_store_dwordx4 v[20:23], v18, {rWS}, {sT0} offen sc1")
    E(f"s_cmp_ge_u32 {sJ}, 16")
    E("s_cbranch_scc1 L_noclr2")
    E("s_mov_b64 exec, 0xffff")
    E(f"buffer_store_dwordx4 v[20:23], {vV}, {rWS}, {sAOP} offen sc1")
    E("s_mov_b64 exec, -1")
    E.label("L_noclr2")
    E(f"s_cmp_eq_u32 {sML}, 0")
    E("s_cbranch_scc1 L_noclr0")
    for i in range(2):
        E(f"buffer_store_dwordx4 v[20:23], {vV}, {rWS}, {sPUB} offen offset:{1024*i} sc1")
    E.label("L_noclr0")
    load_tile("k", 1, 1, depth, "K1", hi=4)
    mktag()
    E(f"s_lshl_b32 {sT0}, {sJ}, 3")
    E(f"s_lshl_b32 {sT1}, {sG}, 8")
    E(f"s_add_u32 {sT0}, {sT0}, {sT1}")
    E(f"v_mov_b32 v18, {WS_CLR}")
    E(f"v_mov_b32 v16, {sXCC}")
    E(f"v_mov_b32 v17, {sTAG}")
    E("s_mov_b64 exec, 1")
    E("s_waitcnt vmcnt(4)")
    E(f"buffer_store_dwordx2 v[16:17], v18, {rWS}, {sT0} offen sc1")
    E("s_mov_b64 exec, -1")
    E("s_branch L_k1b")
    E.label("L_noclr1")
    E.raw("L_sk1:")
    del vm[-4:]
    load_tile("k", 1, 1, depth, "K1", hi=4)
    mktag()
    E.label("L_k1b")
    load_tile("k", 1, 1, depth, "K1", lo=4)
    E.label("L_sk2")
    load_tile("k", 2, 2, depth, "K2")
    E.label("L_sk3")
    load_tile("k", 3, 3, depth, "K3")
    E.label("L_sk4")
    tail_dma(2)
    load_tile("v", 0, 4, depth, "V0")
    QP = 8
    def qpoll(first=True):
        if first:
            E(f"v_lshlrev_b32 v18, 1, {vK}")
            E(f"s_lshl_b32 {sT2}, {sG}, 11")
            E(f"s_add_u32 {sT2}, {sT2}, {WS_QG}")
            E(f"v_and_b32 v19, 15, {vLANE}")
            E(f"s_lshl_b32 {sT0}, {sG}, 8")
            E(f"s_add_u32 {sT0}, {sT0}, {WS_CLR}")
            E(f"v_lshl_add_u32 v19, v19, 4, {sT0}")
            E(f"v_mov_b32 v21, {sTAG}")
            E(f"v_mov_b32 v23, {sTAG}")
            E(f"v_lshrrev_b32 v17, 3, {vLANE}")
            E(f"v_lshlrev_b32 v17, 8, v17")
            E(f"v_and_b32 v4, 7, {vLANE}")
            E(f"v_lshl_add_u32 v17, v4, 4, v17")
            E(f"v_add_u32 v17, {WS_CLR}, v17")
            E(f"s_cmp_eq_u32 {sML}, 0")
            E("s_cbranch_scc1 L_nomdma")
            E(f"buffer_load_dwordx4 v[20:23], v17, {rWS}, 0 offen sc1")
            E(f"s_lshl_b32 {sT0}, {sW}, 10")
            E(f"s_add_u32 m0, {sT0}, {L_MOD}")
            E(f"s_add_u32 {sT0}, {sT0}, {WS_MODG + 4096}")
            E(f"buffer_load_dwordx4 {vV}, {rWS}, {sT0} offen sc1 lds")
            E.label("L_nomdma")
        else: E(f"buffer_load_dwordx4 v[20:23], v17, {rWS}, 0 offen sc1")
        f = (lambda t: vmop("Q", t)) if first else E
        f(f"buffer_load_dwordx4 v[{QP}:{QP+3}], v18, {rWS}, {sT2} offen sc1")
        f(f"buffer_load_dwordx4 v[{QP+4}:{QP+7}], v18, {rWS}, {sT2} offen offset:16 sc1")
        f(f"buffer_load_dwordx4 v[{T0}:{T3}], v19, {rWS}, 0 offen sc1")
    load_tile("v", 1, 5, depth, "V1", mid=qpoll)
    load_tile("v", 2, 6, depth, "V2", hi=2)
    stamp("q0")
    vmwait("Q")
    E.label("L_checkq")
    tagcheck([QP+1, QP+3, QP+5, QP+7, T1, T3, 21, 23], 6)
    E("s_branch L_gotq" if "q" in dbg else "s_cbranch_vccz L_gotq")
    if slpq: E(f"s_sleep {slpq}")
    qpoll(False)
    E("s_waitcnt vmcnt(0)")
    spin_check("L_checkq")
    E.label("L_gotq")
    stamp(4)
    E(f"v_xor_b32 v{T0}, {sXCC}, v{T0}")
    E(f"v_xor_b32 v{T2}, {sXCC}, v{T2}")
    E(f"v_or_b32 v{T0}, v{T0}, v{T2}")
    E(f"v_cmp_ne_u32 vcc, 0, v{T0}")
    for i in range(4): E(f"v_mov_b32 v{Q0+i}, v{QP+2*i}")
    E(f"s_cmp_eq_u64 vcc, 0")
    E(f"s_cselect_b32 {sPL}, {1 if fast else 0}, 0")
    def gstore(text):
        u = len(E.L)
        E(f"s_cmp_lg_u32 {sPL}, 0")
        E(f"s_cbranch_scc1 L_gs{u}")
        E(text + " sc1")
        E(f"s_branch L_gt{u}")
        E.raw(f"L_gs{u}:")
        E(text)
        E.raw(f"L_gt{u}:")
    def sc(T, i): return 20 + i if T == 0 else S[1] + 4*i + (T-1)
    SCR = [sc(T, i) for T in range(4) for i in range(8)]
    def s_tile(T):
        for i in range(8):
            r = S[T] + 4*i
            E(f"v_mfma_f32_16x16x32_bf16 v[{r}:{r+3}], v[{r}:{r+3}], v[{Q0}:{Q0+3}], 0")
        for c in range(4):
            for i in range(8):
                r = S[T] + 4*i; d = sc(T, i)
                if c == 0: E(f"v_mov_b32_dpp v{d}, v{r} quad_perm:[0,0,0,0] {DPPM}")
                else: E(f"v_add_f32_dpp v{d}, v{r+c}, v{d} quad_perm:[{c},{c},{c},{c}] {DPPM}")
    def s_round(T):
        rs = SCR[8*T:8*T+8]
        for i in range(0, 8, 2): rb2(rs[i], rs[i+1], rs[i], rs[i+1], T0 + i//2)
        for r in rs: E(f"v_mul_f32 v{r}, {sT1}, v{r}")
        for i in range(0, 8, 2): rb2(rs[i], rs[i+1], rs[i], rs[i+1], T0 + i//2)
    E(f"s_mov_b32 {sT1}, {f32bits(128.0**-0.5):#x}")
    nxt = [("v", 2, 6, i) for i in range(2, 8)] + [("v", 3, 0, i) for i in range(8)]
    def more(n):
        for _ in range(n*rate):
            if not nxt: return
            k, T, sl, i = nxt.pop(0)
            load_tile(k, T, sl, depth, f"V{T}", lo=i, hi=i+1)
    for T in range(4):
        s_tile(T); more(1)
        s_round(T); more(1 if T < 2 else 0)
    stamp("c0")
    MX, LS = 6, 7
    E(f"v_max3_f32 v{MX}, v{SCR[0]}, v{SCR[1]}, v{SCR[2]}")
    for i in range(3, 31, 2): E(f"v_max3_f32 v{MX}, v{MX}, v{SCR[i]}, v{SCR[i+1]}")
    E(f"v_max_f32 v{MX}, v{MX}, v{SCR[31]}")
    red_rows("v_max_f32", [MX], T0)
    E(f"v_mul_f32 v{MX}, {sC}, v{MX}")
    more(1)
    for r in SCR: E(f"v_fma_f32 v{r}, v{r}, {sC}, -v{MX}")
    more(1)
    for r in SCR: E(f"v_exp_f32 v{r}, v{r}")
    more(1)
    E(f"v_add_f32 v{LS}, v{SCR[0]}, v{SCR[1]}")
    E(f"v_add_f32 v{T0}, v{SCR[2]}, v{SCR[3]}")
    for i in range(4, 32, 2):
        E(f"v_add_f32 v{LS}, v{LS}, v{SCR[i]}")
        E(f"v_add_f32 v{T0}, v{T0}, v{SCR[i+1]}")
    E(f"v_add_f32 v{LS}, v{LS}, v{T0}")
    red_rows("v_add_f32", [LS], T0)
    E(f"v_and_b32 v{T0}, 12, {vLANE}")
    E(f"v_lshlrev_b32 v{T0}, 1, v{T0}")
    E(f"s_lshl_b32 {sT0}, {sW}, 5")
    E(f"v_add_u32 v{T0}, {sT0}, v{T0}")
    E(f"ds_write_b64 v{T0}, v[{MX}:{LS}] offset:{L_STATS}")
    E(f"v_mov_b32 v{T2}, 1")
    E("s_waitcnt lgkmcnt(0)")
    E("s_mov_b64 exec, 1")
    E(f"ds_add_rtn_u32 v{T2}, v5, v{T2}")
    E("s_mov_b64 exec, -1")
    PR = [8, 12, 20, 24]
    for T in range(4):
        for i in range(4): E(f"v_cvt_pk_bf16_f32 v{PR[T]+i}, v{SCR[8*T+2*i]}, v{SCR[8*T+2*i+1]}")
    more(1)
    E("s_waitcnt lgkmcnt(0)")
    E(f"v_readfirstlane_b32 {sLAST}, v{T2}")
    X = S[1]
    E(f"s_cmp_lg_u32 {sLAST}, 7")
    E("s_cbranch_scc1 L_nostat")
    E(f"v_and_b32 v{T0}, 31, {vLANE}")
    E(f"v_lshlrev_b32 v{T1}, 3, v{T0}")
    E(f"ds_read_b64 v[6:7], v{T1} offset:{L_STATS}")
    E(f"v_and_b32 v{T1}, 3, v{T0}")
    E(f"v_and_b32 v{T0}, 28, v{T0}")
    E(f"v_lshl_add_u32 v{T0}, v{T1}, 5, v{T0}")
    if perm: E(f"v_xor_b32 v{T2}, {sJ}, v{T1}")
    else: E(f"v_mov_b32 v{T2}, {sJ}")
    E(f"v_lshlrev_b32 v{T1}, 9, v{T1}")
    E(f"v_lshl_add_u32 v{T1}, v{T2}, 4, v{T1}")
    E("s_waitcnt lgkmcnt(0)")
    E(f"v_mov_b32 v16, v6")
    red_ror("v_max_f32", [16], (4, 8))
    E(f"v_mov_b32 v17, v16")
    E(f"v_permlane16_swap_b32 v16, v17")
    E(f"v_max_f32 v16, v16, v17")
    E(f"v_sub_f32 v6, v6, v16")
    E(f"v_exp_f32 v6, v6")
    E(f"v_mul_f32 v18, v6, v7")
    E(f"ds_write_b32 v{T0}, v6 offset:{L_FAC}")
    red_ror("v_add_f32", [18], (4, 8))
    E(f"v_mov_b32 v17, v18")
    E(f"v_permlane16_swap_b32 v18, v17")
    E(f"v_add_f32 v18, v17, v18")
    E(f"v_mov_b32 v17, {sTAG}")
    E(f"v_mov_b32 v19, {sTAG}")
    E(f"s_lshl_b32 {sT0}, {sG}, 11")
    E(f"s_add_u32 {sT0}, {sT0}, {WS_STAT}")
    E("s_mov_b64 exec, 15")
    gstore(f"buffer_store_dwordx4 v[16:19], v{T1}, {rWS}, {sT0} offen")
    E("s_mov_b64 exec, -1")
    if reclr:
        E(f"s_cmp_eq_u32 {sPL}, 0")
        E("s_cbranch_scc1 L_nostat")
        part_rows(6, 7)
        for r in (T0, T1, T2, T3): E(f"v_mov_b32 v{r}, -1")
        E(f"buffer_store_dwordx4 v[{T0}:{T3}], v6, {rWS}, {sT0} offen")
    E.label("L_nostat")
    stamp("c1")
    vGQ, vN, vCOL, vGAA, vCH, vU16, vOW, vT8, vL4, vGATH, vRR, vRW, vFR, vSTA, vWBW, vWBR = [X+i for i in range(16)]
    TRB = X+16; GA = X+20; GB = X+24; SP = X+24; XT = X+30; vWER = X+31
    def wcalc():
        E(f"v_mov_b32 v{T0}, v{SP}")
        red_ror("v_max_f32", [T0], (1, 2, 4, 8))
        E(f"v_mov_b32 v{T1}, v{T0}")
        E(f"v_permlane16_swap_b32 v{T0}, v{T1}")
        E(f"v_max_f32 v{T0}, v{T0}, v{T1}")
        E(f"v_sub_f32 v{SP}, v{SP}, v{T0}")
        E(f"v_exp_f32 v{SP}, v{SP}")
        E(f"v_mul_f32 v{T0}, v{SP}, v{SP+2}")
        red_ror("v_add_f32", [T0], (1, 2, 4, 8))
        E(f"v_mov_b32 v{T1}, v{T0}")
        E(f"v_permlane16_swap_b32 v{T0}, v{T1}")
        E(f"v_add_f32 v{T0}, v{T0}, v{T1}")
        E(f"v_rcp_f32 v{T0}, v{T0}")
        E(f"v_mul_f32 v{T0}, v{T0}, v{SP}")
    tail_dma(3)
    ACCO = S[2]; TP = S[3]
    first = [True]
    def pv_perm(slot, mm):
        for dw in range(4):
            a = S[slot] + (2*mm)*4 + dw; b = S[slot] + (2*mm+1)*4 + dw
            E(f"v_perm_b32 v{TP + (2*dw)*4 + mm}, v{b}, v{a}, {sSELLO}")
            E(f"v_perm_b32 v{TP + (2*dw+1)*4 + mm}, v{b}, v{a}, {sSELHI}")
    def pv_mfma(T):
        for e in range(8):
            c = "0" if first[0] else f"v[{ACCO+4*e}:{ACCO+4*e+3}]"
            E(f"v_mfma_f32_16x16x32_bf16 v[{ACCO+4*e}:{ACCO+4*e+3}], v[{PR[T]}:{PR[T]+3}], v[{TP+4*e}:{TP+4*e+3}], {c}")
        first[0] = False
    def pv(slot, T):
        for mm in range(4): pv_perm(slot, mm)
        pv_mfma(T)
    more(1)
    vmwait("V0"); pv(4, 0)
    more(1)
    vmwait("V1"); pv(5, 1)
    if ewt:
        E(f"s_cmp_lt_u32 {sJ}, 16")
        E(f"s_cselect_b32 {sLAST}, {sLAST}, 0")
        E(f"s_cmp_lg_u32 {sLAST}, 7")
        E("s_cbranch_scc1 L_noes")
        E(f"s_lshl_b32 {sT0}, {sG}, 11")
        E(f"s_lshr_b32 {sT1}, {sJ}, 3")
        E(f"s_lshl_b32 {sT1}, {sT1}, 10")
        E(f"s_add_u32 {sT0}, {sT0}, {sT1}")
        E(f"s_add_u32 {sT0}, {sT0}, {WS_STAT}")
        E(f"buffer_load_dwordx4 v[{SP}:{SP+3}], {vV}, {rWS}, {sT0} offen sc1")
        E.label("L_noes")
        assert len(nxt) == 2
    more(16)
    stamp("c3")
    if prio >= 2: E("s_setprio 0")
    tail_dma(4)
    if prio >= 2: E("s_setprio 3")
    vmwait("V2"); pv(6, 2)
    nyoung = len(vm) - 1 - [i for i, t in enumerate(vm) if t == "V3"][-1]
    WB = S[4]; SCF = S[5]; WT8 = S[5]; PK = S[5]+16; GBF = S[6]
    W1 = WB; W2 = WB+16
    E(f"v_lshrrev_b32 v{vGQ}, 4, {vLANE}")
    E(f"v_and_b32 v{vN}, 15, {vLANE}")
    E(f"s_lshl_b32 {sT0}, {sW}, 11")
    E(f"v_lshlrev_b32 v{vRR}, 5, {vLANE}")
    E(f"v_add_u32 v{vOW}, {sT0}, v{vRR}")
    E(f"v_lshlrev_b32 v{vT8}, 3, v0")
    E(f"v_lshlrev_b32 v{vL4}, 2, {vLANE}")
    E(f"s_lshl_b32 {sT1}, {sW}, 5")
    E(f"v_mov_b32 v{vFR}, {sT1}")
    E(f"v_bfe_u32 v{T1}, {vLANE}, 2, 2")
    E(f"v_lshl_add_u32 v{T2}, v{vGQ}, 3, v{T1}")
    E(f"v_lshlrev_b32 v{T2}, 7, v{T2}")
    E(f"v_and_b32 v{T3}, 3, {vLANE}")
    E(f"v_lshl_add_u32 v{T2}, v{T3}, 3, v{T2}")
    E(f"v_bfe_u32 v{T1}, {vLANE}, 3, 2")
    E(f"v_lshl_add_u32 v{T2}, v{T1}, 5, v{T2}")
    E(f"s_lshl_b32 {sT0}, {sW}, 12")
    E(f"s_add_u32 {sT0}, {sT0}, {L_WO}")
    E(f"v_add_u32 v{TRB}, {sT0}, v{T2}")
    for nt in range(1, 4): E(f"v_xor_b32 v{TRB+nt}, {nt*32}, v{TRB}")
    E(f"s_lshl_b32 {sT0}, {sG}, 2")
    E(f"s_add_u32 {sPP}, {sT0}, {sW}")
    E(f"s_lshl_b32 {sPP}, {sPP}, 13")
    if perm: E(f"s_xor_b32 {sT1}, {sJ}, {sW}")
    else: E(f"s_mov_b32 {sT1}, {sJ}")
    E(f"s_lshl_b32 {sT1}, {sT1}, 8")
    E(f"s_add_u32 {sPP}, {sPP}, {sT1}")
    E(f"s_add_u32 {sPP}, {sPP}, {WS_PART}")
    E(f"s_lshr_b32 {sT1}, {sJ}, 3")
    E(f"s_lshl_b32 {sT1}, {sT1}, 1")
    E(f"s_add_u32 {sGA0}, {sT0}, {sT1}")
    E(f"s_lshr_b32 {sT1}, {sW}, 2")
    E(f"s_add_u32 {sGA0}, {sGA0}, {sT1}")
    E(f"s_lshl_b32 {sT2}, {sGA0}, 9")
    E(f"s_add_u32 {sT2}, {sT2}, {WS_STAT}")
    E(f"s_lshl_b32 {sGA0}, {sGA0}, 13")
    E(f"s_and_b32 {sT1}, {sW}, 3")
    E(f"s_lshl_b32 {sT1}, {sT1}, 6")
    E(f"s_add_u32 {sGA0}, {sGA0}, {sT1}")
    E(f"s_add_u32 {sGA0}, {sGA0}, {WS_PART}")
    E(f"s_add_u32 {sGA1}, {sGA0}, 4096")
    E(f"v_and_b32 v{vSTA}, 31, {vLANE}")
    E(f"s_lshl_b32 {sT1}, {sW}, 7")
    E(f"v_lshl_add_u32 v{vWBW}, v{vSTA}, 2, {sT1}")
    E(f"v_lshl_add_u32 v{vWBR}, v{vGQ}, 4, {sT1}")
    E(f"v_lshlrev_b32 v{vSTA}, 4, v{vSTA}")
    E(f"s_lshr_b32 {sT1}, {sW}, 2")
    E(f"s_lshl_b32 {sT1}, {sT1}, 7")
    E(f"v_lshl_add_u32 v{vWER}, v{vGQ}, 4, {sT1}")
    E(f"v_lshlrev_b32 v{vGATH}, 8, v{vN}")
    E(f"v_lshl_add_u32 v{vGATH}, v{vGQ}, 4, v{vGATH}")
    E(f"s_lshl_b32 {sT1}, {sW}, 2")
    E(f"v_add_u32 v{vRW}, {sT1}, v{vRR}")
    E(f"s_waitcnt vmcnt({nyoung+4})")
    pv_perm(0, 0); pv_perm(0, 1)
    E(f"s_waitcnt vmcnt({nyoung+2})")
    pv_perm(0, 2)
    if ewt:
        E(f"s_cmp_lg_u32 {sLAST}, 7")
        E("s_cbranch_scc1 L_noew")
        tagcheck([SP+1, SP+3], 6)
        E("s_cbranch_vccnz L_noew")
        wcalc()
        E(f"ds_write_b32 v{vL4}, v{T0} offset:{L_WE}")
        E(f"ds_write_b32 v5, v5 offset:8")
        E.label("L_noew")
    E(f"s_waitcnt vmcnt({nyoung})")
    stamp(5)
    pv_perm(0, 3)
    pv_mfma(3)
    for e in range(8): E(f"v_mov_b32 v{PK+e}, v{ACCO+4*e}")
    E(f"ds_write_b128 v{vOW}, v[{PK}:{PK+3}] offset:{L_ORED}")
    E(f"ds_write_b128 v{vOW}, v[{PK+4}:{PK+7}] offset:{L_ORED+16}")
    E("s_waitcnt lgkmcnt(0)")
    E("s_barrier")
    E(f"s_cmp_ge_u32 {sW}, 4")
    E("s_cbranch_scc1 L_nopart")
    R0 = S[2]; FC = S[2]+16
    E(f"ds_read_b128 v[{FC}:{FC+3}], v{vFR} offset:{L_FAC}")
    E(f"ds_read_b128 v[{FC+4}:{FC+7}], v{vFR} offset:{L_FAC+16}")
    for w in range(8): E(f"ds_read_b64 v[{R0+2*w}:{R0+2*w+1}], v{vT8} offset:{L_ORED + w*2048}")
    for w in range(8):
        if w % 2 == 0: E(f"s_waitcnt lgkmcnt({6-w})")
        a = PK + 2*(w % 2)
        op = "v_mul_f32" if w < 2 else "v_fmac_f32"
        E(f"{op} v{a}, v{R0+2*w}, v{FC+w}")
        E(f"{op} v{a+1}, v{R0+2*w+1}, v{FC+w}")
    E(f"v_pk_add_f32 v[{PK}:{PK+1}], v[{PK}:{PK+1}], v[{PK+2}:{PK+3}]")
    E(f"v_cvt_pk_bf16_f32 v{PK}, v{PK}, v{PK+1}")
    E(f"v_min_u32 v{PK}, -2, v{PK}")
    gstore(f"buffer_store_dword v{PK}, v{vL4}, {rWS}, {sPP} offen")
    E.label("L_nopart")
    stamp(6)
    E(f"s_cmp_lg_u32 {sML}, 0")
    E("s_cbranch_scc1 L_stageb")
    E(f"s_cmp_ge_u32 {sJ}, 16")
    E("s_cbranch_scc1 L_fin")
    GA_ = S[3]
    def a_load(i): E(f"buffer_load_dwordx4 v[{GA_+4*i}:{GA_+4*i+3}], v{vGATH}, {rWS}, {sGA1 if i else sGA0} offen {'nt' if 'n' in dbg else 'sc1'}")
    def a_loads(): a_load(0); a_load(1)
    a_loads()
    if ewt:
        E(f"ds_read_b32 v{T0}, v5 offset:8")
        E(f"ds_read_b128 v[{WT8}:{WT8+3}], v{vWER} offset:{L_WE}")
        E(f"ds_read_b128 v[{WT8+4}:{WT8+7}], v{vWER} offset:{L_WE+64}")
        E("s_waitcnt lgkmcnt(0)")
        E(f"v_readfirstlane_b32 {sT0}, v{T0}")
        E(f"s_cmp_lg_u32 {sT0}, 0")
        E("s_cbranch_scc1 L_havew")
    E.label("L_statchk")
    E(f"buffer_load_dwordx4 v[{SP}:{SP+3}], v{vSTA}, {rWS}, {sT2} offen sc1")
    E("s_waitcnt vmcnt(0)")
    tagcheck([SP+1, SP+3], 6)
    E("s_cbranch_vccz L_gotstat")
    if slp: E(f"s_sleep {slp}")
    spin_check("L_statchk")
    E.label("L_gotstat")
    wcalc()
    E(f"ds_write_b32 v{vWBW}, v{T0} offset:{L_WB}")
    E("s_waitcnt lgkmcnt(0)")
    E(f"ds_read_b128 v[{WT8}:{WT8+3}], v{vWBR} offset:{L_WB}")
    E(f"ds_read_b128 v[{WT8+4}:{WT8+7}], v{vWBR} offset:{L_WB+64}")
    E.label("L_havew")
    E("s_waitcnt vmcnt(2)")
    for nt in range(4):
        for q in range(2): E(f"ds_read_b64_tr_b16 v[{WB+4*nt+2*q}:{WB+4*nt+2*q+1}], v{TRB+nt} offset:{q*512}")
    stamp("w1")
    pollloop("a", a_load, [range(GA_, GA_+4), range(GA_+4, GA_+8)], T0, slpa)
    stamp(7)
    E("s_waitcnt lgkmcnt(0)")
    D = S[2]
    for half in range(2):
        for nt in range(4):
            d = D + half*16 + 4*nt
            E(f"v_mfma_f32_16x16x32_bf16 v[{d}:{d+3}], v[{GA_+4*half}:{GA_+4*half+3}], v[{WB+4*nt}:{WB+4*nt+3}], 0")
    for nt in range(4): E(f"v_pk_mul_f32 v[{D+4*nt}:{D+4*nt+1}], v[{D+4*nt}:{D+4*nt+1}], v[{WT8}:{WT8+1}]")
    for nt in range(4): E(f"v_pk_fma_f32 v[{D+4*nt}:{D+4*nt+1}], v[{D+4*nt+2}:{D+4*nt+3}], v[{WT8+2}:{WT8+3}], v[{D+4*nt}:{D+4*nt+1}]")
    for nt in range(4): E(f"v_pk_fma_f32 v[{D+4*nt}:{D+4*nt+1}], v[{D+16+4*nt}:{D+16+4*nt+1}], v[{WT8+4}:{WT8+5}], v[{D+4*nt}:{D+4*nt+1}]")
    for nt in range(4): E(f"v_pk_fma_f32 v[{D+4*nt}:{D+4*nt+1}], v[{D+16+4*nt+2}:{D+16+4*nt+3}], v[{WT8+6}:{WT8+7}], v[{D+4*nt}:{D+4*nt+1}]")
    for nt in range(4): E(f"v_add_f32 v{D+4*nt}, v{D+4*nt}, v{D+4*nt+1}")
    tred4(D, D+4, D+8, D+12)
    E(f"ds_write_b32 v{vRW}, v{D} offset:{L_RED}")
    E("s_waitcnt lgkmcnt(0)")
    E("s_barrier")
    E(f"s_cmp_lg_u32 {sW}, 0")
    E("s_cbranch_scc1 L_fin")
    D = PK
    E(f"ds_read_b128 v[{D}:{D+3}], v{vRR} offset:{L_RED}")
    E(f"ds_read_b128 v[{D+4}:{D+7}], v{vRR} offset:{L_RED+16}")
    E("s_waitcnt lgkmcnt(0)")
    E(f"v_pk_add_f32 v[{D}:{D+1}], v[{D}:{D+1}], v[{D+4}:{D+5}]")
    E(f"v_pk_add_f32 v[{D+2}:{D+3}], v[{D+2}:{D+3}], v[{D+6}:{D+7}]")
    E(f"v_pk_add_f32 v[{D}:{D+1}], v[{D}:{D+1}], v[{D+2}:{D+3}]")
    E(f"v_add_f32 v{D}, v{D}, v{D+1}")
    E(f"v_min_u32 v{D}, -2, v{D}")
    E(f"buffer_store_dword v{D}, v{vL4}, {rWS}, {sAOP} offen sc1")
    stamp(8)
    E("s_branch L_fin")
    E.label("L_stageb")
    if "x" in dbg: E("s_branch L_fin")
    if mlearly != 1 and "w" not in dbg: w1_dma()
    if mlearly != 2 and "w" not in dbg: w2_dma()
    GBR = S[3]
    E(f"v_lshlrev_b32 v{vSTA}, 11, v{vGQ}")
    E(f"v_lshl_add_u32 v{vSTA}, v{vN}, 4, v{vSTA}")
    E(f"s_lshl_b32 {sT0}, {sW}, 8")
    bs = ["s88", "s89", "s90", "s94"]
    for i in range(4): E(f"s_add_u32 {bs[i]}, {sT0}, {WS_AO + 8192*i}")
    def b_load(i): E(f"buffer_load_dwordx4 v[{S[3]+4*i}:{S[3]+4*i+3}], v{vSTA}, {rWS}, {bs[i]} offen sc1")
    def b_loads():
        for i in range(4): b_load(i)
    E(f"v_lshl_add_u32 v{vCOL}, v{vN}, 2, v{vGQ}")
    E(f"s_lshl_b32 {sT0}, {sW}, 6")
    E(f"v_add_u32 v{vCOL}, {sT0}, v{vCOL}")
    E(f"v_lshlrev_b32 v{vGAA}, 1, v{vCOL}")
    E(f"buffer_load_ushort v{XT}, v{vGAA}, {rX}, 0 offen")
    b_loads()
    E(f"v_and_b32 v{vGAA}, 0x1fe, v{vCOL}")
    E(f"v_lshlrev_b32 v{vGAA}, 2, v{vGAA}")
    E(f"s_mul_i32 {sU}, {sW}, 56")
    E(f"s_add_u32 {sU}, {sU}, {sM}")
    E(f"s_lshl_b32 {sU16}, {sU}, 4")
    E(f"s_and_b32 {sU16}, {sU16}, 0x7ff")
    E(f"v_mov_b32 v{vU16}, {sU16}")
    E(f"s_lshl_b32 {sT0}, {sW}, 1")
    E(f"v_add_u32 v{vCH}, {sT0}, v{vN}")
    E(f"v_and_b32 v{vCH}, 15, v{vCH}")
    E(f"v_lshl_add_u32 v{vCH}, v{vGQ}, 4, v{vCH}")
    E(f"v_lshlrev_b32 v{vCH}, 5, v{vCH}")
    SG = S[6]+8
    E(f"ds_read_b64 v[{GA}:{GA+1}], v{vGAA} offset:{L_MOD}")
    for i in range(4): E(f"ds_read_b128 v[{SG+4*i}:{SG+4*i+3}], v{vCH} offset:{L_MOD + 2048 + (i//2)*2048 + (i%2)*16}")
    E(f"ds_read_b128 v[{GB}:{GB+3}], v{vU16} offset:{L_MOD + 6144}")
    E(f"s_lshl_b32 {sT3}, {sW}, 13")
    E(f"s_add_u32 {sT3}, {sT3}, {L_WT}")
    E(f"v_bfe_u32 v{T0}, {vLANE}, 2, 2")
    E(f"v_and_b32 v{T1}, 3, {vLANE}")
    E(f"v_lshlrev_b32 v{T1}, 3, v{T1}")
    E(f"v_lshl_add_u32 v{T2}, v{T0}, 6, v{T1}")
    E(f"v_lshl_add_u32 v{T2}, v{vGQ}, 10, v{T2}")
    E(f"v_add_u32 v{T2}, {sT3}, v{T2}")
    E(f"v_lshl_add_u32 v{T0}, v{T0}, 7, v{T1}")
    E(f"v_lshl_add_u32 v{T0}, v{vGQ}, 5, v{T0}")
    E(f"v_add_u32 v{T0}, {sT3}, v{T0}")
    E(f"v_lshlrev_b32 v{vRR}, 6, v{vN}")
    E(f"v_lshlrev_b32 v{vRW}, 5, v{vN}")
    E(f"s_lshl_b32 {sT1}, {sW}, 2")
    E(f"v_add_u32 v{vRW}, {sT1}, v{vRW}")
    E(f"v_lshlrev_b32 v{vGATH}, 2, v0")
    E(f"v_mov_b32 v{vWBR}, 0")
    E("s_waitcnt lgkmcnt(0)")
    E.label("L_modchk")
    tagcheck([GA+1, GB+1, GB+3] + [SG+1+2*i for i in range(8)], 6)
    E("s_cbranch_vccz L_gotmd")
    E(f"s_mov_b32 {sT0}, {WS_MODG + 4096}")
    E(f"buffer_load_dwordx2 v[{GA}:{GA+1}], v{vGAA}, {rWS}, {sT0} offen sc1")
    E(f"buffer_load_dwordx4 v[{SG}:{SG+3}], v{vCH}, {rWS}, {sT0} offen offset:2048 sc1")
    E(f"buffer_load_dwordx4 v[{SG+4}:{SG+7}], v{vCH}, {rWS}, {sT0} offen offset:2064 sc1")
    E(f"s_mov_b32 {sT0}, {WS_MODG + 8192}")
    E(f"buffer_load_dwordx4 v[{SG+8}:{SG+11}], v{vCH}, {rWS}, {sT0} offen sc1")
    E(f"buffer_load_dwordx4 v[{SG+12}:{SG+15}], v{vCH}, {rWS}, {sT0} offen offset:16 sc1")
    E(f"buffer_load_dwordx4 v[{GB}:{GB+3}], v{vU16}, {rWS}, {sT0} offen offset:2048 sc1")
    E("s_waitcnt vmcnt(0)")
    spin_check("L_modchk")
    E.label("L_gotmd")
    E(f"v_and_b32 v6, 1, v{vCOL}")
    E(f"v_lshlrev_b32 v{vCOL}, 2, v{vCOL}")
    E(f"v_cmp_eq_u32 vcc, 0, v6")
    E(f"v_lshlrev_b32 v6, 16, v{GA}")
    E(f"v_and_b32 v7, 0xffff0000, v{GA}")
    E(f"v_cndmask_b32 v{GA}, v7, v6, vcc")
    for i in range(4):
        c0, s0, c1, s1_ = SCF+4*i, SCF+4*i+1, SCF+4*i+2, SCF+4*i+3
        E(f"v_lshlrev_b32 v{s0}, 16, v{SG+2*i}")
        E(f"v_and_b32 v{s1_}, 0xffff0000, v{SG+2*i}")
        E(f"v_lshlrev_b32 v{c0}, 16, v{SG+8+2*i}")
        E(f"v_and_b32 v{c1}, 0xffff0000, v{SG+8+2*i}")
        E(f"v_add_f32 v{c0}, 1.0, v{c0}")
        E(f"v_add_f32 v{c1}, 1.0, v{c1}")
        rb2(c0, c1, c0, c1, 6)
    E(f"v_lshlrev_b32 v{GBF}, 16, v{GB}")
    E(f"v_and_b32 v{GBF+1}, 0xffff0000, v{GB}")
    E(f"v_lshlrev_b32 v{GBF+2}, 16, v{GB+2}")
    E(f"v_and_b32 v{GBF+3}, 0xffff0000, v{GB+2}")
    E("s_waitcnt vmcnt(4)")
    stamp("w2")
    for nt in range(2):
        for q in range(4):
            r = W1 + nt*8 + q*2
            E(f"ds_read_b64_tr_b16 v[{r}:{r+1}], v{T2} offset:{q*256 + nt*32}")
    for q in range(8):
        E(f"ds_read_b64_tr_b16 v[{W2+2*q}:{W2+2*q+1}], v{T0} offset:{4096 + q*512}")
    E(f"v_lshlrev_b32 v{XT}, 16, v{XT}")
    pollloop("b", b_load, [range(GBR+4*i, GBR+4*i+4) for i in range(4)], 16, slpb)
    stamp(9)
    G2 = S[0]
    for i in range(0, 8, 2): E(f"v_pk_add_f32 v[{G2+i}:{G2+i+1}], v[{GBR+i}:{GBR+i+1}], v[{GBR+8+i}:{GBR+8+i+1}]")
    for i in range(0, 4, 2): E(f"v_pk_add_f32 v[{G2+i}:{G2+i+1}], v[{G2+i}:{G2+i+1}], v[{G2+4+i}:{G2+4+i+1}]")
    GBR = G2
    tred4(GBR, GBR+1, GBR+2, GBR+3)
    rb1(GBR, GBR)
    E(f"v_mul_f32 v{GBR}, v{GBR}, v{GA}")
    rb1(GBR, GBR)
    E(f"v_add_f32 v{GBR}, v{GBR}, v{XT}")
    rb1(GBR, GBR)
    E(f"ds_write_b32 v{vCOL}, v{GBR} offset:{L_X2}")
    E("s_waitcnt lgkmcnt(0)")
    E("s_barrier")
    stamp("b1")
    X2 = S[2]; X2F = S[2]+8; KS = S[2]+12
    E(f"ds_read_b32 v{KS}, v{vWBR} offset:{L_X2}")
    E(f"ds_read_b128 v[{X2}:{X2+3}], v{vCH} offset:{L_X2}")
    E(f"ds_read_b128 v[{X2+4}:{X2+7}], v{vCH} offset:{L_X2+16}")
    E(f"ds_read_b128 v[{X2F}:{X2F+3}], v{vU16} offset:{L_X2}")
    E("s_waitcnt lgkmcnt(0)" if (stamps and "b1" in stamps) else "s_waitcnt lgkmcnt(1)")
    DD = S[2]+16
    for i in range(8): E(f"v_sub_f32 v{DD+i}, v{X2+i}, v{KS}")
    s1, s2, s3 = 16, 18, T0
    E(f"v_pk_add_f32 v[{s1}:{s1+1}], v[{DD}:{DD+1}], v[{DD+2}:{DD+3}]")
    E(f"v_pk_mul_f32 v[{s2}:{s2+1}], v[{DD}:{DD+1}], v[{DD}:{DD+1}]")
    E(f"v_pk_add_f32 v[{s3}:{s3+1}], v[{DD+4}:{DD+5}], v[{DD+6}:{DD+7}]")
    E(f"v_pk_fma_f32 v[{s2}:{s2+1}], v[{DD+2}:{DD+3}], v[{DD+2}:{DD+3}], v[{s2}:{s2+1}]")
    E(f"v_pk_add_f32 v[{s1}:{s1+1}], v[{s1}:{s1+1}], v[{s3}:{s3+1}]")
    E(f"v_pk_fma_f32 v[{s2}:{s2+1}], v[{DD+4}:{DD+5}], v[{DD+4}:{DD+5}], v[{s2}:{s2+1}]")
    E(f"v_add_f32 v{s1}, v{s1}, v{s1+1}")
    E(f"v_pk_fma_f32 v[{s2}:{s2+1}], v[{DD+6}:{DD+7}], v[{DD+6}:{DD+7}], v[{s2}:{s2+1}]")
    E(f"v_add_f32 v{s2}, v{s2}, v{s2+1}")
    red_ror("v_add_f32", [s1, s2], (1, 2, 4, 8))
    red_rows("v_add_f32", [s1, s2], s3)
    E(f"v_mul_f32 v{s1}, {f32bits(1.0/512):#x}, v{s1}")
    E(f"v_mul_f32 v{s2}, {f32bits(1.0/512):#x}, v{s2}")
    E(f"v_fma_f32 v{s2}, -v{s1}, v{s1}, v{s2}")
    E(f"v_add_f32 v{s1}, v{s1}, v{KS}")
    E(f"v_max_f32 v{s2}, 0, v{s2}")
    rb2(s1, s2, s1, s2, s3)
    E(f"v_add_f32 v{s2}, {f32bits(1e-5):#x}, v{s2}")
    for i in range(0, 4): E(f"v_sub_f32 v{X2+i}, v{X2+i}, v{s1}")
    rb1(s2, s2)
    E(f"v_sqrt_f32 v{s2}, v{s2}")
    for i in range(4, 8): E(f"v_sub_f32 v{X2+i}, v{X2+i}, v{s1}")
    for i in range(0, 4): E(f"v_mul_f32 v{X2+i}, v{X2+i}, v{SCF+2*i}")
    rb1(s2, s2)
    E(f"v_rcp_f32 v{s2}, v{s2}")
    for i in range(4, 8): E(f"v_mul_f32 v{X2+i}, v{X2+i}, v{SCF+2*i}")
    for i in range(8): E(f"v_fma_f32 v{X2+i}, v{X2+i}, v{s2}, v{SCF+2*i+1}")
    H2 = PK
    for p in range(4): E(f"v_cvt_pk_bf16_f32 v{H2+p}, v{X2+2*p}, v{X2+2*p+1}")
    DM = S[2]+16
    for nt in range(2):
        for s_ in range(2):
            d = DM + (nt*2+s_)*4; b = W1 + nt*8 + s_*4
            E(f"v_mfma_f32_16x16x32_bf16 v[{d}:{d+3}], v[{H2}:{H2+3}], v[{b}:{b+3}], 0")
    E("s_mov_b64 exec, 0xffff")
    E(f"v_add_f32 v{DM}, v{DM}, v{DM+5}")
    E(f"v_add_f32 v{DM+8}, v{DM+8}, v{DM+13}")
    E(f"ds_write2st64_b32 v{vRW}, v{DM}, v{DM+8} offset0:{L_RED//256} offset1:{L_RED//256+2}")
    E("s_mov_b64 exec, -1")
    E("s_waitcnt lgkmcnt(0)")
    E("s_barrier")
    stamp("b2")
    D = S[0]
    for i in range(4): E(f"ds_read_b128 v[{D+4*i}:{D+4*i+3}], v{vRR} offset:{L_RED+16*i}")
    E(f"v_mov_b32 v{T0}, 0")
    E(f"v_mov_b32 v{T1}, 0")
    E("s_waitcnt lgkmcnt(0)")
    for h in range(2):
        b = D + 8*h
        E(f"v_pk_add_f32 v[{b}:{b+1}], v[{b}:{b+1}], v[{b+4}:{b+5}]")
        E(f"v_pk_add_f32 v[{b+2}:{b+3}], v[{b+2}:{b+3}], v[{b+6}:{b+7}]")
    for h in range(2):
        b = D + 8*h
        E(f"v_pk_add_f32 v[{b}:{b+1}], v[{b}:{b+1}], v[{b+2}:{b+3}]")
    for h in range(2):
        b = D + 8*h
        E(f"v_add_f32 v{b}, v{b}, v{b+1}")
    E(f"v_max_f32 v{D}, 0, v{D}")
    E(f"v_max_f32 v{D+8}, 0, v{D+8}")
    E(f"v_cvt_pk_bf16_f32 v{D}, v{D}, v{D+8}")
    for k in range(16):
        E(f"v_dot2c_f32_bf16_dpp v{T0+(k&1)}, v{D}, v{W2+k} row_newbcast:{k} {DPPM}")
    E(f"v_add_f32 v{T0}, v{T0}, v{T1}")
    E(f"v_min_u32 v{T0}, -2, v{T0}")
    E(f"buffer_store_dword v{T0}, v{vGATH}, {rWS}, {sPUB} offen sc1")
    stamp(10)
    E(f"s_cmp_ge_u32 {sU}, 128")
    E("s_cbranch_scc1 L_fin")
    C0 = S[3]+16
    E(f"v_lshlrev_b32 v{vSTA}, 11, {vLANE}")
    E(f"s_add_u32 {sT2}, {sU16}, {WS_MO}")
    for i in range(4): E(f"v_mov_b32 v{C0+i}, 0")
    if cdelay: E(f"s_sleep {cdelay}")
    E(f"s_mov_b32 {sSPIN}, 0x40000")
    E(f"s_mov_b32 exec_hi, 0xffffff")
    E(f"buffer_load_dwordx4 v[{C0}:{C0+3}], v{vSTA}, {rWS}, {sT2} offen sc1")
    E(f"s_mov_b64 exec, -1")
    E(f"s_lshl_b32 {sT0}, {sU}, 3")
    E(f"v_mov_b32 v6, 0")
    E(f"v_mov_b32 v7, {sTAG}")
    E.label("L_pollc")
    E("s_waitcnt vmcnt(0)")
    maxall(range(C0, C0+4), T2)
    E(f"v_cmp_eq_u32 vcc, -1, v{T2}")
    E("s_cbranch_vccz L_gotc")
    E(f"s_mov_b64 exec, vcc")
    E(f"buffer_load_dwordx4 v[{C0}:{C0+3}], v{vSTA}, {rWS}, {sT2} offen sc1")
    E("s_mov_b64 exec, -1")
    spin_check("L_pollc")
    E.label("L_gotc")
    if fixt:
        E.label("L_fix")
        E("s_memrealtime s[50:51]")
        E("s_waitcnt lgkmcnt(0)")
        E("s_sub_u32 s50, s50, s48")
        E(f"s_cmp_lt_u32 s50, {fixt*100}")
        E("s_cbranch_scc1 L_fix")
    stamp(11)
    cs = [C0+i for i in range(4)]
    red_ror("v_add_f32", cs, (1, 2, 4, 8))
    red_rows("v_add_f32", cs, C0+4)
    rb2(C0, C0+1, C0, C0+1, T2); rb2(C0+2, C0+3, C0+2, C0+3, T3)
    for i in range(4): E(f"v_mul_f32 v{C0+i}, v{C0+i}, v{GBF+i}")
    rb2(C0, C0+1, C0, C0+1, T2); rb2(C0+2, C0+3, C0+2, C0+3, T3)
    for i in range(4): E(f"v_add_f32 v{C0+i}, v{C0+i}, v{X2F+i}")
    E(f"v_cvt_pk_bf16_f32 v{C0}, v{C0}, v{C0+1}")
    E(f"v_cvt_pk_bf16_f32 v{C0+1}, v{C0+2}, v{C0+3}")
    E("s_mov_b64 exec, 1")
    E(f"buffer_store_dwordx2 v[{C0}:{C0+1}], v6, {rOUT}, {sT0} offen")
    E(f"s_cmp_lg_u32 {sU}, 0")
    E("s_cbranch_scc1 L_fin")
    E(f"buffer_store_dword v7, v6, {rWS}, 0 offen sc1")
    E.label("L_fin")
    if stamps:
        stamp(12)
        E("s_mov_b64 exec, 1")
        E("s_waitcnt lgkmcnt(0)")
        E(f"s_lshl_b32 {sT0}, s2, 3")
        E(f"s_add_u32 {sT0}, {sT0}, {sW}")
        E(f"s_lshl_b32 {sT0}, {sT0}, 7")
        E(f"s_add_u32 {sT0}, {sT0}, {WS_STAMP}")
        if 1:
            E("s_sleep 127"); E("s_sleep 127"); E("s_sleep 127")
        E("v_mov_b32 v6, 0")
        for i in range(13):
            E(f"v_mov_b32 v8, s{52+2*i}")
            E(f"v_mov_b32 v9, s{53+2*i}")
            E(f"buffer_store_dwordx2 v[8:9], v6, {rWS}, {sT0} offen offset:{8*i}")
            E("s_nop 1")
        E(f"v_mov_b32 v8, {sSPIN}")
        E(f"v_mov_b32 v9, 0")
        E(f"buffer_store_dwordx2 v[8:9], v6, {rWS}, {sT0} offen offset:{8*13}")
    E.label("L_end")
    E("s_endpgm")
    E.raw(f'.section .rodata,"a"\n.p2align 6\n.amdhsa_kernel {KN}')
    E.raw("  .amdhsa_next_free_vgpr 256\n  .amdhsa_next_free_sgpr 102\n  .amdhsa_accum_offset 256\n  .amdhsa_group_segment_fixed_size 0\n  .amdhsa_kernarg_size 104\n  .amdhsa_user_sgpr_count 2\n  .amdhsa_user_sgpr_kernarg_segment_ptr 1\n  .amdhsa_system_sgpr_workgroup_id_x 1\n  .amdhsa_float_denorm_mode_32 3\n.end_amdhsa_kernel")
    return E.text()

if __name__ == "__main__":
    import argparse, inspect
    ap = argparse.ArgumentParser()
    ap.add_argument("out")
    for n, p in inspect.signature(gen).parameters.items():
        if n == "stamps": ap.add_argument("--stamps", default="")
        else: ap.add_argument("--"+n, type=type(p.default), default=p.default)
    a = vars(ap.parse_args())
    out = a.pop("out")
    a["stamps"] = a["stamps"].split(",") if a["stamps"] else None
    open(out, "w").write(gen(**a))
```

```python
import re

TRANS = ("v_exp_f32","v_log_f32","v_rcp_f32","v_rsq_f32","v_sqrt_f32","v_sin_f32","v_cos_f32")

def regs_of(tok):
    tok = tok.strip()
    tok = tok.lstrip('-')
    m = re.fullmatch(r"abs\((.*)\)", tok)
    if m: tok = m.group(1)
    tok = tok.strip('|')
    m = re.fullmatch(r"([vsa])(\d+)", tok)
    if m: return {(m.group(1), int(m.group(2)))}
    m = re.fullmatch(r"([vsa])\[(\d+):(\d+)\]", tok)
    if m: return {(m.group(1), i) for i in range(int(m.group(2)), int(m.group(3))+1)}
    if tok in ("vcc","vcc_lo","vcc_hi"): return {("vcc",0)}
    if tok in ("exec","exec_lo","exec_hi"): return {("exec",0)}
    if tok == "m0": return {("m0",0)}
    return set()

class Emit:
    def __init__(self):
        self.L = []
        self.tch = None; self.tn = 0; self.tcnt = 0; self.tpause = False
        self.hist = []
    def raw(self, s): self.L.append(s)
    def comment(self, s): self.L.append("    ; " + s)
    def _push(self, e, n=1):
        self.hist.append(e)
        for _ in range(n-1): self.hist.append(None)
        self.hist = self.hist[-24:]
    def nop(self, n):
        while n > 0:
            k = min(n, 16)
            self.L.append(f"    s_nop {k-1}")
            self._push(None, k)
            n -= k
    def flush(self):
        need = 0
        for d, e in enumerate(reversed(self.hist)):
            if e is None: continue
            mx = {"mfma":8, "mfma8":12, "valu":5 if any(x[0] == "s" for x in e["w"]) else (1 if all(x[0] == "vcc" for x in e["w"]) else 2), "trans":2, "store":2}.get(e["kind"], 0)
            need = max(need, mx - d)
        if need > 0: self.nop(need)
        self.hist = []
    def label(self, name):
        self.flush(); self.L.append(name + ":")
    def touch_begin(self, name, every=7):
        self.tch = name; self.tn = 0; self.tcnt = every; self.tevery = every
    def touch_end(self, ret):
        self.L.append(f"{self.tch}_{self.tn}:")
        self.L.append(f"    s_cbranch_execz {ret}"); self._push(None)
        self.tch = None
    def _touch(self):
        if self.tch is None or self.tpause: return
        self.tcnt += 1
        if self.tcnt >= self.tevery:
            self.L.append(f"{self.tch}_{self.tn}:")
            self.tn += 1
            self.L.append(f"    s_cbranch_execz {self.tch}_{self.tn}"); self._push(None)
            self.tcnt = 0
    def __call__(self, text):
        for line in text.split("\n"):
            line = line.strip()
            if not line: continue
            self.ins(line)
    def ins(self, line):
        self._touch()
        code = line.split(";")[0].strip()
        sp = code.split(None, 1)
        mn = sp[0]; rest = sp[1] if len(sp) > 1 else ""
        ops = [o.strip() for o in re.split(r",(?![^\[]*\])", rest)] if rest else []
        if ops:
            last = ops[-1].split()
            ops[-1] = last[0] if last else ""
            mods = " ".join(last[1:])
        else: mods = ""
        if mn.startswith("s_cbranch") or mn == "s_branch" or mn == "s_endpgm" or mn == "s_setpc_b64":
            if mn in ("s_cbranch_vccz","s_cbranch_vccnz","s_cbranch_scc0","s_cbranch_scc1","s_cbranch_execz","s_cbranch_execnz","s_branch"):
                self.flush()
            self.L.append("    " + line); self._push(None); return
        if mn == "s_nop":
            self.L.append("    " + line); self._push(None, int(ops[0], 0)+1); return
        kind = None; w=set(); r=set(); c=set()
        isv = mn.startswith("v_")
        dpp = "_dpp" in mn
        if mn.startswith("v_mfma"):
            kind = "mfma8" if "32x32" in mn else "mfma"
            w = regs_of(ops[0]); r = regs_of(ops[1]) | regs_of(ops[2]); c = regs_of(ops[3])
        elif isv:
            base = mn.replace("_dpp","").replace("_e32","").replace("_e64","").replace("_sdwa","")
            kind = "trans" if base in TRANS else "valu"
            if base.startswith("v_cmp"):
                w = regs_of(ops[0]); r = set().union(*[regs_of(o) for o in ops[1:]])
            elif base.startswith("v_permlane"):
                w = regs_of(ops[0]) | regs_of(ops[1]); r = set(w)
            elif base in ("v_add_co_u32","v_addc_co_u32","v_sub_co_u32"):
                w = regs_of(ops[0]) | regs_of(ops[1]); r = set().union(*[regs_of(o) for o in ops[2:]])
            else:
                w = regs_of(ops[0]); r = set().union(*[regs_of(o) for o in ops[1:]]) if len(ops) > 1 else set()
                if base in ("v_fmac_f32","v_dot2c_f32_bf16","v_writelane_b32") : r |= w
                if dpp: r |= set()
        elif mn.startswith("buffer_") or mn.startswith("global_") or mn.startswith("ds_"):
            allr = set().union(*[regs_of(o) for o in ops]) if ops else set()
            isload = ("load" in mn and "lds" not in mods.split()) or mn.startswith("ds_read") or "_rtn" in mn or "permute" in mn or "swizzle" in mn
            if isload:
                w = regs_of(ops[0]); r = set().union(*[regs_of(o) for o in ops[1:]])
                kind = "mem"
            else:
                r = allr
                kind = "store" if ("store" in mn and ("x4" in mn or "x3" in mn)) else "mem"
                if kind == "store":
                    c = regs_of(ops[0]) if mn.startswith("buffer_") else regs_of(ops[1])
        elif mn.startswith("s_"):
            kind = "salu"
            w = regs_of(ops[0]) if ops else set()
            r = set().union(*[regs_of(o) for o in ops[1:]]) if len(ops) > 1 else set()
        need = 0
        base = mn.replace("_dpp","").replace("_e32","").replace("_e64","")
        for d, e in enumerate(reversed(self.hist)):
            if e is None: continue
            k = e["kind"]; ew = e["w"]
            req = 0
            vw = {x for x in ew if x[0] in ("v","a")}
            sw = {x for x in ew if x[0] in ("s","vcc")}
            if k in ("valu","trans"):
                if kind in ("valu","trans"):
                    if dpp and ops and (regs_of(ops[1]) & vw): req = max(req, 2)
                    if base.startswith("v_permlane") and (r & vw): req = max(req, 2)
                    if base in ("v_readlane_b32","v_readfirstlane_b32") and (r & vw): req = max(req, 1)
                    if k == "trans" and (r & vw): req = max(req, 1)
                    if r & sw: req = max(req, 4 if base in ("v_readlane_b32","v_writelane_b32") else 2)
                    if base.startswith("v_cndmask") and ("vcc",0) in sw: req = max(req, 2)
                    if e.get("dot") and ((r|w) & vw) and not (base == e["dot"]): req = max(req, 3)
                    if e.get("dot") and base == e["dot"] and len(ops) > 2 and ((regs_of(ops[1])|regs_of(ops[2])) & vw): req = max(req, 3)
                if kind in ("mfma","mfma8") and ((r|c) & vw): req = max(req, 2)
                if kind in ("mem","store") and (r & sw): req = max(req, 5)
                if kind in ("mem","store") and e.get("dot") and (r & vw): req = max(req, 3)
                if kind == "salu" and (r & sw): req = max(req, 1)
            if k in ("mfma","mfma8"):
                n_rw = 8 if k == "mfma" else 12
                if kind in ("valu","trans","mem","store") and ((r|w) & vw): req = max(req, n_rw)
                if kind in ("mfma","mfma8"):
                    if r & vw: req = max(req, n_rw)
                    if (c & vw) and c != vw: req = max(req, n_rw-2)
                    if (w & vw) and not (c == vw): req = max(req, n_rw)
                if kind in ("valu","trans") and (w & e["c"]): req = max(req, 3 if k == "mfma" else 7)
            if k == "store":
                if kind in ("valu","trans","mfma","mfma8") and (w & e["c"]): req = max(req, 2)
                elif kind == "mem" and (w & e["c"]): req = max(req, 1)
            if k == "salu" and ("m0",0) in ew and kind in ("mem",) and "lds" in mods.split(): req = max(req, 1)
            need = max(need, req - d)
        if need > 0: self.nop(need)
        self.L.append("    " + line)
        ent = dict(kind=kind, w=w, r=r, c=c)
        if base.startswith("v_dot2"): ent["dot"] = base
        self._push(ent)
    def text(self): return "\n".join(self.L) + "\n"
```

```python
import sys, math, struct
from emit import Emit
KN = "adaLN_cond__gqa_block_cached__dense_activation_relu__decode_kernel"

WS_EPOCH = 0x0
WS_MODG  = 0x1000
WS_CLR   = 0xC000
WS_STAT  = 0x8000
WS_AO    = 0x100000
WS_PART  = 0x20000
WS_MO    = 0x60000
WS_EP    = 0xC0000
WS_QG    = WS_MODG + 48*256
WS_STAMP = 0x8000000
L_STATS = 0
L_CNT   = 256
L_FAC   = 384
L_WB    = 512
L_WE    = 1536
L_X2    = 2048
L_RED   = 4096
L_ACT   = 6144
L_Q     = 7168
L_ORED  = 8192
L_MOD   = 24576
L_WM    = 32768
L_WT    = 65536

DPPM = "row_mask:0xf bank_mask:0xf"
def f32bits(x): return struct.unpack("<I", struct.pack("<f", x))[0]

def gen(depth=6, kvflags="nt", wflags="", stamps=None, swave=0, tpwo=4, mlearly=0, slp=2, slpa=0, slpb=0, codepf=2, dbg="",
        k1=2, k2=3, slpq=4, prio=3, fixt=0, jml=24, fast=1, rate=1, cdelay=14, ewt=1, rot=0, qat=12, depth0=9, young="", depthe=0, emask=255, swapq=1, lead=0, touch=0, w1e=0, w1pf=2, rep=0, w1dl=0, buddy=0, wopf=0, wopos=3):
    E = Emit()
    L_WO = L_WT + 65536
    LDS_BYTES = max(L_WT + 65536, L_WO + 32768)
    sW, sG, sJ, sTAG, sSPIN = "s3", "s4", "s5", "s6", "s7"
    rK, rV, rWS, rWT, rW2, rX, rC, rOUT = [f"s[{i}:{i+3}]" for i in range(8, 40, 4)]
    rWO = "s[84:87]"
    sSELLO, sSELHI, sC, sBASE, sM, sT0, sT1, sT2 = "s78", "s79", "s80", "s81", "s82", "s83", "s100", "s101"
    sA, sPL, sPUB, sLAST, sU, sU16, sT3, sT4, sEP = "s40", "s41", "s42", "s95", "s98", "s99", "s96", "s97", "s93"
    sPP, sGA0, sGA1, sLD, sML, sXCC, sAOP, sSK = "s43", "s44", "s45", "s46", "s47", "s91", "s92", "s90"
    vLANE, vK, vV = "v1", "v2", "v3"
    Q0 = 16
    T0, T1, T2, T3 = 28, 29, 30, 31
    S = [32 + 32*i for i in range(7)]
    def stamp(i):
        if stamps and str(i) in stamps:
            k = stamps.index(str(i))
            E(f"s_memrealtime s[{52+2*k}:{53+2*k}]")
    vm = []
    light = [False]
    def setlight():
        if depthe:
            E(f"s_lshr_b32 {sT0}, {emask}, {sW}")
            E(f"s_andn2_b32 {sT0}, {sT0}, {sG}")
            E(f"s_bitcmp1_b32 {sT0}, 0")
            E(f"s_cselect_b64 vcc, 1, 0")
    def vmop(tag, text):
        E(text); vm.append(tag)
    def vmwait(tag):
        idx = [i for i, t in enumerate(vm) if t == tag][-1]
        E(f"s_waitcnt vmcnt({min(len(vm) - 1 - idx, 62)})")
    def spin_check(lbl_loop):
        E(f"s_sub_u32 {sSPIN}, {sSPIN}, 1")
        E(f"s_cbranch_scc0 {lbl_loop}")
        E(f"s_branch L_end")
    PRI = {1: {("k",0):3, ("k",2):2, ("v",0):1, ("v",2):0}, 2: {("k",0):3, ("v",0):2, ("v",2):1}, 3: {("k",0):3, ("k",3):2, ("v",2):1}, 0: {},
           4: {("k",0):1, ("k",1):1, ("k",2):1, ("k",3):1, ("v",0):1, ("v",1):1, ("v",2):1, ("v",3):1}}[prio]
    def load_tile(kind, T, slot, dep, tag, mid=None, lo=0, hi=8, setp=True):
        srd = rK if kind == "k" else rV
        va = vK if (kind == "k" and "k" not in dbg) else vV
        if setp and lo == 0 and (kind, T) in PRI:
            E(f"s_setprio {PRI[(kind, T)]}")
        if setp and lo == 0 and f"{kind}{T}" in young.split(","):
            u = len(E.L)
            base = [v for k, v in PRI.items() if (k[0] == "k" and kind == "v") or (k[0] == kind and k[1] <= T)]
            b = min(base) if base else 1
            E(f"s_cmp_lt_u32 {sW}, 4")
            E(f"s_cbranch_scc1 L_yp{u}")
            E(f"s_setprio {min(3, b+1)}")
            E.raw(f"L_yp{u}:")
        for i in range(lo, hi):
            if i == 4 and mid: mid()
            if rot:
                E(f"s_xor_b32 {sLD}, {sBASE}, {T*0x200000 + i*1024}")
            elif i == 0 or i == 4 or hi - lo == 1: E(f"s_add_u32 {sLD}, {sBASE}, {T*0x200000 + (i//4)*4096}")
            if depthe and light[0] and dep and len(vm) >= depthe:
                u = len(E.L)
                E.raw(f"    s_cbranch_vccz L_lt{u}"); E._push(None)
                E(f"s_waitcnt vmcnt({depthe-1})")
                E.raw(f"L_lt{u}:")
            if dep and len(vm) >= dep: E(f"s_waitcnt vmcnt({dep-1})")
            r = S[slot] + i*4
            vmop(tag, f"buffer_load_dwordx4 v[{r}:{r+3}], {va}, {srd}, {sLD} offen offset:{0 if rot else (i%4)*1024} {kvflags}")
    def red_rows(op, regs, tmp):
        for sw in ("v_permlane16_swap_b32", "v_permlane32_swap_b32"):
            for i, r in enumerate(regs): E(f"v_mov_b32 v{tmp+i}, v{r}")
            for i, r in enumerate(regs): E(f"{sw} v{r}, v{tmp+i}")
            for i, r in enumerate(regs): E(f"{op} v{r}, v{r}, v{tmp+i}")
    def red_ror(op, regs, rors):
        for k in rors:
            for r in regs: E(f"{op}_dpp v{r}, v{r}, v{r} row_ror:{k} {DPPM}")
    def tred4(a0, a1, a2, a3):
        E(f"v_permlane16_swap_b32 v{a0}, v{a1}")
        E(f"v_permlane16_swap_b32 v{a2}, v{a3}")
        E(f"v_add_f32 v{a0}, v{a0}, v{a1}")
        E(f"v_add_f32 v{a2}, v{a2}, v{a3}")
        E(f"v_permlane32_swap_b32 v{a0}, v{a2}")
        E(f"v_add_f32 v{a0}, v{a0}, v{a2}")
    def rb1(dst, src):
        E(f"v_cvt_pk_bf16_f32 v{dst}, v{src}, v{src}")
        E(f"v_lshlrev_b32 v{dst}, 16, v{dst}")
    def rb2(d0, d1, s0, s1, t):
        E(f"v_cvt_pk_bf16_f32 v{t}, v{s0}, v{s1}")
        E(f"v_lshlrev_b32 v{d0}, 16, v{t}")
        E(f"v_and_b32 v{d1}, 0xffff0000, v{t}")
    def tagcheck(regs, t):
        regs = [f"v{r}" for r in regs] + [sTAG]
        if len(regs) % 2 == 0: regs.insert(0, regs[0])
        E(f"v_max3_u32 v{t}, {regs[0]}, {regs[1]}, {regs[2]}")
        E(f"v_min3_u32 v{t+1}, {regs[0]}, {regs[1]}, {regs[2]}")
        for i in range(3, len(regs), 2):
            E(f"v_max3_u32 v{t}, v{t}, {regs[i]}, {regs[i+1]}")
            E(f"v_min3_u32 v{t+1}, v{t+1}, {regs[i]}, {regs[i+1]}")
        E(f"v_cmp_ne_u32 vcc, v{t}, v{t+1}")
    def maxall(regs, t):
        regs = list(regs)
        E(f"v_max3_u32 v{t}, v{regs[0]}, v{regs[1]}, v{regs[2]}")
        i = 3
        while i + 1 < len(regs):
            E(f"v_max3_u32 v{t}, v{t}, v{regs[i]}, v{regs[i+1]}"); i += 2
        if i < len(regs): E(f"v_max_u32 v{t}, v{t}, v{regs[i]}")
    def pollloop(name, load1, groups, tmp, sl):
        n = len(groups)
        E.label(f"L_poll{name}")
        E(f"s_waitcnt vmcnt(0)")
        for i, g in enumerate(groups): maxall(g, tmp+i)
        if n == 2: E(f"v_max_u32 v6, v{tmp}, v{tmp+1}")
        else: maxall(range(tmp, tmp+n), 6)
        E(f"v_cmp_eq_u32 vcc, -1, v6")
        E(f"s_cbranch_vccz L_got{name}")
        if sl: E(f"s_sleep {sl}")
        for i in range(n):
            E(f"v_cmp_eq_u32 vcc, -1, v{tmp+i}")
            E(f"s_mov_b64 exec, vcc")
            load1(i)
            E("s_mov_b64 exec, -1")
        spin_check(f"L_poll{name}")
        E.label(f"L_got{name}")
    def mktag():
        E("s_waitcnt lgkmcnt(0)")
        E(f"s_mul_i32 {sTAG}, {sEP}, 0x9E3779B1")
        E(f"s_add_u32 {sTAG}, {sTAG}, 0x7F4A7C15")
    def slice_dma(srd, rowb, soff, lds, n=2):
        if rowb & (rowb-1) == 0: E(f"v_lshl_add_u32 v{T2}, v{T0}, {rowb.bit_length()-1}, v{T1}")
        else:
            E(f"v_mul_u32_u24 v{T2}, {rowb}, v{T0}")
            E(f"v_add_u32 v{T2}, v{T2}, v{T1}")
        E(f"v_xor_b32 v{T3}, 64, v{T2}")
        E(f"s_mul_i32 {sT1}, {sW}, {8*n*rowb}")
        E(f"s_add_u32 {soff}, {soff}, {sT1}")
        E(f"s_mul_i32 {sT1}, {sW}, {1024*n}")
        E(f"s_add_u32 m0, {sT1}, {lds}")
        for i in range(n):
            E(f"buffer_load_dwordx4 v{T2 + i%2}, {srd}, {soff} offen {wflags} lds")
            if i < n-1:
                E(f"s_add_u32 {soff}, {soff}, {8*rowb}")
                E(f"s_add_u32 m0, m0, 1024")
    def part_rows(va, vt):
        E(f"v_lshrrev_b32 v{vt}, 4, {vLANE}")
        E(f"v_lshlrev_b32 v{va}, 13, v{vt}")
        E(f"v_and_b32 v{vt}, 15, {vLANE}")
        E(f"v_lshl_add_u32 v{va}, v{vt}, 8, v{va}")
        E(f"s_lshl_b32 {sT0}, {sG}, 15")
        E(f"s_lshr_b32 {sT1}, {sJ}, 4")
        E(f"s_lshl_b32 {sT1}, {sT1}, 12")
        E(f"s_add_u32 {sT0}, {sT0}, {sT1}")
        E(f"s_and_b32 {sT1}, {sJ}, 15")
        E(f"s_lshl_b32 {sT1}, {sT1}, 4")
        E(f"s_add_u32 {sT0}, {sT0}, {sT1}")
        E(f"s_add_u32 {sT0}, {sT0}, {WS_PART}")
    def slice_prep():
        E(f"v_lshrrev_b32 v{T0}, 3, {vLANE}")
        E(f"v_and_b32 v{T1}, 2, v{T0}")
        E(f"v_and_b32 v{T2}, 7, {vLANE}")
        E(f"v_xor_b32 v{T1}, v{T2}, v{T1}")
        E(f"v_lshlrev_b32 v{T1}, 4, v{T1}")

    hdr = []
    hdr.append(f"; @launch grid=(256,1,1) block=(512,1,1) lds={LDS_BYTES}")
    hdr.append('.amdgcn_target "amdgcn-amd-amdhsa--gfx950"\n.text')
    hdr.append(f".globl {KN}\n.p2align 8\n.type {KN},@function\n{KN}:")
    E.raw("\n".join(hdr))
    E("s_cmp_ge_u32 s2, 256")
    E("s_cbranch_scc1 L_end")
    if fixt or (stamps and "e" in stamps): E("s_memrealtime s[48:49]")
    E("s_load_dwordx16 s[52:67], s[0:1], 0")
    E("s_load_dwordx8 s[68:75], s[0:1], 64")
    E("s_load_dwordx2 s[76:77], s[0:1], 96")
    E(f"v_lshrrev_b32 v4, 6, v0")
    E(f"v_and_b32 {vLANE}, 63, v0")
    E(f"v_readfirstlane_b32 {sW}, v4")
    E(f"s_and_b32 {sG}, s2, 7")
    E(f"s_lshr_b32 {sJ}, s2, 3")
    if codepf:
        E(f"s_cmp_lt_u32 {sJ}, {32-codepf}")
        E("s_cbranch_scc1 L_nopf")
        E("s_getpc_b64 s[88:89]")
        E.raw("L_pc:")
        E(f"v_lshlrev_b32 v6, 4, v0")
        E(f"v_mov_b32 v9, s89")
        E(f"v_add_co_u32 v8, vcc, s88, v6")
        E(f"v_addc_co_u32 v9, vcc, 0, v9, vcc")
        for i in range(3):
            E(f"v_cmp_gt_i32 vcc, L_end-L_pc-{8192*i}-16, v6")
            E(f"s_and_b64 exec, exec, vcc")
            E(f"s_cbranch_execz L_pfdone")
            E(f"global_load_dwordx4 v[24:27], v[8:9], off")
            if i < 2:
                E(f"v_add_co_u32 v8, vcc, 0x2000, v8")
                E(f"v_addc_co_u32 v9, vcc, 0, v9, vcc")
        E.label("L_pfdone")
        E("s_mov_b64 exec, -1")
        E.label("L_nopf")
    slice_prep()
    E(f"s_lshr_b32 {sA}, {sG}, 1")
    E(f"s_lshl_b32 {sT0}, {sJ}, 2")
    E(f"s_add_u32 {sA}, {sA}, {sT0}")
    if swapq:
        E(f"s_cmp_lt_u32 {sA}, 96")
        E(f"s_cselect_b32 {sT0}, {sA}, 255")
        E(f"s_add_u32 {sA}, {sA}, 96")
    else: E(f"s_add_u32 {sT0}, {sA}, 128")
    E(f"s_bitcmp1_b32 {sG}, 0")
    E(f"s_cselect_b32 {sA}, {sT0}, {sA}")
    if "a" in dbg: E(f"s_mov_b32 {sA}, 255")
    E(f"s_mov_b32 s23, 0x20000")
    E(f"s_lshr_b32 {sT3}, {sA}, 1")
    E(f"s_lshl_b32 {sT3}, {sT3}, 7")
    E(f"s_and_b32 {sT2}, {sA}, 1")
    E(f"v_lshlrev_b32 {vV}, 4, {vLANE}")
    E(f"v_and_b32 v4, 12, {vLANE}")
    E(f"v_lshlrev_b32 {vK}, 6, v4")
    E(f"v_lshrrev_b32 v4, 4, {vLANE}")
    E(f"v_lshl_add_u32 {vK}, v4, 6, {vK}")
    E(f"v_and_b32 v4, 3, {vLANE}")
    E(f"v_lshl_add_u32 {vK}, v4, 4, {vK}")
    E(f"s_lshl_b32 {sBASE}, {sG}, 23")
    E(f"s_lshl_b32 {sT0}, {sJ}, 3")
    E(f"s_add_u32 {sT0}, {sT0}, {sW}")
    E(f"s_lshl_b32 {sT0}, {sT0}, 13")
    E(f"s_add_u32 {sBASE}, {sBASE}, {sT0}")
    if rot:
        E(f"s_add_u32 {sT0}, {sW}, {sJ if rot == 2 else 0}")
        E(f"s_and_b32 {sT0}, {sT0}, 7")
        E(f"s_lshl_b32 {sT0}, {sT0}, 10")
        E(f"s_or_b32 {sBASE}, {sBASE}, {sT0}")
    for d, z in ((8, 0x4000000), (12, 0x4000000), (16, 0x10000000), (24, 512*1792*2), (28, 1024), (32, 1024), (36, 1024)):
        E(f"s_mov_b32 s{d+2}, {z:#x}")
    for d in (8, 12, 16, 24, 28, 32, 36): E(f"s_mov_b32 s{d+3}, 0x20000")
    E(f"v_mov_b32 v5, {L_CNT}")
    for r in range(20, 24): E(f"v_mov_b32 v{r}, 0")
    E(f"ds_write_b128 v5, v[20:23]")
    E(f"ds_write_b32 v5, v20 offset:16")
    E("s_setprio 3")
    E("s_waitcnt lgkmcnt(0)")
    E("s_mov_b64 s[8:9], s[54:55]")
    E(f"s_cmp_ge_u32 {sA}, 96")
    E("s_cbranch_scc1 L_eq")
    E("s_mov_b64 s[20:21], s[70:71]")
    E(f"s_mov_b32 s22, {512*3072*2}")
    E(f"s_mul_i32 {sT0}, {sT2}, {256*6144}")
    E(f"s_add_u32 {sT3}, {sT3}, {sT0}")
    slice_dma(rWT, 6144, sT3, L_WM, 4)
    E("s_branch L_ed")
    E.label("L_eq")
    E(f"s_cmp_ge_u32 {sA}, 224")
    E("s_cbranch_scc1 L_ed")
    E("s_mov_b64 s[20:21], s[58:59]")
    E(f"s_mov_b32 s22, {512*4096*2}")
    E(f"s_lshl_b32 {sT0}, {sT2}, 21")
    E(f"s_add_u32 {sT3}, {sT3}, {sT0}")
    E(f"s_sub_u32 {sT3}, {sT3}, {48*128}")
    slice_dma(rWT, 8192, sT3, L_WM, 4)
    E.label("L_ed")
    E(f"s_load_dword {sEP}, s[76:77], {WS_EPOCH}")
    for d, sr in ((28, 52), (32, 68), (16, 76), (12, 56), (24, 66), (36, 72), (84, 60), (20, 64)):
        E(f"s_mov_b64 s[{d}:{d+1}], s[{sr}:{sr+1}]")
    E(f"s_mov_b32 s22, {512*1792*2}")
    stamp(0)
    if stamps and "e" in stamps: E(f"s_mov_b64 s[{52+2*stamps.index('e')}:{53+2*stamps.index('e')}], s[48:49]")
    E("s_barrier")
    def late_setup():
        E(f"s_mov_b32 {sSELLO}, 0x05040100")
        E(f"s_mov_b32 {sSELHI}, 0x07060302")
        E(f"s_mov_b32 {sC}, {f32bits(math.log2(math.e)):#x}")
        E(f"s_mov_b32 {sSPIN}, 0x40000")
        E(f"s_getreg_b32 {sXCC}, hwreg(HW_REG_XCC_ID)")
        E(f"s_sub_u32 {sT0}, {sJ}, {jml}")
        E(f"s_cmp_lt_u32 {sT0}, 7")
        E(f"s_cselect_b32 {sML}, 1, 0")
        E(f"s_mul_i32 {sM}, {sG}, 7")
        E(f"s_add_u32 {sM}, {sM}, {sT0}")
        E(f"s_lshl_b32 {sPUB}, {sM}, 11")
        E(f"s_add_u32 {sPUB}, {sPUB}, {WS_MO}")
        E(f"s_cmp_lt_u32 {sJ}, 16")
        E(f"s_cselect_b32 s86, {512*4096*2}, 0")
        E(f"s_mov_b32 s87, 0x20000")
        E(f"s_lshl_b32 {sAOP}, {sG}, 12")
        E(f"s_lshl_b32 {sT0}, {sJ}, 8")
        E(f"s_add_u32 {sAOP}, {sAOP}, {sT0}")
        E(f"s_add_u32 {sAOP}, {sAOP}, {WS_AO}")
    E(f"s_cmp_lt_u32 {sA}, 224")
    E(f"s_cselect_b32 {sT0}, {sW}, 1")
    E(f"s_cmp_eq_u32 {sT0}, 0")
    E("s_cbranch_scc1 L_aux")
    NPRE = 4
    load_tile("k", 0, 0, 0, "K0", hi=NPRE)
    late_setup()
    E(f"v_mov_b32 v19, 1")
    E("s_mov_b64 exec, 1")
    E(f"s_waitcnt vmcnt({NPRE})")
    E(f"ds_add_u32 v5, v19 offset:4")
    E("s_mov_b64 exec, -1")
    E("s_branch L_stream")

    def flag(n):
        E(f"s_lshl_b32 {sT0}, {sJ}, 3")
        E(f"s_lshl_b32 {sT1}, {sG}, 8")
        E(f"s_add_u32 {sT0}, {sT0}, {sT1}")
        E(f"v_mov_b32 v{T2}, {WS_CLR}")
        E(f"v_mov_b32 v{T0}, {sXCC}")
        E(f"v_mov_b32 v{T1}, {sTAG}")
        E("s_mov_b64 exec, 1")
        E(f"s_waitcnt vmcnt({n})")
        E(f"buffer_store_dwordx2 v[{T0}:{T1}], v{T2}, {rWS}, {sT0} offen sc1")
        E("s_mov_b64 exec, -1")
    def w1_dma():
        E(f"v_lshrrev_b32 v{T0}, 2, {vLANE}")
        E(f"v_mul_u32_u24 v{T0}, 3584, v{T0}")
        E(f"v_and_b32 v{T1}, 3, {vLANE}")
        E(f"v_lshl_add_u32 v{T0}, v{T1}, 4, v{T0}")
        E(f"s_mul_i32 {sT0}, {sW}, {16*3584}")
        E(f"s_lshl_b32 {sT1}, {sM}, 6")
        E(f"s_add_u32 {sT0}, {sT0}, {sT1}")
        E(f"s_lshl_b32 {sT3}, {sW}, 13")
        E(f"s_add_u32 m0, {sT3}, {L_WT}")
        for i in range(4):
            E(f"buffer_load_dwordx4 v{T0}, {rWT}, {sT0} offen {wflags} lds")
            if i < 3:
                E(f"s_add_u32 {sT0}, {sT0}, {128*3584}")
                E(f"s_add_u32 m0, m0, 1024")
    def w2_dma():
        E(f"v_lshrrev_b32 v{T0}, 3, {vLANE}")
        E(f"v_and_b32 v{T1}, 7, {vLANE}")
        E(f"v_lshlrev_b32 v{T1}, 4, v{T1}")
        E(f"v_lshl_add_u32 v{T0}, v{T0}, 10, v{T1}")
        E(f"s_lshl_b32 {sT0}, {sM}, 15")
        E(f"s_lshl_b32 {sT1}, {sW}, 7")
        E(f"s_add_u32 {sT0}, {sT0}, {sT1}")
        E(f"s_lshl_b32 {sT3}, {sW}, 13")
        E(f"s_add_u32 m0, {sT3}, {L_WT + 4096}")
        for i in range(4):
            E(f"buffer_load_dwordx4 v{T0}, {rW2}, {sT0} offen {wflags} lds")
            if i < 3:
                E(f"s_add_u32 {sT0}, {sT0}, 8192")
                E(f"s_add_u32 m0, m0, 1024")
    def w1_pref(skip):
        E(f"s_sub_u32 {sT3}, {sJ}, 16")
        E(f"s_cmp_ge_u32 {sT3}, 8")
        E(f"s_cbranch_scc1 {skip}")
        E(f"v_lshrrev_b32 v{T0}, 5, {vLANE}")
        E(f"v_mul_u32_u24 v{T0}, 3584, v{T0}")
        E(f"v_and_b32 v{T1}, 31, {vLANE}")
        E(f"v_lshl_add_u32 v{T0}, v{T1}, 4, v{T0}")
        E(f"s_lshl_b32 {sT3}, {sT3}, 3")
        E(f"s_add_u32 {sT3}, {sT3}, {sW}")
        E(f"s_mul_i32 {sT0}, {sT3}, {8*3584}")
        E(f"s_mul_i32 {sT1}, {sG}, 448")
        E(f"s_and_b32 {sT1}, {sT1}, 0xffffff80")
        E(f"s_add_u32 {sT0}, {sT0}, {sT1}")
        E(f"s_mov_b32 m0, {L_WO}")
        for i in range(4):
            E(f"buffer_load_dwordx4 v{T0}, {rWT}, {sT0} offen lds")
            if i < 3: E(f"s_add_u32 {sT0}, {sT0}, {2*3584}")
    def wo_pref():
        u = len(E.L)
        E(f"s_cmp_lt_u32 {sJ}, 16")
        E(f"s_cbranch_scc1 L_wp{u}")
        E(f"v_lshrrev_b32 v{T0}, 3, {vLANE}")
        E(f"v_and_b32 v{T1}, 7, {vLANE}")
        E(f"v_lshlrev_b32 v{T1}, 4, v{T1}")
        E(f"v_lshl_add_u32 v{T0}, v{T0}, 10, v{T1}")
        E(f"s_lshl_b32 {sT0}, {sG}, 19")
        E(f"s_bfe_u32 {sT1}, {sJ}, 0x10003")
        E(f"s_lshl_b32 {sT1}, {sT1}, 18")
        E(f"s_add_u32 {sT0}, {sT0}, {sT1}")
        E(f"s_and_b32 {sT1}, {sJ}, 7")
        E(f"s_lshl_b32 {sT1}, {sT1}, 7")
        E(f"s_add_u32 {sT0}, {sT0}, {sT1}")
        E(f"s_lshl_b32 {sT1}, {sW}, 15")
        E(f"s_add_u32 {sT0}, {sT0}, {sT1}")
        E(f"s_mov_b32 s86, {512*4096*2}")
        E(f"s_mov_b32 m0, {L_WO}")
        for i in range(wopf):
            E(f"buffer_load_dwordx4 v{T0}, {rWO}, {sT0} offen lds")
            if i < wopf-1: E(f"s_add_u32 {sT0}, {sT0}, 8192")
        E(f"s_mov_b32 s86, 0")
        E.label(f"L_wp{u}")
    def tail_dma(pos):
        if tpwo != pos or "o" in dbg: return
        u = len(E.L)
        if mlearly:
            E(f"s_cmp_eq_u32 {sML}, 0")
            E(f"s_cbranch_scc1 L_ta{u}")
            (w1_dma if mlearly == 1 else w2_dma)()
            E(f"s_branch L_tb{u}")
            E.label(f"L_ta{u}")
        if w1pf == 1:
            w1_pref(f"L_tc{u}")
            E(f"s_branch L_tb{u}")
            E.label(f"L_tc{u}")
        slice_prep()
        E(f"s_lshl_b32 {sT0}, {sG}, 19")
        E(f"s_lshr_b32 {sT1}, {sJ}, 3")
        E(f"s_lshl_b32 {sT1}, {sT1}, 18")
        E(f"s_add_u32 {sT0}, {sT0}, {sT1}")
        E(f"s_and_b32 {sT1}, {sJ}, 7")
        E(f"s_lshl_b32 {sT1}, {sT1}, 7")
        E(f"s_add_u32 {sT0}, {sT0}, {sT1}")
        slice_dma(rWO, 1024, sT0, L_WO, 4)
        E.label(f"L_tb{u}")
        vm.extend(["WO"]*4)

    E.label("L_aux")
    CR = 8; XQ = 12; TRA = 16; XF = 20
    G6 = S[6]; AD = S[6] + 16
    E(f"v_and_b32 v4, 31, {vLANE}")
    E(f"v_lshlrev_b32 v4, 4, v4")
    E(f"v_lshlrev_b32 v6, 2, {vLANE}")
    E(f"s_lshl_b32 {sT0}, {sT2}, 9")
    E(f"s_cmp_ge_u32 {sA}, 96")
    E("s_cbranch_scc1 L_ax")
    E(f"buffer_load_dwordx4 v[{CR}:{CR+3}], v4, {rC}, {sT0} offen")
    E("s_branch L_ay")
    E.label("L_ax")
    E(f"buffer_load_dwordx4 v[{CR}:{CR+3}], {vV}, {rX}, 0 offen")
    E(f"buffer_load_dword v{XQ}, v6, {rX}, {sT0} offen")
    E(f"buffer_load_dword v{XQ+1}, v6, {rX}, {sT0} offen offset:256")
    E.label("L_ay")
    late_setup()

    E(f"v_lshrrev_b32 v{T0}, 4, {vLANE}")
    E(f"v_bfe_u32 v{T1}, {vLANE}, 2, 2")
    E(f"v_lshl_add_u32 v{T2}, v{T0}, 3, v{T1}")
    E(f"v_lshlrev_b32 v{T2}, 7, v{T2}")
    E(f"v_and_b32 v{T3}, 3, {vLANE}")
    E(f"v_lshl_add_u32 v{T2}, v{T3}, 3, v{T2}")
    E(f"v_bfe_u32 v{T1}, {vLANE}, 3, 2")
    E(f"v_lshl_add_u32 v{TRA}, v{T1}, 5, v{T2}")
    for nt in range(1, 4): E(f"v_xor_b32 v{TRA+nt}, {nt*32}, v{TRA}")
    vAR = 7
    E(f"v_lshlrev_b32 v{vAR}, 4, v{T0}")
    E("s_waitcnt vmcnt(0)")
    mktag()
    stamp("a0")
    for p in range(4):
        E(f"v_lshlrev_b32 v{XF+2*p}, 16, v{CR+p}")
        E(f"v_and_b32 v{XF+2*p+1}, 0xffff0000, v{CR+p}")
    E(f"s_cmp_ge_u32 {sA}, 96")
    E("s_cbranch_scc1 L_auxq")
    E(f"s_mov_b32 {sT0}, {f32bits(-math.log2(math.e)):#x}")
    for i in range(8): E(f"v_mul_f32 v{G6+i}, {sT0}, v{XF+i}")
    for i in range(8): E(f"v_exp_f32 v{G6+i}, v{G6+i}")
    for i in range(8): E(f"v_add_f32 v{G6+i}, 1.0, v{G6+i}")
    for i in range(8): E(f"v_rcp_f32 v{G6+i}, v{G6+i}")
    for i in range(8): E(f"v_mul_f32 v{XF+i}, v{XF+i}, v{G6+i}")
    for p in range(4): E(f"v_cvt_pk_bf16_f32 v{CR+p}, v{XF+2*p}, v{XF+2*p+1}")
    E(f"ds_write_b128 v4, v[{CR}:{CR+3}] offset:{L_ACT}")
    E("s_branch L_gemv")
    E.label("L_auxq")
    for T in range(k1): load_tile("k", T, T, 0, f"K{T}", setp=False)
    m, v, t = 8, 9, 10
    vals = list(range(XF, XF+8))
    E(f"v_add_f32 v{m}, v{vals[0]}, v{vals[1]}")
    for r in vals[2:]: E(f"v_add_f32 v{m}, v{m}, v{r}")
    red_ror("v_add_f32", [m], (1, 2, 4, 8)); red_rows("v_add_f32", [m], t)
    E(f"v_mul_f32 v{m}, {f32bits(1.0/512):#x}, v{m}")
    for i, r in enumerate(vals):
        E(f"v_sub_f32 v{t}, v{r}, v{m}")
        E(f"v_mul_f32 v{v}, v{t}, v{t}" if i == 0 else f"v_fmac_f32 v{v}, v{t}, v{t}")
    red_ror("v_add_f32", [v], (1, 2, 4, 8)); red_rows("v_add_f32", [v], t)
    E(f"v_mul_f32 v{v}, {f32bits(1.0/512):#x}, v{v}")
    rb2(m, v, m, v, t)
    E(f"v_add_f32 v{v}, {f32bits(1e-5):#x}, v{v}")
    rb1(v, v)
    E(f"v_sqrt_f32 v{v}, v{v}")
    rb1(v, v)
    E(f"v_rcp_f32 v{v}, v{v}")
    for u in range(2):
        n0, n1 = XF+2*u, XF+2*u+1
        E(f"v_lshlrev_b32 v{n0}, 16, v{XQ+u}")
        E(f"v_and_b32 v{n1}, 0xffff0000, v{XQ+u}")
        E(f"v_sub_f32 v{n0}, v{n0}, v{m}")
        E(f"v_sub_f32 v{n1}, v{n1}, v{m}")
        rb2(n0, n1, n0, n1, t)
        E(f"v_mul_f32 v{n0}, v{n0}, v{v}")
        E(f"v_mul_f32 v{n1}, v{n1}, v{v}")
        rb2(n0, n1, n0, n1, t)
    E(f"v_lshrrev_b32 v{T0}, 5, {vLANE}")
    E(f"v_lshl_add_u32 v4, v{T0}, 10, v4")
    E(f"s_lshl_b32 {sT4}, {sT2}, 12")
    E(f"s_add_u32 {sT4}, {sT4}, {WS_EP}")
    E(f"s_add_u32 {sT3}, {sT4}, 8192")
    E.label("L_pollmod")
    for arr in range(2):
        for u in range(2):
            for part in range(2):
                r = G6 + (arr*4 + u*2 + part)*4
                E(f"buffer_load_dwordx4 v[{r}:{r+3}], v4, {rWS}, {sT3 if arr else sT4} offen offset:{u*2048 + part*512} sc1")
    E("s_waitcnt vmcnt(0)")
    tagcheck([G6+1+2*i for i in range(16)], T0)
    E("s_cbranch_vccz L_gotmod")
    if slp: E(f"s_sleep {slp}")
    spin_check("L_pollmod")
    E.label("L_gotmod")
    stamp(2)
    for u in range(2):
        n0, n1 = XF+2*u, XF+2*u+1
        s0 = G6 + u*8; s1 = s0+2; c0 = G6 + 16 + u*8; c1 = c0+2
        for r in (s0, s1, c0, c1): E(f"v_add_f32 v{r}, v{r}, v{r+4}")
        rb2(s0, s1, s0, s1, t); rb2(c0, c1, c0, c1, t)
        E(f"v_add_f32 v{c0}, 1.0, v{c0}")
        E(f"v_add_f32 v{c1}, 1.0, v{c1}")
        rb2(c0, c1, c0, c1, t)
        E(f"v_mul_f32 v{n0}, v{n0}, v{c0}")
        E(f"v_mul_f32 v{n1}, v{n1}, v{c1}")
        rb2(n0, n1, n0, n1, t)
        E(f"v_add_f32 v{n0}, v{n0}, v{s0}")
        E(f"v_add_f32 v{n1}, v{n1}, v{s1}")
        E(f"v_cvt_pk_bf16_f32 v{n0}, v{n0}, v{n1}")
        E(f"ds_write_b32 v6, v{n0} offset:{L_ACT + u*256}")
    E.label("L_gemv")
    E(f"ds_read_b32 v{T0}, v5 offset:4")
    E("s_waitcnt lgkmcnt(0)")
    E(f"v_readfirstlane_b32 {sT1}, v{T0}")
    E(f"s_cmp_lg_u32 {sT1}, 7")
    E(f"s_cbranch_scc1 L_gemv")
    stamp("a2")
    if stamps: E("s_waitcnt lgkmcnt(0)")
    def g_reads(st):
        b = S[4] + (st % 3)*20
        E(f"ds_read_b128 v[{b}:{b+3}], v{vAR} offset:{L_ACT + st*64}")
        for nt in range(4):
            for q in range(2):
                r = b + 4 + nt*4 + q*2
                E(f"ds_read_b64_tr_b16 v[{r}:{r+1}], v{TRA+nt} offset:{L_WM + st*4096 + q*512}")
    g_reads(0); g_reads(1)
    E(f"s_lshl_b32 {sT4}, {sA}, 9")
    E(f"s_add_u32 {sT4}, {sT4}, {WS_EP}")
    E(f"v_lshlrev_b32 v4, 3, {vLANE}")
    for st in range(8):
        E(f"s_waitcnt lgkmcnt({9 if st < 7 else 0})")
        if st + 2 < 8: g_reads(st+2)
        b = S[4] + (st % 3)*20
        for nt in range(4):
            d = AD + 4*nt
            c = "0" if st == 0 else f"v[{d}:{d+3}]"
            E(f"v_mfma_f32_16x16x32_bf16 v[{d}:{d+3}], v[{b}:{b+3}], v[{b+4+4*nt}:{b+7+4*nt}], {c}")
    E(f"v_mov_b32 v9, {sTAG}")
    for nt in range(1, 4):
        E(f"v_mov_b32_dpp v{AD}, v{AD+4*nt} quad_perm:[0,1,2,3] row_mask:{1<<nt:#x} bank_mask:0xf")
    E(f"v_mov_b32 v8, v{AD}")
    E(f"s_cmp_lt_u32 {sA}, 32")
    E(f"s_cselect_b32 {sT2}, 1, {sT2}")
    E(f"s_cmp_eq_u32 {sT2}, 0")
    E("s_cbranch_scc1 L_owner")
    E(f"buffer_store_dwordx2 v[8:9], v4, {rWS}, {sT4} offen sc1")
    stamp(1)
    E(f"s_cmp_ge_u32 {sA}, 96")
    E(f"s_cbranch_scc1 L_cu{k1}")
    E("s_branch L_cu0")
    E.label("L_owner")
    E(f"s_cmp_ge_u32 {sA}, 96")
    E(f"s_cbranch_scc1 L_own2")

    for T in range(k1): load_tile("k", T, T, 0, f"K{T}", setp=False)
    E.label("L_own2")
    for T in range(k1, k2): load_tile("k", T, T, 0, f"K{T}", setp=False)
    E.label("L_pollred")
    E(f"buffer_load_dwordx2 v[10:11], v4, {rWS}, {sT4} offen offset:512 sc1")
    E("s_waitcnt vmcnt(0)")
    E(f"v_cmp_ne_u32 vcc, {sTAG}, v11")
    E("s_cbranch_vccz L_gotred")
    spin_check("L_pollred")
    E.label("L_gotred")
    E(f"v_add_f32 v8, v8, v10")
    E(f"s_lshl_b32 {sT0}, {sA}, 7")
    E(f"s_add_u32 {sT0}, {sT0}, {WS_MODG}")
    E(f"v_mov_b32_dpp v10, v8 quad_perm:[1,1,3,3] {DPPM}")
    E(f"v_cvt_pk_bf16_f32 v8, v8, v10")
    E(f"s_mov_b32 exec_lo, 0x55555555")
    E(f"s_mov_b32 exec_hi, 0x55555555")
    E(f"buffer_store_dwordx2 v[8:9], v6, {rWS}, {sT0} offen sc1")
    E(f"s_mov_b64 exec, -1")
    stamp(3)
    E(f"s_branch L_cu{k2}")
    vm[:] = ["x"]*depth0
    for T in range(4):
        E.label(f"L_cu{T}")
        load_tile("k", T, T, depth0, f"K{T}", setp=False)
    E.label("L_cu4")
    assert tpwo != 2
    load_tile("v", 0, 4, depth0, "V0", setp=False)
    setlight()
    E("s_branch L_v1")

    vm[:] = ["K0"]*NPRE
    E.label("L_stream")
    setlight(); light[0] = True
    load_tile("k", 0, 0, depth, "K0", lo=NPRE)
    E(f"s_cmp_lg_u32 {sW}, 1")
    E("s_cbranch_scc1 L_sk1")
    for r in range(20, 24): E(f"v_mov_b32 v{r}, -1")
    E(f"s_cmp_ge_u32 {sJ}, 16")
    E("s_cbranch_scc1 L_noclr2")
    if rep:
        E(f"v_lshrrev_b32 v18, 4, {vLANE}")
        E(f"v_lshlrev_b32 v18, 15, v18")
        E(f"v_and_b32 v19, 15, {vLANE}")
        E(f"v_lshl_add_u32 v18, v19, 4, v18")
        E(f"buffer_store_dwordx4 v[20:23], v18, {rWS}, {sAOP} offen sc1")
        E(f"s_add_u32 {sT0}, {sAOP}, {4*32768}")
        E(f"buffer_store_dwordx4 v[20:23], v18, {rWS}, {sT0} offen sc1")
    else:
        E("s_mov_b64 exec, 0xffff")
        E(f"buffer_store_dwordx4 v[20:23], {vV}, {rWS}, {sAOP} offen sc1")
        E("s_mov_b64 exec, -1")
    E.label("L_noclr2")
    E(f"s_cmp_eq_u32 {sML}, 0")
    E("s_cbranch_scc1 L_noclr0")
    for i in range(2):
        E(f"buffer_store_dwordx4 v[20:23], {vV}, {rWS}, {sPUB} offen offset:{1024*i} sc1")
    E.label("L_noclr0")
    load_tile("k", 1, 1, depth, "K1", hi=4)
    mktag()
    flag(4)
    E("s_branch L_k1b")
    E.label("L_sk1")
    del vm[-4:]
    load_tile("k", 1, 1, depth, "K1", hi=4)
    mktag()
    E.label("L_k1b")
    load_tile("k", 1, 1, depth, "K1", lo=4)
    if w1e:
        E(f"s_cmp_ge_u32 {sA}, 224")
        E(f"s_cselect_b32 {sT0}, {sML}, 0")
        E(f"s_cmp_eq_u32 {sT0}, 0")
        E("s_cbranch_scc1 L_sk2")
        w1_dma()
    E.label("L_sk2")
    load_tile("k", 2, 2, depth, "K2")
    E.label("L_sk3")
    load_tile("k", 3, 3, depth, "K3")
    E.label("L_sk4")
    tail_dma(2)
    QP = 8
    def qloads():
        E(f"buffer_load_dwordx4 v[20:23], v17, {rWS}, 0 offen sc1")
        E(f"buffer_load_dwordx4 v[{QP}:{QP+3}], v18, {rWS}, {sT2} offen sc1")
        E(f"buffer_load_dwordx4 v[{QP+4}:{QP+7}], v18, {rWS}, {sT2} offen offset:16 sc1")
        E(f"buffer_load_dwordx4 v[{T0}:{T3}], v19, {rWS}, 0 offen sc1")
    seq = [("v", 0, 4, i) for i in range(8)] + [("v", 1, 5, i) for i in range(8)] + [("v", 2, 6, i) for i in range(8)] + [("v", 3, 0, i) for i in range(8)]
    def issue(x): load_tile(x[0], x[1], x[2], depth, f"V{x[1]}", lo=x[3], hi=x[3]+1)
    for x in seq[:8]: issue(x)
    E.label("L_v1")
    if wopf and wopos == 2: wo_pref()
    for x in seq[8:qat-1]: issue(x)
    E(f"v_mov_b32 v4, 1")
    E("s_mov_b64 exec, 1")
    E(f"ds_add_rtn_u32 v4, v5, v4 offset:12")
    E("s_mov_b64 exec, -1")
    issue(seq[qat-1])
    E(f"s_cmp_eq_u32 {sML}, 0")
    E("s_cbranch_scc1 L_nomdma")
    E(f"s_lshl_b32 {sT0}, {sW}, 10")
    E(f"s_add_u32 m0, {sT0}, {L_MOD}")
    E(f"s_add_u32 {sT0}, {sT0}, {WS_MODG + 4096}")
    E(f"buffer_load_dwordx4 {vV}, {rWS}, {sT0} offen sc1 lds")
    E.label("L_nomdma")
    E(f"v_lshlrev_b32 v18, 1, {vK}")
    E(f"s_lshl_b32 {sT2}, {sG}, 11")
    E(f"s_add_u32 {sT2}, {sT2}, {WS_QG}")
    E(f"v_and_b32 v19, 15, {vLANE}")
    E(f"s_lshl_b32 {sT0}, {sG}, 8")
    E(f"s_add_u32 {sT0}, {sT0}, {WS_CLR}")
    E(f"v_lshl_add_u32 v19, v19, 4, {sT0}")
    E(f"v_lshrrev_b32 v17, 3, {vLANE}")
    E(f"v_lshlrev_b32 v17, 8, v17")
    E(f"v_and_b32 v16, 7, {vLANE}")
    E(f"v_lshl_add_u32 v17, v16, 4, v17")
    E(f"v_add_u32 v17, {WS_CLR}, v17")
    E("s_waitcnt lgkmcnt(0)")
    E(f"v_readfirstlane_b32 {sSK}, v4")
    E(f"s_cmp_lg_u32 {sSK}, 0")
    E("s_cbranch_scc1 L_noqp")
    qloads()
    E.label("L_noqp")
    for x in seq[qat:18]: issue(x)
    nxt = seq[18:]
    stamp("q0")
    E(f"s_cmp_lg_u32 {sSK}, 0")
    E("s_cbranch_scc1 L_waitq")
    E(f"s_waitcnt vmcnt({18-qat})")
    QT = [QP+1, QP+3, QP+5, QP+7, T1, T3, 21, 23]
    E.label("L_checkq")
    tagcheck(QT, 6)
    E("s_branch L_gotq" if "q" in dbg else "s_cbranch_vccz L_gotq")
    if slpq: E(f"s_sleep {slpq}")
    qloads()
    E("s_waitcnt vmcnt(0)")
    spin_check("L_checkq")
    E.label("L_gotq")
    E(f"v_xor_b32 v{T0}, {sXCC}, v{T0}")
    E(f"v_xor_b32 v{T2}, {sXCC}, v{T2}")
    E(f"v_or_b32 v{T0}, v{T0}, v{T2}")
    E(f"v_cmp_ne_u32 vcc, 0, v{T0}")
    for i in range(4): E(f"v_mov_b32 v{Q0+i}, v{QP+2*i}")
    E(f"ds_write_b128 {vV}, v[{Q0}:{Q0+3}] offset:{L_Q}")
    E(f"s_cmp_eq_u64 vcc, 0")
    E(f"s_cselect_b32 {sPL}, {2 if fast else 1}, 1")
    E(f"v_mov_b32 v4, {sPL}")
    E("s_waitcnt lgkmcnt(0)")
    E(f"ds_write_b32 v5, v4 offset:16")
    def gstore(text):
        u = len(E.L)
        E(f"s_cmp_eq_u32 {sPL}, 2")
        E(f"s_cbranch_scc1 L_gs{u}")
        E(text + " sc1")
        E(f"s_branch L_gt{u}")
        E.raw(f"L_gs{u}:")
        E(text)
        E.raw(f"L_gt{u}:")
    part_rows(6, 7)
    for r in (T0, T1, T2, T3): E(f"v_mov_b32 v{r}, -1")
    gstore(f"buffer_store_dwordx4 v[{T0}:{T3}], v6, {rWS}, {sT0} offen")
    E("s_branch L_haveq")
    E.label("L_waitq")
    E(f"ds_read_b32 v4, v5 offset:16")
    E("s_waitcnt lgkmcnt(0)")
    E(f"v_readfirstlane_b32 {sPL}, v4")
    E(f"s_cmp_lg_u32 {sPL}, 0")
    E("s_cbranch_scc1 L_readq")
    E("s_sleep 1")
    spin_check("L_waitq")
    E.label("L_readq")
    E(f"ds_read_b128 v[{Q0}:{Q0+3}], {vV} offset:{L_Q}")
    vmwait("K3")
    E("s_waitcnt lgkmcnt(0)")
    E.label("L_haveq")
    setlight()
    stamp(4)
    nq = len(vm)
    def sc(T, i): return 20 + i if T == 0 else S[1] + 4*i + (T-1)
    SCR = [sc(T, i) for T in range(4) for i in range(8)]
    def s_tile(T):
        for i in range(8):
            r = S[T] + 4*i
            E(f"v_mfma_f32_16x16x32_bf16 v[{r}:{r+3}], v[{r}:{r+3}], v[{Q0}:{Q0+3}], 0")
        for c in range(4):
            for i in range(8):
                r = S[T] + 4*i; d = sc(T, i)
                if c == 0: E(f"v_mov_b32_dpp v{d}, v{r} quad_perm:[0,0,0,0] {DPPM}")
                else: E(f"v_add_f32_dpp v{d}, v{r+c}, v{d} quad_perm:[{c},{c},{c},{c}] {DPPM}")
    def s_round(T):
        rs = SCR[8*T:8*T+8]
        for i in range(0, 8, 2): rb2(rs[i], rs[i+1], rs[i], rs[i+1], T0 + i//2)
        for r in rs: E(f"v_mul_f32 v{r}, {sT1}, v{r}")
        for i in range(0, 8, 2): rb2(rs[i], rs[i+1], rs[i], rs[i+1], T0 + i//2)
    E(f"s_mov_b32 {sT1}, {f32bits(128.0**-0.5):#x}")
    def more(n, leave=0):
        for _ in range(n*rate):
            if len(nxt) <= leave: return
            issue(nxt.pop(0))
    for T in range(4):
        s_tile(T); more(1)
        s_round(T); more(1 if T < 2 else 0)
    stamp("c0")
    MX, LS = 6, 7
    E(f"v_max3_f32 v{MX}, v{SCR[0]}, v{SCR[1]}, v{SCR[2]}")
    for i in range(3, 31, 2): E(f"v_max3_f32 v{MX}, v{MX}, v{SCR[i]}, v{SCR[i+1]}")
    E(f"v_max_f32 v{MX}, v{MX}, v{SCR[31]}")
    red_rows("v_max_f32", [MX], T0)
    E(f"v_mul_f32 v{MX}, {sC}, v{MX}")
    more(1)
    for r in SCR: E(f"v_fma_f32 v{r}, v{r}, {sC}, -v{MX}")
    more(1)
    for r in SCR: E(f"v_exp_f32 v{r}, v{r}")
    more(1)
    E(f"v_add_f32 v{LS}, v{SCR[0]}, v{SCR[1]}")
    E(f"v_add_f32 v{T0}, v{SCR[2]}, v{SCR[3]}")
    for i in range(4, 32, 2):
        E(f"v_add_f32 v{LS}, v{LS}, v{SCR[i]}")
        E(f"v_add_f32 v{T0}, v{T0}, v{SCR[i+1]}")
    E(f"v_add_f32 v{LS}, v{LS}, v{T0}")
    red_rows("v_add_f32", [LS], T0)
    E(f"v_and_b32 v{T0}, 12, {vLANE}")
    E(f"v_lshlrev_b32 v{T0}, 1, v{T0}")
    E(f"s_lshl_b32 {sT0}, {sW}, 5")
    E(f"v_add_u32 v{T0}, {sT0}, v{T0}")
    E(f"ds_write_b64 v{T0}, v[{MX}:{LS}] offset:{L_STATS}")
    E(f"v_mov_b32 v{T2}, 1")
    E(f"s_waitcnt vmcnt({len(vm) - nq}) lgkmcnt(0)")
    E("s_mov_b64 exec, 1")
    E(f"ds_add_rtn_u32 v{T2}, v5, v{T2}")
    E("s_mov_b64 exec, -1")
    PR = [8, 12, 20, 24]
    for T in range(4):
        for i in range(4): E(f"v_cvt_pk_bf16_f32 v{PR[T]+i}, v{SCR[8*T+2*i]}, v{SCR[8*T+2*i+1]}")
    more(1)
    E("s_waitcnt lgkmcnt(0)")
    E(f"v_readfirstlane_b32 {sLAST}, v{T2}")
    X = S[1]
    E(f"s_cmp_lg_u32 {sLAST}, 7")
    E("s_cbranch_scc1 L_nostat")
    E(f"v_and_b32 v{T0}, 31, {vLANE}")
    E(f"v_lshlrev_b32 v{T1}, 3, v{T0}")
    E(f"ds_read_b64 v[6:7], v{T1} offset:{L_STATS}")
    E(f"v_and_b32 v{T1}, 3, v{T0}")
    E(f"v_and_b32 v{T0}, 28, v{T0}")
    E(f"v_lshl_add_u32 v{T0}, v{T1}, 5, v{T0}")
    E(f"v_mov_b32 v{T2}, {sJ}")
    E(f"v_lshlrev_b32 v{T1}, 9, v{T1}")
    E(f"v_lshl_add_u32 v{T1}, v{T2}, 4, v{T1}")
    E("s_waitcnt lgkmcnt(0)")
    E(f"v_mov_b32 v16, v6")
    red_ror("v_max_f32", [16], (4, 8))
    E(f"v_mov_b32 v17, v16")
    E(f"v_permlane16_swap_b32 v16, v17")
    E(f"v_max_f32 v16, v16, v17")
    E(f"v_sub_f32 v6, v6, v16")
    E(f"v_exp_f32 v6, v6")
    E(f"v_mul_f32 v18, v6, v7")
    E(f"ds_write_b32 v{T0}, v6 offset:{L_FAC}")
    red_ror("v_add_f32", [18], (4, 8))
    E(f"v_mov_b32 v17, v18")
    E(f"v_permlane16_swap_b32 v18, v17")
    E(f"v_add_f32 v18, v17, v18")
    E(f"v_mov_b32 v17, {sTAG}")
    E(f"v_mov_b32 v19, {sTAG}")
    E(f"s_lshl_b32 {sT0}, {sG}, 11")
    E(f"s_add_u32 {sT0}, {sT0}, {WS_STAT}")
    E("s_mov_b64 exec, 15")
    gstore(f"buffer_store_dwordx4 v[16:19], v{T1}, {rWS}, {sT0} offen")
    E("s_mov_b64 exec, -1")
    E.label("L_nostat")
    stamp("c1")
    vGQ, vN, vCOL, vGAA, vCH, vU16, vOW, vT8, vL4, vGATH, vRR, vRW, vFR, vSTA, vWBW, vWBR = [X+i for i in range(16)]
    TRB = X+16; GA = X+20; GB = X+24; SP = X+24; XT = X+30; vWER = X+31
    def wcalc():
        E(f"v_mov_b32 v{T0}, v{SP}")
        red_ror("v_max_f32", [T0], (1, 2, 4, 8))
        E(f"v_mov_b32 v{T1}, v{T0}")
        E(f"v_permlane16_swap_b32 v{T0}, v{T1}")
        E(f"v_max_f32 v{T0}, v{T0}, v{T1}")
        E(f"v_sub_f32 v{SP}, v{SP}, v{T0}")
        E(f"v_exp_f32 v{SP}, v{SP}")
        E(f"v_mul_f32 v{T0}, v{SP}, v{SP+2}")
        red_ror("v_add_f32", [T0], (1, 2, 4, 8))
        E(f"v_mov_b32 v{T1}, v{T0}")
        E(f"v_permlane16_swap_b32 v{T0}, v{T1}")
        E(f"v_add_f32 v{T0}, v{T0}, v{T1}")
        E(f"v_rcp_f32 v{T0}, v{T0}")
        E(f"v_mul_f32 v{T0}, v{T0}, v{SP}")
    tail_dma(3)
    if wopf and wopos == 3: wo_pref()
    ACCO = S[2]; TP = S[3]
    first = [True]
    def pv_perm(slot, mm):
        for dw in range(4):
            a = S[slot] + (2*mm)*4 + dw; b = S[slot] + (2*mm+1)*4 + dw
            E(f"v_perm_b32 v{TP + (2*dw)*4 + mm}, v{b}, v{a}, {sSELLO}")
            E(f"v_perm_b32 v{TP + (2*dw+1)*4 + mm}, v{b}, v{a}, {sSELHI}")
    def pv_mfma(T):
        for e in range(8):
            c = "0" if first[0] else f"v[{ACCO+4*e}:{ACCO+4*e+3}]"
            E(f"v_mfma_f32_16x16x32_bf16 v[{ACCO+4*e}:{ACCO+4*e+3}], v[{PR[T]}:{PR[T]+3}], v[{TP+4*e}:{TP+4*e+3}], {c}")
        first[0] = False
    def pv(slot, T):
        for mm in range(4): pv_perm(slot, mm)
        pv_mfma(T)
    more(1)
    vmwait("V0"); pv(4, 0)
    more(1)
    vmwait("V1"); pv(5, 1)
    more(16, leave=2)
    if ewt:
        E(f"s_cmp_lt_u32 {sJ}, 16")
        E(f"s_cselect_b32 {sLAST}, {sLAST}, 0")
        E(f"s_cmp_lg_u32 {sLAST}, 7")
        E("s_cbranch_scc1 L_noes")
        E(f"s_lshl_b32 {sT0}, {sG}, 11")
        E(f"s_lshr_b32 {sT1}, {sJ}, 3")
        E(f"s_lshl_b32 {sT1}, {sT1}, 10")
        E(f"s_add_u32 {sT0}, {sT0}, {sT1}")
        E(f"s_add_u32 {sT0}, {sT0}, {WS_STAT}")
        E(f"buffer_load_dwordx4 v[{SP}:{SP+3}], {vV}, {rWS}, {sT0} offen sc1")
        E.label("L_noes")
        assert len(nxt) == 2
    more(16)
    stamp("c3")
    if prio >= 2: E("s_setprio 0")
    tail_dma(4)
    if prio >= 2: E("s_setprio 3")
    vmwait("V2"); pv(6, 2)
    nyoung = len(vm) - 1 - [i for i, t in enumerate(vm) if t == "V3"][-1]
    WB = S[4]; SCF = S[5]; WT8 = S[5]; PK = S[5]+16; GBF = S[6]
    W1 = WB; W2 = S[3]+16
    E(f"v_lshrrev_b32 v{vGQ}, 4, {vLANE}")
    E(f"v_and_b32 v{vN}, 15, {vLANE}")
    E(f"s_lshl_b32 {sT0}, {sW}, 11")
    E(f"v_lshlrev_b32 v{vRR}, 5, {vLANE}")
    E(f"v_add_u32 v{vOW}, {sT0}, v{vRR}")
    E(f"v_lshlrev_b32 v{vT8}, 3, v0")
    E(f"v_lshlrev_b32 v{vL4}, 2, {vLANE}")
    E(f"s_lshl_b32 {sT1}, {sW}, 5")
    E(f"v_mov_b32 v{vFR}, {sT1}")
    E(f"v_bfe_u32 v{T1}, {vLANE}, 2, 2")
    E(f"v_lshl_add_u32 v{T2}, v{vGQ}, 3, v{T1}")
    E(f"v_lshlrev_b32 v{T2}, 7, v{T2}")
    E(f"v_and_b32 v{T3}, 3, {vLANE}")
    E(f"v_lshl_add_u32 v{T2}, v{T3}, 3, v{T2}")
    E(f"v_bfe_u32 v{T1}, {vLANE}, 3, 2")
    E(f"v_lshl_add_u32 v{T2}, v{T1}, 5, v{T2}")
    E(f"s_lshl_b32 {sT0}, {sW}, 12")
    E(f"s_add_u32 {sT0}, {sT0}, {L_WO}")
    E(f"v_add_u32 v{TRB}, {sT0}, v{T2}")
    for nt in range(1, 4): E(f"v_xor_b32 v{TRB+nt}, {nt*32}, v{TRB}")
    E(f"s_lshl_b32 {sT0}, {sG}, 2")
    E(f"s_add_u32 {sPP}, {sT0}, {sW}")
    E(f"s_lshl_b32 {sPP}, {sPP}, 13")
    E(f"s_lshr_b32 {sT1}, {sJ}, 4")
    E(f"s_lshl_b32 {sT1}, {sT1}, 12")
    E(f"s_add_u32 {sPP}, {sPP}, {sT1}")
    E(f"s_and_b32 {sT1}, {sJ}, 15")
    E(f"s_lshl_b32 {sT1}, {sT1}, 4")
    E(f"s_add_u32 {sPP}, {sPP}, {sT1}")
    E(f"s_add_u32 {sPP}, {sPP}, {WS_PART}")
    E(f"s_lshr_b32 {sT1}, {sJ}, 3")
    E(f"s_lshl_b32 {sT1}, {sT1}, 1")
    E(f"s_add_u32 {sGA0}, {sT0}, {sT1}")
    E(f"s_lshr_b32 {sT1}, {sW}, 2")
    E(f"s_add_u32 {sGA0}, {sGA0}, {sT1}")
    E(f"s_lshl_b32 {sT2}, {sGA0}, 9")
    E(f"s_add_u32 {sT2}, {sT2}, {WS_STAT}")
    E(f"s_lshl_b32 {sGA0}, {sGA0}, 13")
    E(f"s_and_b32 {sT1}, {sW}, 3")
    E(f"s_lshl_b32 {sT1}, {sT1}, 10")
    E(f"s_add_u32 {sGA0}, {sGA0}, {sT1}")
    E(f"s_add_u32 {sGA0}, {sGA0}, {WS_PART}")
    E(f"s_add_u32 {sGA1}, {sGA0}, 4096")
    E(f"v_and_b32 v{vSTA}, 31, {vLANE}")
    E(f"s_lshl_b32 {sT1}, {sW}, 7")
    E(f"v_lshl_add_u32 v{vWBW}, v{vSTA}, 2, {sT1}")
    E(f"v_lshl_add_u32 v{vWBR}, v{vGQ}, 4, {sT1}")
    E(f"v_lshlrev_b32 v{vSTA}, 4, v{vSTA}")
    E(f"s_lshr_b32 {sT1}, {sW}, 2")
    E(f"s_lshl_b32 {sT1}, {sT1}, 7")
    E(f"v_lshl_add_u32 v{vWER}, v{vGQ}, 4, {sT1}")
    E(f"v_lshrrev_b32 v{vGATH}, 2, {vLANE}")
    E(f"v_lshlrev_b32 v{vGATH}, 8, v{vGATH}")
    E(f"v_and_b32 v{T3}, 3, {vLANE}")
    E(f"v_lshl_add_u32 v{vGATH}, v{T3}, 2, v{vGATH}")
    E(f"s_lshl_b32 {sT1}, {sW}, 2")
    E(f"v_add_u32 v{vRW}, {sT1}, v{vRR}")
    E(f"s_waitcnt vmcnt({nyoung+4})")
    pv_perm(0, 0); pv_perm(0, 1)
    E(f"s_waitcnt vmcnt({nyoung+2})")
    pv_perm(0, 2)
    if ewt:
        E(f"s_cmp_lg_u32 {sLAST}, 7")
        E("s_cbranch_scc1 L_noew")
        tagcheck([SP+1, SP+3], 6)
        E("s_cbranch_vccnz L_noew")
        wcalc()
        E(f"ds_write_b32 v{vL4}, v{T0} offset:{L_WE}")
        E(f"ds_write_b32 v5, v5 offset:8")
        E.label("L_noew")
    E(f"s_waitcnt vmcnt({nyoung})")
    stamp(5)
    pv_perm(0, 3)
    pv_mfma(3)
    for e in range(8): E(f"v_mov_b32 v{PK+e}, v{ACCO+4*e}")
    E(f"ds_write_b128 v{vOW}, v[{PK}:{PK+3}] offset:{L_ORED}")
    E(f"ds_write_b128 v{vOW}, v[{PK+4}:{PK+7}] offset:{L_ORED+16}")
    E("s_waitcnt lgkmcnt(0)")
    E("s_barrier")
    E(f"s_cmp_ge_u32 {sW}, 4")
    E("s_cbranch_scc1 L_nopart")
    R0 = S[2]; FC = S[2]+16
    E(f"ds_read_b128 v[{FC}:{FC+3}], v{vFR} offset:{L_FAC}")
    E(f"ds_read_b128 v[{FC+4}:{FC+7}], v{vFR} offset:{L_FAC+16}")
    for w in range(8): E(f"ds_read_b64 v[{R0+2*w}:{R0+2*w+1}], v{vT8} offset:{L_ORED + w*2048}")
    for w in range(8):
        if w % 2 == 0: E(f"s_waitcnt lgkmcnt({6-w})")
        a = PK + 2*(w % 2)
        op = "v_mul_f32" if w < 2 else "v_fmac_f32"
        E(f"{op} v{a}, v{R0+2*w}, v{FC+w}")
        E(f"{op} v{a+1}, v{R0+2*w+1}, v{FC+w}")
    E(f"v_pk_add_f32 v[{PK}:{PK+1}], v[{PK}:{PK+1}], v[{PK+2}:{PK+3}]")
    E(f"v_cvt_pk_bf16_f32 v{PK}, v{PK}, v{PK+1}")
    E(f"v_min_u32 v{PK}, -2, v{PK}")
    gstore(f"buffer_store_dword v{PK}, v{vGATH}, {rWS}, {sPP} offen")
    E.label("L_nopart")
    stamp(6)
    if "e" in dbg: E("s_branch L_fin")
    E(f"s_cmp_lg_u32 {sML}, 0")
    E("s_cbranch_scc1 L_stageb")
    if w1pf == 2:
        w1_pref("L_nopf2")
        E.label("L_nopf2")
    E(f"s_cmp_ge_u32 {sJ}, 16")
    E("s_cbranch_scc1 L_fin")
    tail_dma(5)
    if buddy:
        E(f"s_sub_u32 {sT0}, {sT0}, {3*8*1024}")
        E(f"s_xor_b32 {sT0}, {sT0}, {buddy}")
        E(f"s_mov_b32 m0, {L_WM}")
        for i in range(4):
            E(f"buffer_load_dwordx4 v{T2}, {rWO}, {sT0} offen lds")
            if i < 3: E(f"s_add_u32 {sT0}, {sT0}, {8*1024}")
    GA_ = S[3]
    def a_load(i): E(f"buffer_load_dwordx4 v[{GA_+4*i}:{GA_+4*i+3}], {vV}, {rWS}, {sGA1 if i else sGA0} offen {'nt' if 'n' in dbg else 'sc1'}")
    def a_loads(): a_load(0); a_load(1)
    if ewt:
        E(f"ds_read_b32 v{T0}, v5 offset:8")
        E(f"ds_read_b128 v[{WT8}:{WT8+3}], v{vWER} offset:{L_WE}")
        E(f"ds_read_b128 v[{WT8+4}:{WT8+7}], v{vWER} offset:{L_WE+64}")
        E("s_waitcnt lgkmcnt(0)")
        E(f"v_readfirstlane_b32 {sT0}, v{T0}")
        E(f"s_cmp_lg_u32 {sT0}, 0")
        E("s_cbranch_scc1 L_havew")
    E.label("L_statchk")
    E(f"buffer_load_dwordx4 v[{SP}:{SP+3}], v{vSTA}, {rWS}, {sT2} offen sc1")
    E("s_waitcnt vmcnt(0)")
    tagcheck([SP+1, SP+3], 6)
    E("s_cbranch_vccz L_gotstat")
    if slp: E(f"s_sleep {slp}")
    spin_check("L_statchk")
    E.label("L_gotstat")
    wcalc()
    E(f"ds_write_b32 v{vWBW}, v{T0} offset:{L_WB}")
    E("s_waitcnt lgkmcnt(0)")
    E(f"ds_read_b128 v[{WT8}:{WT8+3}], v{vWBR} offset:{L_WB}")
    E(f"ds_read_b128 v[{WT8+4}:{WT8+7}], v{vWBR} offset:{L_WB+64}")
    E.label("L_havew")
    if lead:
        E(f"s_and_b32 {sT0}, {sW}, 3")
        E("s_cbranch_scc0 L_lead")
        E("s_barrier")
        E.label("L_lead")
    a_loads()
    E("s_waitcnt vmcnt(2)")
    for nt in range(4):
        for q in range(2): E(f"ds_read_b64_tr_b16 v[{WB+4*nt+2*q}:{WB+4*nt+2*q+1}], v{TRB+nt} offset:{q*512}")
    stamp("w1")
    if rep:
        E(f"s_lshl_b32 {sT0}, {sW}, 15")
        E(f"s_add_u32 {sAOP}, {sAOP}, {sT0}")
    pollloop("a", a_load, [range(GA_, GA_+4), range(GA_+4, GA_+8)], T0, slpa)
    if lead:
        E(f"s_and_b32 {sT0}, {sW}, 3")
        E("s_cbranch_scc1 L_lead2")
        E("s_barrier")
        E.label("L_lead2")
    stamp(7)
    E("s_waitcnt lgkmcnt(0)")
    D = S[2]
    for half in range(2):
        for nt in range(4):
            d = D + half*16 + 4*nt
            E(f"v_mfma_f32_16x16x32_bf16 v[{d}:{d+3}], v[{GA_+4*half}:{GA_+4*half+3}], v[{WB+4*nt}:{WB+4*nt+3}], 0")
    for nt in range(4): E(f"v_pk_mul_f32 v[{D+4*nt}:{D+4*nt+1}], v[{D+4*nt}:{D+4*nt+1}], v[{WT8}:{WT8+1}]")
    for nt in range(4): E(f"v_pk_fma_f32 v[{D+4*nt}:{D+4*nt+1}], v[{D+4*nt+2}:{D+4*nt+3}], v[{WT8+2}:{WT8+3}], v[{D+4*nt}:{D+4*nt+1}]")
    for nt in range(4): E(f"v_pk_fma_f32 v[{D+4*nt}:{D+4*nt+1}], v[{D+16+4*nt}:{D+16+4*nt+1}], v[{WT8+4}:{WT8+5}], v[{D+4*nt}:{D+4*nt+1}]")
    for nt in range(4): E(f"v_pk_fma_f32 v[{D+4*nt}:{D+4*nt+1}], v[{D+16+4*nt+2}:{D+16+4*nt+3}], v[{WT8+6}:{WT8+7}], v[{D+4*nt}:{D+4*nt+1}]")
    for nt in range(4): E(f"v_add_f32 v{D+4*nt}, v{D+4*nt}, v{D+4*nt+1}")
    tred4(D, D+4, D+8, D+12)
    E(f"ds_write_b32 v{vRW}, v{D} offset:{L_RED}")
    E("s_waitcnt lgkmcnt(0)")
    E("s_barrier")
    if not rep:
        E(f"s_cmp_lg_u32 {sW}, 0")
        E("s_cbranch_scc1 L_fin")
    D = PK
    E(f"ds_read_b128 v[{D}:{D+3}], v{vRR} offset:{L_RED}")
    E(f"ds_read_b128 v[{D+4}:{D+7}], v{vRR} offset:{L_RED+16}")
    E("s_waitcnt lgkmcnt(0)")
    E(f"v_pk_add_f32 v[{D}:{D+1}], v[{D}:{D+1}], v[{D+4}:{D+5}]")
    E(f"v_pk_add_f32 v[{D+2}:{D+3}], v[{D+2}:{D+3}], v[{D+6}:{D+7}]")
    E(f"v_pk_add_f32 v[{D}:{D+1}], v[{D}:{D+1}], v[{D+2}:{D+3}]")
    E(f"v_add_f32 v{D}, v{D}, v{D+1}")
    E(f"v_min_u32 v{D}, -2, v{D}")
    E(f"buffer_store_dword v{D}, v{vL4}, {rWS}, {sAOP} offen sc1")
    stamp(8)
    E("s_branch L_fin")
    E.label("L_stageb")
    if "x" in dbg: E("s_branch L_fin")
    if w1e:
        E(f"s_cmp_ge_u32 {sA}, 224")
        E("s_cbranch_scc1 L_now1")
    if mlearly != 2: w2_dma()
    if w1dl: E(f"s_sleep {w1dl}")
    if mlearly != 1: w1_dma()
    E.label("L_now1")
    GBR = S[3]
    E(f"v_lshlrev_b32 v{vSTA}, 11, v{vGQ}")
    E(f"v_lshl_add_u32 v{vSTA}, v{vN}, 4, v{vSTA}")
    E(f"s_lshl_b32 {sT0}, {sW}, 8")
    if rep:
        E(f"s_lshl_b32 {sT1}, {sG}, 15")
        E(f"s_add_u32 {sT0}, {sT0}, {sT1}")
    bs = ["s88", "s89", "s90", "s94"]
    for i in range(4): E(f"s_add_u32 {bs[i]}, {sT0}, {WS_AO + 8192*i}")
    def b_load(i): E(f"buffer_load_dwordx4 v[{S[3]+4*i}:{S[3]+4*i+3}], v{vSTA}, {rWS}, {bs[i]} offen sc1")
    def b_loads():
        for i in range(4): b_load(i)
    E(f"v_lshl_add_u32 v{vCOL}, v{vN}, 2, v{vGQ}")
    E(f"s_lshl_b32 {sT0}, {sW}, 6")
    E(f"v_add_u32 v{vCOL}, {sT0}, v{vCOL}")
    E(f"v_lshlrev_b32 v{vGAA}, 1, v{vCOL}")
    E(f"buffer_load_ushort v{XT}, v{vGAA}, {rX}, 0 offen")
    E(f"v_and_b32 v{vGAA}, 0x1fe, v{vCOL}")
    E(f"v_lshlrev_b32 v{vGAA}, 2, v{vGAA}")
    E(f"s_mul_i32 {sU}, {sW}, 56")
    E(f"s_add_u32 {sU}, {sU}, {sM}")
    E(f"s_lshl_b32 {sU16}, {sU}, 4")
    E(f"s_and_b32 {sU16}, {sU16}, 0x7ff")
    E(f"v_mov_b32 v{vU16}, {sU16}")
    E(f"s_lshl_b32 {sT0}, {sW}, 2")
    E(f"v_add_u32 v{vCH}, {sT0}, v{vN}")
    E(f"v_and_b32 v{vCH}, 15, v{vCH}")
    E(f"v_lshl_add_u32 v{vCH}, v{vGQ}, 4, v{vCH}")
    E(f"v_lshlrev_b32 v{vCH}, 5, v{vCH}")
    SG = S[6]+8
    E(f"ds_read_b64 v[{GA}:{GA+1}], v{vGAA} offset:{L_MOD}")
    for i in range(4): E(f"ds_read_b128 v[{SG+4*i}:{SG+4*i+3}], v{vCH} offset:{L_MOD + 2048 + (i//2)*2048 + (i%2)*16}")
    E(f"ds_read_b128 v[{GB}:{GB+3}], v{vU16} offset:{L_MOD + 6144}")
    E(f"s_lshl_b32 {sT3}, {sW}, 13")
    E(f"s_add_u32 {sT3}, {sT3}, {L_WT}")
    E(f"v_bfe_u32 v{T0}, {vLANE}, 2, 2")
    E(f"v_and_b32 v{T1}, 3, {vLANE}")
    E(f"v_lshlrev_b32 v{T1}, 3, v{T1}")
    E(f"v_lshl_add_u32 v{T2}, v{T0}, 6, v{T1}")
    E(f"v_lshl_add_u32 v{T2}, v{vGQ}, 10, v{T2}")
    E(f"s_and_b32 {sT1}, {sW}, 3")
    E(f"s_lshl_b32 {sT1}, {sT1}, 14")
    E(f"s_add_u32 {sT1}, {sT1}, {L_WT}")
    E(f"v_add_u32 v{T2}, {sT1}, v{T2}")
    E(f"v_lshl_add_u32 v{T0}, v{T0}, 7, v{T1}")
    E(f"v_lshl_add_u32 v{T0}, v{vGQ}, 5, v{T0}")
    E(f"v_add_u32 v{T0}, {sT3}, v{T0}")
    E(f"v_lshlrev_b32 v{vRR}, 5, v{vN}")
    E(f"v_lshlrev_b32 v{vRW}, 4, v{vN}")
    E(f"s_lshl_b32 {sT1}, {sW}, 2")
    E(f"v_add_u32 v{vRW}, {sT1}, v{vRW}")
    E(f"v_lshlrev_b32 v{vGATH}, 2, v0")
    E(f"v_mov_b32 v{vWBR}, 0")
    E("s_waitcnt lgkmcnt(0)")
    E.label("L_modchk")
    tagcheck([GA+1, GB+1, GB+3] + [SG+1+2*i for i in range(8)], 6)
    E("s_cbranch_vccz L_gotmd")
    E(f"s_mov_b32 {sT0}, {WS_MODG + 4096}")
    E(f"buffer_load_dwordx2 v[{GA}:{GA+1}], v{vGAA}, {rWS}, {sT0} offen sc1")
    E(f"buffer_load_dwordx4 v[{SG}:{SG+3}], v{vCH}, {rWS}, {sT0} offen offset:2048 sc1")
    E(f"buffer_load_dwordx4 v[{SG+4}:{SG+7}], v{vCH}, {rWS}, {sT0} offen offset:2064 sc1")
    E(f"s_mov_b32 {sT0}, {WS_MODG + 8192}")
    E(f"buffer_load_dwordx4 v[{SG+8}:{SG+11}], v{vCH}, {rWS}, {sT0} offen sc1")
    E(f"buffer_load_dwordx4 v[{SG+12}:{SG+15}], v{vCH}, {rWS}, {sT0} offen offset:16 sc1")
    E(f"buffer_load_dwordx4 v[{GB}:{GB+3}], v{vU16}, {rWS}, {sT0} offen offset:2048 sc1")
    E("s_waitcnt vmcnt(0)")
    spin_check("L_modchk")
    E.label("L_gotmd")
    E(f"v_and_b32 v6, 1, v{vCOL}")
    E(f"v_lshlrev_b32 v{vCOL}, 2, v{vCOL}")
    E(f"v_cmp_eq_u32 vcc, 0, v6")
    E(f"v_lshlrev_b32 v6, 16, v{GA}")
    E(f"v_and_b32 v7, 0xffff0000, v{GA}")
    E(f"v_cndmask_b32 v{GA}, v7, v6, vcc")
    for i in range(4):
        c0, c1, s0, s1_ = SCF+2*i, SCF+2*i+1, SCF+8+2*i, SCF+8+2*i+1
        E(f"v_lshlrev_b32 v{s0}, 16, v{SG+2*i}")
        E(f"v_and_b32 v{s1_}, 0xffff0000, v{SG+2*i}")
        E(f"v_lshlrev_b32 v{c0}, 16, v{SG+8+2*i}")
        E(f"v_and_b32 v{c1}, 0xffff0000, v{SG+8+2*i}")
        E(f"v_add_f32 v{c0}, 1.0, v{c0}")
        E(f"v_add_f32 v{c1}, 1.0, v{c1}")
        rb2(c0, c1, c0, c1, 6)
    E(f"v_lshlrev_b32 v{GBF}, 16, v{GB}")
    E(f"v_and_b32 v{GBF+1}, 0xffff0000, v{GB}")
    E(f"v_lshlrev_b32 v{GBF+2}, 16, v{GB+2}")
    E(f"v_and_b32 v{GBF+3}, 0xffff0000, v{GB+2}")
    E("s_waitcnt vmcnt(0)")
    b_loads()
    stamp("w2")
    E("s_barrier")
    for nt in range(2):
        for q in range(8):
            r = W1 + nt*16 + q*2
            E(f"ds_read_b64_tr_b16 v[{r}:{r+1}], v{T2} offset:{(q>>2)*8192 + (q&3)*256 + nt*32}")
    for q in range(8):
        E(f"ds_read_b64_tr_b16 v[{W2+2*q}:{W2+2*q+1}], v{T0} offset:{4096 + q*512}")
    E(f"v_lshlrev_b32 v{XT}, 16, v{XT}")
    if touch:
        E("s_mov_b64 exec, 0")
        E("s_branch L_tb_0")
        E.label("L_tbret")
        E("s_mov_b64 exec, -1")
    G2 = S[0]
    E.label("L_pollb")
    E(f"s_waitcnt vmcnt(0)")
    for i in range(0, 8, 2): E(f"v_pk_add_f32 v[{G2+i}:{G2+i+1}], v[{GBR+i}:{GBR+i+1}], v[{GBR+8+i}:{GBR+8+i+1}]")
    for i in range(0, 4, 2): E(f"v_pk_add_f32 v[{G2+i}:{G2+i+1}], v[{G2+i}:{G2+i+1}], v[{G2+4+i}:{G2+4+i+1}]")
    E(f"v_pk_add_f32 v[{G2+4}:{G2+5}], v[{G2}:{G2+1}], v[{G2+2}:{G2+3}]")
    E(f"v_cmp_u_f32 vcc, v{G2+4}, v{G2+5}")
    E("s_cbranch_vccz L_gotb")
    for i in range(4): maxall(range(GBR+4*i, GBR+4*i+4), 16+i)
    maxall(range(16, 20), 6)
    E(f"v_cmp_eq_u32 vcc, -1, v6")
    E("s_cbranch_vccz L_gotb")
    if slpb: E(f"s_sleep {slpb}")
    for i in range(4):
        E(f"v_cmp_eq_u32 vcc, -1, v{16+i}")
        E(f"s_mov_b64 exec, vcc")
        b_load(i)
        E("s_mov_b64 exec, -1")
    spin_check("L_pollb")
    E.label("L_gotb")
    if touch: E.touch_begin("L_tb", touch)
    stamp(9)
    GBR = G2
    tred4(GBR, GBR+1, GBR+2, GBR+3)
    rb1(GBR, GBR)
    E(f"v_mul_f32 v{GBR}, v{GBR}, v{GA}")
    rb1(GBR, GBR)
    E(f"v_add_f32 v{GBR}, v{GBR}, v{XT}")
    rb1(GBR, GBR)
    E(f"ds_write_b32 v{vCOL}, v{GBR} offset:{L_X2}")
    E("s_waitcnt lgkmcnt(0)")
    E("s_barrier")
    stamp("b1")
    X2 = S[2]; X2F = S[2]+8; KS = S[2]+12
    E(f"s_cmp_ge_u32 {sW}, 4")
    E("s_cbranch_scc1 L_b4")
    E(f"ds_read_b32 v{KS}, v{vWBR} offset:{L_X2}")
    E(f"ds_read_b128 v[{X2}:{X2+3}], v{vCH} offset:{L_X2}")
    E(f"ds_read_b128 v[{X2+4}:{X2+7}], v{vCH} offset:{L_X2+16}")
    E(f"ds_read_b128 v[{X2F}:{X2F+3}], v{vU16} offset:{L_X2}")
    E("s_waitcnt lgkmcnt(0)" if (stamps and "b1" in stamps) else "s_waitcnt lgkmcnt(1)")
    DD = S[2]+16
    NEGB = "op_sel_hi:[1,0] neg_lo:[0,1] neg_hi:[0,1]"
    for i in range(0, 8, 2): E(f"v_pk_add_f32 v[{DD+i}:{DD+i+1}], v[{X2+i}:{X2+i+1}], v[{KS}:{KS+1}] {NEGB}")
    s1, s2, s3 = 16, 18, T0
    E(f"v_pk_add_f32 v[{s1}:{s1+1}], v[{DD}:{DD+1}], v[{DD+2}:{DD+3}]")
    E(f"v_pk_mul_f32 v[{s2}:{s2+1}], v[{DD}:{DD+1}], v[{DD}:{DD+1}]")
    E(f"v_pk_add_f32 v[{s3}:{s3+1}], v[{DD+4}:{DD+5}], v[{DD+6}:{DD+7}]")
    E(f"v_pk_mul_f32 v[{s3+2}:{s3+3}], v[{DD+4}:{DD+5}], v[{DD+4}:{DD+5}]")
    E(f"v_pk_fma_f32 v[{s2}:{s2+1}], v[{DD+2}:{DD+3}], v[{DD+2}:{DD+3}], v[{s2}:{s2+1}]")
    E(f"v_pk_fma_f32 v[{s3+2}:{s3+3}], v[{DD+6}:{DD+7}], v[{DD+6}:{DD+7}], v[{s3+2}:{s3+3}]")
    E(f"v_pk_add_f32 v[{s1}:{s1+1}], v[{s1}:{s1+1}], v[{s3}:{s3+1}]")
    E(f"v_pk_add_f32 v[{s2}:{s2+1}], v[{s2}:{s2+1}], v[{s3+2}:{s3+3}]")
    E(f"v_permlane16_swap_b32 v{s1}, v{s2}")
    E(f"v_permlane16_swap_b32 v{s1+1}, v{s2+1}")
    E(f"v_pk_add_f32 v[{s1}:{s1+1}], v[{s1}:{s1+1}], v[{s2}:{s2+1}]")
    E(f"v_add_f32 v{s1}, v{s1}, v{s1+1}")
    E(f"v_mov_b32 v{s2}, v{s1}")
    E(f"v_permlane32_swap_b32 v{s1}, v{s2}")
    E(f"v_add_f32 v{s1}, v{s1}, v{s2}")
    red_ror("v_add_f32", [s1], (1, 2, 4, 8))
    E(f"v_mul_f32 v{s1}, {f32bits(1.0/512):#x}, v{s1}")
    E(f"v_mov_b32 v{s2}, v{s1}")
    E(f"v_permlane16_swap_b32 v{s1}, v{s2}")
    E(f"v_fma_f32 v{s2}, -v{s1}, v{s1}, v{s2}")
    E(f"v_add_f32 v{s1}, v{s1}, v{KS}")
    E(f"v_max_f32 v{s2}, 0, v{s2}")
    E(f"v_cvt_pk_bf16_f32 v{s3}, v{s1}, v{s2}")
    E(f"v_and_b32 v{s2}, 0xffff0000, v{s3}")
    E(f"v_lshlrev_b32 v{s1}, 16, v{s3}")
    E(f"v_add_f32 v{s2}, {f32bits(1e-5):#x}, v{s2}")
    E(f"v_pk_add_f32 v[{X2}:{X2+1}], v[{X2}:{X2+1}], v[{s1}:{s1+1}] {NEGB}")
    E(f"v_cvt_pk_bf16_f32 v{s2}, v{s2}, v{s2}")
    E(f"v_pk_add_f32 v[{X2+2}:{X2+3}], v[{X2+2}:{X2+3}], v[{s1}:{s1+1}] {NEGB}")
    E(f"v_lshlrev_b32 v{s2}, 16, v{s2}")
    E(f"v_pk_add_f32 v[{X2+4}:{X2+5}], v[{X2+4}:{X2+5}], v[{s1}:{s1+1}] {NEGB}")
    E(f"v_sqrt_f32 v{s2}, v{s2}")
    E(f"v_pk_add_f32 v[{X2+6}:{X2+7}], v[{X2+6}:{X2+7}], v[{s1}:{s1+1}] {NEGB}")
    E(f"v_pk_mul_f32 v[{X2}:{X2+1}], v[{X2}:{X2+1}], v[{SCF}:{SCF+1}]")
    E(f"v_cvt_pk_bf16_f32 v{s2}, v{s2}, v{s2}")
    E(f"v_pk_mul_f32 v[{X2+2}:{X2+3}], v[{X2+2}:{X2+3}], v[{SCF+2}:{SCF+3}]")
    E(f"v_lshlrev_b32 v{s2}, 16, v{s2}")
    E(f"v_pk_mul_f32 v[{X2+4}:{X2+5}], v[{X2+4}:{X2+5}], v[{SCF+4}:{SCF+5}]")
    E(f"v_rcp_f32 v{s2}, v{s2}")
    E(f"v_pk_mul_f32 v[{X2+6}:{X2+7}], v[{X2+6}:{X2+7}], v[{SCF+6}:{SCF+7}]")
    for i in range(0, 8, 2): E(f"v_pk_fma_f32 v[{X2+i}:{X2+i+1}], v[{X2+i}:{X2+i+1}], v[{s2}:{s2+1}], v[{SCF+8+i}:{SCF+8+i+1}] op_sel_hi:[1,0,1]")
    H2 = PK
    for p in range(4): E(f"v_cvt_pk_bf16_f32 v{H2+p}, v{X2+2*p}, v{X2+2*p+1}")
    DM = S[0]
    for s_ in range(4):
        for nt in range(2):
            d = DM + (nt*4+s_)*4; b = W1 + nt*16 + s_*4
            E(f"v_mfma_f32_16x16x32_bf16 v[{d}:{d+3}], v[{H2}:{H2+3}], v[{b}:{b+3}], 0")
    E("s_mov_b64 exec, 0xffff")
    for nt in range(2): E(f"v_add_f32 v{DM+16*nt}, v{DM+16*nt}, v{DM+16*nt+5}")
    for nt in range(2): E(f"v_add_f32 v{DM+16*nt}, v{DM+16*nt}, v{DM+16*nt+10}")
    for nt in range(2): E(f"v_add_f32 v{DM+16*nt}, v{DM+16*nt}, v{DM+16*nt+15}")
    E(f"ds_write2st64_b32 v{vRW}, v{DM}, v{DM+16} offset0:{L_RED//256} offset1:{L_RED//256+1}")
    E("s_mov_b64 exec, -1")
    E("s_waitcnt lgkmcnt(0)")
    E.label("L_b4")
    E(f"v_mov_b32 v{T0}, 0")
    E(f"v_mov_b32 v{T1}, 0")
    E("s_barrier")
    stamp("b2")
    D = S[0]
    E(f"ds_read_b128 v[{D}:{D+3}], v{vRR} offset:{L_RED}")
    E(f"ds_read_b128 v[{D+8}:{D+11}], v{vRR} offset:{L_RED+16}")
    E("s_waitcnt lgkmcnt(0)")
    for b in (D, D+8): E(f"v_pk_add_f32 v[{b}:{b+1}], v[{b}:{b+1}], v[{b+2}:{b+3}]")
    for b in (D, D+8): E(f"v_add_f32 v{b}, v{b}, v{b+1}")
    E(f"v_max_f32 v{D}, 0, v{D}")
    E(f"v_max_f32 v{D+8}, 0, v{D+8}")
    E(f"v_cvt_pk_bf16_f32 v{D}, v{D}, v{D+8}")
    for k in range(16):
        E(f"v_dot2c_f32_bf16_dpp v{T0+(k&1)}, v{D}, v{W2+k} row_newbcast:{k} {DPPM}")
    E(f"v_add_f32 v{T0}, v{T0}, v{T1}")
    E(f"v_min_u32 v{T0}, -2, v{T0}")
    E(f"buffer_store_dword v{T0}, v{vGATH}, {rWS}, {sPUB} offen sc1")
    stamp(10)
    E(f"s_cmp_ge_u32 {sU}, 128")
    E("s_cbranch_scc1 L_fin")
    C0 = S[0]+16
    E(f"v_lshlrev_b32 v{vSTA}, 11, {vLANE}")
    E(f"s_add_u32 {sT2}, {sU16}, {WS_MO}")
    for i in range(4): E(f"v_mov_b32 v{C0+i}, 0")
    def c_loads(): E(f"buffer_load_dwordx4 v[{C0}:{C0+3}], v{vSTA}, {rWS}, {sT2} offen sc1")
    if cdelay: E(f"s_sleep {cdelay}")
    E(f"s_mov_b32 {sSPIN}, 0x40000")
    E(f"s_mov_b32 exec_hi, 0xffffff")
    c_loads()
    E(f"s_mov_b64 exec, -1")
    E(f"s_lshl_b32 {sT0}, {sU}, 3")
    E(f"v_mov_b32 v6, 0")
    E(f"v_mov_b32 v7, {sTAG}")
    E.tpause = True
    E.label("L_pollc")
    E("s_waitcnt vmcnt(0)")
    maxall(range(C0, C0+4), T2)
    E(f"v_cmp_eq_u32 vcc, -1, v{T2}")
    E("s_cbranch_vccz L_gotc")
    E(f"s_mov_b64 exec, vcc")
    c_loads()
    E("s_mov_b64 exec, -1")
    spin_check("L_pollc")
    E.label("L_gotc")
    E.tpause = False
    if fixt:
        E.label("L_fix")
        E("s_memrealtime s[50:51]")
        E("s_waitcnt lgkmcnt(0)")
        E("s_sub_u32 s50, s50, s48")
        E(f"s_cmp_lt_u32 s50, {fixt*100}")
        E("s_cbranch_scc1 L_fix")
    stamp(11)
    cs = [C0+i for i in range(4)]
    red_ror("v_add_f32", cs, (1, 2, 4, 8))
    red_rows("v_add_f32", cs, C0+8)
    rb2(cs[0], cs[1], cs[0], cs[1], T2); rb2(cs[2], cs[3], cs[2], cs[3], T3)
    for i in range(4): E(f"v_mul_f32 v{cs[i]}, v{cs[i]}, v{GBF+i}")
    rb2(cs[0], cs[1], cs[0], cs[1], T2); rb2(cs[2], cs[3], cs[2], cs[3], T3)
    for i in range(4): E(f"v_add_f32 v{cs[i]}, v{cs[i]}, v{X2F+i}")
    E(f"v_cvt_pk_bf16_f32 v{C0}, v{cs[0]}, v{cs[1]}")
    E(f"v_cvt_pk_bf16_f32 v{C0+1}, v{cs[2]}, v{cs[3]}")
    if touch: E.touch_end("L_tbret")
    E("s_mov_b64 exec, 1")
    E(f"buffer_store_dwordx2 v[{C0}:{C0+1}], v6, {rOUT}, {sT0} offen")
    E(f"s_cmp_lg_u32 {sU}, 0")
    E("s_cbranch_scc1 L_fin")
    E(f"buffer_store_dword v7, v6, {rWS}, 0 offen sc1")
    E.label("L_fin")
    if stamps:
        stamp(12)
        E("s_mov_b64 exec, 1")
        E("s_waitcnt lgkmcnt(0)")
        E(f"s_lshl_b32 {sT0}, s2, 3")
        E(f"s_add_u32 {sT0}, {sT0}, {sW}")
        E(f"s_lshl_b32 {sT0}, {sT0}, 7")
        E(f"s_add_u32 {sT0}, {sT0}, {WS_STAMP}")
        if 1:
            E("s_sleep 127"); E("s_sleep 127"); E("s_sleep 127")
        E("v_mov_b32 v6, 0")
        for i in range(13):
            E(f"v_mov_b32 v8, s{52+2*i}")
            E(f"v_mov_b32 v9, s{53+2*i}")
            E(f"buffer_store_dwordx2 v[8:9], v6, {rWS}, {sT0} offen offset:{8*i}")
            E("s_nop 1")
        E(f"v_mov_b32 v8, {sSPIN}")
        E(f"v_mov_b32 v9, 0")
        E(f"buffer_store_dwordx2 v[8:9], v6, {rWS}, {sT0} offen offset:{8*13}")
    E.label("L_end")
    E("s_endpgm")
    E.raw(f'.section .rodata,"a"\n.p2align 6\n.amdhsa_kernel {KN}')
    E.raw("  .amdhsa_next_free_vgpr 256\n  .amdhsa_next_free_sgpr 102\n  .amdhsa_accum_offset 256\n  .amdhsa_group_segment_fixed_size 0\n  .amdhsa_kernarg_size 104\n  .amdhsa_user_sgpr_count 2\n  .amdhsa_user_sgpr_kernarg_segment_ptr 1\n  .amdhsa_system_sgpr_workgroup_id_x 1\n  .amdhsa_float_denorm_mode_32 3\n.end_amdhsa_kernel")
    return E.text()

if __name__ == "__main__":
    import argparse, inspect
    ap = argparse.ArgumentParser()
    ap.add_argument("out")
    for n, p in inspect.signature(gen).parameters.items():
        if n == "stamps": ap.add_argument("--stamps", default="")
        else: ap.add_argument("--"+n, type=type(p.default), default=p.default)
    a = vars(ap.parse_args())
    out = a.pop("out")
    a["stamps"] = a["stamps"].split(",") if a["stamps"] else None
    open(out, "w").write(gen(**a))
```

```python
import sys, math, struct
from emit import Emit
KN = "adaLN_cond__gqa_block_cached__dense_activation_relu__decode_kernel"

WS_EPOCH = 0x0
WS_MODG  = 0x1000
WS_CLR   = 0xC000
WS_STAT  = 0x8000
WS_AO    = 0x100000
WS_PART  = 0x20000
WS_MO    = 0x60000
WS_EP    = 0xC0000
WS_QG    = WS_MODG + 48*256
WS_STAMP = 0x8000000
L_STATS = 0
L_CNT   = 256
L_FAC   = 384
L_WB    = 512
L_WE    = 1536
L_X2    = 2048
L_RED   = 4096
L_ACT   = 6144
L_Q     = 7168
L_ORED  = 8192
L_MOD   = 24576
L_WM    = 32768
L_WT    = 65536

DPPM = "row_mask:0xf bank_mask:0xf"
def f32bits(x): return struct.unpack("<I", struct.pack("<f", x))[0]

def gen(depth=6, kvflags="nt", wflags="", stamps=None, swave=0, tpwo=4, mlearly=0, slp=2, slpa=0, slpb=0, codepf=2, dbg="",
        k1=2, k2=3, slpq=4, prio=3, fixt=0, jml=24, fast=1, rate=1, cdelay=14, ewt=1, rot=0, qat=12, depth0=9, young="", depthe=0, emask=255, swapq=1, lead=0, touch=0, w1e=0, w1pf=2, rep=0, w1dl=0, buddy=0, wopf=0, wopos=3, fixw=-1, aslist=0):
    E = Emit()
    L_WO = L_WT + 65536
    LDS_BYTES = max(L_WT + 65536, L_WO + 32768)
    sW, sG, sJ, sTAG, sSPIN = "s3", "s4", "s5", "s6", "s7"
    rK, rV, rWS, rWT, rW2, rX, rC, rOUT = [f"s[{i}:{i+3}]" for i in range(8, 40, 4)]
    rWO = "s[84:87]"
    sSELLO, sSELHI, sC, sBASE, sM, sT0, sT1, sT2 = "s78", "s79", "s80", "s81", "s82", "s83", "s100", "s101"
    sA, sPL, sPUB, sLAST, sU, sU16, sT3, sT4, sEP = "s40", "s41", "s42", "s95", "s98", "s99", "s96", "s97", "s93"
    sPP, sGA0, sGA1, sLD, sML, sXCC, sAOP, sSK = "s43", "s44", "s45", "s46", "s47", "s91", "s92", "s90"
    vLANE, vK, vV = "v1", "v2", "v3"
    Q0 = 16
    T0, T1, T2, T3 = 28, 29, 30, 31
    S = [32 + 32*i for i in range(7)]
    def stamp(i):
        if stamps and str(i) in stamps:
            k = stamps.index(str(i))
            E(f"s_memrealtime s[{52+2*k}:{53+2*k}]")
    vm = []
    light = [False]
    def setlight():
        if depthe:
            E(f"s_lshr_b32 {sT0}, {emask}, {sW}")
            E(f"s_andn2_b32 {sT0}, {sT0}, {sG}")
            E(f"s_bitcmp1_b32 {sT0}, 0")
            E(f"s_cselect_b64 vcc, 1, 0")
    def vmop(tag, text):
        E(text); vm.append(tag)
    def vmwait(tag):
        idx = [i for i, t in enumerate(vm) if t == tag][-1]
        E(f"s_waitcnt vmcnt({min(len(vm) - 1 - idx, 62)})")
    def spin_check(lbl_loop):
        E(f"s_sub_u32 {sSPIN}, {sSPIN}, 1")
        E(f"s_cbranch_scc0 {lbl_loop}")
        E(f"s_branch L_end")
    PRI = {1: {("k",0):3, ("k",2):2, ("v",0):1, ("v",2):0}, 2: {("k",0):3, ("v",0):2, ("v",2):1}, 3: {("k",0):3, ("k",3):2, ("v",2):1}, 0: {},
           4: {("k",0):1, ("k",1):1, ("k",2):1, ("k",3):1, ("v",0):1, ("v",1):1, ("v",2):1, ("v",3):1}}[prio]
    def load_tile(kind, T, slot, dep, tag, mid=None, lo=0, hi=8, setp=True):
        srd = rK if kind == "k" else rV
        va = vK if (kind == "k" and "k" not in dbg) else vV
        if setp and lo == 0 and (kind, T) in PRI:
            E(f"s_setprio {PRI[(kind, T)]}")
        if setp and lo == 0 and f"{kind}{T}" in young.split(","):
            u = len(E.L)
            base = [v for k, v in PRI.items() if (k[0] == "k" and kind == "v") or (k[0] == kind and k[1] <= T)]
            b = min(base) if base else 1
            E(f"s_cmp_lt_u32 {sW}, 4")
            E(f"s_cbranch_scc1 L_yp{u}")
            E(f"s_setprio {min(3, b+1)}")
            E.raw(f"L_yp{u}:")
        for i in range(lo, hi):
            if i == 4 and mid: mid()
            if rot:
                E(f"s_xor_b32 {sLD}, {sBASE}, {T*0x200000 + i*1024}")
            elif i == 0 or i == 4 or hi - lo == 1: E(f"s_add_u32 {sLD}, {sBASE}, {T*0x200000 + (i//4)*4096}")
            if depthe and light[0] and dep and len(vm) >= depthe:
                u = len(E.L)
                E.raw(f"    s_cbranch_vccz L_lt{u}"); E._push(None)
                E(f"s_waitcnt vmcnt({depthe-1})")
                E.raw(f"L_lt{u}:")
            if dep and len(vm) >= dep: E(f"s_waitcnt vmcnt({dep-1})")
            r = S[slot] + i*4
            vmop(tag, f"buffer_load_dwordx4 v[{r}:{r+3}], {va}, {srd}, {sLD} offen offset:{0 if rot else (i%4)*1024} {kvflags}")
    def red_rows(op, regs, tmp):
        for sw in ("v_permlane16_swap_b32", "v_permlane32_swap_b32"):
            for i, r in enumerate(regs): E(f"v_mov_b32 v{tmp+i}, v{r}")
            for i, r in enumerate(regs): E(f"{sw} v{r}, v{tmp+i}")
            for i, r in enumerate(regs): E(f"{op} v{r}, v{r}, v{tmp+i}")
    def red_ror(op, regs, rors):
        for k in rors:
            for r in regs: E(f"{op}_dpp v{r}, v{r}, v{r} row_ror:{k} {DPPM}")
    def tred4(a0, a1, a2, a3):
        E(f"v_permlane16_swap_b32 v{a0}, v{a1}")
        E(f"v_permlane16_swap_b32 v{a2}, v{a3}")
        E(f"v_add_f32 v{a0}, v{a0}, v{a1}")
        E(f"v_add_f32 v{a2}, v{a2}, v{a3}")
        E(f"v_permlane32_swap_b32 v{a0}, v{a2}")
        E(f"v_add_f32 v{a0}, v{a0}, v{a2}")
    def rb1(dst, src):
        E(f"v_cvt_pk_bf16_f32 v{dst}, v{src}, v{src}")
        E(f"v_lshlrev_b32 v{dst}, 16, v{dst}")
    def rb2(d0, d1, s0, s1, t):
        E(f"v_cvt_pk_bf16_f32 v{t}, v{s0}, v{s1}")
        E(f"v_lshlrev_b32 v{d0}, 16, v{t}")
        E(f"v_and_b32 v{d1}, 0xffff0000, v{t}")
    def tagcheck(regs, t):
        regs = [f"v{r}" for r in regs] + [sTAG]
        if len(regs) % 2 == 0: regs.insert(0, regs[0])
        E(f"v_max3_u32 v{t}, {regs[0]}, {regs[1]}, {regs[2]}")
        E(f"v_min3_u32 v{t+1}, {regs[0]}, {regs[1]}, {regs[2]}")
        for i in range(3, len(regs), 2):
            E(f"v_max3_u32 v{t}, v{t}, {regs[i]}, {regs[i+1]}")
            E(f"v_min3_u32 v{t+1}, v{t+1}, {regs[i]}, {regs[i+1]}")
        E(f"v_cmp_ne_u32 vcc, v{t}, v{t+1}")
    def maxall(regs, t):
        regs = list(regs)
        E(f"v_max3_u32 v{t}, v{regs[0]}, v{regs[1]}, v{regs[2]}")
        i = 3
        while i + 1 < len(regs):
            E(f"v_max3_u32 v{t}, v{t}, v{regs[i]}, v{regs[i+1]}"); i += 2
        if i < len(regs): E(f"v_max_u32 v{t}, v{t}, v{regs[i]}")
    def pollloop(name, load1, groups, tmp, sl):
        n = len(groups)
        E.label(f"L_poll{name}")
        E(f"s_waitcnt vmcnt(0)")
        for i, g in enumerate(groups): maxall(g, tmp+i)
        if n == 2: E(f"v_max_u32 v6, v{tmp}, v{tmp+1}")
        else: maxall(range(tmp, tmp+n), 6)
        E(f"v_cmp_eq_u32 vcc, -1, v6")
        E(f"s_cbranch_vccz L_got{name}")
        if sl: E(f"s_sleep {sl}")
        for i in range(n):
            E(f"v_cmp_eq_u32 vcc, -1, v{tmp+i}")
            E(f"s_mov_b64 exec, vcc")
            load1(i)
            E("s_mov_b64 exec, -1")
        spin_check(f"L_poll{name}")
        E.label(f"L_got{name}")
    def mktag():
        E("s_waitcnt lgkmcnt(0)")
        E(f"s_mul_i32 {sTAG}, {sEP}, 0x9E3779B1")
        E(f"s_add_u32 {sTAG}, {sTAG}, 0x7F4A7C15")
    def slice_dma(srd, rowb, soff, lds, n=2):
        if rowb & (rowb-1) == 0: E(f"v_lshl_add_u32 v{T2}, v{T0}, {rowb.bit_length()-1}, v{T1}")
        else:
            E(f"v_mul_u32_u24 v{T2}, {rowb}, v{T0}")
            E(f"v_add_u32 v{T2}, v{T2}, v{T1}")
        E(f"v_xor_b32 v{T3}, 64, v{T2}")
        E(f"s_mul_i32 {sT1}, {sW}, {8*n*rowb}")
        E(f"s_add_u32 {soff}, {soff}, {sT1}")
        E(f"s_mul_i32 {sT1}, {sW}, {1024*n}")
        E(f"s_add_u32 m0, {sT1}, {lds}")
        for i in range(n):
            E(f"buffer_load_dwordx4 v{T2 + i%2}, {srd}, {soff} offen {wflags} lds")
            if i < n-1:
                E(f"s_add_u32 {soff}, {soff}, {8*rowb}")
                E(f"s_add_u32 m0, m0, 1024")
    def part_rows(va, vt):
        E(f"v_lshrrev_b32 v{vt}, 4, {vLANE}")
        E(f"v_lshlrev_b32 v{va}, 13, v{vt}")
        E(f"v_and_b32 v{vt}, 15, {vLANE}")
        E(f"v_lshl_add_u32 v{va}, v{vt}, 8, v{va}")
        E(f"s_lshl_b32 {sT0}, {sG}, 15")
        E(f"s_lshr_b32 {sT1}, {sJ}, 4")
        E(f"s_lshl_b32 {sT1}, {sT1}, 12")
        E(f"s_add_u32 {sT0}, {sT0}, {sT1}")
        E(f"s_and_b32 {sT1}, {sJ}, 15")
        E(f"s_lshl_b32 {sT1}, {sT1}, 4")
        E(f"s_add_u32 {sT0}, {sT0}, {sT1}")
        E(f"s_add_u32 {sT0}, {sT0}, {WS_PART}")
    def slice_prep():
        E(f"v_lshrrev_b32 v{T0}, 3, {vLANE}")
        E(f"v_and_b32 v{T1}, 2, v{T0}")
        E(f"v_and_b32 v{T2}, 7, {vLANE}")
        E(f"v_xor_b32 v{T1}, v{T2}, v{T1}")
        E(f"v_lshlrev_b32 v{T1}, 4, v{T1}")

    hdr = []
    if aslist == 2: hdr.append(f"; @launch kernel=warm_kernel grid=(256,1,1) block=(64,1,1) lds=0")
    if aslist: hdr.append(f"; @launch kernel={KN} grid=(256,1,1) block=(512,1,1) lds={LDS_BYTES}")
    else: hdr.append(f"; @launch grid=(256,1,1) block=(512,1,1) lds={LDS_BYTES}")
    hdr.append('.amdgcn_target "amdgcn-amd-amdhsa--gfx950"\n.text')
    hdr.append(f".globl {KN}\n.p2align 8\n.type {KN},@function\n{KN}:")
    E.raw("\n".join(hdr))
    E("s_cmp_ge_u32 s2, 256")
    E("s_cbranch_scc1 L_end")
    if fixt or (stamps and "e" in stamps): E("s_memrealtime s[48:49]")
    E("s_load_dwordx16 s[52:67], s[0:1], 0")
    E("s_load_dwordx8 s[68:75], s[0:1], 64")
    E("s_load_dwordx2 s[76:77], s[0:1], 96")
    E(f"v_lshrrev_b32 v4, 6, v0")
    E(f"v_and_b32 {vLANE}, 63, v0")
    E(f"v_readfirstlane_b32 {sW}, v4")
    E(f"s_and_b32 {sG}, s2, 7")
    E(f"s_lshr_b32 {sJ}, s2, 3")
    if codepf:
        E(f"s_cmp_lt_u32 {sJ}, {32-codepf}")
        E("s_cbranch_scc1 L_nopf")
        E("s_getpc_b64 s[88:89]")
        E.raw("L_pc:")
        E(f"v_lshlrev_b32 v6, 4, v0")
        E(f"v_mov_b32 v9, s89")
        E(f"v_add_co_u32 v8, vcc, s88, v6")
        E(f"v_addc_co_u32 v9, vcc, 0, v9, vcc")
        for i in range(3):
            E(f"v_cmp_gt_i32 vcc, L_end-L_pc-{8192*i}-16, v6")
            E(f"s_and_b64 exec, exec, vcc")
            E(f"s_cbranch_execz L_pfdone")
            E(f"global_load_dwordx4 v[24:27], v[8:9], off")
            if i < 2:
                E(f"v_add_co_u32 v8, vcc, 0x2000, v8")
                E(f"v_addc_co_u32 v9, vcc, 0, v9, vcc")
        E.label("L_pfdone")
        E("s_mov_b64 exec, -1")
        E.label("L_nopf")
    slice_prep()
    E(f"s_lshr_b32 {sA}, {sG}, 1")
    E(f"s_lshl_b32 {sT0}, {sJ}, 2")
    E(f"s_add_u32 {sA}, {sA}, {sT0}")
    if swapq:
        E(f"s_cmp_lt_u32 {sA}, 96")
        E(f"s_cselect_b32 {sT0}, {sA}, 255")
        E(f"s_add_u32 {sA}, {sA}, 96")
    else: E(f"s_add_u32 {sT0}, {sA}, 128")
    E(f"s_bitcmp1_b32 {sG}, 0")
    E(f"s_cselect_b32 {sA}, {sT0}, {sA}")
    if "a" in dbg: E(f"s_mov_b32 {sA}, 255")
    E(f"s_mov_b32 s23, 0x20000")
    E(f"s_lshr_b32 {sT3}, {sA}, 1")
    E(f"s_lshl_b32 {sT3}, {sT3}, 7")
    E(f"s_and_b32 {sT2}, {sA}, 1")
    E(f"v_lshlrev_b32 {vV}, 4, {vLANE}")
    E(f"v_and_b32 v4, 12, {vLANE}")
    E(f"v_lshlrev_b32 {vK}, 6, v4")
    E(f"v_lshrrev_b32 v4, 4, {vLANE}")
    E(f"v_lshl_add_u32 {vK}, v4, 6, {vK}")
    E(f"v_and_b32 v4, 3, {vLANE}")
    E(f"v_lshl_add_u32 {vK}, v4, 4, {vK}")
    E(f"s_lshl_b32 {sBASE}, {sG}, 23")
    E(f"s_lshl_b32 {sT0}, {sJ}, 3")
    E(f"s_add_u32 {sT0}, {sT0}, {sW}")
    E(f"s_lshl_b32 {sT0}, {sT0}, 13")
    E(f"s_add_u32 {sBASE}, {sBASE}, {sT0}")
    if rot:
        E(f"s_add_u32 {sT0}, {sW}, {sJ if rot == 2 else 0}")
        E(f"s_and_b32 {sT0}, {sT0}, 7")
        E(f"s_lshl_b32 {sT0}, {sT0}, 10")
        E(f"s_or_b32 {sBASE}, {sBASE}, {sT0}")
    for d, z in ((8, 0x4000000), (12, 0x4000000), (16, 0x10000000), (24, 512*1792*2), (28, 1024), (32, 1024), (36, 1024)):
        E(f"s_mov_b32 s{d+2}, {z:#x}")
    for d in (8, 12, 16, 24, 28, 32, 36): E(f"s_mov_b32 s{d+3}, 0x20000")
    E(f"v_mov_b32 v5, {L_CNT}")
    for r in range(20, 24): E(f"v_mov_b32 v{r}, 0")
    E(f"ds_write_b128 v5, v[20:23]")
    E(f"ds_write_b32 v5, v20 offset:16")
    E("s_setprio 3")
    E("s_waitcnt lgkmcnt(0)")
    E("s_mov_b64 s[8:9], s[54:55]")
    E(f"s_cmp_ge_u32 {sA}, 96")
    E("s_cbranch_scc1 L_eq")
    E("s_mov_b64 s[20:21], s[70:71]")
    E(f"s_mov_b32 s22, {512*3072*2}")
    E(f"s_mul_i32 {sT0}, {sT2}, {256*6144}")
    E(f"s_add_u32 {sT3}, {sT3}, {sT0}")
    slice_dma(rWT, 6144, sT3, L_WM, 4)
    E("s_branch L_ed")
    E.label("L_eq")
    E(f"s_cmp_ge_u32 {sA}, 224")
    E("s_cbranch_scc1 L_ed")
    E("s_mov_b64 s[20:21], s[58:59]")
    E(f"s_mov_b32 s22, {512*4096*2}")
    E(f"s_lshl_b32 {sT0}, {sT2}, 21")
    E(f"s_add_u32 {sT3}, {sT3}, {sT0}")
    E(f"s_sub_u32 {sT3}, {sT3}, {48*128}")
    slice_dma(rWT, 8192, sT3, L_WM, 4)
    E.label("L_ed")
    E(f"s_load_dword {sEP}, s[76:77], {WS_EPOCH}")
    for d, sr in ((28, 52), (32, 68), (16, 76), (12, 56), (24, 66), (36, 72), (84, 60), (20, 64)):
        E(f"s_mov_b64 s[{d}:{d+1}], s[{sr}:{sr+1}]")
    E(f"s_mov_b32 s22, {512*1792*2}")
    stamp(0)
    if stamps and "e" in stamps: E(f"s_mov_b64 s[{52+2*stamps.index('e')}:{53+2*stamps.index('e')}], s[48:49]")
    E("s_barrier")
    def late_setup():
        E(f"s_mov_b32 {sSELLO}, 0x05040100")
        E(f"s_mov_b32 {sSELHI}, 0x07060302")
        E(f"s_mov_b32 {sC}, {f32bits(math.log2(math.e)):#x}")
        E(f"s_mov_b32 {sSPIN}, 0x40000")
        E(f"s_getreg_b32 {sXCC}, hwreg(HW_REG_XCC_ID)")
        E(f"s_sub_u32 {sT0}, {sJ}, {jml}")
        E(f"s_cmp_lt_u32 {sT0}, 7")
        E(f"s_cselect_b32 {sML}, 1, 0")
        E(f"s_mul_i32 {sM}, {sG}, 7")
        E(f"s_add_u32 {sM}, {sM}, {sT0}")
        E(f"s_lshl_b32 {sPUB}, {sM}, 11")
        E(f"s_add_u32 {sPUB}, {sPUB}, {WS_MO}")
        E(f"s_cmp_lt_u32 {sJ}, 16")
        E(f"s_cselect_b32 s86, {512*4096*2}, 0")
        E(f"s_mov_b32 s87, 0x20000")
        E(f"s_lshl_b32 {sAOP}, {sG}, 12")
        E(f"s_lshl_b32 {sT0}, {sJ}, 8")
        E(f"s_add_u32 {sAOP}, {sAOP}, {sT0}")
        E(f"s_add_u32 {sAOP}, {sAOP}, {WS_AO}")
    E(f"s_cmp_lt_u32 {sA}, 224")
    E(f"s_cselect_b32 {sT0}, {sW}, 1")
    E(f"s_cmp_eq_u32 {sT0}, 0")
    E("s_cbranch_scc1 L_aux")
    NPRE = 4
    load_tile("k", 0, 0, 0, "K0", hi=NPRE)
    late_setup()
    E(f"v_mov_b32 v19, 1")
    E("s_mov_b64 exec, 1")
    E(f"s_waitcnt vmcnt({NPRE})")
    E(f"ds_add_u32 v5, v19 offset:4")
    E("s_mov_b64 exec, -1")
    E("s_branch L_stream")

    def flag(n):
        E(f"s_lshl_b32 {sT0}, {sJ}, 3")
        E(f"s_lshl_b32 {sT1}, {sG}, 8")
        E(f"s_add_u32 {sT0}, {sT0}, {sT1}")
        E(f"v_mov_b32 v{T2}, {WS_CLR}")
        E(f"v_mov_b32 v{T0}, {sXCC}")
        E(f"v_mov_b32 v{T1}, {sTAG}")
        E("s_mov_b64 exec, 1")
        E(f"s_waitcnt vmcnt({n})")
        E(f"buffer_store_dwordx2 v[{T0}:{T1}], v{T2}, {rWS}, {sT0} offen sc1")
        E("s_mov_b64 exec, -1")
    def w1_dma():
        E(f"v_lshrrev_b32 v{T0}, 2, {vLANE}")
        E(f"v_mul_u32_u24 v{T0}, 3584, v{T0}")
        E(f"v_and_b32 v{T1}, 3, {vLANE}")
        E(f"v_lshl_add_u32 v{T0}, v{T1}, 4, v{T0}")
        E(f"s_mul_i32 {sT0}, {sW}, {16*3584}")
        E(f"s_lshl_b32 {sT1}, {sM}, 6")
        E(f"s_add_u32 {sT0}, {sT0}, {sT1}")
        E(f"s_lshl_b32 {sT3}, {sW}, 13")
        E(f"s_add_u32 m0, {sT3}, {L_WT}")
        for i in range(4):
            E(f"buffer_load_dwordx4 v{T0}, {rWT}, {sT0} offen {wflags} lds")
            if i < 3:
                E(f"s_add_u32 {sT0}, {sT0}, {128*3584}")
                E(f"s_add_u32 m0, m0, 1024")
    def w2_dma():
        E(f"v_lshrrev_b32 v{T0}, 3, {vLANE}")
        E(f"v_and_b32 v{T1}, 7, {vLANE}")
        E(f"v_lshlrev_b32 v{T1}, 4, v{T1}")
        E(f"v_lshl_add_u32 v{T0}, v{T0}, 10, v{T1}")
        E(f"s_lshl_b32 {sT0}, {sM}, 15")
        E(f"s_lshl_b32 {sT1}, {sW}, 7")
        E(f"s_add_u32 {sT0}, {sT0}, {sT1}")
        E(f"s_lshl_b32 {sT3}, {sW}, 13")
        E(f"s_add_u32 m0, {sT3}, {L_WT + 4096}")
        for i in range(4):
            E(f"buffer_load_dwordx4 v{T0}, {rW2}, {sT0} offen {wflags} lds")
            if i < 3:
                E(f"s_add_u32 {sT0}, {sT0}, 8192")
                E(f"s_add_u32 m0, m0, 1024")
    def w1_pref(skip):
        E(f"s_sub_u32 {sT3}, {sJ}, 16")
        E(f"s_cmp_ge_u32 {sT3}, 8")
        E(f"s_cbranch_scc1 {skip}")
        E(f"v_lshrrev_b32 v{T0}, 5, {vLANE}")
        E(f"v_mul_u32_u24 v{T0}, 3584, v{T0}")
        E(f"v_and_b32 v{T1}, 31, {vLANE}")
        E(f"v_lshl_add_u32 v{T0}, v{T1}, 4, v{T0}")
        E(f"s_lshl_b32 {sT3}, {sT3}, 3")
        E(f"s_add_u32 {sT3}, {sT3}, {sW}")
        E(f"s_mul_i32 {sT0}, {sT3}, {8*3584}")
        E(f"s_mul_i32 {sT1}, {sG}, 448")
        E(f"s_and_b32 {sT1}, {sT1}, 0xffffff80")
        E(f"s_add_u32 {sT0}, {sT0}, {sT1}")
        E(f"s_mov_b32 m0, {L_WO}")
        for i in range(4):
            E(f"buffer_load_dwordx4 v{T0}, {rWT}, {sT0} offen lds")
            if i < 3: E(f"s_add_u32 {sT0}, {sT0}, {2*3584}")
    def wo_pref():
        u = len(E.L)
        E(f"s_cmp_lt_u32 {sJ}, 16")
        E(f"s_cbranch_scc1 L_wp{u}")
        E(f"v_lshrrev_b32 v{T0}, 3, {vLANE}")
        E(f"v_and_b32 v{T1}, 7, {vLANE}")
        E(f"v_lshlrev_b32 v{T1}, 4, v{T1}")
        E(f"v_lshl_add_u32 v{T0}, v{T0}, 10, v{T1}")
        E(f"s_lshl_b32 {sT0}, {sG}, 19")
        E(f"s_bfe_u32 {sT1}, {sJ}, 0x10003")
        E(f"s_lshl_b32 {sT1}, {sT1}, 18")
        E(f"s_add_u32 {sT0}, {sT0}, {sT1}")
        E(f"s_and_b32 {sT1}, {sJ}, 7")
        E(f"s_lshl_b32 {sT1}, {sT1}, 7")
        E(f"s_add_u32 {sT0}, {sT0}, {sT1}")
        E(f"s_lshl_b32 {sT1}, {sW}, 15")
        E(f"s_add_u32 {sT0}, {sT0}, {sT1}")
        E(f"s_mov_b32 s86, {512*4096*2}")
        E(f"s_mov_b32 m0, {L_WO}")
        for i in range(wopf):
            E(f"buffer_load_dwordx4 v{T0}, {rWO}, {sT0} offen lds")
            if i < wopf-1: E(f"s_add_u32 {sT0}, {sT0}, 8192")
        E(f"s_mov_b32 s86, 0")
        E.label(f"L_wp{u}")
    def tail_dma(pos):
        if tpwo != pos or "o" in dbg: return
        u = len(E.L)
        if mlearly:
            E(f"s_cmp_eq_u32 {sML}, 0")
            E(f"s_cbranch_scc1 L_ta{u}")
            (w1_dma if mlearly == 1 else w2_dma)()
            E(f"s_branch L_tb{u}")
            E.label(f"L_ta{u}")
        if w1pf == 1:
            w1_pref(f"L_tc{u}")
            E(f"s_branch L_tb{u}")
            E.label(f"L_tc{u}")
        slice_prep()
        E(f"s_lshl_b32 {sT0}, {sG}, 19")
        E(f"s_lshr_b32 {sT1}, {sJ}, 3")
        E(f"s_lshl_b32 {sT1}, {sT1}, 18")
        E(f"s_add_u32 {sT0}, {sT0}, {sT1}")
        E(f"s_and_b32 {sT1}, {sJ}, 7")
        E(f"s_lshl_b32 {sT1}, {sT1}, 7")
        E(f"s_add_u32 {sT0}, {sT0}, {sT1}")
        slice_dma(rWO, 1024, sT0, L_WO, 4)
        E.label(f"L_tb{u}")
        vm.extend(["WO"]*4)

    E.label("L_aux")
    CR = 8; XQ = 12; TRA = 16; XF = 20
    G6 = S[6]; AD = S[6] + 16
    E(f"v_and_b32 v4, 31, {vLANE}")
    E(f"v_lshlrev_b32 v4, 4, v4")
    E(f"v_lshlrev_b32 v6, 2, {vLANE}")
    E(f"s_lshl_b32 {sT0}, {sT2}, 9")
    E(f"s_cmp_ge_u32 {sA}, 96")
    E("s_cbranch_scc1 L_ax")
    E(f"buffer_load_dwordx4 v[{CR}:{CR+3}], v4, {rC}, {sT0} offen")
    E("s_branch L_ay")
    E.label("L_ax")
    E(f"buffer_load_dwordx4 v[{CR}:{CR+3}], {vV}, {rX}, 0 offen")
    E(f"buffer_load_dword v{XQ}, v6, {rX}, {sT0} offen")
    E(f"buffer_load_dword v{XQ+1}, v6, {rX}, {sT0} offen offset:256")
    E.label("L_ay")
    late_setup()

    E(f"v_lshrrev_b32 v{T0}, 4, {vLANE}")
    E(f"v_bfe_u32 v{T1}, {vLANE}, 2, 2")
    E(f"v_lshl_add_u32 v{T2}, v{T0}, 3, v{T1}")
    E(f"v_lshlrev_b32 v{T2}, 7, v{T2}")
    E(f"v_and_b32 v{T3}, 3, {vLANE}")
    E(f"v_lshl_add_u32 v{T2}, v{T3}, 3, v{T2}")
    E(f"v_bfe_u32 v{T1}, {vLANE}, 3, 2")
    E(f"v_lshl_add_u32 v{TRA}, v{T1}, 5, v{T2}")
    for nt in range(1, 4): E(f"v_xor_b32 v{TRA+nt}, {nt*32}, v{TRA}")
    vAR = 7
    E(f"v_lshlrev_b32 v{vAR}, 4, v{T0}")
    E("s_waitcnt vmcnt(0)")
    mktag()
    stamp("a0")
    for p in range(4):
        E(f"v_lshlrev_b32 v{XF+2*p}, 16, v{CR+p}")
        E(f"v_and_b32 v{XF+2*p+1}, 0xffff0000, v{CR+p}")
    E(f"s_cmp_ge_u32 {sA}, 96")
    E("s_cbranch_scc1 L_auxq")
    E(f"s_mov_b32 {sT0}, {f32bits(-math.log2(math.e)):#x}")
    for i in range(8): E(f"v_mul_f32 v{G6+i}, {sT0}, v{XF+i}")
    for i in range(8): E(f"v_exp_f32 v{G6+i}, v{G6+i}")
    for i in range(8): E(f"v_add_f32 v{G6+i}, 1.0, v{G6+i}")
    for i in range(8): E(f"v_rcp_f32 v{G6+i}, v{G6+i}")
    for i in range(8): E(f"v_mul_f32 v{XF+i}, v{XF+i}, v{G6+i}")
    for p in range(4): E(f"v_cvt_pk_bf16_f32 v{CR+p}, v{XF+2*p}, v{XF+2*p+1}")
    E(f"ds_write_b128 v4, v[{CR}:{CR+3}] offset:{L_ACT}")
    E("s_branch L_gemv")
    E.label("L_auxq")
    for T in range(k1): load_tile("k", T, T, 0, f"K{T}", setp=False)
    m, v, t = 8, 9, 10
    vals = list(range(XF, XF+8))
    E(f"v_add_f32 v{m}, v{vals[0]}, v{vals[1]}")
    for r in vals[2:]: E(f"v_add_f32 v{m}, v{m}, v{r}")
    red_ror("v_add_f32", [m], (1, 2, 4, 8)); red_rows("v_add_f32", [m], t)
    E(f"v_mul_f32 v{m}, {f32bits(1.0/512):#x}, v{m}")
    for i, r in enumerate(vals):
        E(f"v_sub_f32 v{t}, v{r}, v{m}")
        E(f"v_mul_f32 v{v}, v{t}, v{t}" if i == 0 else f"v_fmac_f32 v{v}, v{t}, v{t}")
    red_ror("v_add_f32", [v], (1, 2, 4, 8)); red_rows("v_add_f32", [v], t)
    E(f"v_mul_f32 v{v}, {f32bits(1.0/512):#x}, v{v}")
    rb2(m, v, m, v, t)
    E(f"v_add_f32 v{v}, {f32bits(1e-5):#x}, v{v}")
    rb1(v, v)
    E(f"v_sqrt_f32 v{v}, v{v}")
    rb1(v, v)
    E(f"v_rcp_f32 v{v}, v{v}")
    for u in range(2):
        n0, n1 = XF+2*u, XF+2*u+1
        E(f"v_lshlrev_b32 v{n0}, 16, v{XQ+u}")
        E(f"v_and_b32 v{n1}, 0xffff0000, v{XQ+u}")
        E(f"v_sub_f32 v{n0}, v{n0}, v{m}")
        E(f"v_sub_f32 v{n1}, v{n1}, v{m}")
        rb2(n0, n1, n0, n1, t)
        E(f"v_mul_f32 v{n0}, v{n0}, v{v}")
        E(f"v_mul_f32 v{n1}, v{n1}, v{v}")
        rb2(n0, n1, n0, n1, t)
    E(f"v_lshrrev_b32 v{T0}, 5, {vLANE}")
    E(f"v_lshl_add_u32 v4, v{T0}, 10, v4")
    E(f"s_lshl_b32 {sT4}, {sT2}, 12")
    E(f"s_add_u32 {sT4}, {sT4}, {WS_EP}")
    E(f"s_add_u32 {sT3}, {sT4}, 8192")
    E.label("L_pollmod")
    for arr in range(2):
        for u in range(2):
            for part in range(2):
                r = G6 + (arr*4 + u*2 + part)*4
                E(f"buffer_load_dwordx4 v[{r}:{r+3}], v4, {rWS}, {sT3 if arr else sT4} offen offset:{u*2048 + part*512} sc1")
    E("s_waitcnt vmcnt(0)")
    tagcheck([G6+1+2*i for i in range(16)], T0)
    E("s_cbranch_vccz L_gotmod")
    if slp: E(f"s_sleep {slp}")
    spin_check("L_pollmod")
    E.label("L_gotmod")
    stamp(2)
    for u in range(2):
        n0, n1 = XF+2*u, XF+2*u+1
        s0 = G6 + u*8; s1 = s0+2; c0 = G6 + 16 + u*8; c1 = c0+2
        for r in (s0, s1, c0, c1): E(f"v_add_f32 v{r}, v{r}, v{r+4}")
        rb2(s0, s1, s0, s1, t); rb2(c0, c1, c0, c1, t)
        E(f"v_add_f32 v{c0}, 1.0, v{c0}")
        E(f"v_add_f32 v{c1}, 1.0, v{c1}")
        rb2(c0, c1, c0, c1, t)
        E(f"v_mul_f32 v{n0}, v{n0}, v{c0}")
        E(f"v_mul_f32 v{n1}, v{n1}, v{c1}")
        rb2(n0, n1, n0, n1, t)
        E(f"v_add_f32 v{n0}, v{n0}, v{s0}")
        E(f"v_add_f32 v{n1}, v{n1}, v{s1}")
        E(f"v_cvt_pk_bf16_f32 v{n0}, v{n0}, v{n1}")
        E(f"ds_write_b32 v6, v{n0} offset:{L_ACT + u*256}")
    E.label("L_gemv")
    E(f"ds_read_b32 v{T0}, v5 offset:4")
    E("s_waitcnt lgkmcnt(0)")
    E(f"v_readfirstlane_b32 {sT1}, v{T0}")
    E(f"s_cmp_lg_u32 {sT1}, 7")
    E(f"s_cbranch_scc1 L_gemv")
    stamp("a2")
    if stamps: E("s_waitcnt lgkmcnt(0)")
    def g_reads(st):
        b = S[4] + (st % 3)*20
        E(f"ds_read_b128 v[{b}:{b+3}], v{vAR} offset:{L_ACT + st*64}")
        for nt in range(4):
            for q in range(2):
                r = b + 4 + nt*4 + q*2
                E(f"ds_read_b64_tr_b16 v[{r}:{r+1}], v{TRA+nt} offset:{L_WM + st*4096 + q*512}")
    g_reads(0); g_reads(1)
    E(f"s_lshl_b32 {sT4}, {sA}, 9")
    E(f"s_add_u32 {sT4}, {sT4}, {WS_EP}")
    E(f"v_lshlrev_b32 v4, 3, {vLANE}")
    for st in range(8):
        E(f"s_waitcnt lgkmcnt({9 if st < 7 else 0})")
        if st + 2 < 8: g_reads(st+2)
        b = S[4] + (st % 3)*20
        for nt in range(4):
            d = AD + 4*nt
            c = "0" if st == 0 else f"v[{d}:{d+3}]"
            E(f"v_mfma_f32_16x16x32_bf16 v[{d}:{d+3}], v[{b}:{b+3}], v[{b+4+4*nt}:{b+7+4*nt}], {c}")
    E(f"v_mov_b32 v9, {sTAG}")
    for nt in range(1, 4):
        E(f"v_mov_b32_dpp v{AD}, v{AD+4*nt} quad_perm:[0,1,2,3] row_mask:{1<<nt:#x} bank_mask:0xf")
    E(f"v_mov_b32 v8, v{AD}")
    E(f"s_cmp_lt_u32 {sA}, 32")
    E(f"s_cselect_b32 {sT2}, 1, {sT2}")
    E(f"s_cmp_eq_u32 {sT2}, 0")
    E("s_cbranch_scc1 L_owner")
    E(f"buffer_store_dwordx2 v[8:9], v4, {rWS}, {sT4} offen sc1")
    stamp(1)
    E(f"s_cmp_ge_u32 {sA}, 96")
    E(f"s_cbranch_scc1 L_cu{k1}")
    E("s_branch L_cu0")
    E.label("L_owner")
    E(f"s_cmp_ge_u32 {sA}, 96")
    E(f"s_cbranch_scc1 L_own2")

    for T in range(k1): load_tile("k", T, T, 0, f"K{T}", setp=False)
    E.label("L_own2")
    for T in range(k1, k2): load_tile("k", T, T, 0, f"K{T}", setp=False)
    E.label("L_pollred")
    E(f"buffer_load_dwordx2 v[10:11], v4, {rWS}, {sT4} offen offset:512 sc1")
    E("s_waitcnt vmcnt(0)")
    E(f"v_cmp_ne_u32 vcc, {sTAG}, v11")
    E("s_cbranch_vccz L_gotred")
    spin_check("L_pollred")
    E.label("L_gotred")
    E(f"v_add_f32 v8, v8, v10")
    E(f"s_lshl_b32 {sT0}, {sA}, 7")
    E(f"s_add_u32 {sT0}, {sT0}, {WS_MODG}")
    E(f"v_mov_b32_dpp v10, v8 quad_perm:[1,1,3,3] {DPPM}")
    E(f"v_cvt_pk_bf16_f32 v8, v8, v10")
    E(f"s_mov_b32 exec_lo, 0x55555555")
    E(f"s_mov_b32 exec_hi, 0x55555555")
    E(f"buffer_store_dwordx2 v[8:9], v6, {rWS}, {sT0} offen sc1")
    E(f"s_mov_b64 exec, -1")
    stamp(3)
    E(f"s_branch L_cu{k2}")
    vm[:] = ["x"]*depth0
    for T in range(4):
        E.label(f"L_cu{T}")
        load_tile("k", T, T, depth0, f"K{T}", setp=False)
    E.label("L_cu4")
    assert tpwo != 2
    load_tile("v", 0, 4, depth0, "V0", setp=False)
    setlight()
    E("s_branch L_v1")

    vm[:] = ["K0"]*NPRE
    E.label("L_stream")
    setlight(); light[0] = True
    load_tile("k", 0, 0, depth, "K0", lo=NPRE)
    E(f"s_cmp_lg_u32 {sW}, 1")
    E("s_cbranch_scc1 L_sk1")
    for r in range(20, 24): E(f"v_mov_b32 v{r}, -1")
    E(f"s_cmp_ge_u32 {sJ}, 16")
    E("s_cbranch_scc1 L_noclr2")
    if rep:
        E(f"v_lshrrev_b32 v18, 4, {vLANE}")
        E(f"v_lshlrev_b32 v18, 15, v18")
        E(f"v_and_b32 v19, 15, {vLANE}")
        E(f"v_lshl_add_u32 v18, v19, 4, v18")
        E(f"buffer_store_dwordx4 v[20:23], v18, {rWS}, {sAOP} offen sc1")
        E(f"s_add_u32 {sT0}, {sAOP}, {4*32768}")
        E(f"buffer_store_dwordx4 v[20:23], v18, {rWS}, {sT0} offen sc1")
    else:
        E("s_mov_b64 exec, 0xffff")
        E(f"buffer_store_dwordx4 v[20:23], {vV}, {rWS}, {sAOP} offen sc1")
        E("s_mov_b64 exec, -1")
    E.label("L_noclr2")
    E(f"s_cmp_eq_u32 {sML}, 0")
    E("s_cbranch_scc1 L_noclr0")
    for i in range(2):
        E(f"buffer_store_dwordx4 v[20:23], {vV}, {rWS}, {sPUB} offen offset:{1024*i} sc1")
    E.label("L_noclr0")
    load_tile("k", 1, 1, depth, "K1", hi=4)
    mktag()
    flag(4)
    if fixw >= 0:
        E(f"s_cmp_lg_u32 s2, {fixw}")
        E("s_cbranch_scc1 L_nofw")
        E(f"v_mov_b32 v{T0}, s48")
        E(f"v_mov_b32 v{T2}, 0x800")
        E(f"buffer_store_dword v{T0}, v{T2}, {rWS}, 0 offen sc1")
        E.label("L_nofw")
    E("s_branch L_k1b")
    E.label("L_sk1")
    del vm[-4:]
    load_tile("k", 1, 1, depth, "K1", hi=4)
    mktag()
    E.label("L_k1b")
    load_tile("k", 1, 1, depth, "K1", lo=4)
    if w1e:
        E(f"s_cmp_ge_u32 {sA}, 224")
        E(f"s_cselect_b32 {sT0}, {sML}, 0")
        E(f"s_cmp_eq_u32 {sT0}, 0")
        E("s_cbranch_scc1 L_sk2")
        w1_dma()
    E.label("L_sk2")
    load_tile("k", 2, 2, depth, "K2")
    E.label("L_sk3")
    load_tile("k", 3, 3, depth, "K3")
    E.label("L_sk4")
    tail_dma(2)
    QP = 8
    def qloads():
        E(f"buffer_load_dwordx4 v[20:23], v17, {rWS}, 0 offen sc1")
        E(f"buffer_load_dwordx4 v[{QP}:{QP+3}], v18, {rWS}, {sT2} offen sc1")
        E(f"buffer_load_dwordx4 v[{QP+4}:{QP+7}], v18, {rWS}, {sT2} offen offset:16 sc1")
        E(f"buffer_load_dwordx4 v[{T0}:{T3}], v19, {rWS}, 0 offen sc1")
    seq = [("v", 0, 4, i) for i in range(8)] + [("v", 1, 5, i) for i in range(8)] + [("v", 2, 6, i) for i in range(8)] + [("v", 3, 0, i) for i in range(8)]
    def issue(x): load_tile(x[0], x[1], x[2], depth, f"V{x[1]}", lo=x[3], hi=x[3]+1)
    for x in seq[:8]: issue(x)
    E.label("L_v1")
    if wopf and wopos == 2: wo_pref()
    for x in seq[8:qat-1]: issue(x)
    E(f"v_mov_b32 v4, 1")
    E("s_mov_b64 exec, 1")
    E(f"ds_add_rtn_u32 v4, v5, v4 offset:12")
    E("s_mov_b64 exec, -1")
    issue(seq[qat-1])
    E(f"s_cmp_eq_u32 {sML}, 0")
    E("s_cbranch_scc1 L_nomdma")
    E(f"s_lshl_b32 {sT0}, {sW}, 10")
    E(f"s_add_u32 m0, {sT0}, {L_MOD}")
    E(f"s_add_u32 {sT0}, {sT0}, {WS_MODG + 4096}")
    E(f"buffer_load_dwordx4 {vV}, {rWS}, {sT0} offen sc1 lds")
    E.label("L_nomdma")
    E(f"v_lshlrev_b32 v18, 1, {vK}")
    E(f"s_lshl_b32 {sT2}, {sG}, 11")
    E(f"s_add_u32 {sT2}, {sT2}, {WS_QG}")
    E(f"v_and_b32 v19, 15, {vLANE}")
    E(f"s_lshl_b32 {sT0}, {sG}, 8")
    E(f"s_add_u32 {sT0}, {sT0}, {WS_CLR}")
    E(f"v_lshl_add_u32 v19, v19, 4, {sT0}")
    E(f"v_lshrrev_b32 v17, 3, {vLANE}")
    E(f"v_lshlrev_b32 v17, 8, v17")
    E(f"v_and_b32 v16, 7, {vLANE}")
    E(f"v_lshl_add_u32 v17, v16, 4, v17")
    E(f"v_add_u32 v17, {WS_CLR}, v17")
    E("s_waitcnt lgkmcnt(0)")
    E(f"v_readfirstlane_b32 {sSK}, v4")
    E(f"s_cmp_lg_u32 {sSK}, 0")
    E("s_cbranch_scc1 L_noqp")
    qloads()
    E.label("L_noqp")
    for x in seq[qat:18]: issue(x)
    nxt = seq[18:]
    stamp("q0")
    E(f"s_cmp_lg_u32 {sSK}, 0")
    E("s_cbranch_scc1 L_waitq")
    E(f"s_waitcnt vmcnt({18-qat})")
    QT = [QP+1, QP+3, QP+5, QP+7, T1, T3, 21, 23]
    E.label("L_checkq")
    tagcheck(QT, 6)
    E("s_branch L_gotq" if "q" in dbg else "s_cbranch_vccz L_gotq")
    if slpq: E(f"s_sleep {slpq}")
    qloads()
    E("s_waitcnt vmcnt(0)")
    spin_check("L_checkq")
    E.label("L_gotq")
    E(f"v_xor_b32 v{T0}, {sXCC}, v{T0}")
    E(f"v_xor_b32 v{T2}, {sXCC}, v{T2}")
    E(f"v_or_b32 v{T0}, v{T0}, v{T2}")
    E(f"v_cmp_ne_u32 vcc, 0, v{T0}")
    for i in range(4): E(f"v_mov_b32 v{Q0+i}, v{QP+2*i}")
    E(f"ds_write_b128 {vV}, v[{Q0}:{Q0+3}] offset:{L_Q}")
    E(f"s_cmp_eq_u64 vcc, 0")
    E(f"s_cselect_b32 {sPL}, {2 if fast else 1}, 1")
    E(f"v_mov_b32 v4, {sPL}")
    E("s_waitcnt lgkmcnt(0)")
    E(f"ds_write_b32 v5, v4 offset:16")
    def gstore(text):
        u = len(E.L)
        E(f"s_cmp_eq_u32 {sPL}, 2")
        E(f"s_cbranch_scc1 L_gs{u}")
        E(text + " sc1")
        E(f"s_branch L_gt{u}")
        E.raw(f"L_gs{u}:")
        E(text)
        E.raw(f"L_gt{u}:")
    part_rows(6, 7)
    for r in (T0, T1, T2, T3): E(f"v_mov_b32 v{r}, -1")
    gstore(f"buffer_store_dwordx4 v[{T0}:{T3}], v6, {rWS}, {sT0} offen")
    E("s_branch L_haveq")
    E.label("L_waitq")
    E(f"ds_read_b32 v4, v5 offset:16")
    E("s_waitcnt lgkmcnt(0)")
    E(f"v_readfirstlane_b32 {sPL}, v4")
    E(f"s_cmp_lg_u32 {sPL}, 0")
    E("s_cbranch_scc1 L_readq")
    E("s_sleep 1")
    spin_check("L_waitq")
    E.label("L_readq")
    E(f"ds_read_b128 v[{Q0}:{Q0+3}], {vV} offset:{L_Q}")
    vmwait("K3")
    E("s_waitcnt lgkmcnt(0)")
    E.label("L_haveq")
    setlight()
    stamp(4)
    nq = len(vm)
    def sc(T, i): return 20 + i if T == 0 else S[1] + 4*i + (T-1)
    SCR = [sc(T, i) for T in range(4) for i in range(8)]
    def s_tile(T):
        for i in range(8):
            r = S[T] + 4*i
            E(f"v_mfma_f32_16x16x32_bf16 v[{r}:{r+3}], v[{r}:{r+3}], v[{Q0}:{Q0+3}], 0")
        for c in range(4):
            for i in range(8):
                r = S[T] + 4*i; d = sc(T, i)
                if c == 0: E(f"v_mov_b32_dpp v{d}, v{r} quad_perm:[0,0,0,0] {DPPM}")
                else: E(f"v_add_f32_dpp v{d}, v{r+c}, v{d} quad_perm:[{c},{c},{c},{c}] {DPPM}")
    def s_round(T):
        rs = SCR[8*T:8*T+8]
        for i in range(0, 8, 2): rb2(rs[i], rs[i+1], rs[i], rs[i+1], T0 + i//2)
        for r in rs: E(f"v_mul_f32 v{r}, {sT1}, v{r}")
        for i in range(0, 8, 2): rb2(rs[i], rs[i+1], rs[i], rs[i+1], T0 + i//2)
    E(f"s_mov_b32 {sT1}, {f32bits(128.0**-0.5):#x}")
    def more(n, leave=0):
        for _ in range(n*rate):
            if len(nxt) <= leave: return
            issue(nxt.pop(0))
    for T in range(4):
        s_tile(T); more(1)
        s_round(T); more(1 if T < 2 else 0)
    stamp("c0")
    MX, LS = 6, 7
    E(f"v_max3_f32 v{MX}, v{SCR[0]}, v{SCR[1]}, v{SCR[2]}")
    for i in range(3, 31, 2): E(f"v_max3_f32 v{MX}, v{MX}, v{SCR[i]}, v{SCR[i+1]}")
    E(f"v_max_f32 v{MX}, v{MX}, v{SCR[31]}")
    red_rows("v_max_f32", [MX], T0)
    E(f"v_mul_f32 v{MX}, {sC}, v{MX}")
    more(1)
    for r in SCR: E(f"v_fma_f32 v{r}, v{r}, {sC}, -v{MX}")
    more(1)
    for r in SCR: E(f"v_exp_f32 v{r}, v{r}")
    more(1)
    E(f"v_add_f32 v{LS}, v{SCR[0]}, v{SCR[1]}")
    E(f"v_add_f32 v{T0}, v{SCR[2]}, v{SCR[3]}")
    for i in range(4, 32, 2):
        E(f"v_add_f32 v{LS}, v{LS}, v{SCR[i]}")
        E(f"v_add_f32 v{T0}, v{T0}, v{SCR[i+1]}")
    E(f"v_add_f32 v{LS}, v{LS}, v{T0}")
    red_rows("v_add_f32", [LS], T0)
    E(f"v_and_b32 v{T0}, 12, {vLANE}")
    E(f"v_lshlrev_b32 v{T0}, 1, v{T0}")
    E(f"s_lshl_b32 {sT0}, {sW}, 5")
    E(f"v_add_u32 v{T0}, {sT0}, v{T0}")
    E(f"ds_write_b64 v{T0}, v[{MX}:{LS}] offset:{L_STATS}")
    E(f"v_mov_b32 v{T2}, 1")
    E(f"s_waitcnt vmcnt({len(vm) - nq}) lgkmcnt(0)")
    E("s_mov_b64 exec, 1")
    E(f"ds_add_rtn_u32 v{T2}, v5, v{T2}")
    E("s_mov_b64 exec, -1")
    PR = [8, 12, 20, 24]
    for T in range(4):
        for i in range(4): E(f"v_cvt_pk_bf16_f32 v{PR[T]+i}, v{SCR[8*T+2*i]}, v{SCR[8*T+2*i+1]}")
    more(1)
    E("s_waitcnt lgkmcnt(0)")
    E(f"v_readfirstlane_b32 {sLAST}, v{T2}")
    X = S[1]
    E(f"s_cmp_lg_u32 {sLAST}, 7")
    E("s_cbranch_scc1 L_nostat")
    E(f"v_and_b32 v{T0}, 31, {vLANE}")
    E(f"v_lshlrev_b32 v{T1}, 3, v{T0}")
    E(f"ds_read_b64 v[6:7], v{T1} offset:{L_STATS}")
    E(f"v_and_b32 v{T1}, 3, v{T0}")
    E(f"v_and_b32 v{T0}, 28, v{T0}")
    E(f"v_lshl_add_u32 v{T0}, v{T1}, 5, v{T0}")
    E(f"v_mov_b32 v{T2}, {sJ}")
    E(f"v_lshlrev_b32 v{T1}, 9, v{T1}")
    E(f"v_lshl_add_u32 v{T1}, v{T2}, 4, v{T1}")
    E("s_waitcnt lgkmcnt(0)")
    E(f"v_mov_b32 v16, v6")
    red_ror("v_max_f32", [16], (4, 8))
    E(f"v_mov_b32 v17, v16")
    E(f"v_permlane16_swap_b32 v16, v17")
    E(f"v_max_f32 v16, v16, v17")
    E(f"v_sub_f32 v6, v6, v16")
    E(f"v_exp_f32 v6, v6")
    E(f"v_mul_f32 v18, v6, v7")
    E(f"ds_write_b32 v{T0}, v6 offset:{L_FAC}")
    red_ror("v_add_f32", [18], (4, 8))
    E(f"v_mov_b32 v17, v18")
    E(f"v_permlane16_swap_b32 v18, v17")
    E(f"v_add_f32 v18, v17, v18")
    E(f"v_mov_b32 v17, {sTAG}")
    E(f"v_mov_b32 v19, {sTAG}")
    E(f"s_lshl_b32 {sT0}, {sG}, 11")
    E(f"s_add_u32 {sT0}, {sT0}, {WS_STAT}")
    E("s_mov_b64 exec, 15")
    gstore(f"buffer_store_dwordx4 v[16:19], v{T1}, {rWS}, {sT0} offen")
    E("s_mov_b64 exec, -1")
    E.label("L_nostat")
    stamp("c1")
    vGQ, vN, vCOL, vGAA, vCH, vU16, vOW, vT8, vL4, vGATH, vRR, vRW, vFR, vSTA, vWBW, vWBR = [X+i for i in range(16)]
    TRB = X+16; GA = X+20; GB = X+24; SP = X+24; XT = X+30; vWER = X+31
    def wcalc():
        E(f"v_mov_b32 v{T0}, v{SP}")
        red_ror("v_max_f32", [T0], (1, 2, 4, 8))
        E(f"v_mov_b32 v{T1}, v{T0}")
        E(f"v_permlane16_swap_b32 v{T0}, v{T1}")
        E(f"v_max_f32 v{T0}, v{T0}, v{T1}")
        E(f"v_sub_f32 v{SP}, v{SP}, v{T0}")
        E(f"v_exp_f32 v{SP}, v{SP}")
        E(f"v_mul_f32 v{T0}, v{SP}, v{SP+2}")
        red_ror("v_add_f32", [T0], (1, 2, 4, 8))
        E(f"v_mov_b32 v{T1}, v{T0}")
        E(f"v_permlane16_swap_b32 v{T0}, v{T1}")
        E(f"v_add_f32 v{T0}, v{T0}, v{T1}")
        E(f"v_rcp_f32 v{T0}, v{T0}")
        E(f"v_mul_f32 v{T0}, v{T0}, v{SP}")
    tail_dma(3)
    if wopf and wopos == 3: wo_pref()
    ACCO = S[2]; TP = S[3]
    first = [True]
    def pv_perm(slot, mm):
        for dw in range(4):
            a = S[slot] + (2*mm)*4 + dw; b = S[slot] + (2*mm+1)*4 + dw
            E(f"v_perm_b32 v{TP + (2*dw)*4 + mm}, v{b}, v{a}, {sSELLO}")
            E(f"v_perm_b32 v{TP + (2*dw+1)*4 + mm}, v{b}, v{a}, {sSELHI}")
    def pv_mfma(T):
        for e in range(8):
            c = "0" if first[0] else f"v[{ACCO+4*e}:{ACCO+4*e+3}]"
            E(f"v_mfma_f32_16x16x32_bf16 v[{ACCO+4*e}:{ACCO+4*e+3}], v[{PR[T]}:{PR[T]+3}], v[{TP+4*e}:{TP+4*e+3}], {c}")
        first[0] = False
    def pv(slot, T):
        for mm in range(4): pv_perm(slot, mm)
        pv_mfma(T)
    more(1)
    vmwait("V0"); pv(4, 0)
    more(1)
    vmwait("V1"); pv(5, 1)
    more(16, leave=2)
    if ewt:
        E(f"s_cmp_lt_u32 {sJ}, 16")
        E(f"s_cselect_b32 {sLAST}, {sLAST}, 0")
        E(f"s_cmp_lg_u32 {sLAST}, 7")
        E("s_cbranch_scc1 L_noes")
        E(f"s_lshl_b32 {sT0}, {sG}, 11")
        E(f"s_lshr_b32 {sT1}, {sJ}, 3")
        E(f"s_lshl_b32 {sT1}, {sT1}, 10")
        E(f"s_add_u32 {sT0}, {sT0}, {sT1}")
        E(f"s_add_u32 {sT0}, {sT0}, {WS_STAT}")
        E(f"buffer_load_dwordx4 v[{SP}:{SP+3}], {vV}, {rWS}, {sT0} offen sc1")
        E.label("L_noes")
        assert len(nxt) == 2
    more(16)
    stamp("c3")
    if prio >= 2: E("s_setprio 0")
    tail_dma(4)
    if prio >= 2: E("s_setprio 3")
    vmwait("V2"); pv(6, 2)
    nyoung = len(vm) - 1 - [i for i, t in enumerate(vm) if t == "V3"][-1]
    WB = S[4]; SCF = S[5]; WT8 = S[5]; PK = S[5]+16; GBF = S[6]
    W1 = WB; W2 = S[3]+16
    E(f"v_lshrrev_b32 v{vGQ}, 4, {vLANE}")
    E(f"v_and_b32 v{vN}, 15, {vLANE}")
    E(f"s_lshl_b32 {sT0}, {sW}, 11")
    E(f"v_lshlrev_b32 v{vRR}, 5, {vLANE}")
    E(f"v_add_u32 v{vOW}, {sT0}, v{vRR}")
    E(f"v_lshlrev_b32 v{vT8}, 3, v0")
    E(f"v_lshlrev_b32 v{vL4}, 2, {vLANE}")
    E(f"s_lshl_b32 {sT1}, {sW}, 5")
    E(f"v_mov_b32 v{vFR}, {sT1}")
    E(f"v_bfe_u32 v{T1}, {vLANE}, 2, 2")
    E(f"v_lshl_add_u32 v{T2}, v{vGQ}, 3, v{T1}")
    E(f"v_lshlrev_b32 v{T2}, 7, v{T2}")
    E(f"v_and_b32 v{T3}, 3, {vLANE}")
    E(f"v_lshl_add_u32 v{T2}, v{T3}, 3, v{T2}")
    E(f"v_bfe_u32 v{T1}, {vLANE}, 3, 2")
    E(f"v_lshl_add_u32 v{T2}, v{T1}, 5, v{T2}")
    E(f"s_lshl_b32 {sT0}, {sW}, 12")
    E(f"s_add_u32 {sT0}, {sT0}, {L_WO}")
    E(f"v_add_u32 v{TRB}, {sT0}, v{T2}")
    for nt in range(1, 4): E(f"v_xor_b32 v{TRB+nt}, {nt*32}, v{TRB}")
    E(f"s_lshl_b32 {sT0}, {sG}, 2")
    E(f"s_add_u32 {sPP}, {sT0}, {sW}")
    E(f"s_lshl_b32 {sPP}, {sPP}, 13")
    E(f"s_lshr_b32 {sT1}, {sJ}, 4")
    E(f"s_lshl_b32 {sT1}, {sT1}, 12")
    E(f"s_add_u32 {sPP}, {sPP}, {sT1}")
    E(f"s_and_b32 {sT1}, {sJ}, 15")
    E(f"s_lshl_b32 {sT1}, {sT1}, 4")
    E(f"s_add_u32 {sPP}, {sPP}, {sT1}")
    E(f"s_add_u32 {sPP}, {sPP}, {WS_PART}")
    E(f"s_lshr_b32 {sT1}, {sJ}, 3")
    E(f"s_lshl_b32 {sT1}, {sT1}, 1")
    E(f"s_add_u32 {sGA0}, {sT0}, {sT1}")
    E(f"s_lshr_b32 {sT1}, {sW}, 2")
    E(f"s_add_u32 {sGA0}, {sGA0}, {sT1}")
    E(f"s_lshl_b32 {sT2}, {sGA0}, 9")
    E(f"s_add_u32 {sT2}, {sT2}, {WS_STAT}")
    E(f"s_lshl_b32 {sGA0}, {sGA0}, 13")
    E(f"s_and_b32 {sT1}, {sW}, 3")
    E(f"s_lshl_b32 {sT1}, {sT1}, 10")
    E(f"s_add_u32 {sGA0}, {sGA0}, {sT1}")
    E(f"s_add_u32 {sGA0}, {sGA0}, {WS_PART}")
    E(f"s_add_u32 {sGA1}, {sGA0}, 4096")
    E(f"v_and_b32 v{vSTA}, 31, {vLANE}")
    E(f"s_lshl_b32 {sT1}, {sW}, 7")
    E(f"v_lshl_add_u32 v{vWBW}, v{vSTA}, 2, {sT1}")
    E(f"v_lshl_add_u32 v{vWBR}, v{vGQ}, 4, {sT1}")
    E(f"v_lshlrev_b32 v{vSTA}, 4, v{vSTA}")
    E(f"s_lshr_b32 {sT1}, {sW}, 2")
    E(f"s_lshl_b32 {sT1}, {sT1}, 7")
    E(f"v_lshl_add_u32 v{vWER}, v{vGQ}, 4, {sT1}")
    E(f"v_lshrrev_b32 v{vGATH}, 2, {vLANE}")
    E(f"v_lshlrev_b32 v{vGATH}, 8, v{vGATH}")
    E(f"v_and_b32 v{T3}, 3, {vLANE}")
    E(f"v_lshl_add_u32 v{vGATH}, v{T3}, 2, v{vGATH}")
    E(f"s_lshl_b32 {sT1}, {sW}, 2")
    E(f"v_add_u32 v{vRW}, {sT1}, v{vRR}")
    E(f"s_waitcnt vmcnt({nyoung+4})")
    pv_perm(0, 0); pv_perm(0, 1)
    E(f"s_waitcnt vmcnt({nyoung+2})")
    pv_perm(0, 2)
    if ewt:
        E(f"s_cmp_lg_u32 {sLAST}, 7")
        E("s_cbranch_scc1 L_noew")
        tagcheck([SP+1, SP+3], 6)
        E("s_cbranch_vccnz L_noew")
        wcalc()
        E(f"ds_write_b32 v{vL4}, v{T0} offset:{L_WE}")
        E(f"ds_write_b32 v5, v5 offset:8")
        E.label("L_noew")
    E(f"s_waitcnt vmcnt({nyoung})")
    stamp(5)
    pv_perm(0, 3)
    pv_mfma(3)
    for e in range(8): E(f"v_mov_b32 v{PK+e}, v{ACCO+4*e}")
    E(f"ds_write_b128 v{vOW}, v[{PK}:{PK+3}] offset:{L_ORED}")
    E(f"ds_write_b128 v{vOW}, v[{PK+4}:{PK+7}] offset:{L_ORED+16}")
    E("s_waitcnt lgkmcnt(0)")
    E("s_barrier")
    E(f"s_cmp_ge_u32 {sW}, 4")
    E("s_cbranch_scc1 L_nopart")
    R0 = S[2]; FC = S[2]+16
    E(f"ds_read_b128 v[{FC}:{FC+3}], v{vFR} offset:{L_FAC}")
    E(f"ds_read_b128 v[{FC+4}:{FC+7}], v{vFR} offset:{L_FAC+16}")
    for w in range(8): E(f"ds_read_b64 v[{R0+2*w}:{R0+2*w+1}], v{vT8} offset:{L_ORED + w*2048}")
    for w in range(8):
        if w % 2 == 0: E(f"s_waitcnt lgkmcnt({6-w})")
        a = PK + 2*(w % 2)
        op = "v_mul_f32" if w < 2 else "v_fmac_f32"
        E(f"{op} v{a}, v{R0+2*w}, v{FC+w}")
        E(f"{op} v{a+1}, v{R0+2*w+1}, v{FC+w}")
    E(f"v_pk_add_f32 v[{PK}:{PK+1}], v[{PK}:{PK+1}], v[{PK+2}:{PK+3}]")
    E(f"v_cvt_pk_bf16_f32 v{PK}, v{PK}, v{PK+1}")
    E(f"v_min_u32 v{PK}, -2, v{PK}")
    gstore(f"buffer_store_dword v{PK}, v{vGATH}, {rWS}, {sPP} offen")
    E.label("L_nopart")
    stamp(6)
    if "e" in dbg: E("s_branch L_fin")
    E(f"s_cmp_lg_u32 {sML}, 0")
    E("s_cbranch_scc1 L_stageb")
    if w1pf == 2:
        w1_pref("L_nopf2")
        E.label("L_nopf2")
    E(f"s_cmp_ge_u32 {sJ}, 16")
    E("s_cbranch_scc1 L_fin")
    tail_dma(5)
    if buddy:
        E(f"s_sub_u32 {sT0}, {sT0}, {3*8*1024}")
        E(f"s_xor_b32 {sT0}, {sT0}, {buddy}")
        E(f"s_mov_b32 m0, {L_WM}")
        for i in range(4):
            E(f"buffer_load_dwordx4 v{T2}, {rWO}, {sT0} offen lds")
            if i < 3: E(f"s_add_u32 {sT0}, {sT0}, {8*1024}")
    GA_ = S[3]
    def a_load(i): E(f"buffer_load_dwordx4 v[{GA_+4*i}:{GA_+4*i+3}], {vV}, {rWS}, {sGA1 if i else sGA0} offen {'nt' if 'n' in dbg else 'sc1'}")
    def a_loads(): a_load(0); a_load(1)
    if ewt:
        E(f"ds_read_b32 v{T0}, v5 offset:8")
        E(f"ds_read_b128 v[{WT8}:{WT8+3}], v{vWER} offset:{L_WE}")
        E(f"ds_read_b128 v[{WT8+4}:{WT8+7}], v{vWER} offset:{L_WE+64}")
        E("s_waitcnt lgkmcnt(0)")
        E(f"v_readfirstlane_b32 {sT0}, v{T0}")
        E(f"s_cmp_lg_u32 {sT0}, 0")
        E("s_cbranch_scc1 L_havew")
    E.label("L_statchk")
    E(f"buffer_load_dwordx4 v[{SP}:{SP+3}], v{vSTA}, {rWS}, {sT2} offen sc1")
    E("s_waitcnt vmcnt(0)")
    tagcheck([SP+1, SP+3], 6)
    E("s_cbranch_vccz L_gotstat")
    if slp: E(f"s_sleep {slp}")
    spin_check("L_statchk")
    E.label("L_gotstat")
    wcalc()
    E(f"ds_write_b32 v{vWBW}, v{T0} offset:{L_WB}")
    E("s_waitcnt lgkmcnt(0)")
    E(f"ds_read_b128 v[{WT8}:{WT8+3}], v{vWBR} offset:{L_WB}")
    E(f"ds_read_b128 v[{WT8+4}:{WT8+7}], v{vWBR} offset:{L_WB+64}")
    E.label("L_havew")
    if lead:
        E(f"s_and_b32 {sT0}, {sW}, 3")
        E("s_cbranch_scc0 L_lead")
        E("s_barrier")
        E.label("L_lead")
    a_loads()
    E("s_waitcnt vmcnt(2)")
    for nt in range(4):
        for q in range(2): E(f"ds_read_b64_tr_b16 v[{WB+4*nt+2*q}:{WB+4*nt+2*q+1}], v{TRB+nt} offset:{q*512}")
    stamp("w1")
    if rep:
        E(f"s_lshl_b32 {sT0}, {sW}, 15")
        E(f"s_add_u32 {sAOP}, {sAOP}, {sT0}")
    pollloop("a", a_load, [range(GA_, GA_+4), range(GA_+4, GA_+8)], T0, slpa)
    if lead:
        E(f"s_and_b32 {sT0}, {sW}, 3")
        E("s_cbranch_scc1 L_lead2")
        E("s_barrier")
        E.label("L_lead2")
    stamp(7)
    E("s_waitcnt lgkmcnt(0)")
    D = S[2]
    for half in range(2):
        for nt in range(4):
            d = D + half*16 + 4*nt
            E(f"v_mfma_f32_16x16x32_bf16 v[{d}:{d+3}], v[{GA_+4*half}:{GA_+4*half+3}], v[{WB+4*nt}:{WB+4*nt+3}], 0")
    for nt in range(4): E(f"v_pk_mul_f32 v[{D+4*nt}:{D+4*nt+1}], v[{D+4*nt}:{D+4*nt+1}], v[{WT8}:{WT8+1}]")
    for nt in range(4): E(f"v_pk_fma_f32 v[{D+4*nt}:{D+4*nt+1}], v[{D+4*nt+2}:{D+4*nt+3}], v[{WT8+2}:{WT8+3}], v[{D+4*nt}:{D+4*nt+1}]")
    for nt in range(4): E(f"v_pk_fma_f32 v[{D+4*nt}:{D+4*nt+1}], v[{D+16+4*nt}:{D+16+4*nt+1}], v[{WT8+4}:{WT8+5}], v[{D+4*nt}:{D+4*nt+1}]")
    for nt in range(4): E(f"v_pk_fma_f32 v[{D+4*nt}:{D+4*nt+1}], v[{D+16+4*nt+2}:{D+16+4*nt+3}], v[{WT8+6}:{WT8+7}], v[{D+4*nt}:{D+4*nt+1}]")
    for nt in range(4): E(f"v_add_f32 v{D+4*nt}, v{D+4*nt}, v{D+4*nt+1}")
    tred4(D, D+4, D+8, D+12)
    E(f"ds_write_b32 v{vRW}, v{D} offset:{L_RED}")
    E("s_waitcnt lgkmcnt(0)")
    E("s_barrier")
    if not rep:
        E(f"s_cmp_lg_u32 {sW}, 0")
        E("s_cbranch_scc1 L_fin")
    D = PK
    E(f"ds_read_b128 v[{D}:{D+3}], v{vRR} offset:{L_RED}")
    E(f"ds_read_b128 v[{D+4}:{D+7}], v{vRR} offset:{L_RED+16}")
    E("s_waitcnt lgkmcnt(0)")
    E(f"v_pk_add_f32 v[{D}:{D+1}], v[{D}:{D+1}], v[{D+4}:{D+5}]")
    E(f"v_pk_add_f32 v[{D+2}:{D+3}], v[{D+2}:{D+3}], v[{D+6}:{D+7}]")
    E(f"v_pk_add_f32 v[{D}:{D+1}], v[{D}:{D+1}], v[{D+2}:{D+3}]")
    E(f"v_add_f32 v{D}, v{D}, v{D+1}")
    E(f"v_min_u32 v{D}, -2, v{D}")
    E(f"buffer_store_dword v{D}, v{vL4}, {rWS}, {sAOP} offen sc1")
    stamp(8)
    E("s_branch L_fin")
    E.label("L_stageb")
    if "x" in dbg: E("s_branch L_fin")
    if w1e:
        E(f"s_cmp_ge_u32 {sA}, 224")
        E("s_cbranch_scc1 L_now1")
    if mlearly != 2: w2_dma()
    if w1dl: E(f"s_sleep {w1dl}")
    if mlearly != 1: w1_dma()
    E.label("L_now1")
    GBR = S[3]
    E(f"v_lshlrev_b32 v{vSTA}, 11, v{vGQ}")
    E(f"v_lshl_add_u32 v{vSTA}, v{vN}, 4, v{vSTA}")
    E(f"s_lshl_b32 {sT0}, {sW}, 8")
    if rep:
        E(f"s_lshl_b32 {sT1}, {sG}, 15")
        E(f"s_add_u32 {sT0}, {sT0}, {sT1}")
    bs = ["s88", "s89", "s90", "s94"]
    for i in range(4): E(f"s_add_u32 {bs[i]}, {sT0}, {WS_AO + 8192*i}")
    def b_load(i): E(f"buffer_load_dwordx4 v[{S[3]+4*i}:{S[3]+4*i+3}], v{vSTA}, {rWS}, {bs[i]} offen sc1")
    def b_loads():
        for i in range(4): b_load(i)
    E(f"v_lshl_add_u32 v{vCOL}, v{vN}, 2, v{vGQ}")
    E(f"s_lshl_b32 {sT0}, {sW}, 6")
    E(f"v_add_u32 v{vCOL}, {sT0}, v{vCOL}")
    E(f"v_lshlrev_b32 v{vGAA}, 1, v{vCOL}")
    E(f"buffer_load_ushort v{XT}, v{vGAA}, {rX}, 0 offen")
    E(f"v_and_b32 v{vGAA}, 0x1fe, v{vCOL}")
    E(f"v_lshlrev_b32 v{vGAA}, 2, v{vGAA}")
    E(f"s_mul_i32 {sU}, {sW}, 56")
    E(f"s_add_u32 {sU}, {sU}, {sM}")
    E(f"s_lshl_b32 {sU16}, {sU}, 4")
    E(f"s_and_b32 {sU16}, {sU16}, 0x7ff")
    E(f"v_mov_b32 v{vU16}, {sU16}")
    E(f"s_lshl_b32 {sT0}, {sW}, 2")
    E(f"v_add_u32 v{vCH}, {sT0}, v{vN}")
    E(f"v_and_b32 v{vCH}, 15, v{vCH}")
    E(f"v_lshl_add_u32 v{vCH}, v{vGQ}, 4, v{vCH}")
    E(f"v_lshlrev_b32 v{vCH}, 5, v{vCH}")
    SG = S[6]+8
    E(f"ds_read_b64 v[{GA}:{GA+1}], v{vGAA} offset:{L_MOD}")
    for i in range(4): E(f"ds_read_b128 v[{SG+4*i}:{SG+4*i+3}], v{vCH} offset:{L_MOD + 2048 + (i//2)*2048 + (i%2)*16}")
    E(f"ds_read_b128 v[{GB}:{GB+3}], v{vU16} offset:{L_MOD + 6144}")
    E(f"s_lshl_b32 {sT3}, {sW}, 13")
    E(f"s_add_u32 {sT3}, {sT3}, {L_WT}")
    E(f"v_bfe_u32 v{T0}, {vLANE}, 2, 2")
    E(f"v_and_b32 v{T1}, 3, {vLANE}")
    E(f"v_lshlrev_b32 v{T1}, 3, v{T1}")
    E(f"v_lshl_add_u32 v{T2}, v{T0}, 6, v{T1}")
    E(f"v_lshl_add_u32 v{T2}, v{vGQ}, 10, v{T2}")
    E(f"s_and_b32 {sT1}, {sW}, 3")
    E(f"s_lshl_b32 {sT1}, {sT1}, 14")
    E(f"s_add_u32 {sT1}, {sT1}, {L_WT}")
    E(f"v_add_u32 v{T2}, {sT1}, v{T2}")
    E(f"v_lshl_add_u32 v{T0}, v{T0}, 7, v{T1}")
    E(f"v_lshl_add_u32 v{T0}, v{vGQ}, 5, v{T0}")
    E(f"v_add_u32 v{T0}, {sT3}, v{T0}")
    E(f"v_lshlrev_b32 v{vRR}, 5, v{vN}")
    E(f"v_lshlrev_b32 v{vRW}, 4, v{vN}")
    E(f"s_lshl_b32 {sT1}, {sW}, 2")
    E(f"v_add_u32 v{vRW}, {sT1}, v{vRW}")
    E(f"v_lshlrev_b32 v{vGATH}, 2, v0")
    E(f"v_mov_b32 v{vWBR}, 0")
    E("s_waitcnt lgkmcnt(0)")
    E.label("L_modchk")
    tagcheck([GA+1, GB+1, GB+3] + [SG+1+2*i for i in range(8)], 6)
    E("s_cbranch_vccz L_gotmd")
    E(f"s_mov_b32 {sT0}, {WS_MODG + 4096}")
    E(f"buffer_load_dwordx2 v[{GA}:{GA+1}], v{vGAA}, {rWS}, {sT0} offen sc1")
    E(f"buffer_load_dwordx4 v[{SG}:{SG+3}], v{vCH}, {rWS}, {sT0} offen offset:2048 sc1")
    E(f"buffer_load_dwordx4 v[{SG+4}:{SG+7}], v{vCH}, {rWS}, {sT0} offen offset:2064 sc1")
    E(f"s_mov_b32 {sT0}, {WS_MODG + 8192}")
    E(f"buffer_load_dwordx4 v[{SG+8}:{SG+11}], v{vCH}, {rWS}, {sT0} offen sc1")
    E(f"buffer_load_dwordx4 v[{SG+12}:{SG+15}], v{vCH}, {rWS}, {sT0} offen offset:16 sc1")
    E(f"buffer_load_dwordx4 v[{GB}:{GB+3}], v{vU16}, {rWS}, {sT0} offen offset:2048 sc1")
    E("s_waitcnt vmcnt(0)")
    spin_check("L_modchk")
    E.label("L_gotmd")
    E(f"v_and_b32 v6, 1, v{vCOL}")
    E(f"v_lshlrev_b32 v{vCOL}, 2, v{vCOL}")
    E(f"v_cmp_eq_u32 vcc, 0, v6")
    E(f"v_lshlrev_b32 v6, 16, v{GA}")
    E(f"v_and_b32 v7, 0xffff0000, v{GA}")
    E(f"v_cndmask_b32 v{GA}, v7, v6, vcc")
    for i in range(4):
        c0, c1, s0, s1_ = SCF+2*i, SCF+2*i+1, SCF+8+2*i, SCF+8+2*i+1
        E(f"v_lshlrev_b32 v{s0}, 16, v{SG+2*i}")
        E(f"v_and_b32 v{s1_}, 0xffff0000, v{SG+2*i}")
        E(f"v_lshlrev_b32 v{c0}, 16, v{SG+8+2*i}")
        E(f"v_and_b32 v{c1}, 0xffff0000, v{SG+8+2*i}")
        E(f"v_add_f32 v{c0}, 1.0, v{c0}")
        E(f"v_add_f32 v{c1}, 1.0, v{c1}")
        rb2(c0, c1, c0, c1, 6)
    E(f"v_lshlrev_b32 v{GBF}, 16, v{GB}")
    E(f"v_and_b32 v{GBF+1}, 0xffff0000, v{GB}")
    E(f"v_lshlrev_b32 v{GBF+2}, 16, v{GB+2}")
    E(f"v_and_b32 v{GBF+3}, 0xffff0000, v{GB+2}")
    E("s_waitcnt vmcnt(0)")
    b_loads()
    stamp("w2")
    E("s_barrier")
    for nt in range(2):
        for q in range(8):
            r = W1 + nt*16 + q*2
            E(f"ds_read_b64_tr_b16 v[{r}:{r+1}], v{T2} offset:{(q>>2)*8192 + (q&3)*256 + nt*32}")
    for q in range(8):
        E(f"ds_read_b64_tr_b16 v[{W2+2*q}:{W2+2*q+1}], v{T0} offset:{4096 + q*512}")
    E(f"v_lshlrev_b32 v{XT}, 16, v{XT}")
    if touch:
        E("s_mov_b64 exec, 0")
        E("s_branch L_tb_0")
        E.label("L_tbret")
        E("s_mov_b64 exec, -1")
    G2 = S[0]
    E.label("L_pollb")
    E(f"s_waitcnt vmcnt(0)")
    for i in range(0, 8, 2): E(f"v_pk_add_f32 v[{G2+i}:{G2+i+1}], v[{GBR+i}:{GBR+i+1}], v[{GBR+8+i}:{GBR+8+i+1}]")
    for i in range(0, 4, 2): E(f"v_pk_add_f32 v[{G2+i}:{G2+i+1}], v[{G2+i}:{G2+i+1}], v[{G2+4+i}:{G2+4+i+1}]")
    E(f"v_pk_add_f32 v[{G2+4}:{G2+5}], v[{G2}:{G2+1}], v[{G2+2}:{G2+3}]")
    E(f"v_cmp_u_f32 vcc, v{G2+4}, v{G2+5}")
    E("s_cbranch_vccz L_gotb")
    for i in range(4): maxall(range(GBR+4*i, GBR+4*i+4), 16+i)
    maxall(range(16, 20), 6)
    E(f"v_cmp_eq_u32 vcc, -1, v6")
    E("s_cbranch_vccz L_gotb")
    if slpb: E(f"s_sleep {slpb}")
    for i in range(4):
        E(f"v_cmp_eq_u32 vcc, -1, v{16+i}")
        E(f"s_mov_b64 exec, vcc")
        b_load(i)
        E("s_mov_b64 exec, -1")
    spin_check("L_pollb")
    E.label("L_gotb")
    if touch: E.touch_begin("L_tb", touch)
    stamp(9)
    GBR = G2
    tred4(GBR, GBR+1, GBR+2, GBR+3)
    rb1(GBR, GBR)
    E(f"v_mul_f32 v{GBR}, v{GBR}, v{GA}")
    rb1(GBR, GBR)
    E(f"v_add_f32 v{GBR}, v{GBR}, v{XT}")
    rb1(GBR, GBR)
    E(f"ds_write_b32 v{vCOL}, v{GBR} offset:{L_X2}")
    E("s_waitcnt lgkmcnt(0)")
    E("s_barrier")
    stamp("b1")
    X2 = S[2]; X2F = S[2]+8; KS = S[2]+12
    E(f"s_cmp_ge_u32 {sW}, 4")
    E("s_cbranch_scc1 L_b4")
    E(f"ds_read_b32 v{KS}, v{vWBR} offset:{L_X2}")
    E(f"ds_read_b128 v[{X2}:{X2+3}], v{vCH} offset:{L_X2}")
    E(f"ds_read_b128 v[{X2+4}:{X2+7}], v{vCH} offset:{L_X2+16}")
    E(f"ds_read_b128 v[{X2F}:{X2F+3}], v{vU16} offset:{L_X2}")
    E("s_waitcnt lgkmcnt(0)" if (stamps and "b1" in stamps) else "s_waitcnt lgkmcnt(1)")
    DD = S[2]+16
    NEGB = "op_sel_hi:[1,0] neg_lo:[0,1] neg_hi:[0,1]"
    for i in range(0, 8, 2): E(f"v_pk_add_f32 v[{DD+i}:{DD+i+1}], v[{X2+i}:{X2+i+1}], v[{KS}:{KS+1}] {NEGB}")
    s1, s2, s3 = 16, 18, T0
    E(f"v_pk_add_f32 v[{s1}:{s1+1}], v[{DD}:{DD+1}], v[{DD+2}:{DD+3}]")
    E(f"v_pk_mul_f32 v[{s2}:{s2+1}], v[{DD}:{DD+1}], v[{DD}:{DD+1}]")
    E(f"v_pk_add_f32 v[{s3}:{s3+1}], v[{DD+4}:{DD+5}], v[{DD+6}:{DD+7}]")
    E(f"v_pk_mul_f32 v[{s3+2}:{s3+3}], v[{DD+4}:{DD+5}], v[{DD+4}:{DD+5}]")
    E(f"v_pk_fma_f32 v[{s2}:{s2+1}], v[{DD+2}:{DD+3}], v[{DD+2}:{DD+3}], v[{s2}:{s2+1}]")
    E(f"v_pk_fma_f32 v[{s3+2}:{s3+3}], v[{DD+6}:{DD+7}], v[{DD+6}:{DD+7}], v[{s3+2}:{s3+3}]")
    E(f"v_pk_add_f32 v[{s1}:{s1+1}], v[{s1}:{s1+1}], v[{s3}:{s3+1}]")
    E(f"v_pk_add_f32 v[{s2}:{s2+1}], v[{s2}:{s2+1}], v[{s3+2}:{s3+3}]")
    E(f"v_permlane16_swap_b32 v{s1}, v{s2}")
    E(f"v_permlane16_swap_b32 v{s1+1}, v{s2+1}")
    E(f"v_pk_add_f32 v[{s1}:{s1+1}], v[{s1}:{s1+1}], v[{s2}:{s2+1}]")
    E(f"v_add_f32 v{s1}, v{s1}, v{s1+1}")
    E(f"v_mov_b32 v{s2}, v{s1}")
    E(f"v_permlane32_swap_b32 v{s1}, v{s2}")
    E(f"v_add_f32 v{s1}, v{s1}, v{s2}")
    red_ror("v_add_f32", [s1], (1, 2, 4, 8))
    E(f"v_mul_f32 v{s1}, {f32bits(1.0/512):#x}, v{s1}")
    E(f"v_mov_b32 v{s2}, v{s1}")
    E(f"v_permlane16_swap_b32 v{s1}, v{s2}")
    E(f"v_fma_f32 v{s2}, -v{s1}, v{s1}, v{s2}")
    E(f"v_add_f32 v{s1}, v{s1}, v{KS}")
    E(f"v_max_f32 v{s2}, 0, v{s2}")
    E(f"v_cvt_pk_bf16_f32 v{s3}, v{s1}, v{s2}")
    E(f"v_and_b32 v{s2}, 0xffff0000, v{s3}")
    E(f"v_lshlrev_b32 v{s1}, 16, v{s3}")
    E(f"v_add_f32 v{s2}, {f32bits(1e-5):#x}, v{s2}")
    E(f"v_pk_add_f32 v[{X2}:{X2+1}], v[{X2}:{X2+1}], v[{s1}:{s1+1}] {NEGB}")
    E(f"v_cvt_pk_bf16_f32 v{s2}, v{s2}, v{s2}")
    E(f"v_pk_add_f32 v[{X2+2}:{X2+3}], v[{X2+2}:{X2+3}], v[{s1}:{s1+1}] {NEGB}")
    E(f"v_lshlrev_b32 v{s2}, 16, v{s2}")
    E(f"v_pk_add_f32 v[{X2+4}:{X2+5}], v[{X2+4}:{X2+5}], v[{s1}:{s1+1}] {NEGB}")
    E(f"v_sqrt_f32 v{s2}, v{s2}")
    E(f"v_pk_add_f32 v[{X2+6}:{X2+7}], v[{X2+6}:{X2+7}], v[{s1}:{s1+1}] {NEGB}")
    E(f"v_pk_mul_f32 v[{X2}:{X2+1}], v[{X2}:{X2+1}], v[{SCF}:{SCF+1}]")
    E(f"v_cvt_pk_bf16_f32 v{s2}, v{s2}, v{s2}")
    E(f"v_pk_mul_f32 v[{X2+2}:{X2+3}], v[{X2+2}:{X2+3}], v[{SCF+2}:{SCF+3}]")
    E(f"v_lshlrev_b32 v{s2}, 16, v{s2}")
    E(f"v_pk_mul_f32 v[{X2+4}:{X2+5}], v[{X2+4}:{X2+5}], v[{SCF+4}:{SCF+5}]")
    E(f"v_rcp_f32 v{s2}, v{s2}")
    E(f"v_pk_mul_f32 v[{X2+6}:{X2+7}], v[{X2+6}:{X2+7}], v[{SCF+6}:{SCF+7}]")
    for i in range(0, 8, 2): E(f"v_pk_fma_f32 v[{X2+i}:{X2+i+1}], v[{X2+i}:{X2+i+1}], v[{s2}:{s2+1}], v[{SCF+8+i}:{SCF+8+i+1}] op_sel_hi:[1,0,1]")
    H2 = PK
    for p in range(4): E(f"v_cvt_pk_bf16_f32 v{H2+p}, v{X2+2*p}, v{X2+2*p+1}")
    DM = S[0]
    for s_ in range(4):
        for nt in range(2):
            d = DM + (nt*4+s_)*4; b = W1 + nt*16 + s_*4
            E(f"v_mfma_f32_16x16x32_bf16 v[{d}:{d+3}], v[{H2}:{H2+3}], v[{b}:{b+3}], 0")
    E("s_mov_b64 exec, 0xffff")
    for nt in range(2): E(f"v_add_f32 v{DM+16*nt}, v{DM+16*nt}, v{DM+16*nt+5}")
    for nt in range(2): E(f"v_add_f32 v{DM+16*nt}, v{DM+16*nt}, v{DM+16*nt+10}")
    for nt in range(2): E(f"v_add_f32 v{DM+16*nt}, v{DM+16*nt}, v{DM+16*nt+15}")
    E(f"ds_write2st64_b32 v{vRW}, v{DM}, v{DM+16} offset0:{L_RED//256} offset1:{L_RED//256+1}")
    E("s_mov_b64 exec, -1")
    E("s_waitcnt lgkmcnt(0)")
    E.label("L_b4")
    E(f"v_mov_b32 v{T0}, 0")
    E(f"v_mov_b32 v{T1}, 0")
    E("s_barrier")
    stamp("b2")
    D = S[0]
    E(f"ds_read_b128 v[{D}:{D+3}], v{vRR} offset:{L_RED}")
    E(f"ds_read_b128 v[{D+8}:{D+11}], v{vRR} offset:{L_RED+16}")
    E("s_waitcnt lgkmcnt(0)")
    for b in (D, D+8): E(f"v_pk_add_f32 v[{b}:{b+1}], v[{b}:{b+1}], v[{b+2}:{b+3}]")
    for b in (D, D+8): E(f"v_add_f32 v{b}, v{b}, v{b+1}")
    E(f"v_max_f32 v{D}, 0, v{D}")
    E(f"v_max_f32 v{D+8}, 0, v{D+8}")
    E(f"v_cvt_pk_bf16_f32 v{D}, v{D}, v{D+8}")
    for k in range(16):
        E(f"v_dot2c_f32_bf16_dpp v{T0+(k&1)}, v{D}, v{W2+k} row_newbcast:{k} {DPPM}")
    E(f"v_add_f32 v{T0}, v{T0}, v{T1}")
    E(f"v_min_u32 v{T0}, -2, v{T0}")
    E(f"buffer_store_dword v{T0}, v{vGATH}, {rWS}, {sPUB} offen sc1")
    stamp(10)
    E(f"s_cmp_ge_u32 {sU}, 128")
    E("s_cbranch_scc1 L_fin")
    C0 = S[0]+16
    E(f"v_lshlrev_b32 v{vSTA}, 11, {vLANE}")
    E(f"s_add_u32 {sT2}, {sU16}, {WS_MO}")
    for i in range(4): E(f"v_mov_b32 v{C0+i}, 0")
    def c_loads(): E(f"buffer_load_dwordx4 v[{C0}:{C0+3}], v{vSTA}, {rWS}, {sT2} offen sc1")
    if cdelay: E(f"s_sleep {cdelay}")
    E(f"s_mov_b32 {sSPIN}, 0x40000")
    E(f"s_mov_b32 exec_hi, 0xffffff")
    c_loads()
    E(f"s_mov_b64 exec, -1")
    E(f"s_lshl_b32 {sT0}, {sU}, 3")
    E(f"v_mov_b32 v6, 0")
    E(f"v_mov_b32 v7, {sTAG}")
    E.tpause = True
    E.label("L_pollc")
    E("s_waitcnt vmcnt(0)")
    maxall(range(C0, C0+4), T2)
    E(f"v_cmp_eq_u32 vcc, -1, v{T2}")
    E("s_cbranch_vccz L_gotc")
    E(f"s_mov_b64 exec, vcc")
    c_loads()
    E("s_mov_b64 exec, -1")
    spin_check("L_pollc")
    E.label("L_gotc")
    E.tpause = False
    if fixt:
        if fixw >= 0:
            E(f"v_mov_b32 v{T2}, 0x800")
            E(f"buffer_load_dword v{T3}, v{T2}, {rWS}, 0 offen sc1")
            E("s_waitcnt vmcnt(0)")
            E(f"v_readfirstlane_b32 s48, v{T3}")
        E.label("L_fix")
        E("s_memrealtime s[50:51]")
        E("s_waitcnt lgkmcnt(0)")
        E("s_sub_u32 s50, s50, s48")
        E(f"s_cmp_lt_u32 s50, {fixt*100}")
        E("s_cbranch_scc1 L_fix")
    stamp(11)
    cs = [C0+i for i in range(4)]
    red_ror("v_add_f32", cs, (1, 2, 4, 8))
    red_rows("v_add_f32", cs, C0+8)
    rb2(cs[0], cs[1], cs[0], cs[1], T2); rb2(cs[2], cs[3], cs[2], cs[3], T3)
    for i in range(4): E(f"v_mul_f32 v{cs[i]}, v{cs[i]}, v{GBF+i}")
    rb2(cs[0], cs[1], cs[0], cs[1], T2); rb2(cs[2], cs[3], cs[2], cs[3], T3)
    for i in range(4): E(f"v_add_f32 v{cs[i]}, v{cs[i]}, v{X2F+i}")
    E(f"v_cvt_pk_bf16_f32 v{C0}, v{cs[0]}, v{cs[1]}")
    E(f"v_cvt_pk_bf16_f32 v{C0+1}, v{cs[2]}, v{cs[3]}")
    if touch: E.touch_end("L_tbret")
    E("s_mov_b64 exec, 1")
    E(f"buffer_store_dwordx2 v[{C0}:{C0+1}], v6, {rOUT}, {sT0} offen")
    E(f"s_cmp_lg_u32 {sU}, 0")
    E("s_cbranch_scc1 L_fin")
    E(f"buffer_store_dword v7, v6, {rWS}, 0 offen sc1")
    E.label("L_fin")
    if stamps:
        stamp(12)
        E("s_mov_b64 exec, 1")
        E("s_waitcnt lgkmcnt(0)")
        E(f"s_lshl_b32 {sT0}, s2, 3")
        E(f"s_add_u32 {sT0}, {sT0}, {sW}")
        E(f"s_lshl_b32 {sT0}, {sT0}, 7")
        E(f"s_add_u32 {sT0}, {sT0}, {WS_STAMP}")
        if 1:
            E("s_sleep 127"); E("s_sleep 127"); E("s_sleep 127")
        E("v_mov_b32 v6, 0")
        for i in range(13):
            E(f"v_mov_b32 v8, s{52+2*i}")
            E(f"v_mov_b32 v9, s{53+2*i}")
            E(f"buffer_store_dwordx2 v[8:9], v6, {rWS}, {sT0} offen offset:{8*i}")
            E("s_nop 1")
        E(f"v_mov_b32 v8, {sSPIN}")
        E(f"v_mov_b32 v9, 0")
        E(f"buffer_store_dwordx2 v[8:9], v6, {rWS}, {sT0} offen offset:{8*13}")
    E.label("L_end")
    E("s_endpgm")
    if aslist == 2:
        E.raw(".globl warm_kernel\n.p2align 8\n.type warm_kernel,@function\nwarm_kernel:\n    s_endpgm")
        E.raw('.section .rodata,"a"\n.p2align 6\n.amdhsa_kernel warm_kernel\n  .amdhsa_next_free_vgpr 8\n  .amdhsa_next_free_sgpr 16\n  .amdhsa_accum_offset 8\n  .amdhsa_group_segment_fixed_size 0\n  .amdhsa_kernarg_size 104\n  .amdhsa_user_sgpr_count 2\n  .amdhsa_user_sgpr_kernarg_segment_ptr 1\n  .amdhsa_system_sgpr_workgroup_id_x 1\n.end_amdhsa_kernel')
    E.raw(f'.section .rodata,"a"\n.p2align 6\n.amdhsa_kernel {KN}')
    E.raw("  .amdhsa_next_free_vgpr 256\n  .amdhsa_next_free_sgpr 102\n  .amdhsa_accum_offset 256\n  .amdhsa_group_segment_fixed_size 0\n  .amdhsa_kernarg_size 104\n  .amdhsa_user_sgpr_count 2\n  .amdhsa_user_sgpr_kernarg_segment_ptr 1\n  .amdhsa_system_sgpr_workgroup_id_x 1\n  .amdhsa_float_denorm_mode_32 3\n.end_amdhsa_kernel")
    return E.text()

if __name__ == "__main__":
    import argparse, inspect
    ap = argparse.ArgumentParser()
    ap.add_argument("out")
    for n, p in inspect.signature(gen).parameters.items():
        if n == "stamps": ap.add_argument("--stamps", default="")
        else: ap.add_argument("--"+n, type=type(p.default), default=p.default)
    a = vars(ap.parse_args())
    out = a.pop("out")
    a["stamps"] = a["stamps"].split(",") if a["stamps"] else None
    open(out, "w").write(gen(**a))
```

```python
import sys, math, struct
from emit import Emit
KN = "adaLN_cond__gqa_block_cached__dense_activation_relu__decode_kernel"

WS_EPOCH = 0x0
WS_MODG  = 0x1000
WS_CLR   = 0x10000
WS_STAT  = 0x8000
WS_AO    = 0x100000
WS_PART  = 0x20000
WS_MO    = 0x60000
WS_EP    = 0xC0000
WS_QG    = WS_MODG + 48*256
WS_STAMP = 0x8000000
L_STATS = 0
L_CNT   = 256
L_FAC   = 384
L_WB    = 512
L_WE    = 1536
L_X2    = 2048
L_RED   = 4096
L_ACT   = 6144
L_Q     = 7168
L_ORED  = 8192
L_MOD   = 24576
L_WM    = 32768
L_WT    = 65536

DPPM = "row_mask:0xf bank_mask:0xf"
def f32bits(x): return struct.unpack("<I", struct.pack("<f", x))[0]

def gen(depth=6, kvflags="nt", wflags="", stamps=None, swave=0, tpwo=4, mlearly=0, slp=2, slpa=0, slpb=0, codepf=2, dbg="",
        k1=2, k2=3, slpq=4, prio=3, fixt=0, jml=24, fast=1, rate=1, cdelay=-1, ewt=1, rot=0, qat=12, depth0=9, young="", depthe=0, emask=255, swapq=1, lead=0, touch=0, w1e=0, w1pf=2, rep=0, w1dl=0, buddy=0, wopf=0, wopos=3, fixw=-1, aslist=0, fpos=-1, fwave=1, dyn=0, pfirst=1, tlb=0, eflags="nt", oflags="nt", quick=1, epe=1, outpf=0, outf="", depthv=0, dvat=18, p0=3, dynt=7, wmx=3, dburst=0, wb=0):
    E = Emit()
    L_WO = L_WT + 65536
    LDS_BYTES = max(L_WT + 65536, L_WO + 32768)
    sW, sG, sJ, sTAG, sSPIN = "s3", "s4", "s5", "s6", "s7"
    rK, rV, rWS, rWT, rW2, rX, rC, rOUT = [f"s[{i}:{i+3}]" for i in range(8, 40, 4)]
    rWO = "s[84:87]"
    sSELLO, sSELHI, sC, sBASE, sM, sT0, sT1, sT2 = "s78", "s79", "s80", "s81", "s82", "s83", "s100", "s101"
    sA, sPL, sPUB, sLAST, sU, sU16, sT3, sT4, sEP = "s40", "s41", "s42", "s95", "s98", "s99", "s96", "s97", "s93"
    sPP, sGA0, sGA1, sLD, sML, sXCC, sAOP, sSK = "s43", "s44", "s45", "s46", "s47", "s91", "s92", "s90"
    sJW = "s94" if dyn else sJ
    vLANE, vK, vV = "v1", "v2", "v3"
    Q0 = 16
    T0, T1, T2, T3 = 28, 29, 30, 31
    S = [32 + 32*i for i in range(7)]
    def stamp(i):
        if stamps and str(i) in stamps:
            k = stamps.index(str(i))
            E(f"s_memrealtime s[{52+2*k}:{53+2*k}]")
    vm = []
    light = [False]
    def setlight():
        if depthe:
            if emask == 0: E(f"s_cmp_ge_u32 {sJ}, 16")
            else:
                E(f"s_lshr_b32 {sT0}, {emask}, {sW}")
                E(f"s_andn2_b32 {sT0}, {sT0}, {sG}")
                E(f"s_bitcmp1_b32 {sT0}, 0")
            E(f"s_cselect_b64 vcc, 1, 0")
    def vmop(tag, text):
        E(text); vm.append(tag)
    def vmwait(tag):
        idx = [i for i, t in enumerate(vm) if t == tag][-1]
        E(f"s_waitcnt vmcnt({min(len(vm) - 1 - idx, 62)})")
    def spin_check(lbl_loop):
        E(f"s_sub_u32 {sSPIN}, {sSPIN}, 1")
        E(f"s_cbranch_scc0 {lbl_loop}")
        E(f"s_branch L_end")
    PRI = {1: {("k",0):3, ("k",2):2, ("v",0):1, ("v",2):0}, 2: {("k",0):3, ("v",0):2, ("v",2):1}, 3: {("k",0):3, ("k",3):2, ("v",2):1}, 0: {},
           4: {("k",0):1, ("k",1):1, ("k",2):1, ("k",3):1, ("v",0):1, ("v",1):1, ("v",2):1, ("v",3):1}}[prio]
    def load_tile(kind, T, slot, dep, tag, mid=None, lo=0, hi=8, setp=True):
        srd = rK if kind == "k" else rV
        va = vK if (kind == "k" and "k" not in dbg) else vV
        if setp and lo == 0 and (kind, T) in PRI:
            E(f"s_setprio {PRI[(kind, T)]}")
        if setp and lo == 0 and f"{kind}{T}" in young.split(","):
            u = len(E.L)
            base = [v for k, v in PRI.items() if (k[0] == "k" and kind == "v") or (k[0] == kind and k[1] <= T)]
            b = min(base) if base else 1
            E(f"s_cmp_lt_u32 {sW}, 4")
            E(f"s_cbranch_scc1 L_yp{u}")
            E(f"s_setprio {min(3, b+1)}")
            E.raw(f"L_yp{u}:")
        for i in range(lo, hi):
            if i == 4 and mid: mid()
            if rot:
                E(f"s_xor_b32 {sLD}, {sBASE}, {T*0x200000 + i*1024}")
            elif i == 0 or i == 4 or hi - lo == 1: E(f"s_add_u32 {sLD}, {sBASE}, {T*0x200000 + (i//4)*4096}")
            if depthe and light[0] and dep and len(vm) >= depthe:
                u = len(E.L)
                E.raw(f"    s_cbranch_vccz L_lt{u}"); E._push(None)
                E(f"s_waitcnt vmcnt({depthe-1})")
                E.raw(f"L_lt{u}:")
            if dep and len(vm) >= dep: E(f"s_waitcnt vmcnt({dep-1})")
            r = S[slot] + i*4
            vmop(tag, f"buffer_load_dwordx4 v[{r}:{r+3}], {va}, {srd}, {sLD} offen offset:{0 if rot else (i%4)*1024} {kvflags}")
    def red_rows(op, regs, tmp):
        for sw in ("v_permlane16_swap_b32", "v_permlane32_swap_b32"):
            for i, r in enumerate(regs): E(f"v_mov_b32 v{tmp+i}, v{r}")
            for i, r in enumerate(regs): E(f"{sw} v{r}, v{tmp+i}")
            for i, r in enumerate(regs): E(f"{op} v{r}, v{r}, v{tmp+i}")
    def red_ror(op, regs, rors):
        for k in rors:
            for r in regs: E(f"{op}_dpp v{r}, v{r}, v{r} row_ror:{k} {DPPM}")
    def tred4(a0, a1, a2, a3):
        E(f"v_permlane16_swap_b32 v{a0}, v{a1}")
        E(f"v_permlane16_swap_b32 v{a2}, v{a3}")
        E(f"v_add_f32 v{a0}, v{a0}, v{a1}")
        E(f"v_add_f32 v{a2}, v{a2}, v{a3}")
        E(f"v_permlane32_swap_b32 v{a0}, v{a2}")
        E(f"v_add_f32 v{a0}, v{a0}, v{a2}")
    def rb1(dst, src):
        E(f"v_cvt_pk_bf16_f32 v{dst}, v{src}, v{src}")
        E(f"v_lshlrev_b32 v{dst}, 16, v{dst}")
    def rb2(d0, d1, s0, s1, t):
        E(f"v_cvt_pk_bf16_f32 v{t}, v{s0}, v{s1}")
        E(f"v_lshlrev_b32 v{d0}, 16, v{t}")
        E(f"v_and_b32 v{d1}, 0xffff0000, v{t}")
    def tagcheck(regs, t):
        regs = [f"v{r}" for r in regs] + [sTAG]
        if len(regs) % 2 == 0: regs.insert(0, regs[0])
        E(f"v_max3_u32 v{t}, {regs[0]}, {regs[1]}, {regs[2]}")
        E(f"v_min3_u32 v{t+1}, {regs[0]}, {regs[1]}, {regs[2]}")
        for i in range(3, len(regs), 2):
            E(f"v_max3_u32 v{t}, v{t}, {regs[i]}, {regs[i+1]}")
            E(f"v_min3_u32 v{t+1}, v{t+1}, {regs[i]}, {regs[i+1]}")
        E(f"v_cmp_ne_u32 vcc, v{t}, v{t+1}")
    def maxall(regs, t):
        regs = list(regs)
        E(f"v_max3_u32 v{t}, v{regs[0]}, v{regs[1]}, v{regs[2]}")
        i = 3
        while i + 1 < len(regs):
            E(f"v_max3_u32 v{t}, v{t}, v{regs[i]}, v{regs[i+1]}"); i += 2
        if i < len(regs): E(f"v_max_u32 v{t}, v{t}, v{regs[i]}")
    def pollloop(name, load1, groups, tmp, sl):
        n = len(groups)
        E.label(f"L_poll{name}")
        E(f"s_waitcnt vmcnt(0)")
        for i, g in enumerate(groups): maxall(g, tmp+i)
        if n == 2: E(f"v_max_u32 v6, v{tmp}, v{tmp+1}")
        else: maxall(range(tmp, tmp+n), 6)
        E(f"v_cmp_eq_u32 vcc, -1, v6")
        E(f"s_cbranch_vccz L_got{name}")
        if sl: E(f"s_sleep {sl}")
        for i in range(n):
            E(f"v_cmp_eq_u32 vcc, -1, v{tmp+i}")
            E(f"s_mov_b64 exec, vcc")
            load1(i)
            E("s_mov_b64 exec, -1")
        spin_check(f"L_poll{name}")
        E.label(f"L_got{name}")
    def quickpoll(name, load1, firsts, back):
        n = len(firsts)
        mk = [f"s[{8+2*i}:{9+2*i}]" for i in range(n)]
        E.label(f"L_qp{name}")
        E("s_waitcnt vmcnt(0)")
        for i, r in enumerate(firsts): E(f"v_cmp_eq_u32 {mk[i]}, -1, v{r}")
        E(f"s_or_b64 vcc, {mk[0]}, {mk[1]}")
        for i in range(2, n): E(f"s_or_b64 vcc, vcc, {mk[i]}")
        E.raw(f"    s_cbranch_scc0 {back}"); E._push(None)
        for i in range(n):
            E(f"s_mov_b64 exec, {mk[i]}")
            load1(i)
        E("s_mov_b64 exec, -1")
        E(f"s_sub_u32 {sSPIN}, {sSPIN}, 1")
        E.raw(f"    s_cbranch_scc0 L_qp{name}"); E._push(None)
        E("s_branch L_end")
    def mktag():
        E("s_waitcnt lgkmcnt(0)")
        E(f"s_mul_i32 {sTAG}, {sEP}, 0x9E3779B1")
        E(f"s_add_u32 {sTAG}, {sTAG}, 0x7F4A7C15")
    def slice_dma(srd, rowb, soff, lds, n=2):
        if rowb & (rowb-1) == 0: E(f"v_lshl_add_u32 v{T2}, v{T0}, {rowb.bit_length()-1}, v{T1}")
        else:
            E(f"v_mul_u32_u24 v{T2}, {rowb}, v{T0}")
            E(f"v_add_u32 v{T2}, v{T2}, v{T1}")
        E(f"v_xor_b32 v{T3}, 64, v{T2}")
        E(f"s_mul_i32 {sT1}, {sW}, {8*n*rowb}")
        E(f"s_add_u32 {soff}, {soff}, {sT1}")
        E(f"s_mul_i32 {sT1}, {sW}, {1024*n}")
        E(f"s_add_u32 m0, {sT1}, {lds}")
        for i in range(n):
            E(f"buffer_load_dwordx4 v{T2 + i%2}, {srd}, {soff} offen {oflags} lds")
            if i < n-1:
                E(f"s_add_u32 {soff}, {soff}, {8*rowb}")
                E(f"s_add_u32 m0, m0, 1024")
    def part_rows(va, vt):
        E(f"v_lshrrev_b32 v{vt}, 4, {vLANE}")
        E(f"v_lshlrev_b32 v{va}, 13, v{vt}")
        E(f"v_and_b32 v{vt}, 15, {vLANE}")
        E(f"v_lshl_add_u32 v{va}, v{vt}, 8, v{va}")
        E(f"s_lshl_b32 {sT0}, {sG}, 15")
        E(f"s_lshr_b32 {sT1}, {sJ}, 4")
        E(f"s_lshl_b32 {sT1}, {sT1}, 12")
        E(f"s_add_u32 {sT0}, {sT0}, {sT1}")
        E(f"s_and_b32 {sT1}, {sJ}, 15")
        E(f"s_lshl_b32 {sT1}, {sT1}, 4")
        E(f"s_add_u32 {sT0}, {sT0}, {sT1}")
        E(f"s_add_u32 {sT0}, {sT0}, {WS_PART}")
    def slice_prep():
        E(f"v_lshrrev_b32 v{T0}, 3, {vLANE}")
        E(f"v_and_b32 v{T1}, 2, v{T0}")
        E(f"v_and_b32 v{T2}, 7, {vLANE}")
        E(f"v_xor_b32 v{T1}, v{T2}, v{T1}")
        E(f"v_lshlrev_b32 v{T1}, 4, v{T1}")

    hdr = []
    if aslist == 2: hdr.append(f"; @launch kernel=warm_kernel grid=(256,1,1) block=(64,1,1) lds=0")
    if aslist: hdr.append(f"; @launch kernel={KN} grid=(256,1,1) block=(512,1,1) lds={LDS_BYTES}")
    else: hdr.append(f"; @launch grid=(256,1,1) block=(512,1,1) lds={LDS_BYTES}")
    hdr.append('.amdgcn_target "amdgcn-amd-amdhsa--gfx950"\n.text')
    hdr.append(f".globl {KN}\n.p2align 8\n.type {KN},@function\n{KN}:")
    E.raw("\n".join(hdr))
    E("s_cmp_ge_u32 s2, 256")
    E("s_cbranch_scc1 L_end")
    if fixt or (stamps and "e" in stamps): E("s_memrealtime s[48:49]")
    E("s_load_dwordx2 s[8:9], s[0:1], 8")
    if codepf:
        if codepf < 32:
            E(f"s_cmp_ge_u32 s2, {8*codepf}" if pfirst else f"s_cmp_lt_u32 s2, {256-8*codepf}")
            E("s_cbranch_scc1 L_nopf")
        E("s_getpc_b64 s[88:89]")
        E.raw("L_pc:")
        E(f"v_lshlrev_b32 v6, 6, v0")
        E(f"v_min_u32 v6, L_end-L_pc, v6")
        E(f"v_mov_b32 v9, s89")
        E(f"v_add_co_u32 v8, vcc, s88, v6")
        E(f"v_addc_co_u32 v9, vcc, 0, v9, vcc")
        E(f"global_load_dword v24, v[8:9], off")
        E.label("L_nopf")
    E(f"s_and_b32 {sG}, s2, 7")
    E(f"s_lshr_b32 {sJ}, s2, 3")
    E(f"s_lshr_b32 {sA}, {sG}, 1")
    E(f"s_lshl_b32 {sT0}, {sJ}, 2")
    E(f"s_add_u32 {sA}, {sA}, {sT0}")
    if swapq:
        E(f"s_cmp_lt_u32 {sA}, 96")
        E(f"s_cselect_b32 {sT0}, {sA}, 255")
        E(f"s_add_u32 {sA}, {sA}, 96")
    else: E(f"s_add_u32 {sT0}, {sA}, 128")
    E(f"s_bitcmp1_b32 {sG}, 0")
    E(f"s_cselect_b32 {sA}, {sT0}, {sA}")
    if "a" in dbg: E(f"s_mov_b32 {sA}, 255")
    if "g" in dbg:
        E(f"s_sub_u32 {sT0}, {sA}, 32")
        E(f"s_cmp_lt_u32 {sT0}, 64")
        E(f"s_cselect_b32 {sA}, 255, {sA}")
    E(f"s_cmp_lt_u32 {sA}, 96")
    E(f"s_cselect_b32 {sT0}, 72, 24")
    E(f"s_load_dwordx2 s[20:21], s[0:1], {sT0}")
    E("s_load_dwordx16 s[52:67], s[0:1], 0")
    E("s_load_dwordx8 s[68:75], s[0:1], 64")
    E("s_load_dwordx2 s[76:77], s[0:1], 96")
    E(f"s_cselect_b32 {sT4}, 48, 64")
    E(f"s_cselect_b32 {sT3}, 0, 48")
    E(f"v_lshrrev_b32 v4, 6, v0")
    E(f"v_and_b32 {vLANE}, 63, v0")
    E(f"v_readfirstlane_b32 {sW}, v4")
    slice_prep()
    E(f"s_lshl_b32 {sT4}, {sT4}, 7")
    E(f"s_lshl_b32 s22, {sT4}, 9")
    E(f"s_cmp_lt_u32 {sA}, 224")
    E(f"s_cselect_b32 s22, s22, 0")
    E(f"s_mov_b32 s23, 0x20000")
    E(f"s_lshr_b32 {sT0}, {sA}, 1")
    E(f"s_sub_u32 {sT3}, {sT0}, {sT3}")
    E(f"s_lshl_b32 {sT3}, {sT3}, 7")
    E(f"s_and_b32 {sT2}, {sA}, 1")
    E(f"s_lshl_b32 {sT0}, {sT2}, 3")
    E(f"s_add_u32 {sT0}, {sT0}, {sW}")
    E(f"s_lshl_b32 {sT0}, {sT0}, 5")
    E(f"s_mul_i32 {sT0}, {sT0}, {sT4}")
    E(f"s_add_u32 {sT3}, {sT3}, {sT0}")
    E(f"v_mul_u32_u24 v{T2}, {sT4}, v{T0}")
    E(f"v_add_u32 v{T2}, v{T2}, v{T1}")
    E(f"v_xor_b32 v{T3}, 64, v{T2}")
    E(f"s_lshl_b32 {sT4}, {sT4}, 3")
    E(f"s_lshl_b32 {sT0}, {sW}, 12")
    E(f"s_add_u32 m0, {sT0}, {L_WM}")
    E(f"v_and_b32 v4, 12, {vLANE}")
    E(f"v_lshlrev_b32 {vK}, 6, v4")
    E(f"v_lshrrev_b32 v4, 4, {vLANE}")
    E(f"v_lshl_add_u32 {vK}, v4, 6, {vK}")
    E(f"v_and_b32 v4, 3, {vLANE}")
    E(f"v_lshl_add_u32 {vK}, v4, 4, {vK}")
    E(f"s_lshl_b32 {sBASE}, {sG}, 23")
    E(f"s_lshl_b32 {sT0}, {sJ}, 3")
    E(f"s_add_u32 {sT0}, {sT0}, {sW}")
    E(f"s_lshl_b32 {sT0}, {sT0}, 13")
    E(f"s_add_u32 {sBASE}, {sBASE}, {sT0}")
    E(f"s_mov_b32 s10, 0x4000000")
    E(f"s_mov_b32 s11, 0x20000")
    E(f"v_mov_b32 v5, {L_CNT}")
    for r in range(20, 24): E(f"v_mov_b32 v{r}, 0")
    E(f"ds_write_b128 v5, v[20:23]")
    E(f"ds_write_b64 v5, v[20:21] offset:16")
    E("s_setprio 3")
    E("s_waitcnt lgkmcnt(0)")
    if "4" in dbg:
        E(f"s_cmp_lg_u32 {sW}, 7")
        E("s_cbranch_scc1 L_nb")
        E("v_mov_b32 v6, s2")
        E("v_mov_b32 v7, 0x80")
        E("s_mov_b64 exec, 1")
        E("global_store_byte v6, v7, s[74:75] sc1")
        E("s_mov_b64 exec, -1")
        E.label("L_nb")
    for i in range(4):
        E(f"buffer_load_dwordx4 v{T2 + i%2}, {rWT}, {sT3} offen {eflags} lds")
        if i < 3:
            E(f"s_add_u32 m0, m0, 1024")
            E(f"s_add_u32 {sT3}, {sT3}, {sT4}")
    if "b" not in dbg: E("s_barrier")
    def srd_setup():
        E(f"s_load_dword {sEP}, s[76:77], {WS_EPOCH}")
        E(f"v_lshlrev_b32 {vV}, 4, {vLANE}")
        for d, sr in ((28, 52), (32, 68), (16, 76), (12, 56), (24, 66), (36, 72), (84, 60), (20, 64)):
            E(f"s_mov_b64 s[{d}:{d+1}], s[{sr}:{sr+1}]")
        for d, z in ((28, 1024), (32, 1024), (12, 0x4000000), (16, 0x10000000), (20, 512*1792*2), (24, 512*1792*2), (36, 1024)):
            E(f"s_mov_b32 s{d+2}, {z:#x}")
        for d in (28, 32, 12, 16, 24, 36): E(f"s_mov_b32 s{d+3}, 0x20000")
        stamp(0)
        if stamps and "e" in stamps: E(f"s_mov_b64 s[{52+2*stamps.index('e')}:{53+2*stamps.index('e')}], s[48:49]")
    def late_setup():
        E(f"s_mov_b32 {sSELLO}, 0x05040100")
        E(f"s_mov_b32 {sSELHI}, 0x07060302")
        E(f"s_mov_b32 {sC}, {f32bits(math.log2(math.e)):#x}")
        E(f"s_mov_b32 {sSPIN}, 0x40000")
        E(f"s_getreg_b32 {sXCC}, hwreg(HW_REG_XCC_ID)")
        E(f"s_sub_u32 {sT0}, {sJ}, {jml}")
        E(f"s_cmp_lt_u32 {sT0}, 7")
        E(f"s_cselect_b32 {sML}, 1, 0")
        E(f"s_mul_i32 {sM}, {sG}, 7")
        E(f"s_add_u32 {sM}, {sM}, {sT0}")
        E(f"s_lshl_b32 {sPUB}, {sM}, 11")
        E(f"s_add_u32 {sPUB}, {sPUB}, {WS_MO}")
        E(f"s_cmp_lt_u32 {sJ}, 16")
        E(f"s_cselect_b32 s86, {512*4096*2}, 0")
        E(f"s_mov_b32 s87, 0x20000")
        E(f"s_lshl_b32 {sAOP}, {sG}, 12")
        E(f"s_lshl_b32 {sT0}, {sJ}, 8")
        E(f"s_add_u32 {sAOP}, {sAOP}, {sT0}")
        E(f"s_add_u32 {sAOP}, {sAOP}, {WS_AO}")
    E(f"s_cmp_lt_u32 {sA}, 224")
    E(f"s_cselect_b32 {sT0}, {sW}, 1")
    E(f"s_cmp_eq_u32 {sT0}, 0")
    E("s_cbranch_scc1 L_aux")
    NPRE = 4
    if tlb:
        E(f"s_cmp_lg_u32 {sW}, 1")
        E("s_cbranch_scc1 L_notlb")
        if tlb < 32:
            E(f"s_cmp_ge_u32 {sJ}, {tlb}")
            E("s_cbranch_scc1 L_notlb")
        E(f"v_lshlrev_b32 v6, 21, {vLANE}")
        E(f"s_mov_b64 s[12:13], s[56:57]")
        E(f"s_mov_b32 s14, 0x4000000")
        E(f"s_mov_b32 s15, 0x20000")
        E("s_mov_b64 exec, 15")
        E(f"buffer_load_dword v25, v6, {rK}, {sBASE} offen nt")
        E(f"buffer_load_dword v25, v6, {rV}, {sBASE} offen nt")
        E("s_mov_b64 exec, 1")
        E(f"s_lshl_b32 {sT0}, {sG}, 19")
        E(f"v_mov_b32 v7, {sT0}")
        for pr in (60, 64, 66, 72, 76):
            E(f"global_load_dword v25, {'v7' if pr == 60 else 'v6'}, s[{pr}:{pr+1}]")
        E("s_mov_b64 exec, -1")
        E.label("L_notlb")
    load_tile("k", 0, 0, 0, "K0", hi=NPRE, setp=False)
    srd_setup()
    late_setup()
    E(f"v_mov_b32 v19, 1")
    E("s_mov_b64 exec, 1")
    E(f"s_waitcnt vmcnt({NPRE})")
    E(f"ds_add_u32 v5, v19 offset:4")
    E("s_mov_b64 exec, -1")
    E("s_branch L_stream")

    def flag(n):
        E(f"s_lshl_b32 {sT0}, {sJ}, 7")
        E(f"s_lshl_b32 {sT1}, {sG}, 12")
        E(f"s_add_u32 {sT0}, {sT0}, {sT1}")
        E(f"s_add_u32 {sT0}, {sT0}, {WS_CLR}")
        E(f"v_mov_b32 v{T0}, {sXCC}")
        E(f"v_mov_b32 v{T1}, {sTAG}")
        E(f"v_mov_b32 v{T2}, {sXCC}")
        E(f"v_mov_b32 v{T3}, {sTAG}")
        E("s_mov_b64 exec, 0xff")
        E(f"s_waitcnt vmcnt({n})")
        E(f"buffer_store_dwordx4 v[{T0}:{T3}], {vV}, {rWS}, {sT0} offen {'' if '5' in dbg else 'sc1'}")
        E("s_mov_b64 exec, -1")
    def w1_dma():
        E(f"v_lshrrev_b32 v{T0}, 2, {vLANE}")
        E(f"v_mul_u32_u24 v{T0}, 3584, v{T0}")
        E(f"v_and_b32 v{T1}, 3, {vLANE}")
        E(f"v_lshl_add_u32 v{T0}, v{T1}, 4, v{T0}")
        E(f"s_mul_i32 {sT0}, {sW}, {16*3584}")
        E(f"s_lshl_b32 {sT1}, {sM}, 6")
        E(f"s_add_u32 {sT0}, {sT0}, {sT1}")
        E(f"s_lshl_b32 {sT3}, {sW}, 13")
        E(f"s_add_u32 m0, {sT3}, {L_WT}")
        for i in range(4):
            E(f"buffer_load_dwordx4 v{T0}, {rWT}, {sT0} offen {wflags} lds")
            if i < 3:
                E(f"s_add_u32 {sT0}, {sT0}, {128*3584}")
                E(f"s_add_u32 m0, m0, 1024")
    def w2_dma():
        E(f"v_lshrrev_b32 v{T0}, 3, {vLANE}")
        E(f"v_and_b32 v{T1}, 7, {vLANE}")
        E(f"v_lshlrev_b32 v{T1}, 4, v{T1}")
        E(f"v_lshl_add_u32 v{T0}, v{T0}, 10, v{T1}")
        E(f"s_lshl_b32 {sT0}, {sM}, 15")
        E(f"s_lshl_b32 {sT1}, {sW}, 7")
        E(f"s_add_u32 {sT0}, {sT0}, {sT1}")
        E(f"s_lshl_b32 {sT3}, {sW}, 13")
        E(f"s_add_u32 m0, {sT3}, {L_WT + 4096}")
        for i in range(4):
            E(f"buffer_load_dwordx4 v{T0}, {rW2}, {sT0} offen {oflags} lds")
            if i < 3:
                E(f"s_add_u32 {sT0}, {sT0}, 8192")
                E(f"s_add_u32 m0, m0, 1024")
    def w1_pref(skip):
        E(f"s_sub_u32 {sT3}, {sJW}, 16")
        E(f"s_cmp_ge_u32 {sT3}, 8")
        E(f"s_cbranch_scc1 {skip}")
        E(f"v_lshrrev_b32 v{T0}, 5, {vLANE}")
        E(f"v_mul_u32_u24 v{T0}, 3584, v{T0}")
        E(f"v_and_b32 v{T1}, 31, {vLANE}")
        E(f"v_lshl_add_u32 v{T0}, v{T1}, 4, v{T0}")
        E(f"s_lshl_b32 {sT3}, {sT3}, 3")
        E(f"s_add_u32 {sT3}, {sT3}, {sW}")
        E(f"s_mul_i32 {sT0}, {sT3}, {8*3584}")
        E(f"s_mul_i32 {sT1}, {sG}, 448")
        E(f"s_and_b32 {sT1}, {sT1}, 0xffffff80")
        E(f"s_add_u32 {sT0}, {sT0}, {sT1}")
        E(f"s_mov_b32 m0, {L_WO}")
        for i in range(4):
            E(f"buffer_load_dwordx4 v{T0}, {rWT}, {sT0} offen lds")
            if i < 3: E(f"s_add_u32 {sT0}, {sT0}, {2*3584}")
    def wo_pref():
        u = len(E.L)
        E(f"s_cmp_lt_u32 {sJ}, 16")
        E(f"s_cbranch_scc1 L_wp{u}")
        E(f"v_lshrrev_b32 v{T0}, 3, {vLANE}")
        E(f"v_and_b32 v{T1}, 7, {vLANE}")
        E(f"v_lshlrev_b32 v{T1}, 4, v{T1}")
        E(f"v_lshl_add_u32 v{T0}, v{T0}, 10, v{T1}")
        E(f"s_lshl_b32 {sT0}, {sG}, 19")
        E(f"s_bfe_u32 {sT1}, {sJ}, 0x10003")
        E(f"s_lshl_b32 {sT1}, {sT1}, 18")
        E(f"s_add_u32 {sT0}, {sT0}, {sT1}")
        E(f"s_and_b32 {sT1}, {sJ}, 7")
        E(f"s_lshl_b32 {sT1}, {sT1}, 7")
        E(f"s_add_u32 {sT0}, {sT0}, {sT1}")
        E(f"s_lshl_b32 {sT1}, {sW}, 15")
        E(f"s_add_u32 {sT0}, {sT0}, {sT1}")
        E(f"s_mov_b32 s86, {512*4096*2}")
        E(f"s_mov_b32 m0, {L_WO}")
        for i in range(wopf):
            E(f"buffer_load_dwordx4 v{T0}, {rWO}, {sT0} offen lds")
            if i < wopf-1: E(f"s_add_u32 {sT0}, {sT0}, 8192")
        E(f"s_mov_b32 s86, 0")
        E.label(f"L_wp{u}")
    def tail_dma(pos):
        if tpwo != pos or "o" in dbg: return
        u = len(E.L)
        if mlearly:
            E(f"s_cmp_eq_u32 {sML}, 0")
            E(f"s_cbranch_scc1 L_ta{u}")
            (w1_dma if mlearly == 1 else w2_dma)()
            E(f"s_branch L_tb{u}")
            E.label(f"L_ta{u}")
        if w1pf == 1:
            w1_pref(f"L_tc{u}")
            E(f"s_branch L_tb{u}")
            E.label(f"L_tc{u}")
        slice_prep()
        E(f"s_lshl_b32 {sT0}, {sG}, 19")
        E(f"s_lshr_b32 {sT1}, {sJW}, 3")
        E(f"s_lshl_b32 {sT1}, {sT1}, 18")
        E(f"s_add_u32 {sT0}, {sT0}, {sT1}")
        E(f"s_and_b32 {sT1}, {sJW}, 7")
        E(f"s_lshl_b32 {sT1}, {sT1}, 7")
        E(f"s_add_u32 {sT0}, {sT0}, {sT1}")
        slice_dma(rWO, 1024, sT0, L_WO, 4)
        E.label(f"L_tb{u}")
        vm.extend(["WO"]*4)

    E.label("L_aux")
    srd_setup()
    CR = 8; XQ = 12; TRA = 16; XF = 20
    G6 = S[6]; AD = S[6] + 16
    E(f"v_and_b32 v4, 31, {vLANE}")
    E(f"v_lshlrev_b32 v4, 4, v4")
    E(f"v_lshlrev_b32 v6, 2, {vLANE}")
    E(f"s_lshl_b32 {sT0}, {sT2}, 9")
    E(f"s_cmp_ge_u32 {sA}, 96")
    E("s_cbranch_scc1 L_ax")
    E(f"buffer_load_dwordx4 v[{CR}:{CR+3}], v4, {rC}, {sT0} offen")
    E("s_branch L_ay")
    E.label("L_ax")
    E(f"buffer_load_dwordx4 v[{CR}:{CR+3}], {vV}, {rX}, 0 offen")
    E(f"buffer_load_dword v{XQ}, v6, {rX}, {sT0} offen")
    E(f"buffer_load_dword v{XQ+1}, v6, {rX}, {sT0} offen offset:256")
    E.label("L_ay")
    late_setup()

    E(f"v_lshrrev_b32 v{T0}, 4, {vLANE}")
    E(f"v_bfe_u32 v{T1}, {vLANE}, 2, 2")
    E(f"v_lshl_add_u32 v{T2}, v{T0}, 3, v{T1}")
    E(f"v_lshlrev_b32 v{T2}, 7, v{T2}")
    E(f"v_and_b32 v{T3}, 3, {vLANE}")
    E(f"v_lshl_add_u32 v{T2}, v{T3}, 3, v{T2}")
    E(f"v_bfe_u32 v{T1}, {vLANE}, 3, 2")
    E(f"v_lshl_add_u32 v{TRA}, v{T1}, 5, v{T2}")
    for nt in range(1, 4): E(f"v_xor_b32 v{TRA+nt}, {nt*32}, v{TRA}")
    vAR = 7
    E(f"v_lshlrev_b32 v{vAR}, 4, v{T0}")
    E("s_waitcnt vmcnt(0)")
    mktag()
    stamp("a0")
    for p in range(4):
        E(f"v_lshlrev_b32 v{XF+2*p}, 16, v{CR+p}")
        E(f"v_and_b32 v{XF+2*p+1}, 0xffff0000, v{CR+p}")
    E(f"s_cmp_ge_u32 {sA}, 96")
    E("s_cbranch_scc1 L_auxq")
    E(f"s_mov_b32 {sT0}, {f32bits(-math.log2(math.e)):#x}")
    for i in range(8): E(f"v_mul_f32 v{G6+i}, {sT0}, v{XF+i}")
    for i in range(8): E(f"v_exp_f32 v{G6+i}, v{G6+i}")
    for i in range(8): E(f"v_add_f32 v{G6+i}, 1.0, v{G6+i}")
    for i in range(8): E(f"v_rcp_f32 v{G6+i}, v{G6+i}")
    for i in range(8): E(f"v_mul_f32 v{XF+i}, v{XF+i}, v{G6+i}")
    for p in range(4): E(f"v_cvt_pk_bf16_f32 v{CR+p}, v{XF+2*p}, v{XF+2*p+1}")
    E(f"ds_write_b128 v4, v[{CR}:{CR+3}] offset:{L_ACT}")
    E("s_branch L_gemv")
    E.label("L_auxq")
    vm[:] = ["x"]*64
    for T in range(k1): load_tile("k", T, T, dburst, f"K{T}", setp=False)
    m, v, t = 8, 9, 10
    vals = list(range(XF, XF+8))
    E(f"v_add_f32 v{m}, v{vals[0]}, v{vals[1]}")
    for r in vals[2:]: E(f"v_add_f32 v{m}, v{m}, v{r}")
    red_ror("v_add_f32", [m], (1, 2, 4, 8)); red_rows("v_add_f32", [m], t)
    E(f"v_mul_f32 v{m}, {f32bits(1.0/512):#x}, v{m}")
    for i, r in enumerate(vals):
        E(f"v_sub_f32 v{t}, v{r}, v{m}")
        E(f"v_mul_f32 v{v}, v{t}, v{t}" if i == 0 else f"v_fmac_f32 v{v}, v{t}, v{t}")
    red_ror("v_add_f32", [v], (1, 2, 4, 8)); red_rows("v_add_f32", [v], t)
    E(f"v_mul_f32 v{v}, {f32bits(1.0/512):#x}, v{v}")
    rb2(m, v, m, v, t)
    E(f"v_add_f32 v{v}, {f32bits(1e-5):#x}, v{v}")
    rb1(v, v)
    E(f"v_sqrt_f32 v{v}, v{v}")
    rb1(v, v)
    E(f"v_rcp_f32 v{v}, v{v}")
    for u in range(2):
        n0, n1 = XF+2*u, XF+2*u+1
        E(f"v_lshlrev_b32 v{n0}, 16, v{XQ+u}")
        E(f"v_and_b32 v{n1}, 0xffff0000, v{XQ+u}")
        E(f"v_sub_f32 v{n0}, v{n0}, v{m}")
        E(f"v_sub_f32 v{n1}, v{n1}, v{m}")
        rb2(n0, n1, n0, n1, t)
        E(f"v_mul_f32 v{n0}, v{n0}, v{v}")
        E(f"v_mul_f32 v{n1}, v{n1}, v{v}")
        rb2(n0, n1, n0, n1, t)
    E(f"v_lshrrev_b32 v{T0}, 5, {vLANE}")
    E(f"v_lshl_add_u32 v4, v{T0}, 10, v4")
    E(f"s_lshl_b32 {sT4}, {sT2}, 12")
    E(f"s_add_u32 {sT4}, {sT4}, {WS_EP}")
    E(f"s_add_u32 {sT3}, {sT4}, 8192")
    E.label("L_pollmod")
    for arr in range(2):
        for u in range(2):
            for part in range(2):
                r = G6 + (arr*4 + u*2 + part)*4
                E(f"buffer_load_dwordx4 v[{r}:{r+3}], v4, {rWS}, {sT3 if arr else sT4} offen offset:{u*2048 + part*512} sc1")
    E("s_waitcnt vmcnt(0)")
    tagcheck([G6+1+2*i for i in range(16)], T0)
    E("s_cbranch_vccz L_gotmod")
    if slp: E(f"s_sleep {slp}")
    spin_check("L_pollmod")
    E.label("L_gotmod")
    stamp(2)
    for u in range(2):
        n0, n1 = XF+2*u, XF+2*u+1
        s0 = G6 + u*8; s1 = s0+2; c0 = G6 + 16 + u*8; c1 = c0+2
        for r in (s0, s1, c0, c1): E(f"v_add_f32 v{r}, v{r}, v{r+4}")
        rb2(s0, s1, s0, s1, t); rb2(c0, c1, c0, c1, t)
        E(f"v_add_f32 v{c0}, 1.0, v{c0}")
        E(f"v_add_f32 v{c1}, 1.0, v{c1}")
        rb2(c0, c1, c0, c1, t)
        E(f"v_mul_f32 v{n0}, v{n0}, v{c0}")
        E(f"v_mul_f32 v{n1}, v{n1}, v{c1}")
        rb2(n0, n1, n0, n1, t)
        E(f"v_add_f32 v{n0}, v{n0}, v{s0}")
        E(f"v_add_f32 v{n1}, v{n1}, v{s1}")
        E(f"v_cvt_pk_bf16_f32 v{n0}, v{n0}, v{n1}")
        E(f"ds_write_b32 v6, v{n0} offset:{L_ACT + u*256}")
    E.label("L_gemv")
    E(f"ds_read_b32 v{T0}, v5 offset:4")
    E("s_waitcnt lgkmcnt(0)")
    E(f"v_readfirstlane_b32 {sT1}, v{T0}")
    E(f"s_cmp_lg_u32 {sT1}, 7")
    E(f"s_cbranch_scc1 L_gemv")
    stamp("a2")
    if stamps: E("s_waitcnt lgkmcnt(0)")
    def g_reads(st):
        b = S[4] + (st % 3)*20
        E(f"ds_read_b128 v[{b}:{b+3}], v{vAR} offset:{L_ACT + st*64}")
        for nt in range(4):
            for q in range(2):
                r = b + 4 + nt*4 + q*2
                E(f"ds_read_b64_tr_b16 v[{r}:{r+1}], v{TRA+nt} offset:{L_WM + st*4096 + q*512}")
    g_reads(0); g_reads(1)
    E(f"s_lshl_b32 {sT4}, {sA}, 9")
    E(f"s_add_u32 {sT4}, {sT4}, {WS_EP}")
    E(f"v_lshlrev_b32 v4, 3, {vLANE}")
    for st in range(8):
        E(f"s_waitcnt lgkmcnt({9 if st < 7 else 0})")
        if st + 2 < 8: g_reads(st+2)
        b = S[4] + (st % 3)*20
        for nt in range(4):
            d = AD + 4*nt
            c = "0" if st == 0 else f"v[{d}:{d+3}]"
            E(f"v_mfma_f32_16x16x32_bf16 v[{d}:{d+3}], v[{b}:{b+3}], v[{b+4+4*nt}:{b+7+4*nt}], {c}")
    E(f"v_mov_b32 v9, {sTAG}")
    for nt in range(1, 4):
        E(f"v_mov_b32_dpp v{AD}, v{AD+4*nt} quad_perm:[0,1,2,3] row_mask:{1<<nt:#x} bank_mask:0xf")
    E(f"v_mov_b32 v8, v{AD}")
    E(f"s_cmp_lt_u32 {sA}, 32")
    E(f"s_cselect_b32 {sT2}, 1, {sT2}")
    E(f"s_cmp_eq_u32 {sT2}, 0")
    E("s_cbranch_scc1 L_owner")
    E(f"buffer_store_dwordx2 v[8:9], v4, {rWS}, {sT4} offen sc1")
    stamp(1)
    E(f"s_cmp_ge_u32 {sA}, 96")
    E(f"s_cbranch_scc1 L_cu{k1}")
    E("s_branch L_cu0")
    E.label("L_owner")
    E(f"s_cmp_ge_u32 {sA}, 96")
    E(f"s_cbranch_scc1 L_own2")

    vm[:] = ["x"]*64
    for T in range(k1): load_tile("k", T, T, dburst, f"K{T}", setp=False)
    E.label("L_own2")
    for T in range(k1, k2): load_tile("k", T, T, dburst, f"K{T}", setp=False)
    E.label("L_pollred")
    E(f"buffer_load_dwordx2 v[10:11], v4, {rWS}, {sT4} offen offset:512 sc1")
    E("s_waitcnt vmcnt(0)")
    E(f"v_cmp_ne_u32 vcc, {sTAG}, v11")
    E("s_cbranch_vccz L_gotred")
    spin_check("L_pollred")
    E.label("L_gotred")
    E(f"v_add_f32 v8, v8, v10")
    E(f"s_lshl_b32 {sT0}, {sA}, 7")
    E(f"s_add_u32 {sT0}, {sT0}, {WS_MODG}")
    E(f"v_mov_b32_dpp v10, v8 quad_perm:[1,1,3,3] {DPPM}")
    E(f"v_cvt_pk_bf16_f32 v8, v8, v10")
    E(f"s_mov_b32 exec_lo, 0x55555555")
    E(f"s_mov_b32 exec_hi, 0x55555555")
    E(f"buffer_store_dwordx2 v[8:9], v6, {rWS}, {sT0} offen sc1")
    E(f"s_mov_b64 exec, -1")
    stamp(3)
    E(f"s_branch L_cu{k2}")
    vm[:] = ["x"]*depth0
    for T in range(4):
        E.label(f"L_cu{T}")
        if p0 != 3: E(f"s_setprio {p0}")
        if wmx and T >= wmx:
            E(f"s_cmp_lt_u32 {sA}, 96")
            E(f"s_cbranch_scc1 L_sk{T}")
        load_tile("k", T, T, depth0, f"K{T}", setp=False)
    E.label("L_cu4")
    assert tpwo != 2
    load_tile("v", 0, 4, depth0, "V0", setp=False)
    setlight()
    E("s_branch L_v1")

    vm[:] = ["K0"]*NPRE
    E.label("L_stream")
    setlight(); light[0] = True
    load_tile("k", 0, 0, depth, "K0", lo=NPRE)
    E(f"s_cmp_lg_u32 {sW}, {99 if 'l' in dbg else fwave}")
    E("s_cbranch_scc1 L_sk1")
    for r in range(20, 24): E(f"v_mov_b32 v{r}, -1")
    E(f"s_cmp_ge_u32 {sJ}, 16")
    E("s_cbranch_scc1 L_noclr2")
    if rep:
        E(f"v_lshrrev_b32 v18, 4, {vLANE}")
        E(f"v_lshlrev_b32 v18, 15, v18")
        E(f"v_and_b32 v19, 15, {vLANE}")
        E(f"v_lshl_add_u32 v18, v19, 4, v18")
        E(f"buffer_store_dwordx4 v[20:23], v18, {rWS}, {sAOP} offen sc1")
        E(f"s_add_u32 {sT0}, {sAOP}, {4*32768}")
        E(f"buffer_store_dwordx4 v[20:23], v18, {rWS}, {sT0} offen sc1")
    else:
        E("s_mov_b64 exec, 0xffff")
        if "1" not in dbg: E(f"buffer_store_dwordx4 v[20:23], {vV}, {rWS}, {sAOP} offen sc1")
        E("s_mov_b64 exec, -1")
    E.label("L_noclr2")
    E(f"s_cmp_eq_u32 {sML}, 0")
    E("s_cbranch_scc1 L_noclr0")
    for i in range(0 if "2" in dbg else 2):
        E(f"buffer_store_dwordx4 v[20:23], {vV}, {rWS}, {sPUB} offen offset:{1024*i} sc1")
    E.label("L_noclr0")
    if wb:
        sv = list(vm)
        load_tile("k", 1, 1, depth+wb, "K1")
        mktag()
        flag(8)
        load_tile("k", 2, 2, depth+wb, "K2")
        E("s_branch L_sk3")
        vm[:] = sv
    load_tile("k", 1, 1, depth, "K1", hi=4)
    mktag()
    if fpos < 0 and "3" not in dbg: flag(4)
    if fixw >= 0:
        E(f"s_cmp_lg_u32 s2, {fixw}")
        E("s_cbranch_scc1 L_nofw")
        E(f"v_mov_b32 v{T0}, s48")
        E(f"v_mov_b32 v{T2}, 0x800")
        E(f"buffer_store_dword v{T0}, v{T2}, {rWS}, 0 offen sc1")
        E.label("L_nofw")
    E("s_branch L_k1b")
    E.label("L_sk1")
    del vm[-4:]
    load_tile("k", 1, 1, depth, "K1", hi=4)
    mktag()
    E.label("L_k1b")
    load_tile("k", 1, 1, depth, "K1", lo=4)
    if w1e:
        E(f"s_cmp_ge_u32 {sA}, 224")
        E(f"s_cselect_b32 {sT0}, {sML}, 0")
        E(f"s_cmp_eq_u32 {sT0}, 0")
        E("s_cbranch_scc1 L_sk2")
        w1_dma()
    E.label("L_sk2")
    load_tile("k", 2, 2, depth, "K2")
    E.label("L_sk3")
    load_tile("k", 3, 3, depth, "K3")
    E.label("L_sk4")
    tail_dma(2)
    QP = 8
    def qloads():
        if "p" in dbg: return
        u = len(E.L)
        E(f"s_cmp_eq_u32 {sML}, 0")
        E(f"s_cbranch_scc1 L_nwf{u}")
        E(f"buffer_load_dwordx2 v[20:21], v17, {rWS}, 0 offen sc1")
        E(f"buffer_load_dwordx2 v[22:23], v17, {rWS}, 0 offen offset:1024 sc1")
        E.label(f"L_nwf{u}")
        E(f"buffer_load_dwordx4 v[{QP}:{QP+3}], v18, {rWS}, {sT2} offen sc1")
        E(f"buffer_load_dwordx4 v[{QP+4}:{QP+7}], v18, {rWS}, {sT2} offen offset:16 sc1")
        E(f"buffer_load_dwordx2 v[{T0}:{T1}], v19, {rWS}, 0 offen sc1")
    seq = [("v", 0, 4, i) for i in range(8)] + [("v", 1, 5, i) for i in range(8)] + [("v", 2, 6, i) for i in range(8)] + [("v", 3, 0, i) for i in range(8)]
    def issue(x): load_tile(x[0], x[1], x[2], (depthv if (depthv and x[1]*8+x[3] >= dvat) else depth), f"V{x[1]}", lo=x[3], hi=x[3]+1)
    for n_, x in enumerate(seq[:8]):
        if fpos == n_:
            E(f"s_cmp_lg_u32 {sW}, {fwave}")
            E("s_cbranch_scc1 L_nofl")
            flag(depth)
            E.label("L_nofl")
        issue(x)
    E.label("L_v1")
    if wopf and wopos == 2: wo_pref()
    for x in seq[8:qat-1]: issue(x)
    E(f"v_mov_b32 v4, 1")
    E("s_mov_b64 exec, 1")
    E(f"ds_add_rtn_u32 v4, v5, v4 offset:12")
    E("s_mov_b64 exec, -1")
    issue(seq[qat-1])
    E(f"s_cmp_eq_u32 {sML}, 0")
    E("s_cbranch_scc1 L_nomdma")
    E(f"s_lshl_b32 {sT0}, {sW}, 10")
    E(f"s_add_u32 m0, {sT0}, {L_MOD}")
    E(f"s_add_u32 {sT0}, {sT0}, {WS_MODG + 4096}")
    E(f"buffer_load_dwordx4 {vV}, {rWS}, {sT0} offen sc1 lds")
    E.label("L_nomdma")
    E(f"v_lshlrev_b32 v18, 1, {vK}")
    E(f"s_lshl_b32 {sT2}, {sG}, 11")
    E(f"s_add_u32 {sT2}, {sT2}, {WS_QG}")
    E(f"v_and_b32 v19, 31, {vLANE}")
    E(f"s_lshl_b32 {sT0}, {sG}, 12")
    E(f"s_add_u32 {sT0}, {sT0}, {WS_CLR}")
    E(f"v_lshl_add_u32 v19, v19, 7, {sT0}")
    E(f"v_mov_b32 v21, {sTAG}")
    E(f"v_mov_b32 v23, {sTAG}")
    E(f"v_lshrrev_b32 v17, 3, {vLANE}")
    E(f"v_lshlrev_b32 v17, 12, v17")
    E(f"v_and_b32 v16, 7, {vLANE}")
    E(f"v_lshl_add_u32 v17, v16, 7, v17")
    E(f"v_add_u32 v17, {WS_CLR}, v17")
    E("s_waitcnt lgkmcnt(0)")
    E(f"v_readfirstlane_b32 {sSK}, v4")
    E(f"s_cmp_lg_u32 {sSK}, 0")
    E("s_cbranch_scc1 L_noqp")
    if dyn == 1:
        E(f"s_load_dwordx2 s[32:33], s[0:1], 88")
        E(f"s_mov_b32 s34, 256")
        E(f"s_lshl_b32 {sT0}, {sG}, 5")
        E(f"s_xor_b32 {sT1}, {sML}, 1")
        E(f"v_mov_b32 v24, {sT1}")
        E(f"v_mov_b32 v25, 0")
        E("s_waitcnt lgkmcnt(0)")
        E("s_mov_b64 exec, 1")
        E(f"buffer_atomic_add v24, v25, {rC}, {sT0} offen sc0 sc1")
        E("s_mov_b64 exec, -1")
    qloads()
    E.label("L_noqp")
    if dyn == 2:
        E(f"s_cmp_lg_u32 {sSK}, {dynt}")
        E("s_cbranch_scc1 L_notk")
        E(f"s_load_dwordx2 s[32:33], s[0:1], 88")
        E(f"s_mov_b32 s34, 256")
        E(f"s_lshl_b32 {sT0}, {sG}, 5")
        E(f"s_xor_b32 {sT1}, {sML}, 1")
        E(f"v_mov_b32 v24, {sT1}")
        E(f"v_mov_b32 v25, 0")
        E("s_waitcnt lgkmcnt(0)")
        E("s_mov_b64 exec, 1")
        E(f"buffer_atomic_add v24, v25, {rC}, {sT0} offen sc0 sc1")
        E("s_mov_b64 exec, -1")
        E.label("L_notk")
    for x in seq[qat:18]: issue(x)
    nxt = seq[18:]
    stamp("q0")
    if dyn == 2:
        E(f"s_cmp_lg_u32 {sSK}, {dynt}")
        E("s_cbranch_scc1 L_notk2")
        E(f"s_lshl_b32 {sT0}, {sML}, 6")
        E(f"s_add_u32 {sT0}, {sT0}, 1")
        E(f"s_waitcnt vmcnt({18-qat})")
        E(f"v_add_u32 v24, {sT0}, v24")
        E("s_mov_b64 exec, 1")
        E(f"ds_write_b32 v5, v24 offset:20")
        E("s_mov_b64 exec, -1")
        E.label("L_notk2")
    E(f"s_cmp_lg_u32 {sSK}, 0")
    E("s_cbranch_scc1 L_waitq")
    E(f"s_waitcnt vmcnt({18-qat})")
    QT = [QP+1, QP+3, QP+5, QP+7, T1, 21, 23]
    E.label("L_checkq")
    tagcheck(QT, 6)
    E("s_branch L_gotq" if "q" in dbg else "s_cbranch_vccz L_gotq")
    if slpq: E(f"s_sleep {slpq}")
    qloads()
    E("s_waitcnt vmcnt(0)")
    spin_check("L_checkq")
    E.label("L_gotq")
    E(f"v_cmp_ne_u32 vcc, {sXCC}, v{T0}")
    for i in range(4): E(f"v_mov_b32 v{Q0+i}, v{QP+2*i}")
    E(f"ds_write_b128 {vV}, v[{Q0}:{Q0+3}] offset:{L_Q}")
    E(f"s_cmp_eq_u64 vcc, 0")
    E(f"s_cselect_b32 {sPL}, {2 if fast else 1}, 1")
    if dyn == 1:
        E(f"v_readfirstlane_b32 {sJW}, v24")
        E(f"s_lshl_b32 {sT0}, {sML}, 6")
        E(f"s_or_b32 {sJW}, {sJW}, {sT0}")
        E(f"s_lshl_b32 {sT0}, {sJW}, 8")
        E(f"s_or_b32 {sT0}, {sT0}, {sPL}")
        E(f"v_mov_b32 v4, {sT0}")
    else: E(f"v_mov_b32 v4, {sPL}")
    E("s_waitcnt lgkmcnt(0)")
    E(f"ds_write_b32 v5, v4 offset:16")
    def gstore(text):
        if "s" in dbg: return
        if "f" in dbg: E(text); return
        u = len(E.L)
        E(f"s_cmp_eq_u32 {sPL}, 2")
        E(f"s_cbranch_scc1 L_gs{u}")
        E(text + " sc1")
        E(f"s_branch L_gt{u}")
        E.raw(f"L_gs{u}:")
        E(text)
        E.raw(f"L_gt{u}:")
    part_rows(6, 7)
    for r in (T0, T1, T2, T3): E(f"v_mov_b32 v{r}, -1")
    gstore(f"buffer_store_dwordx4 v[{T0}:{T3}], v6, {rWS}, {sT0} offen")
    E("s_branch L_haveq")
    E.label("L_waitq")
    E(f"ds_read_b32 v4, v5 offset:16")
    E("s_waitcnt lgkmcnt(0)")
    E(f"v_readfirstlane_b32 {sPL}, v4")
    E(f"s_cmp_lg_u32 {sPL}, 0")
    E("s_cbranch_scc1 L_readq")
    E("s_sleep 1")
    spin_check("L_waitq")
    E.label("L_readq")
    if dyn == 1:
        E(f"s_lshr_b32 {sJW}, {sPL}, 8")
        E(f"s_and_b32 {sPL}, {sPL}, 0xff")
    E(f"ds_read_b128 v[{Q0}:{Q0+3}], {vV} offset:{L_Q}")
    vmwait("K3")
    E("s_waitcnt lgkmcnt(0)")
    E.label("L_haveq")
    def role_setup():
        E(f"s_cmp_lt_u32 {sJW}, 16")
        E(f"s_cselect_b32 s86, {512*4096*2}, 0")
        E(f"s_lshl_b32 {sAOP}, {sG}, 12")
        E(f"s_lshl_b32 {sT0}, {sJW}, 8")
        E(f"s_add_u32 {sAOP}, {sAOP}, {sT0}")
        E(f"s_add_u32 {sAOP}, {sAOP}, {WS_AO}")
    if dyn == 1: role_setup()
    setlight()
    stamp(4)
    nq = len(vm)
    def sc(T, i): return 20 + i if T == 0 else S[1] + 4*i + (T-1)
    SCR = [sc(T, i) for T in range(4) for i in range(8)]
    def s_tile(T):
        for i in range(8):
            r = S[T] + 4*i
            E(f"v_mfma_f32_16x16x32_bf16 v[{r}:{r+3}], v[{r}:{r+3}], v[{Q0}:{Q0+3}], 0")
        for c in range(4):
            for i in range(8):
                r = S[T] + 4*i; d = sc(T, i)
                if c == 0: E(f"v_mov_b32_dpp v{d}, v{r} quad_perm:[0,0,0,0] {DPPM}")
                else: E(f"v_add_f32_dpp v{d}, v{r+c}, v{d} quad_perm:[{c},{c},{c},{c}] {DPPM}")
    def s_round(T):
        rs = SCR[8*T:8*T+8]
        for i in range(0, 8, 2): rb2(rs[i], rs[i+1], rs[i], rs[i+1], T0 + i//2)
        for r in rs: E(f"v_mul_f32 v{r}, {sT1}, v{r}")
        for i in range(0, 8, 2): rb2(rs[i], rs[i+1], rs[i], rs[i+1], T0 + i//2)
    E(f"s_mov_b32 {sT1}, {f32bits(128.0**-0.5):#x}")
    def more(n, leave=0):
        for _ in range(n*rate):
            if len(nxt) <= leave: return
            issue(nxt.pop(0))
    for T in range(4):
        s_tile(T); more(1)
        s_round(T); more(1 if T < 2 else 0)
    stamp("c0")
    MX, LS = 6, 7
    E(f"v_max3_f32 v{MX}, v{SCR[0]}, v{SCR[1]}, v{SCR[2]}")
    for i in range(3, 31, 2): E(f"v_max3_f32 v{MX}, v{MX}, v{SCR[i]}, v{SCR[i+1]}")
    E(f"v_max_f32 v{MX}, v{MX}, v{SCR[31]}")
    red_rows("v_max_f32", [MX], T0)
    E(f"v_mul_f32 v{MX}, {sC}, v{MX}")
    more(1)
    for r in SCR: E(f"v_fma_f32 v{r}, v{r}, {sC}, -v{MX}")
    more(1)
    for r in SCR: E(f"v_exp_f32 v{r}, v{r}")
    more(1)
    E(f"v_add_f32 v{LS}, v{SCR[0]}, v{SCR[1]}")
    E(f"v_add_f32 v{T0}, v{SCR[2]}, v{SCR[3]}")
    for i in range(4, 32, 2):
        E(f"v_add_f32 v{LS}, v{LS}, v{SCR[i]}")
        E(f"v_add_f32 v{T0}, v{T0}, v{SCR[i+1]}")
    E(f"v_add_f32 v{LS}, v{LS}, v{T0}")
    red_rows("v_add_f32", [LS], T0)
    E(f"v_and_b32 v{T0}, 12, {vLANE}")
    E(f"v_lshlrev_b32 v{T0}, 1, v{T0}")
    E(f"s_lshl_b32 {sT0}, {sW}, 5")
    E(f"v_add_u32 v{T0}, {sT0}, v{T0}")
    E(f"ds_write_b64 v{T0}, v[{MX}:{LS}] offset:{L_STATS}")
    E(f"v_mov_b32 v{T2}, 1")
    E(f"s_waitcnt vmcnt({len(vm) - nq}) lgkmcnt(0)")
    E("s_mov_b64 exec, 1")
    E(f"ds_add_rtn_u32 v{T2}, v5, v{T2}")
    E("s_mov_b64 exec, -1")
    PR = [8, 12, 20, 24]
    for T in range(4):
        for i in range(4): E(f"v_cvt_pk_bf16_f32 v{PR[T]+i}, v{SCR[8*T+2*i]}, v{SCR[8*T+2*i+1]}")
    more(1)
    E("s_waitcnt lgkmcnt(0)")
    E(f"v_readfirstlane_b32 {sLAST}, v{T2}")
    X = S[1]
    E(f"s_cmp_lg_u32 {sLAST}, 7")
    E("s_cbranch_scc1 L_nostat")
    E(f"v_and_b32 v{T0}, 31, {vLANE}")
    E(f"v_lshlrev_b32 v{T1}, 3, v{T0}")
    E(f"ds_read_b64 v[6:7], v{T1} offset:{L_STATS}")
    E(f"v_and_b32 v{T1}, 3, v{T0}")
    E(f"v_and_b32 v{T0}, 28, v{T0}")
    E(f"v_lshl_add_u32 v{T0}, v{T1}, 5, v{T0}")
    E(f"v_mov_b32 v{T2}, {sJ}")
    E(f"v_lshlrev_b32 v{T1}, 9, v{T1}")
    E(f"v_lshl_add_u32 v{T1}, v{T2}, 4, v{T1}")
    E("s_waitcnt lgkmcnt(0)")
    E(f"v_mov_b32 v16, v6")
    red_ror("v_max_f32", [16], (4, 8))
    E(f"v_mov_b32 v17, v16")
    E(f"v_permlane16_swap_b32 v16, v17")
    E(f"v_max_f32 v16, v16, v17")
    E(f"v_sub_f32 v6, v6, v16")
    E(f"v_exp_f32 v6, v6")
    E(f"v_mul_f32 v18, v6, v7")
    E(f"ds_write_b32 v{T0}, v6 offset:{L_FAC}")
    red_ror("v_add_f32", [18], (4, 8))
    E(f"v_mov_b32 v17, v18")
    E(f"v_permlane16_swap_b32 v18, v17")
    E(f"v_add_f32 v18, v17, v18")
    E(f"v_mov_b32 v17, {sTAG}")
    E(f"v_mov_b32 v19, {sTAG}")
    E(f"s_lshl_b32 {sT0}, {sG}, 11")
    E(f"s_add_u32 {sT0}, {sT0}, {WS_STAT}")
    E("s_mov_b64 exec, 15")
    gstore(f"buffer_store_dwordx4 v[16:19], v{T1}, {rWS}, {sT0} offen")
    E("s_mov_b64 exec, -1")
    E.label("L_nostat")
    stamp("c1")
    vGQ, vN, vCOL, vGAA, vCH, vU16, vOW, vT8, vL4, vGATH, vRR, vRW, vFR, vSTA, vWBW, vWBR = [X+i for i in range(16)]
    TRB = X+16; GA = X+20; GB = X+24; SP = X+24; XT = X+30; vWER = X+31
    def wcalc():
        E(f"v_mov_b32 v{T0}, v{SP}")
        red_ror("v_max_f32", [T0], (1, 2, 4, 8))
        E(f"v_mov_b32 v{T1}, v{T0}")
        E(f"v_permlane16_swap_b32 v{T0}, v{T1}")
        E(f"v_max_f32 v{T0}, v{T0}, v{T1}")
        E(f"v_sub_f32 v{SP}, v{SP}, v{T0}")
        E(f"v_exp_f32 v{SP}, v{SP}")
        E(f"v_mul_f32 v{T0}, v{SP}, v{SP+2}")
        red_ror("v_add_f32", [T0], (1, 2, 4, 8))
        E(f"v_mov_b32 v{T1}, v{T0}")
        E(f"v_permlane16_swap_b32 v{T0}, v{T1}")
        E(f"v_add_f32 v{T0}, v{T0}, v{T1}")
        E(f"v_rcp_f32 v{T0}, v{T0}")
        E(f"v_mul_f32 v{T0}, v{T0}, v{SP}")
    tail_dma(3)
    if wopf and wopos == 3: wo_pref()
    ACCO = S[2]; TP = S[3]
    first = [True]
    def pv_perm(slot, mm):
        for dw in range(4):
            a = S[slot] + (2*mm)*4 + dw; b = S[slot] + (2*mm+1)*4 + dw
            E(f"v_perm_b32 v{TP + (2*dw)*4 + mm}, v{b}, v{a}, {sSELLO}")
            E(f"v_perm_b32 v{TP + (2*dw+1)*4 + mm}, v{b}, v{a}, {sSELHI}")
    def pv_mfma(T):
        for e in range(8):
            c = "0" if first[0] else f"v[{ACCO+4*e}:{ACCO+4*e+3}]"
            E(f"v_mfma_f32_16x16x32_bf16 v[{ACCO+4*e}:{ACCO+4*e+3}], v[{PR[T]}:{PR[T]+3}], v[{TP+4*e}:{TP+4*e+3}], {c}")
        first[0] = False
    def pv(slot, T):
        for mm in range(4): pv_perm(slot, mm)
        pv_mfma(T)
    more(1)
    vmwait("V0"); pv(4, 0)
    more(1)
    vmwait("V1"); pv(5, 1)
    more(16, leave=2)
    if dyn == 2:
        E.label("L_tkw")
        E(f"ds_read_b32 v{T0}, v5 offset:20")
        E("s_waitcnt lgkmcnt(0)")
        E(f"v_readfirstlane_b32 {sJW}, v{T0}")
        E(f"s_cmp_eq_u32 {sJW}, 0")
        E("s_cbranch_scc1 L_tkw")
        E(f"s_sub_u32 {sJW}, {sJW}, 1")
        role_setup()
    if ewt:
        E(f"s_cmp_lt_u32 {sJW}, 16")
        E(f"s_cselect_b32 {sLAST}, {sLAST}, 0")
        E(f"s_cmp_lg_u32 {sLAST}, 7")
        E("s_cbranch_scc1 L_noes")
        E(f"s_lshl_b32 {sT0}, {sG}, 11")
        E(f"s_lshr_b32 {sT1}, {sJW}, 3")
        E(f"s_lshl_b32 {sT1}, {sT1}, 10")
        E(f"s_add_u32 {sT0}, {sT0}, {sT1}")
        E(f"s_add_u32 {sT0}, {sT0}, {WS_STAT}")
        E(f"buffer_load_dwordx4 v[{SP}:{SP+3}], {vV}, {rWS}, {sT0} offen sc1")
        E.label("L_noes")
        ewt_after = len(nxt)
    more(16)
    stamp("c3")
    if prio >= 2: E("s_setprio 0")
    tail_dma(4)
    if prio >= 2: E("s_setprio 3")
    vmwait("V2"); pv(6, 2)
    nyoung = len(vm) - 1 - [i for i, t in enumerate(vm) if t == "V3"][-1]
    WB = S[4]; SCF = S[5]; WT8 = S[5]; PK = S[5]+16; GBF = S[6]
    W1 = WB; W2 = S[3]+16
    E(f"v_lshrrev_b32 v{vGQ}, 4, {vLANE}")
    E(f"v_and_b32 v{vN}, 15, {vLANE}")
    E(f"s_lshl_b32 {sT0}, {sW}, 11")
    E(f"v_lshlrev_b32 v{vRR}, 5, {vLANE}")
    E(f"v_add_u32 v{vOW}, {sT0}, v{vRR}")
    E(f"v_lshlrev_b32 v{vT8}, 3, v0")
    E(f"v_lshlrev_b32 v{vL4}, 2, {vLANE}")
    E(f"s_lshl_b32 {sT1}, {sW}, 5")
    E(f"v_mov_b32 v{vFR}, {sT1}")
    E(f"v_bfe_u32 v{T1}, {vLANE}, 2, 2")
    E(f"v_lshl_add_u32 v{T2}, v{vGQ}, 3, v{T1}")
    E(f"v_lshlrev_b32 v{T2}, 7, v{T2}")
    E(f"v_and_b32 v{T3}, 3, {vLANE}")
    E(f"v_lshl_add_u32 v{T2}, v{T3}, 3, v{T2}")
    E(f"v_bfe_u32 v{T1}, {vLANE}, 3, 2")
    E(f"v_lshl_add_u32 v{T2}, v{T1}, 5, v{T2}")
    E(f"s_lshl_b32 {sT0}, {sW}, 12")
    E(f"s_add_u32 {sT0}, {sT0}, {L_WO}")
    E(f"v_add_u32 v{TRB}, {sT0}, v{T2}")
    for nt in range(1, 4): E(f"v_xor_b32 v{TRB+nt}, {nt*32}, v{TRB}")
    E(f"s_lshl_b32 {sT0}, {sG}, 2")
    E(f"s_add_u32 {sPP}, {sT0}, {sW}")
    E(f"s_lshl_b32 {sPP}, {sPP}, 13")
    E(f"s_lshr_b32 {sT1}, {sJ}, 4")
    E(f"s_lshl_b32 {sT1}, {sT1}, 12")
    E(f"s_add_u32 {sPP}, {sPP}, {sT1}")
    E(f"s_and_b32 {sT1}, {sJ}, 15")
    E(f"s_lshl_b32 {sT1}, {sT1}, 4")
    E(f"s_add_u32 {sPP}, {sPP}, {sT1}")
    E(f"s_add_u32 {sPP}, {sPP}, {WS_PART}")
    E(f"s_lshr_b32 {sT1}, {sJW}, 3")
    E(f"s_lshl_b32 {sT1}, {sT1}, 1")
    E(f"s_add_u32 {sGA0}, {sT0}, {sT1}")
    E(f"s_lshr_b32 {sT1}, {sW}, 2")
    E(f"s_add_u32 {sGA0}, {sGA0}, {sT1}")
    E(f"s_lshl_b32 {sT2}, {sGA0}, 9")
    E(f"s_add_u32 {sT2}, {sT2}, {WS_STAT}")
    E(f"s_lshl_b32 {sGA0}, {sGA0}, 13")
    E(f"s_and_b32 {sT1}, {sW}, 3")
    E(f"s_lshl_b32 {sT1}, {sT1}, 10")
    E(f"s_add_u32 {sGA0}, {sGA0}, {sT1}")
    E(f"s_add_u32 {sGA0}, {sGA0}, {WS_PART}")
    E(f"s_add_u32 {sGA1}, {sGA0}, 4096")
    E(f"v_and_b32 v{vSTA}, 31, {vLANE}")
    E(f"s_lshl_b32 {sT1}, {sW}, 7")
    E(f"v_lshl_add_u32 v{vWBW}, v{vSTA}, 2, {sT1}")
    E(f"v_lshl_add_u32 v{vWBR}, v{vGQ}, 4, {sT1}")
    E(f"v_lshlrev_b32 v{vSTA}, 4, v{vSTA}")
    E(f"s_lshr_b32 {sT1}, {sW}, 2")
    E(f"s_lshl_b32 {sT1}, {sT1}, 7")
    E(f"v_lshl_add_u32 v{vWER}, v{vGQ}, 4, {sT1}")
    E(f"v_lshrrev_b32 v{vGATH}, 2, {vLANE}")
    E(f"v_lshlrev_b32 v{vGATH}, 8, v{vGATH}")
    E(f"v_and_b32 v{T3}, 3, {vLANE}")
    E(f"v_lshl_add_u32 v{vGATH}, v{T3}, 2, v{vGATH}")
    E(f"s_lshl_b32 {sT1}, {sW}, 2")
    E(f"v_add_u32 v{vRW}, {sT1}, v{vRR}")
    E(f"s_waitcnt vmcnt({nyoung+4})")
    pv_perm(0, 0); pv_perm(0, 1)
    E(f"s_waitcnt vmcnt({nyoung+2})")
    pv_perm(0, 2)
    if ewt:
        E(f"s_cmp_lg_u32 {sLAST}, 7")
        E("s_cbranch_scc1 L_noew")
        if ewt_after < 2: E(f"s_waitcnt vmcnt({nyoung + ewt_after})")
        tagcheck([SP+1, SP+3], 6)
        E("s_cbranch_vccnz L_noew")
        wcalc()
        E(f"ds_write_b32 v{vL4}, v{T0} offset:{L_WE}")
        E(f"ds_write_b32 v5, v5 offset:8")
        E.label("L_noew")
    E(f"s_waitcnt vmcnt({nyoung})")
    stamp(5)
    pv_perm(0, 3)
    pv_mfma(3)
    for e in range(8): E(f"v_mov_b32 v{PK+e}, v{ACCO+4*e}")
    E(f"ds_write_b128 v{vOW}, v[{PK}:{PK+3}] offset:{L_ORED}")
    E(f"ds_write_b128 v{vOW}, v[{PK+4}:{PK+7}] offset:{L_ORED+16}")
    tail_dma(6)
    E("s_waitcnt lgkmcnt(0)")
    E("s_barrier")
    E(f"s_cmp_ge_u32 {sW}, 4")
    E("s_cbranch_scc1 L_nopart")
    R0 = S[2]; FC = S[2]+16
    E(f"ds_read_b128 v[{FC}:{FC+3}], v{vFR} offset:{L_FAC}")
    E(f"ds_read_b128 v[{FC+4}:{FC+7}], v{vFR} offset:{L_FAC+16}")
    for w in range(8): E(f"ds_read_b64 v[{R0+2*w}:{R0+2*w+1}], v{vT8} offset:{L_ORED + w*2048}")
    for w in range(8):
        if w % 2 == 0: E(f"s_waitcnt lgkmcnt({6-w})")
        a = PK + 2*(w % 2)
        op = "v_mul_f32" if w < 2 else "v_fmac_f32"
        E(f"{op} v{a}, v{R0+2*w}, v{FC+w}")
        E(f"{op} v{a+1}, v{R0+2*w+1}, v{FC+w}")
    E(f"v_pk_add_f32 v[{PK}:{PK+1}], v[{PK}:{PK+1}], v[{PK+2}:{PK+3}]")
    E(f"v_cvt_pk_bf16_f32 v{PK}, v{PK}, v{PK+1}")
    E(f"v_min_u32 v{PK}, -2, v{PK}")
    gstore(f"buffer_store_dword v{PK}, v{vGATH}, {rWS}, {sPP} offen")
    E.label("L_nopart")
    stamp(6)
    if "e" in dbg: E("s_branch L_fin")
    E(f"s_cmp_lg_u32 {sML}, 0")
    E("s_cbranch_scc1 L_stageb")
    if w1pf == 2:
        w1_pref("L_nopf2")
        E.label("L_nopf2")
    E(f"s_cmp_ge_u32 {sJW}, 16")
    E("s_cbranch_scc1 L_fin")
    tail_dma(5)
    if buddy:
        E(f"s_sub_u32 {sT0}, {sT0}, {3*8*1024}")
        E(f"s_xor_b32 {sT0}, {sT0}, {buddy}")
        E(f"s_mov_b32 m0, {L_WM}")
        for i in range(4):
            E(f"buffer_load_dwordx4 v{T2}, {rWO}, {sT0} offen lds")
            if i < 3: E(f"s_add_u32 {sT0}, {sT0}, {8*1024}")
    GA_ = S[3]
    def a_load(i): E(f"buffer_load_dwordx4 v[{GA_+4*i}:{GA_+4*i+3}], {vV}, {rWS}, {sGA1 if i else sGA0} offen {'nt' if 'n' in dbg else 'sc1'}")
    def a_loads(): a_load(0); a_load(1)
    if ewt:
        E(f"ds_read_b32 v{T0}, v5 offset:8")
        E(f"ds_read_b128 v[{WT8}:{WT8+3}], v{vWER} offset:{L_WE}")
        E(f"ds_read_b128 v[{WT8+4}:{WT8+7}], v{vWER} offset:{L_WE+64}")
        E("s_waitcnt lgkmcnt(0)")
        E(f"v_readfirstlane_b32 {sT0}, v{T0}")
        E(f"s_cmp_lg_u32 {sT0}, 0")
        E("s_cbranch_scc1 L_havew")
    E.label("L_statchk")
    E(f"buffer_load_dwordx4 v[{SP}:{SP+3}], v{vSTA}, {rWS}, {sT2} offen sc1")
    E("s_waitcnt vmcnt(0)")
    tagcheck([SP+1, SP+3], 6)
    E("s_cbranch_vccz L_gotstat")
    if slp: E(f"s_sleep {slp}")
    spin_check("L_statchk")
    E.label("L_gotstat")
    wcalc()
    E(f"ds_write_b32 v{vWBW}, v{T0} offset:{L_WB}")
    E("s_waitcnt lgkmcnt(0)")
    E(f"ds_read_b128 v[{WT8}:{WT8+3}], v{vWBR} offset:{L_WB}")
    E(f"ds_read_b128 v[{WT8+4}:{WT8+7}], v{vWBR} offset:{L_WB+64}")
    E.label("L_havew")
    if lead:
        E(f"s_and_b32 {sT0}, {sW}, 3")
        E("s_cbranch_scc0 L_lead")
        E("s_barrier")
        E.label("L_lead")
    a_loads()
    E("s_waitcnt vmcnt(2)")
    for nt in range(4):
        for q in range(2): E(f"ds_read_b64_tr_b16 v[{WB+4*nt+2*q}:{WB+4*nt+2*q+1}], v{TRB+nt} offset:{q*512}")
    stamp("w1")
    if rep:
        E(f"s_lshl_b32 {sT0}, {sW}, 15")
        E(f"s_add_u32 {sAOP}, {sAOP}, {sT0}")
    if quick: quickpoll("a", a_load, [GA_, GA_+4], "L_polla")
    pollloop("a", a_load, [range(GA_, GA_+4), range(GA_+4, GA_+8)], T0, slpa)
    if lead:
        E(f"s_and_b32 {sT0}, {sW}, 3")
        E("s_cbranch_scc1 L_lead2")
        E("s_barrier")
        E.label("L_lead2")
    stamp(7)
    E("s_waitcnt lgkmcnt(0)")
    D = S[2]
    for half in range(2):
        for nt in range(4):
            d = D + half*16 + 4*nt
            E(f"v_mfma_f32_16x16x32_bf16 v[{d}:{d+3}], v[{GA_+4*half}:{GA_+4*half+3}], v[{WB+4*nt}:{WB+4*nt+3}], 0")
    for nt in range(4): E(f"v_pk_mul_f32 v[{D+4*nt}:{D+4*nt+1}], v[{D+4*nt}:{D+4*nt+1}], v[{WT8}:{WT8+1}]")
    for nt in range(4): E(f"v_pk_fma_f32 v[{D+4*nt}:{D+4*nt+1}], v[{D+4*nt+2}:{D+4*nt+3}], v[{WT8+2}:{WT8+3}], v[{D+4*nt}:{D+4*nt+1}]")
    for nt in range(4): E(f"v_pk_fma_f32 v[{D+4*nt}:{D+4*nt+1}], v[{D+16+4*nt}:{D+16+4*nt+1}], v[{WT8+4}:{WT8+5}], v[{D+4*nt}:{D+4*nt+1}]")
    for nt in range(4): E(f"v_pk_fma_f32 v[{D+4*nt}:{D+4*nt+1}], v[{D+16+4*nt+2}:{D+16+4*nt+3}], v[{WT8+6}:{WT8+7}], v[{D+4*nt}:{D+4*nt+1}]")
    for nt in range(4): E(f"v_add_f32 v{D+4*nt}, v{D+4*nt}, v{D+4*nt+1}")
    tred4(D, D+4, D+8, D+12)
    E(f"ds_write_b32 v{vRW}, v{D} offset:{L_RED}")
    E("s_waitcnt lgkmcnt(0)")
    E("s_barrier")
    if not rep:
        E(f"s_cmp_lg_u32 {sW}, 0")
        E("s_cbranch_scc1 L_fin")
    D = PK
    E(f"ds_read_b128 v[{D}:{D+3}], v{vRR} offset:{L_RED}")
    E(f"ds_read_b128 v[{D+4}:{D+7}], v{vRR} offset:{L_RED+16}")
    E("s_waitcnt lgkmcnt(0)")
    E(f"v_pk_add_f32 v[{D}:{D+1}], v[{D}:{D+1}], v[{D+4}:{D+5}]")
    E(f"v_pk_add_f32 v[{D+2}:{D+3}], v[{D+2}:{D+3}], v[{D+6}:{D+7}]")
    E(f"v_pk_add_f32 v[{D}:{D+1}], v[{D}:{D+1}], v[{D+2}:{D+3}]")
    E(f"v_add_f32 v{D}, v{D}, v{D+1}")
    E(f"v_min_u32 v{D}, -2, v{D}")
    E(f"buffer_store_dword v{D}, v{vL4}, {rWS}, {sAOP} offen sc1")
    stamp(8)
    E("s_branch L_fin")
    E.label("L_stageb")
    if "x" in dbg: E("s_branch L_fin")
    if w1e:
        E(f"s_cmp_ge_u32 {sA}, 224")
        E("s_cbranch_scc1 L_now1")
    if mlearly != 2: w2_dma()
    if w1dl: E(f"s_sleep {w1dl}")
    if mlearly != 1: w1_dma()
    E.label("L_now1")
    GBR = S[3]
    E(f"v_lshlrev_b32 v{vSTA}, 11, v{vGQ}")
    E(f"v_lshl_add_u32 v{vSTA}, v{vN}, 4, v{vSTA}")
    E(f"s_lshl_b32 {sT0}, {sW}, 8")
    if rep:
        E(f"s_lshl_b32 {sT1}, {sG}, 15")
        E(f"s_add_u32 {sT0}, {sT0}, {sT1}")
    bs = ["s88", "s89", "s90", "s95"]
    for i in range(4): E(f"s_add_u32 {bs[i]}, {sT0}, {WS_AO + 8192*i}")
    def b_load(i): E(f"buffer_load_dwordx4 v[{S[3]+4*i}:{S[3]+4*i+3}], v{vSTA}, {rWS}, {bs[i]} offen sc1")
    def b_loads():
        for i in range(4): b_load(i)
    E(f"v_lshl_add_u32 v{vCOL}, v{vN}, 2, v{vGQ}")
    E(f"s_lshl_b32 {sT0}, {sW}, 6")
    E(f"v_add_u32 v{vCOL}, {sT0}, v{vCOL}")
    E(f"v_lshlrev_b32 v{vGAA}, 1, v{vCOL}")
    E(f"buffer_load_ushort v{XT}, v{vGAA}, {rX}, 0 offen")
    if outpf: E(f"buffer_load_ushort v{TRB}, v{vGAA}, {rOUT}, 0 offen")
    E(f"v_and_b32 v{vGAA}, 0x1fe, v{vCOL}")
    E(f"v_lshlrev_b32 v{vGAA}, 2, v{vGAA}")
    E(f"s_mul_i32 {sU}, {sW}, 56")
    E(f"s_add_u32 {sU}, {sU}, {sM}")
    E(f"s_lshl_b32 {sU16}, {sU}, 4")
    E(f"s_and_b32 {sU16}, {sU16}, 0x7ff")
    E(f"v_mov_b32 v{vU16}, {sU16}")
    E(f"s_lshl_b32 {sT0}, {sW}, 2")
    E(f"v_add_u32 v{vCH}, {sT0}, v{vN}")
    E(f"v_and_b32 v{vCH}, 15, v{vCH}")
    E(f"v_lshl_add_u32 v{vCH}, v{vGQ}, 4, v{vCH}")
    E(f"v_lshlrev_b32 v{vCH}, 5, v{vCH}")
    SG = S[6]+8
    E(f"ds_read_b64 v[{GA}:{GA+1}], v{vGAA} offset:{L_MOD}")
    for i in range(4): E(f"ds_read_b128 v[{SG+4*i}:{SG+4*i+3}], v{vCH} offset:{L_MOD + 2048 + (i//2)*2048 + (i%2)*16}")
    E(f"ds_read_b128 v[{GB}:{GB+3}], v{vU16} offset:{L_MOD + 6144}")
    E(f"s_lshl_b32 {sT3}, {sW}, 13")
    E(f"s_add_u32 {sT3}, {sT3}, {L_WT}")
    E(f"v_bfe_u32 v{T0}, {vLANE}, 2, 2")
    E(f"v_and_b32 v{T1}, 3, {vLANE}")
    E(f"v_lshlrev_b32 v{T1}, 3, v{T1}")
    E(f"v_lshl_add_u32 v{T2}, v{T0}, 6, v{T1}")
    E(f"v_lshl_add_u32 v{T2}, v{vGQ}, 10, v{T2}")
    E(f"s_and_b32 {sT1}, {sW}, 3")
    E(f"s_lshl_b32 {sT1}, {sT1}, 14")
    E(f"s_add_u32 {sT1}, {sT1}, {L_WT}")
    E(f"v_add_u32 v{T2}, {sT1}, v{T2}")
    E(f"v_lshl_add_u32 v{T0}, v{T0}, 7, v{T1}")
    E(f"v_lshl_add_u32 v{T0}, v{vGQ}, 5, v{T0}")
    E(f"v_add_u32 v{T0}, {sT3}, v{T0}")
    E(f"v_lshlrev_b32 v{vRR}, 5, v{vN}")
    E(f"v_lshlrev_b32 v{vRW}, 4, v{vN}")
    E(f"s_lshl_b32 {sT1}, {sW}, 2")
    E(f"v_add_u32 v{vRW}, {sT1}, v{vRW}")
    E(f"v_lshlrev_b32 v{vGATH}, 2, v0")
    E(f"v_mov_b32 v{vWBR}, 0")
    E("s_waitcnt lgkmcnt(0)")
    E.label("L_modchk")
    tagcheck([GA+1, GB+1, GB+3] + [SG+1+2*i for i in range(8)], 6)
    E("s_cbranch_vccz L_gotmd")
    E(f"s_mov_b32 {sT0}, {WS_MODG + 4096}")
    E(f"buffer_load_dwordx2 v[{GA}:{GA+1}], v{vGAA}, {rWS}, {sT0} offen sc1")
    E(f"buffer_load_dwordx4 v[{SG}:{SG+3}], v{vCH}, {rWS}, {sT0} offen offset:2048 sc1")
    E(f"buffer_load_dwordx4 v[{SG+4}:{SG+7}], v{vCH}, {rWS}, {sT0} offen offset:2064 sc1")
    E(f"s_mov_b32 {sT0}, {WS_MODG + 8192}")
    E(f"buffer_load_dwordx4 v[{SG+8}:{SG+11}], v{vCH}, {rWS}, {sT0} offen sc1")
    E(f"buffer_load_dwordx4 v[{SG+12}:{SG+15}], v{vCH}, {rWS}, {sT0} offen offset:16 sc1")
    E(f"buffer_load_dwordx4 v[{GB}:{GB+3}], v{vU16}, {rWS}, {sT0} offen offset:2048 sc1")
    E("s_waitcnt vmcnt(0)")
    spin_check("L_modchk")
    E.label("L_gotmd")
    E(f"v_and_b32 v6, 1, v{vCOL}")
    E(f"v_lshlrev_b32 v{vCOL}, 2, v{vCOL}")
    E(f"v_cmp_eq_u32 vcc, 0, v6")
    E(f"v_lshlrev_b32 v6, 16, v{GA}")
    E(f"v_and_b32 v7, 0xffff0000, v{GA}")
    E(f"v_cndmask_b32 v{GA}, v7, v6, vcc")
    for i in range(4):
        c0, c1, s0, s1_ = SCF+2*i, SCF+2*i+1, SCF+8+2*i, SCF+8+2*i+1
        E(f"v_lshlrev_b32 v{s0}, 16, v{SG+2*i}")
        E(f"v_and_b32 v{s1_}, 0xffff0000, v{SG+2*i}")
        E(f"v_lshlrev_b32 v{c0}, 16, v{SG+8+2*i}")
        E(f"v_and_b32 v{c1}, 0xffff0000, v{SG+8+2*i}")
        E(f"v_add_f32 v{c0}, 1.0, v{c0}")
        E(f"v_add_f32 v{c1}, 1.0, v{c1}")
        rb2(c0, c1, c0, c1, 6)
    E(f"v_lshlrev_b32 v{GBF}, 16, v{GB}")
    E(f"v_and_b32 v{GBF+1}, 0xffff0000, v{GB}")
    E(f"v_lshlrev_b32 v{GBF+2}, 16, v{GB+2}")
    E(f"v_and_b32 v{GBF+3}, 0xffff0000, v{GB+2}")
    for r in range(1, 4):
        E(f"v_mov_b32_dpp v{GBF}, v{GBF+r} quad_perm:[0,1,2,3] row_mask:{1<<r:#x} bank_mask:0xf")
    E(f"v_lshl_add_u32 v{vU16}, v{vGQ}, 2, v{vU16}")
    E("s_waitcnt vmcnt(0)")
    b_loads()
    stamp("w2")
    E("s_barrier")
    for nt in range(2):
        for q in range(8):
            r = W1 + nt*16 + q*2
            E(f"ds_read_b64_tr_b16 v[{r}:{r+1}], v{T2} offset:{(q>>2)*8192 + (q&3)*256 + nt*32}")
    for q in range(8):
        E(f"ds_read_b64_tr_b16 v[{W2+2*q}:{W2+2*q+1}], v{T0} offset:{4096 + q*512}")
    E(f"v_lshlrev_b32 v{XT}, 16, v{XT}")
    if touch:
        E("s_mov_b64 exec, 0")
        E("s_branch L_tb_0")
        E.label("L_tbret")
        E("s_mov_b64 exec, -1")
    G2 = S[0]
    if quick: quickpoll("b", b_load, [GBR+4*i for i in range(4)], "L_pollb")
    E.label("L_pollb")
    E(f"s_waitcnt vmcnt(0)")
    for i in range(0, 8, 2): E(f"v_pk_add_f32 v[{G2+i}:{G2+i+1}], v[{GBR+i}:{GBR+i+1}], v[{GBR+8+i}:{GBR+8+i+1}]")
    for i in range(0, 4, 2): E(f"v_pk_add_f32 v[{G2+i}:{G2+i+1}], v[{G2+i}:{G2+i+1}], v[{G2+4+i}:{G2+4+i+1}]")
    E(f"v_pk_add_f32 v[{G2+4}:{G2+5}], v[{G2}:{G2+1}], v[{G2+2}:{G2+3}]")
    E(f"v_cmp_u_f32 vcc, v{G2+4}, v{G2+5}")
    E("s_cbranch_vccz L_gotb")
    for i in range(4): maxall(range(GBR+4*i, GBR+4*i+4), 16+i)
    maxall(range(16, 20), 6)
    E(f"v_cmp_eq_u32 vcc, -1, v6")
    E("s_cbranch_vccz L_gotb")
    if slpb: E(f"s_sleep {slpb}")
    for i in range(4):
        E(f"v_cmp_eq_u32 vcc, -1, v{16+i}")
        E(f"s_mov_b64 exec, vcc")
        b_load(i)
        E("s_mov_b64 exec, -1")
    spin_check("L_pollb")
    E.label("L_gotb")
    if touch: E.touch_begin("L_tb", touch)
    stamp(9)
    GBR = G2
    tred4(GBR, GBR+1, GBR+2, GBR+3)
    rb1(GBR, GBR)
    E(f"v_mul_f32 v{GBR}, v{GBR}, v{GA}")
    rb1(GBR, GBR)
    E(f"v_add_f32 v{GBR}, v{GBR}, v{XT}")
    rb1(GBR, GBR)
    E(f"ds_write_b32 v{vCOL}, v{GBR} offset:{L_X2}")
    E("s_waitcnt lgkmcnt(0)")
    E("s_barrier")
    stamp("b1")
    X2 = S[2]; X2F = S[2]+8; KS = S[2]+12
    if epe:
        E(f"s_cmp_lg_u32 {sU}, {7*56}")
        E("s_cbranch_scc1 L_noep")
        E(f"v_mov_b32 v7, {sTAG}")
        E("s_mov_b64 exec, 1")
        E(f"buffer_store_dword v7, v{vWBR}, {rWS}, 0 offen sc1")
        E("s_mov_b64 exec, -1")
        E.label("L_noep")
    E(f"s_cmp_ge_u32 {sW}, 4")
    E("s_cbranch_scc1 L_b4")
    E(f"ds_read_b32 v{KS}, v{vWBR} offset:{L_X2}")
    E(f"ds_read_b128 v[{X2}:{X2+3}], v{vCH} offset:{L_X2}")
    E(f"ds_read_b128 v[{X2+4}:{X2+7}], v{vCH} offset:{L_X2+16}")
    E(f"ds_read_b32 v{X2F}, v{vU16} offset:{L_X2}")
    E("s_waitcnt lgkmcnt(0)" if (stamps and "b1" in stamps) else "s_waitcnt lgkmcnt(1)")
    DD = S[2]+16
    NEGB = "op_sel_hi:[1,0] neg_lo:[0,1] neg_hi:[0,1]"
    for i in range(0, 8, 2): E(f"v_pk_add_f32 v[{DD+i}:{DD+i+1}], v[{X2+i}:{X2+i+1}], v[{KS}:{KS+1}] {NEGB}")
    s1, s2, s3 = 16, 18, T0
    E(f"v_pk_add_f32 v[{s1}:{s1+1}], v[{DD}:{DD+1}], v[{DD+2}:{DD+3}]")
    E(f"v_pk_mul_f32 v[{s2}:{s2+1}], v[{DD}:{DD+1}], v[{DD}:{DD+1}]")
    E(f"v_pk_add_f32 v[{s3}:{s3+1}], v[{DD+4}:{DD+5}], v[{DD+6}:{DD+7}]")
    E(f"v_pk_mul_f32 v[{s3+2}:{s3+3}], v[{DD+4}:{DD+5}], v[{DD+4}:{DD+5}]")
    E(f"v_pk_fma_f32 v[{s2}:{s2+1}], v[{DD+2}:{DD+3}], v[{DD+2}:{DD+3}], v[{s2}:{s2+1}]")
    E(f"v_pk_fma_f32 v[{s3+2}:{s3+3}], v[{DD+6}:{DD+7}], v[{DD+6}:{DD+7}], v[{s3+2}:{s3+3}]")
    E(f"v_pk_add_f32 v[{s1}:{s1+1}], v[{s1}:{s1+1}], v[{s3}:{s3+1}]")
    E(f"v_pk_add_f32 v[{s2}:{s2+1}], v[{s2}:{s2+1}], v[{s3+2}:{s3+3}]")
    E(f"v_permlane16_swap_b32 v{s1}, v{s2}")
    E(f"v_permlane16_swap_b32 v{s1+1}, v{s2+1}")
    E(f"v_pk_add_f32 v[{s1}:{s1+1}], v[{s1}:{s1+1}], v[{s2}:{s2+1}]")
    E(f"v_add_f32 v{s1}, v{s1}, v{s1+1}")
    E(f"v_mov_b32 v{s2}, v{s1}")
    E(f"v_permlane32_swap_b32 v{s1}, v{s2}")
    E(f"v_add_f32 v{s1}, v{s1}, v{s2}")
    red_ror("v_add_f32", [s1], (1, 2, 4, 8))
    E(f"v_mul_f32 v{s1}, {f32bits(1.0/512):#x}, v{s1}")
    E(f"v_mov_b32 v{s2}, v{s1}")
    E(f"v_permlane16_swap_b32 v{s1}, v{s2}")
    E(f"v_fma_f32 v{s2}, -v{s1}, v{s1}, v{s2}")
    E(f"v_add_f32 v{s1}, v{s1}, v{KS}")
    E(f"v_max_f32 v{s2}, 0, v{s2}")
    E(f"v_cvt_pk_bf16_f32 v{s3}, v{s1}, v{s2}")
    E(f"v_and_b32 v{s2}, 0xffff0000, v{s3}")
    E(f"v_lshlrev_b32 v{s1}, 16, v{s3}")
    E(f"v_add_f32 v{s2}, {f32bits(1e-5):#x}, v{s2}")
    E(f"v_pk_add_f32 v[{X2}:{X2+1}], v[{X2}:{X2+1}], v[{s1}:{s1+1}] {NEGB}")
    E(f"v_cvt_pk_bf16_f32 v{s2}, v{s2}, v{s2}")
    E(f"v_pk_add_f32 v[{X2+2}:{X2+3}], v[{X2+2}:{X2+3}], v[{s1}:{s1+1}] {NEGB}")
    E(f"v_lshlrev_b32 v{s2}, 16, v{s2}")
    E(f"v_pk_add_f32 v[{X2+4}:{X2+5}], v[{X2+4}:{X2+5}], v[{s1}:{s1+1}] {NEGB}")
    E(f"v_sqrt_f32 v{s2}, v{s2}")
    E(f"v_pk_add_f32 v[{X2+6}:{X2+7}], v[{X2+6}:{X2+7}], v[{s1}:{s1+1}] {NEGB}")
    E(f"v_pk_mul_f32 v[{X2}:{X2+1}], v[{X2}:{X2+1}], v[{SCF}:{SCF+1}]")
    E(f"v_cvt_pk_bf16_f32 v{s2}, v{s2}, v{s2}")
    E(f"v_pk_mul_f32 v[{X2+2}:{X2+3}], v[{X2+2}:{X2+3}], v[{SCF+2}:{SCF+3}]")
    E(f"v_lshlrev_b32 v{s2}, 16, v{s2}")
    E(f"v_pk_mul_f32 v[{X2+4}:{X2+5}], v[{X2+4}:{X2+5}], v[{SCF+4}:{SCF+5}]")
    E(f"v_rcp_f32 v{s2}, v{s2}")
    E(f"v_pk_mul_f32 v[{X2+6}:{X2+7}], v[{X2+6}:{X2+7}], v[{SCF+6}:{SCF+7}]")
    for i in range(0, 8, 2): E(f"v_pk_fma_f32 v[{X2+i}:{X2+i+1}], v[{X2+i}:{X2+i+1}], v[{s2}:{s2+1}], v[{SCF+8+i}:{SCF+8+i+1}] op_sel_hi:[1,0,1]")
    H2 = PK
    for p in range(4): E(f"v_cvt_pk_bf16_f32 v{H2+p}, v{X2+2*p}, v{X2+2*p+1}")
    DM = S[0]
    for s_ in range(4):
        for nt in range(2):
            d = DM + (nt*4+s_)*4; b = W1 + nt*16 + s_*4
            E(f"v_mfma_f32_16x16x32_bf16 v[{d}:{d+3}], v[{H2}:{H2+3}], v[{b}:{b+3}], 0")
    E("s_mov_b64 exec, 0xffff")
    for nt in range(2): E(f"v_add_f32 v{DM+16*nt}, v{DM+16*nt}, v{DM+16*nt+5}")
    for nt in range(2): E(f"v_add_f32 v{DM+16*nt}, v{DM+16*nt}, v{DM+16*nt+10}")
    for nt in range(2): E(f"v_add_f32 v{DM+16*nt}, v{DM+16*nt}, v{DM+16*nt+15}")
    E(f"ds_write2st64_b32 v{vRW}, v{DM}, v{DM+16} offset0:{L_RED//256} offset1:{L_RED//256+1}")
    E("s_mov_b64 exec, -1")
    E("s_waitcnt lgkmcnt(0)")
    E.label("L_b4")
    E(f"v_mov_b32 v{T0}, 0")
    E(f"v_mov_b32 v{T1}, 0")
    E("s_barrier")
    stamp("b2")
    D = S[0]
    E(f"ds_read_b128 v[{D}:{D+3}], v{vRR} offset:{L_RED}")
    E(f"ds_read_b128 v[{D+8}:{D+11}], v{vRR} offset:{L_RED+16}")
    E("s_waitcnt lgkmcnt(0)")
    for b in (D, D+8): E(f"v_pk_add_f32 v[{b}:{b+1}], v[{b}:{b+1}], v[{b+2}:{b+3}]")
    for b in (D, D+8): E(f"v_add_f32 v{b}, v{b}, v{b+1}")
    E(f"v_max_f32 v{D}, 0, v{D}")
    E(f"v_max_f32 v{D+8}, 0, v{D+8}")
    E(f"v_cvt_pk_bf16_f32 v{D}, v{D}, v{D+8}")
    for k in range(16):
        E(f"v_dot2c_f32_bf16_dpp v{T0+(k&1)}, v{D}, v{W2+k} row_newbcast:{k} {DPPM}")
    E(f"v_add_f32 v{T0}, v{T0}, v{T1}")
    E(f"v_min_u32 v{T0}, -2, v{T0}")
    E(f"buffer_store_dword v{T0}, v{vGATH}, {rWS}, {sPUB} offen sc1")
    stamp(10)
    E(f"s_cmp_ge_u32 {sU}, 128")
    E("s_cbranch_scc1 L_fin")
    C0 = S[0]+16
    E(f"v_lshlrev_b32 v{vSTA}, 11, {vLANE}")
    E(f"s_add_u32 {sT2}, {sU16}, {WS_MO}")
    for i in range(4): E(f"v_mov_b32 v{C0+i}, 0")
    def c_loads(): E(f"buffer_load_dwordx4 v[{C0}:{C0+3}], v{vSTA}, {rWS}, {sT2} offen sc1")
    if cdelay > 0: E(f"s_sleep {cdelay}")
    if cdelay < 0: E("s_waitcnt vmcnt(0)")
    E(f"s_mov_b32 {sSPIN}, 0x40000")
    E(f"s_mov_b32 exec_hi, 0xffffff")
    c_loads()
    E(f"s_mov_b64 exec, -1")
    E(f"s_lshl_b32 {sT0}, {sU}, 3")
    E(f"v_mov_b32 v6, 0")
    E(f"v_mov_b32 v7, {sTAG}")
    E(f"v_lshlrev_b32 v{T0}, 1, v{vGQ}")
    E.tpause = True
    E.label("L_pollc")
    E("s_waitcnt vmcnt(0)")
    maxall(range(C0, C0+4), T2)
    E(f"v_cmp_eq_u32 vcc, -1, v{T2}")
    E("s_cbranch_vccz L_gotc")
    E(f"s_mov_b64 exec, vcc")
    c_loads()
    E("s_mov_b64 exec, -1")
    spin_check("L_pollc")
    E.label("L_gotc")
    E.tpause = False
    if fixt:
        if fixw >= 0:
            E(f"v_mov_b32 v{T2}, 0x800")
            E(f"buffer_load_dword v{T3}, v{T2}, {rWS}, 0 offen sc1")
            E("s_waitcnt vmcnt(0)")
            E(f"v_readfirstlane_b32 s48, v{T3}")
        E.label("L_fix")
        E("s_memrealtime s[50:51]")
        E("s_waitcnt lgkmcnt(0)")
        E("s_sub_u32 s50, s50, s48")
        E(f"s_cmp_lt_u32 s50, {fixt*100}")
        E("s_cbranch_scc1 L_fix")
    stamp(11)
    tred4(C0, C0+1, C0+2, C0+3)
    red_ror("v_add_f32", [C0], (1, 2, 4, 8))
    rb1(C0, C0)
    E(f"v_mul_f32 v{C0}, v{C0}, v{GBF}")
    rb1(C0, C0)
    E(f"v_add_f32 v{C0}, v{C0}, v{X2F}")
    E(f"v_cvt_pk_bf16_f32 v{C0}, v{C0}, v{C0}")
    if touch: E.touch_end("L_tbret")
    E("s_mov_b32 exec_lo, 0x10001")
    E("s_mov_b32 exec_hi, 0x10001")
    E(f"buffer_store_short v{C0}, v{T0}, {rOUT}, {sT0} offen {outf}")
    if not epe:
        E("s_mov_b64 exec, 1")
        E(f"s_cmp_lg_u32 {sU}, 0")
        E("s_cbranch_scc1 L_fin")
        E(f"buffer_store_dword v7, v6, {rWS}, 0 offen sc1")
    E.label("L_fin")
    if stamps:
        stamp(12)
        E("s_mov_b64 exec, 1")
        E("s_waitcnt lgkmcnt(0)")
        E(f"s_lshl_b32 {sT0}, s2, 3")
        E(f"s_add_u32 {sT0}, {sT0}, {sW}")
        E(f"s_lshl_b32 {sT0}, {sT0}, 7")
        E(f"s_add_u32 {sT0}, {sT0}, {WS_STAMP}")
        if 1:
            E("s_sleep 127"); E("s_sleep 127"); E("s_sleep 127")
        E("v_mov_b32 v6, 0")
        for i in range(13):
            E(f"v_mov_b32 v8, s{52+2*i}")
            E(f"v_mov_b32 v9, s{53+2*i}")
            E(f"buffer_store_dwordx2 v[8:9], v6, {rWS}, {sT0} offen offset:{8*i}")
            E("s_nop 1")
        E(f"v_mov_b32 v8, {sSPIN}")
        E(f"v_mov_b32 v9, 0")
        E(f"buffer_store_dwordx2 v[8:9], v6, {rWS}, {sT0} offen offset:{8*13}")
    E.label("L_end")
    E("s_endpgm")
    if aslist == 2:
        E.raw(".globl warm_kernel\n.p2align 8\n.type warm_kernel,@function\nwarm_kernel:\n    s_endpgm")
        E.raw('.section .rodata,"a"\n.p2align 6\n.amdhsa_kernel warm_kernel\n  .amdhsa_next_free_vgpr 8\n  .amdhsa_next_free_sgpr 16\n  .amdhsa_accum_offset 8\n  .amdhsa_group_segment_fixed_size 0\n  .amdhsa_kernarg_size 104\n  .amdhsa_user_sgpr_count 2\n  .amdhsa_user_sgpr_kernarg_segment_ptr 1\n  .amdhsa_system_sgpr_workgroup_id_x 1\n.end_amdhsa_kernel')
    E.raw(f'.section .rodata,"a"\n.p2align 6\n.amdhsa_kernel {KN}')
    E.raw("  .amdhsa_next_free_vgpr 256\n  .amdhsa_next_free_sgpr 102\n  .amdhsa_accum_offset 256\n  .amdhsa_group_segment_fixed_size 0\n  .amdhsa_kernarg_size 104\n  .amdhsa_user_sgpr_count 2\n  .amdhsa_user_sgpr_kernarg_segment_ptr 1\n  .amdhsa_system_sgpr_workgroup_id_x 1\n  .amdhsa_float_denorm_mode_32 3\n.end_amdhsa_kernel")
    return E.text()

if __name__ == "__main__":
    import argparse, inspect
    ap = argparse.ArgumentParser()
    ap.add_argument("out")
    for n, p in inspect.signature(gen).parameters.items():
        if n == "stamps": ap.add_argument("--stamps", default="")
        else: ap.add_argument("--"+n, type=type(p.default), default=p.default)
    a = vars(ap.parse_args())
    out = a.pop("out")
    a["stamps"] = a["stamps"].split(",") if a["stamps"] else None
    open(out, "w").write(gen(**a))
```

```python
import sys, math, struct
from emit import Emit
KN = "adaLN_cond__gqa_block_cached__dense_activation_relu__decode_kernel"

WS_EPOCH = 0x0
WS_MODG  = 0x1000
WS_CLR   = 0x10000
WS_STAT  = 0x8000
WS_AO    = 0x100000
WS_PART  = 0x20000
WS_MO    = 0x60000
WS_HB    = 0x18000
WS_EP    = 0xC0000
WS_QG    = WS_MODG + 48*256
WS_STAMP = 0x8000000
L_STATS = 0
L_CNT   = 256
L_FAC   = 384
L_WB    = 512
L_WE    = 1536
L_X2    = 2048
L_RED   = 4096
L_ACT   = 6144
L_Q     = 7168
L_ORED  = 8192
L_MOD   = 24576
L_WM    = 32768
L_WT    = 65536

DPPM = "row_mask:0xf bank_mask:0xf"
def f32bits(x): return struct.unpack("<I", struct.pack("<f", x))[0]

def gen(depth=6, kvflags="nt", wflags="", stamps=None, swave=0, tpwo=4, mlearly=0, slp=2, slpa=0, slpb=0, codepf=2, dbg="",
        k1=2, k2=3, slpq=4, prio=3, fixt=0, jml=24, fast=1, rate=1, cdelay=-1, ewt=1, rot=0, qat=12, depth0=9, young="", depthe=0, emask=255, swapq=1, lead=0, touch=0, w1e=0, w1pf=2, rep=0, w1dl=0, buddy=0, wopf=0, wopos=3, fixw=-1, aslist=0, fpos=-1, fwave=1, dyn=0, pfirst=1, tlb=0, eflags="nt", oflags="nt", quick=1, epe=1, outpf=0, outf="", depthv=0, dvat=18, p0=3, dynt=7, wmx=3, dburst=0, wb=0, nb=0, pa=12, la=8, pb=24, lb=8, pc=12, da=8, ext=0, dx=8, fmap=0, jperm=0, mlite=0, emap=0, esw=0, hint=0, hdl=0):
    E = Emit()
    L_WO = L_WT + 65536
    LDS_BYTES = max(L_WT + 65536, L_WO + 32768)
    sW, sG, sJ, sTAG, sSPIN = "s3", "s4", "s5", "s6", "s7"
    rK, rV, rWS, rWT, rW2, rX, rC, rOUT = [f"s[{i}:{i+3}]" for i in range(8, 40, 4)]
    rWO = "s[84:87]"
    sSELLO, sSELHI, sC, sBASE, sM, sT0, sT1, sT2 = "s78", "s79", "s80", "s81", "s82", "s83", "s100", "s101"
    sA, sPL, sPUB, sLAST, sU, sU16, sT3, sT4, sEP = "s40", "s41", "s42", "s95", "s98", "s99", "s96", "s97", "s93"
    sPP, sGA0, sGA1, sLD, sML, sXCC, sAOP, sSK = "s43", "s44", "s45", "s46", "s47", "s91", "s92", "s90"
    sJW = "s94" if dyn else sJ
    vLANE, vK, vV = "v1", "v2", "v3"
    Q0 = 16
    T0, T1, T2, T3 = 28, 29, 30, 31
    S = [32 + 32*i for i in range(7)]
    def stamp(i):
        if "j" in dbg and str(i) not in ("0", "b1", "a2"):
            u = len(E.L)
            E("s_memtime s[52:53]")
            E("s_waitcnt lgkmcnt(0)")
            E("s_mul_i32 s52, s52, 0x9E3779B1")
            E("s_lshr_b32 s52, s52, 26")
            E("s_cmp_lt_u32 s52, 48")
            E(f"s_cbranch_scc1 L_jt{u}")
            E(f"s_sub_u32 s52, s52, 47")
            E.label(f"L_ju{u}")
            E("s_sleep 32")
            E("s_sub_u32 s52, s52, 1")
            E("s_cmp_lg_u32 s52, 0")
            E(f"s_cbranch_scc1 L_ju{u}")
            E.label(f"L_jt{u}")
            return
        if stamps and str(i) in stamps:
            k = stamps.index(str(i))
            E(f"s_memrealtime s[{52+2*k}:{53+2*k}]")
    vm = []
    light = [False]
    def setlight():
        if depthe:
            if emask == 0: E(f"s_cmp_ge_u32 {sJ}, 16")
            else:
                E(f"s_lshr_b32 {sT0}, {emask}, {sW}")
                E(f"s_andn2_b32 {sT0}, {sT0}, {sG}")
                E(f"s_bitcmp1_b32 {sT0}, 0")
            E(f"s_cselect_b64 vcc, 1, 0")
    def vmop(tag, text):
        E(text); vm.append(tag)
    def vmwait(tag):
        idx = [i for i, t in enumerate(vm) if t == tag][-1]
        E(f"s_waitcnt vmcnt({min(len(vm) - 1 - idx, 62)})")
    def spin_check(lbl_loop):
        E(f"s_sub_u32 {sSPIN}, {sSPIN}, 1")
        E(f"s_cbranch_scc0 {lbl_loop}")
        E(f"s_branch L_end")
    PRI = {1: {("k",0):3, ("k",2):2, ("v",0):1, ("v",2):0}, 2: {("k",0):3, ("v",0):2, ("v",2):1}, 3: {("k",0):3, ("k",3):2, ("v",2):1}, 0: {},
           4: {("k",0):1, ("k",1):1, ("k",2):1, ("k",3):1, ("v",0):1, ("v",1):1, ("v",2):1, ("v",3):1}}[prio]
    def load_tile(kind, T, slot, dep, tag, mid=None, lo=0, hi=8, setp=True):
        srd = rK if kind == "k" else rV
        va = vK if (kind == "k" and "k" not in dbg) else vV
        if setp and lo == 0 and (kind, T) in PRI:
            E(f"s_setprio {PRI[(kind, T)]}")
        if setp and lo == 0 and f"{kind}{T}" in young.split(","):
            u = len(E.L)
            base = [v for k, v in PRI.items() if (k[0] == "k" and kind == "v") or (k[0] == kind and k[1] <= T)]
            b = min(base) if base else 1
            E(f"s_cmp_lt_u32 {sW}, 4")
            E(f"s_cbranch_scc1 L_yp{u}")
            E(f"s_setprio {min(3, b+1)}")
            E.raw(f"L_yp{u}:")
        for i in range(lo, hi):
            if i == 4 and mid: mid()
            if rot:
                E(f"s_xor_b32 {sLD}, {sBASE}, {T*0x200000 + i*1024}")
            elif i == 0 or i == 4 or hi - lo == 1: E(f"s_add_u32 {sLD}, {sBASE}, {T*0x200000 + (i//4)*4096}")
            if depthe and light[0] and dep and len(vm) >= depthe:
                u = len(E.L)
                E.raw(f"    s_cbranch_vccz L_lt{u}"); E._push(None)
                E(f"s_waitcnt vmcnt({depthe-1})")
                E.raw(f"L_lt{u}:")
            if dep and len(vm) >= dep: E(f"s_waitcnt vmcnt({dep-1})")
            r = S[slot] + i*4
            vmop(tag, f"buffer_load_dwordx4 v[{r}:{r+3}], {va}, {srd}, {sLD} offen offset:{0 if rot else (i%4)*1024} {kvflags}")
    def krange(a, b, dep):
        vm[:] = ["x"]*64
        for n_ in range(a, b):
            kind, T = ("k", n_//8) if n_ < 32 else ("v", n_//8 - 4)
            load_tile(kind, T, n_//8, dep, "K", lo=n_%8, hi=n_%8+1, setp=False)
    def red_rows(op, regs, tmp):
        for sw in ("v_permlane16_swap_b32", "v_permlane32_swap_b32"):
            for i, r in enumerate(regs): E(f"v_mov_b32 v{tmp+i}, v{r}")
            for i, r in enumerate(regs): E(f"{sw} v{r}, v{tmp+i}")
            for i, r in enumerate(regs): E(f"{op} v{r}, v{r}, v{tmp+i}")
    def red_ror(op, regs, rors):
        for k in rors:
            for r in regs: E(f"{op}_dpp v{r}, v{r}, v{r} row_ror:{k} {DPPM}")
    def tred4(a0, a1, a2, a3):
        E(f"v_permlane16_swap_b32 v{a0}, v{a1}")
        E(f"v_permlane16_swap_b32 v{a2}, v{a3}")
        E(f"v_add_f32 v{a0}, v{a0}, v{a1}")
        E(f"v_add_f32 v{a2}, v{a2}, v{a3}")
        E(f"v_permlane32_swap_b32 v{a0}, v{a2}")
        E(f"v_add_f32 v{a0}, v{a0}, v{a2}")
    def rb1(dst, src):
        E(f"v_cvt_pk_bf16_f32 v{dst}, v{src}, v{src}")
        E(f"v_lshlrev_b32 v{dst}, 16, v{dst}")
    def rb2(d0, d1, s0, s1, t):
        E(f"v_cvt_pk_bf16_f32 v{t}, v{s0}, v{s1}")
        E(f"v_lshlrev_b32 v{d0}, 16, v{t}")
        E(f"v_and_b32 v{d1}, 0xffff0000, v{t}")
    def tagcheck(regs, t):
        regs = [f"v{r}" for r in regs] + [sTAG]
        if len(regs) % 2 == 0: regs.insert(0, regs[0])
        E(f"v_max3_u32 v{t}, {regs[0]}, {regs[1]}, {regs[2]}")
        E(f"v_min3_u32 v{t+1}, {regs[0]}, {regs[1]}, {regs[2]}")
        for i in range(3, len(regs), 2):
            E(f"v_max3_u32 v{t}, v{t}, {regs[i]}, {regs[i+1]}")
            E(f"v_min3_u32 v{t+1}, v{t+1}, {regs[i]}, {regs[i+1]}")
        E(f"v_cmp_ne_u32 vcc, v{t}, v{t+1}")
    def maxall(regs, t):
        regs = list(regs)
        E(f"v_max3_u32 v{t}, v{regs[0]}, v{regs[1]}, v{regs[2]}")
        i = 3
        while i + 1 < len(regs):
            E(f"v_max3_u32 v{t}, v{t}, v{regs[i]}, v{regs[i+1]}"); i += 2
        if i < len(regs): E(f"v_max_u32 v{t}, v{t}, v{regs[i]}")
    def pollloop(name, load1, groups, tmp, sl):
        n = len(groups)
        E.label(f"L_poll{name}")
        E(f"s_waitcnt vmcnt(0)")
        for i, g in enumerate(groups): maxall(g, tmp+i)
        if n == 2: E(f"v_max_u32 v6, v{tmp}, v{tmp+1}")
        else: maxall(range(tmp, tmp+n), 6)
        E(f"v_cmp_eq_u32 vcc, -1, v6")
        E(f"s_cbranch_vccz L_got{name}")
        if sl: E(f"s_sleep {sl}")
        for i in range(n):
            E(f"v_cmp_eq_u32 vcc, -1, v{tmp+i}")
            E(f"s_mov_b64 exec, vcc")
            load1(i)
            E("s_mov_b64 exec, -1")
        spin_check(f"L_poll{name}")
        E.label(f"L_got{name}")
    def quickpoll(name, load1, firsts, back):
        n = len(firsts)
        mk = [f"s[{8+2*i}:{9+2*i}]" for i in range(n)]
        E.label(f"L_qp{name}")
        E("s_waitcnt vmcnt(0)")
        for i, r in enumerate(firsts): E(f"v_cmp_eq_u32 {mk[i]}, -1, v{r}")
        E(f"s_or_b64 vcc, {mk[0]}, {mk[1]}")
        for i in range(2, n): E(f"s_or_b64 vcc, vcc, {mk[i]}")
        E.raw(f"    s_cbranch_scc0 {back}"); E._push(None)
        for i in range(n):
            E(f"s_mov_b64 exec, {mk[i]}")
            load1(i)
        E("s_mov_b64 exec, -1")
        E(f"s_sub_u32 {sSPIN}, {sSPIN}, 1")
        E.raw(f"    s_cbranch_scc0 L_qp{name}"); E._push(None)
        E("s_branch L_end")
    def mktag():
        E("s_waitcnt lgkmcnt(0)")
        E(f"s_mul_i32 {sTAG}, {sEP}, 0x9E3779B1")
        E(f"s_add_u32 {sTAG}, {sTAG}, 0x7F4A7C15")
    def slice_dma(srd, rowb, soff, lds, n=2):
        if rowb & (rowb-1) == 0: E(f"v_lshl_add_u32 v{T2}, v{T0}, {rowb.bit_length()-1}, v{T1}")
        else:
            E(f"v_mul_u32_u24 v{T2}, {rowb}, v{T0}")
            E(f"v_add_u32 v{T2}, v{T2}, v{T1}")
        E(f"v_xor_b32 v{T3}, 64, v{T2}")
        E(f"s_mul_i32 {sT1}, {sW}, {8*n*rowb}")
        E(f"s_add_u32 {soff}, {soff}, {sT1}")
        E(f"s_mul_i32 {sT1}, {sW}, {1024*n}")
        E(f"s_add_u32 m0, {sT1}, {lds}")
        for i in range(n):
            E(f"buffer_load_dwordx4 v{T2 + i%2}, {srd}, {soff} offen {oflags} lds")
            if i < n-1:
                E(f"s_add_u32 {soff}, {soff}, {8*rowb}")
                E(f"s_add_u32 m0, m0, 1024")
    def part_rows(va, vt):
        E(f"v_lshrrev_b32 v{vt}, 4, {vLANE}")
        E(f"v_lshlrev_b32 v{va}, 13, v{vt}")
        E(f"v_and_b32 v{vt}, 15, {vLANE}")
        E(f"v_lshl_add_u32 v{va}, v{vt}, 8, v{va}")
        E(f"s_lshl_b32 {sT0}, {sG}, 15")
        E(f"s_lshr_b32 {sT1}, {sJ}, 4")
        E(f"s_lshl_b32 {sT1}, {sT1}, 12")
        E(f"s_add_u32 {sT0}, {sT0}, {sT1}")
        E(f"s_and_b32 {sT1}, {sJ}, 15")
        E(f"s_lshl_b32 {sT1}, {sT1}, 4")
        E(f"s_add_u32 {sT0}, {sT0}, {sT1}")
        E(f"s_add_u32 {sT0}, {sT0}, {WS_PART}")
    def slice_prep():
        E(f"v_lshrrev_b32 v{T0}, 3, {vLANE}")
        E(f"v_and_b32 v{T1}, 2, v{T0}")
        E(f"v_and_b32 v{T2}, 7, {vLANE}")
        E(f"v_xor_b32 v{T1}, v{T2}, v{T1}")
        E(f"v_lshlrev_b32 v{T1}, 4, v{T1}")

    hdr = []
    hdr.append("""; Fused adaLN + GQA decode attention + ReLU MLP in one launch: 256 workgroups (one per CU) x 8 waves.
;   d_ws as {data, tag} granules (tag = hash of an epoch word found in d_ws, advanced once per launch).
;   Hand-offs inside a group use plain stores only when every workgroup of the group reported the same die id.""")
    if aslist == 2: hdr.append(f"; @launch kernel=warm_kernel grid=(256,1,1) block=(64,1,1) lds=0")
    if aslist: hdr.append(f"; @launch kernel={KN} grid=(256,1,1) block=(512,1,1) lds={LDS_BYTES}")
    else: hdr.append(f"; @launch grid=(256,1,1) block=(512,1,1) lds={LDS_BYTES}")
    hdr.append('.amdgcn_target "amdgcn-amd-amdhsa--gfx950"\n.text')
    hdr.append(f".globl {KN}\n.p2align 8\n.type {KN},@function\n{KN}:")
    E.raw("\n".join(hdr))
    E("s_cmp_ge_u32 s2, 256")
    E("s_cbranch_scc1 L_end")
    if fixt or (stamps and "e" in stamps): E("s_memrealtime s[48:49]")
    E("s_load_dwordx2 s[8:9], s[0:1], 8")
    if codepf:
        if codepf < 32:
            E(f"s_cmp_ge_u32 s2, {8*codepf}" if pfirst else f"s_cmp_lt_u32 s2, {256-8*codepf}")
            E("s_cbranch_scc1 L_nopf")
        E("s_getpc_b64 s[88:89]")
        E.raw("L_pc:")
        E(f"v_lshlrev_b32 v6, 6, v0")
        E(f"v_min_u32 v6, L_end-L_pc, v6")
        E(f"v_mov_b32 v9, s89")
        E(f"v_add_co_u32 v8, vcc, s88, v6")
        E(f"v_addc_co_u32 v9, vcc, 0, v9, vcc")
        E(f"global_load_dword v24, v[8:9], off")
        E.label("L_nopf")
    E(f"s_and_b32 {sG}, s2, 7")
    if jperm:
        E(f"s_lshr_b32 {sJ}, s2, 4")
        E(f"s_bfe_u32 {sT0}, s2, 0x10003")
        E(f"s_lshl_b32 {sT0}, {sT0}, 4")
        E(f"s_or_b32 {sJ}, {sJ}, {sT0}")
    else: E(f"s_lshr_b32 {sJ}, s2, 3")
    sJE = sJ
    if esw:
        sJE = sT4
        E(f"s_mov_b32 {sJE}, {sJ}")
        for x, y in ((3, 31), (11, 30))[:esw]:
            E(f"s_cmp_eq_u32 {sJ}, {x}")
            E(f"s_cselect_b32 {sJE}, {y}, {sJE}")
            E(f"s_cmp_eq_u32 {sJ}, {y}")
            E(f"s_cselect_b32 {sJE}, {x}, {sJE}")
    if emap:
        E(f"s_and_b32 {sT1}, {sG}, 1")
        E(f"s_lshl_b32 {sT1}, {sT1}, 1")
        E(f"s_sub_u32 {sT0}, {sJE}, 8")
        E(f"s_add_u32 {sT0}, {sT0}, {sT1}")
        E(f"s_cmp_lt_u32 {sJE}, 16")
        E(f"s_cselect_b32 {sT0}, {sJE}, {sT0}")
        E(f"s_add_u32 {sA}, {sT0}, 2")
        E(f"s_mul_i32 {sA}, {sA}, 86")
        E(f"s_lshr_b32 {sA}, {sA}, 8")
        E(f"s_add_u32 {sT0}, {sT0}, {sA}")
        E(f"s_sub_u32 {sA}, {sJE}, 16")
        E(f"s_sub_u32 {sT1}, 8, {sT1}")
        E(f"s_cmp_lt_u32 {sA}, {sT1}")
        E(f"s_lshl_b32 {sA}, {sA}, 2")
        E(f"s_add_u32 {sA}, {sA}, 1")
        E(f"s_sub_u32 {sT3}, {sJE}, 16")
        E(f"s_cmp_lt_u32 {sT3}, {sT1}")
        E(f"s_cselect_b32 {sT0}, {sA}, {sT0}")
        E(f"s_lshl_b32 {sT0}, {sT0}, 2")
        E(f"s_lshr_b32 {sA}, {sG}, 1")
    else:
        E(f"s_lshr_b32 {sA}, {sG}, 1")
        E(f"s_lshl_b32 {sT0}, {sJE}, 2")
    E(f"s_add_u32 {sA}, {sA}, {sT0}")
    if swapq:
        if fmap == 0:
            E(f"s_cmp_lt_u32 {sA}, 96")
            E(f"s_cselect_b32 {sT0}, {sA}, 255")
        else:
            E(f"s_lshl_b32 {sT1}, {sJ}, 1")
            E(f"s_sub_u32 {sT1}, {sA}, {sT1}")
            E(f"s_bitcmp1_b32 {sJ}, 0")
            E(f"s_cselect_b32 {sT1}, 255, {sT1}")
            E(f"s_sub_u32 {sT0}, {sA}, 32")
            E(f"s_cmp_lt_u32 {sJ}, 16")
            E(f"s_cselect_b32 {sT0}, {sT1}, {sT0}")
        E(f"s_add_u32 {sA}, {sA}, 96")
    else: E(f"s_add_u32 {sT0}, {sA}, 128")
    E(f"s_bitcmp1_b32 {sG}, 0")
    E(f"s_cselect_b32 {sA}, {sT0}, {sA}")
    if "a" in dbg: E(f"s_mov_b32 {sA}, 255")
    if "g" in dbg:
        E(f"s_sub_u32 {sT0}, {sA}, 32")
        E(f"s_cmp_lt_u32 {sT0}, 64")
        E(f"s_cselect_b32 {sA}, 255, {sA}")
    E(f"s_cmp_lt_u32 {sA}, 96")
    E(f"s_cselect_b32 {sT0}, 72, 24")
    E(f"s_load_dwordx2 s[20:21], s[0:1], {sT0}")
    E("s_load_dwordx16 s[52:67], s[0:1], 0")
    E("s_load_dwordx8 s[68:75], s[0:1], 64")
    E("s_load_dwordx2 s[76:77], s[0:1], 96")
    E(f"s_cselect_b32 {sT4}, 48, 64")
    E(f"s_cselect_b32 {sT3}, 0, 48")
    E(f"v_lshrrev_b32 v4, 6, v0")
    E(f"v_and_b32 {vLANE}, 63, v0")
    E(f"v_readfirstlane_b32 {sW}, v4")
    slice_prep()
    E(f"s_lshl_b32 {sT4}, {sT4}, 7")
    E(f"s_lshl_b32 s22, {sT4}, 9")
    E(f"s_cmp_lt_u32 {sA}, 224")
    E(f"s_cselect_b32 s22, s22, 0")
    E(f"s_mov_b32 s23, 0x20000")
    E(f"s_lshr_b32 {sT0}, {sA}, 1")
    E(f"s_sub_u32 {sT3}, {sT0}, {sT3}")
    E(f"s_lshl_b32 {sT3}, {sT3}, 7")
    E(f"s_and_b32 {sT2}, {sA}, 1")
    E(f"s_lshl_b32 {sT0}, {sT2}, 3")
    E(f"s_add_u32 {sT0}, {sT0}, {sW}")
    E(f"s_lshl_b32 {sT0}, {sT0}, 5")
    E(f"s_mul_i32 {sT0}, {sT0}, {sT4}")
    E(f"s_add_u32 {sT3}, {sT3}, {sT0}")
    E(f"v_mul_u32_u24 v{T2}, {sT4}, v{T0}")
    E(f"v_add_u32 v{T2}, v{T2}, v{T1}")
    E(f"v_xor_b32 v{T3}, 64, v{T2}")
    E(f"s_lshl_b32 {sT4}, {sT4}, 3")
    E(f"s_lshl_b32 {sT0}, {sW}, 12")
    E(f"s_add_u32 m0, {sT0}, {L_WM}")
    E(f"v_and_b32 v4, 12, {vLANE}")
    E(f"v_lshlrev_b32 {vK}, 6, v4")
    E(f"v_lshrrev_b32 v4, 4, {vLANE}")
    E(f"v_lshl_add_u32 {vK}, v4, 6, {vK}")
    E(f"v_and_b32 v4, 3, {vLANE}")
    E(f"v_lshl_add_u32 {vK}, v4, 4, {vK}")
    E(f"s_lshl_b32 {sBASE}, {sG}, 23")
    E(f"s_andn2_b32 {sT0}, s2, 7")
    E(f"s_add_u32 {sT0}, {sT0}, {sW}")
    E(f"s_lshl_b32 {sT0}, {sT0}, 13")
    E(f"s_add_u32 {sBASE}, {sBASE}, {sT0}")
    E(f"s_mov_b32 s10, 0x4000000")
    E(f"s_mov_b32 s11, 0x20000")
    E(f"v_mov_b32 v5, {L_CNT}")
    for r in range(20, 24): E(f"v_mov_b32 v{r}, 0")
    E(f"ds_write_b128 v5, v[20:23]")
    E(f"ds_write_b64 v5, v[20:21] offset:16")
    E("s_setprio 3")
    E("s_waitcnt lgkmcnt(0)")
    if "4" in dbg:
        E(f"s_cmp_lg_u32 {sW}, 7")
        E("s_cbranch_scc1 L_nb")
        E("v_mov_b32 v6, s2")
        E("v_mov_b32 v7, 0x80")
        E("s_mov_b64 exec, 1")
        E("global_store_byte v6, v7, s[74:75] sc1")
        E("s_mov_b64 exec, -1")
        E.label("L_nb")
    for i in range(4):
        E(f"buffer_load_dwordx4 v{T2 + i%2}, {rWT}, {sT3} offen {eflags} lds")
        if i < 3:
            E(f"s_add_u32 m0, m0, 1024")
            E(f"s_add_u32 {sT3}, {sT3}, {sT4}")
    if "b" not in dbg: E("s_barrier")
    def srd_setup():
        E(f"s_load_dword {sEP}, s[76:77], {WS_EPOCH}")
        E(f"v_lshlrev_b32 {vV}, 4, {vLANE}")
        for d, sr in ((28, 52), (32, 68), (16, 76), (12, 56), (24, 66), (36, 72), (84, 60), (20, 64)):
            E(f"s_mov_b64 s[{d}:{d+1}], s[{sr}:{sr+1}]")
        for d, z in ((28, 1024), (32, 1024), (12, 0x4000000), (16, 0x10000000), (20, 512*1792*2), (24, 512*1792*2), (36, 1024)):
            E(f"s_mov_b32 s{d+2}, {z:#x}")
        for d in (28, 32, 12, 16, 24, 36): E(f"s_mov_b32 s{d+3}, 0x20000")
        stamp(0)
        if stamps and "e" in stamps: E(f"s_mov_b64 s[{52+2*stamps.index('e')}:{53+2*stamps.index('e')}], s[48:49]")
    def late_setup():
        E(f"s_mov_b32 {sSELLO}, 0x05040100")
        E(f"s_mov_b32 {sSELHI}, 0x07060302")
        E(f"s_mov_b32 {sC}, {f32bits(math.log2(math.e)):#x}")
        E(f"s_mov_b32 {sSPIN}, 0x40000")
        E(f"s_getreg_b32 {sXCC}, hwreg(HW_REG_XCC_ID)")
        E(f"s_sub_u32 {sT0}, {sJ}, {jml}")
        E(f"s_cmp_lt_u32 {sT0}, 7")
        E(f"s_cselect_b32 {sML}, 1, 0")
        E(f"s_mul_i32 {sM}, {sG}, 7")
        E(f"s_add_u32 {sM}, {sM}, {sT0}")
        E(f"s_lshl_b32 {sPUB}, {sM}, 11")
        E(f"s_add_u32 {sPUB}, {sPUB}, {WS_MO}")
        E(f"s_cmp_lt_u32 {sJ}, 16")
        E(f"s_cselect_b32 s86, {512*4096*2}, 0")
        E(f"s_mov_b32 s87, 0x20000")
        E(f"s_lshl_b32 {sAOP}, {sG}, 12")
        E(f"s_lshl_b32 {sT0}, {sJ}, 8")
        E(f"s_add_u32 {sAOP}, {sAOP}, {sT0}")
        E(f"s_add_u32 {sAOP}, {sAOP}, {WS_AO}")
    E(f"s_cmp_lt_u32 {sA}, 224")
    E(f"s_cselect_b32 {sT0}, {sW}, 1")
    E(f"s_cmp_eq_u32 {sT0}, 0")
    E("s_cbranch_scc1 L_aux")
    NPRE = 4
    if tlb:
        E(f"s_cmp_lg_u32 {sW}, 1")
        E("s_cbranch_scc1 L_notlb")
        if tlb < 32:
            E(f"s_cmp_ge_u32 {sJ}, {tlb}")
            E("s_cbranch_scc1 L_notlb")
        E(f"v_lshlrev_b32 v6, 21, {vLANE}")
        E(f"s_mov_b64 s[12:13], s[56:57]")
        E(f"s_mov_b32 s14, 0x4000000")
        E(f"s_mov_b32 s15, 0x20000")
        E("s_mov_b64 exec, 15")
        E(f"buffer_load_dword v25, v6, {rK}, {sBASE} offen nt")
        E(f"buffer_load_dword v25, v6, {rV}, {sBASE} offen nt")
        E("s_mov_b64 exec, 1")
        E(f"s_lshl_b32 {sT0}, {sG}, 19")
        E(f"v_mov_b32 v7, {sT0}")
        for pr in (60, 64, 66, 72, 76):
            E(f"global_load_dword v25, {'v7' if pr == 60 else 'v6'}, s[{pr}:{pr+1}]")
        E("s_mov_b64 exec, -1")
        E.label("L_notlb")
    load_tile("k", 0, 0, 0, "K0", hi=NPRE, setp=False)
    srd_setup()
    late_setup()
    E(f"v_mov_b32 v19, 1")
    E("s_mov_b64 exec, 1")
    E(f"s_waitcnt vmcnt({NPRE})")
    E(f"ds_add_u32 v5, v19 offset:4")
    E("s_mov_b64 exec, -1")
    stamp("d")
    E("s_branch L_stream")

    def flag(n):
        E(f"s_lshl_b32 {sT0}, {sJ}, 7")
        E(f"s_lshl_b32 {sT1}, {sG}, 12")
        E(f"s_add_u32 {sT0}, {sT0}, {sT1}")
        E(f"s_add_u32 {sT0}, {sT0}, {WS_CLR}")
        E(f"v_mov_b32 v{T0}, {sXCC}")
        E(f"v_mov_b32 v{T1}, {sTAG}")
        E(f"v_mov_b32 v{T2}, {sXCC}")
        E(f"v_mov_b32 v{T3}, {sTAG}")
        E("s_mov_b64 exec, 0xff")
        E(f"s_waitcnt vmcnt({n})")
        E(f"buffer_store_dwordx4 v[{T0}:{T3}], {vV}, {rWS}, {sT0} offen {'' if '5' in dbg else 'sc1'}")
        E("s_mov_b64 exec, -1")
    def w1_dma():
        E(f"v_lshrrev_b32 v{T0}, 2, {vLANE}")
        E(f"v_mul_u32_u24 v{T0}, 3584, v{T0}")
        E(f"v_and_b32 v{T1}, 3, {vLANE}")
        E(f"v_lshl_add_u32 v{T0}, v{T1}, 4, v{T0}")
        E(f"s_mul_i32 {sT0}, {sW}, {16*3584}")
        E(f"s_lshl_b32 {sT1}, {sM}, 6")
        E(f"s_add_u32 {sT0}, {sT0}, {sT1}")
        E(f"s_lshl_b32 {sT3}, {sW}, 13")
        E(f"s_add_u32 m0, {sT3}, {L_WT}")
        for i in range(4):
            E(f"buffer_load_dwordx4 v{T0}, {rWT}, {sT0} offen {wflags} lds")
            if i < 3:
                E(f"s_add_u32 {sT0}, {sT0}, {128*3584}")
                E(f"s_add_u32 m0, m0, 1024")
    def w2_dma():
        E(f"v_lshrrev_b32 v{T0}, 3, {vLANE}")
        E(f"v_and_b32 v{T1}, 7, {vLANE}")
        E(f"v_lshlrev_b32 v{T1}, 4, v{T1}")
        E(f"v_lshl_add_u32 v{T0}, v{T0}, 10, v{T1}")
        E(f"s_lshl_b32 {sT0}, {sM}, 15")
        E(f"s_lshl_b32 {sT1}, {sW}, 7")
        E(f"s_add_u32 {sT0}, {sT0}, {sT1}")
        E(f"s_lshl_b32 {sT3}, {sW}, 13")
        E(f"s_add_u32 m0, {sT3}, {L_WT + 4096}")
        for i in range(4):
            E(f"buffer_load_dwordx4 v{T0}, {rW2}, {sT0} offen {oflags} lds")
            if i < 3:
                E(f"s_add_u32 {sT0}, {sT0}, 8192")
                E(f"s_add_u32 m0, m0, 1024")
    def w1_pref(skip):
        E(f"s_sub_u32 {sT3}, {sJW}, 16")
        E(f"s_cmp_ge_u32 {sT3}, 8")
        E(f"s_cbranch_scc1 {skip}")
        E(f"v_lshrrev_b32 v{T0}, 5, {vLANE}")
        E(f"v_mul_u32_u24 v{T0}, 3584, v{T0}")
        E(f"v_and_b32 v{T1}, 31, {vLANE}")
        E(f"v_lshl_add_u32 v{T0}, v{T1}, 4, v{T0}")
        E(f"s_lshl_b32 {sT3}, {sT3}, 3")
        E(f"s_add_u32 {sT3}, {sT3}, {sW}")
        E(f"s_mul_i32 {sT0}, {sT3}, {8*3584}")
        E(f"s_mul_i32 {sT1}, {sG}, 448")
        E(f"s_and_b32 {sT1}, {sT1}, 0xffffff80")
        E(f"s_add_u32 {sT0}, {sT0}, {sT1}")
        E(f"s_mov_b32 m0, {L_WO}")
        for i in range(4):
            E(f"buffer_load_dwordx4 v{T0}, {rWT}, {sT0} offen lds")
            if i < 3: E(f"s_add_u32 {sT0}, {sT0}, {2*3584}")
    def wo_pref():
        u = len(E.L)
        E(f"s_cmp_lt_u32 {sJ}, 16")
        E(f"s_cbranch_scc1 L_wp{u}")
        E(f"v_lshrrev_b32 v{T0}, 3, {vLANE}")
        E(f"v_and_b32 v{T1}, 7, {vLANE}")
        E(f"v_lshlrev_b32 v{T1}, 4, v{T1}")
        E(f"v_lshl_add_u32 v{T0}, v{T0}, 10, v{T1}")
        E(f"s_lshl_b32 {sT0}, {sG}, 19")
        E(f"s_bfe_u32 {sT1}, {sJ}, 0x10003")
        E(f"s_lshl_b32 {sT1}, {sT1}, 18")
        E(f"s_add_u32 {sT0}, {sT0}, {sT1}")
        E(f"s_and_b32 {sT1}, {sJ}, 7")
        E(f"s_lshl_b32 {sT1}, {sT1}, 7")
        E(f"s_add_u32 {sT0}, {sT0}, {sT1}")
        E(f"s_lshl_b32 {sT1}, {sW}, 15")
        E(f"s_add_u32 {sT0}, {sT0}, {sT1}")
        E(f"s_mov_b32 s86, {512*4096*2}")
        E(f"s_mov_b32 m0, {L_WO}")
        for i in range(wopf):
            E(f"buffer_load_dwordx4 v{T0}, {rWO}, {sT0} offen lds")
            if i < wopf-1: E(f"s_add_u32 {sT0}, {sT0}, 8192")
        E(f"s_mov_b32 s86, 0")
        E.label(f"L_wp{u}")
    def tail_dma(pos):
        if tpwo != pos or "o" in dbg: return
        u = len(E.L)
        if mlearly:
            E(f"s_cmp_eq_u32 {sML}, 0")
            E(f"s_cbranch_scc1 L_ta{u}")
            (w1_dma if mlearly == 1 else w2_dma)()
            E(f"s_branch L_tb{u}")
            E.label(f"L_ta{u}")
        if w1pf == 1:
            w1_pref(f"L_tc{u}")
            E(f"s_branch L_tb{u}")
            E.label(f"L_tc{u}")
        slice_prep()
        E(f"s_lshl_b32 {sT0}, {sG}, 19")
        E(f"s_lshr_b32 {sT1}, {sJW}, 3")
        E(f"s_lshl_b32 {sT1}, {sT1}, 18")
        E(f"s_add_u32 {sT0}, {sT0}, {sT1}")
        E(f"s_and_b32 {sT1}, {sJW}, 7")
        E(f"s_lshl_b32 {sT1}, {sT1}, 7")
        E(f"s_add_u32 {sT0}, {sT0}, {sT1}")
        slice_dma(rWO, 1024, sT0, L_WO, 4)
        E.label(f"L_tb{u}")
        vm.extend(["WO"]*4)

    E.label("L_aux")
    srd_setup()
    CR = 8; XQ = 12; TRA = 16; XF = 20
    G6 = S[6]; AD = S[6] + 16
    E(f"v_and_b32 v4, 31, {vLANE}")
    E(f"v_lshlrev_b32 v4, 4, v4")
    E(f"v_lshlrev_b32 v6, 2, {vLANE}")
    E(f"s_lshl_b32 {sT0}, {sT2}, 9")
    E(f"s_cmp_ge_u32 {sA}, 96")
    E("s_cbranch_scc1 L_ax")
    E(f"buffer_load_dwordx4 v[{CR}:{CR+3}], v4, {rC}, {sT0} offen")
    E("s_branch L_ay")
    E.label("L_ax")
    E(f"buffer_load_dwordx4 v[{CR}:{CR+3}], {vV}, {rX}, 0 offen")
    E(f"buffer_load_dword v{XQ}, v6, {rX}, {sT0} offen")
    E(f"buffer_load_dword v{XQ+1}, v6, {rX}, {sT0} offen offset:256")
    E.label("L_ay")
    if nb: krange(0, 4, 0)
    late_setup()

    E(f"v_lshrrev_b32 v{T0}, 4, {vLANE}")
    E(f"v_bfe_u32 v{T1}, {vLANE}, 2, 2")
    E(f"v_lshl_add_u32 v{T2}, v{T0}, 3, v{T1}")
    E(f"v_lshlrev_b32 v{T2}, 7, v{T2}")
    E(f"v_and_b32 v{T3}, 3, {vLANE}")
    E(f"v_lshl_add_u32 v{T2}, v{T3}, 3, v{T2}")
    E(f"v_bfe_u32 v{T1}, {vLANE}, 3, 2")
    E(f"v_lshl_add_u32 v{TRA}, v{T1}, 5, v{T2}")
    for nt in range(1, 4): E(f"v_xor_b32 v{TRA+nt}, {nt*32}, v{TRA}")
    vAR = 7
    E(f"v_lshlrev_b32 v{vAR}, 4, v{T0}")
    E(f"s_waitcnt vmcnt({4 if nb else 0})")
    mktag()
    stamp("a0")
    for p in range(4):
        E(f"v_lshlrev_b32 v{XF+2*p}, 16, v{CR+p}")
        E(f"v_and_b32 v{XF+2*p+1}, 0xffff0000, v{CR+p}")
    E(f"s_cmp_ge_u32 {sA}, 96")
    E("s_cbranch_scc1 L_auxq")
    E(f"s_mov_b32 {sT0}, {f32bits(-math.log2(math.e)):#x}")
    for i in range(8): E(f"v_mul_f32 v{G6+i}, {sT0}, v{XF+i}")
    for i in range(8): E(f"v_exp_f32 v{G6+i}, v{G6+i}")
    for i in range(8): E(f"v_add_f32 v{G6+i}, 1.0, v{G6+i}")
    for i in range(8): E(f"v_rcp_f32 v{G6+i}, v{G6+i}")
    for i in range(8): E(f"v_mul_f32 v{XF+i}, v{XF+i}, v{G6+i}")
    for p in range(4): E(f"v_cvt_pk_bf16_f32 v{CR+p}, v{XF+2*p}, v{XF+2*p+1}")
    E(f"ds_write_b128 v4, v[{CR}:{CR+3}] offset:{L_ACT}")
    E("s_branch L_gemv")
    E.label("L_auxq")
    vm[:] = ["x"]*64
    if nb: krange(4, 8, da)
    else:
        for T in range(k1): load_tile("k", T, T, dburst, f"K{T}", setp=False)
    m, v, t = 8, 9, 10
    vals = list(range(XF, XF+8))
    E(f"v_add_f32 v{m}, v{vals[0]}, v{vals[1]}")
    for r in vals[2:]: E(f"v_add_f32 v{m}, v{m}, v{r}")
    red_ror("v_add_f32", [m], (1, 2, 4, 8)); red_rows("v_add_f32", [m], t)
    E(f"v_mul_f32 v{m}, {f32bits(1.0/512):#x}, v{m}")
    for i, r in enumerate(vals):
        E(f"v_sub_f32 v{t}, v{r}, v{m}")
        E(f"v_mul_f32 v{v}, v{t}, v{t}" if i == 0 else f"v_fmac_f32 v{v}, v{t}, v{t}")
    red_ror("v_add_f32", [v], (1, 2, 4, 8)); red_rows("v_add_f32", [v], t)
    E(f"v_mul_f32 v{v}, {f32bits(1.0/512):#x}, v{v}")
    rb2(m, v, m, v, t)
    E(f"v_add_f32 v{v}, {f32bits(1e-5):#x}, v{v}")
    rb1(v, v)
    E(f"v_sqrt_f32 v{v}, v{v}")
    rb1(v, v)
    E(f"v_rcp_f32 v{v}, v{v}")
    for u in range(2):
        n0, n1 = XF+2*u, XF+2*u+1
        E(f"v_lshlrev_b32 v{n0}, 16, v{XQ+u}")
        E(f"v_and_b32 v{n1}, 0xffff0000, v{XQ+u}")
        E(f"v_sub_f32 v{n0}, v{n0}, v{m}")
        E(f"v_sub_f32 v{n1}, v{n1}, v{m}")
        rb2(n0, n1, n0, n1, t)
        E(f"v_mul_f32 v{n0}, v{n0}, v{v}")
        E(f"v_mul_f32 v{n1}, v{n1}, v{v}")
        rb2(n0, n1, n0, n1, t)
    E(f"v_lshrrev_b32 v{T0}, 5, {vLANE}")
    E(f"v_lshl_add_u32 v4, v{T0}, 10, v4")
    E(f"s_lshl_b32 {sT4}, {sT2}, 12")
    E(f"s_add_u32 {sT4}, {sT4}, {WS_EP}")
    E(f"s_add_u32 {sT3}, {sT4}, 8192")
    def modpoll():
        for arr in range(2):
            for u in range(2):
                for part in range(2):
                    r = G6 + (arr*4 + u*2 + part)*4
                    E(f"buffer_load_dwordx4 v[{r}:{r+3}], v4, {rWS}, {sT3 if arr else sT4} offen offset:{u*2048 + part*512} sc1")
    if nb:
        krange(8, pa, da)
        modpoll()
        krange(pa, pa+la, da+8)
        E(f"s_waitcnt vmcnt({la})")
        tagcheck([G6+1+2*i for i in range(16)], T0)
        E("s_cbranch_vccz L_gotmod")
    E.label("L_pollmod")
    modpoll()
    E("s_waitcnt vmcnt(0)")
    tagcheck([G6+1+2*i for i in range(16)], T0)
    E("s_cbranch_vccz L_gotmod")
    if slp: E(f"s_sleep {slp}")
    spin_check("L_pollmod")
    E.label("L_gotmod")
    stamp(2)
    for u in range(2):
        n0, n1 = XF+2*u, XF+2*u+1
        s0 = G6 + u*8; s1 = s0+2; c0 = G6 + 16 + u*8; c1 = c0+2
        for r in (s0, s1, c0, c1): E(f"v_add_f32 v{r}, v{r}, v{r+4}")
        rb2(s0, s1, s0, s1, t); rb2(c0, c1, c0, c1, t)
        E(f"v_add_f32 v{c0}, 1.0, v{c0}")
        E(f"v_add_f32 v{c1}, 1.0, v{c1}")
        rb2(c0, c1, c0, c1, t)
        E(f"v_mul_f32 v{n0}, v{n0}, v{c0}")
        E(f"v_mul_f32 v{n1}, v{n1}, v{c1}")
        rb2(n0, n1, n0, n1, t)
        E(f"v_add_f32 v{n0}, v{n0}, v{s0}")
        E(f"v_add_f32 v{n1}, v{n1}, v{s1}")
        E(f"v_cvt_pk_bf16_f32 v{n0}, v{n0}, v{n1}")
        E(f"ds_write_b32 v6, v{n0} offset:{L_ACT + u*256}")
    E.label("L_gemv")
    E(f"ds_read_b32 v{T0}, v5 offset:4")
    E("s_waitcnt lgkmcnt(0)")
    E(f"v_readfirstlane_b32 {sT1}, v{T0}")
    E(f"s_cmp_lg_u32 {sT1}, 7")
    E(f"s_cbranch_scc1 L_gemv")
    stamp("a2")
    if stamps: E("s_waitcnt lgkmcnt(0)")
    def g_reads(st):
        b = S[4] + (st % 3)*20
        E(f"ds_read_b128 v[{b}:{b+3}], v{vAR} offset:{L_ACT + st*64}")
        for nt in range(4):
            for q in range(2):
                r = b + 4 + nt*4 + q*2
                E(f"ds_read_b64_tr_b16 v[{r}:{r+1}], v{TRA+nt} offset:{L_WM + st*4096 + q*512}")
    g_reads(0); g_reads(1)
    E(f"s_lshl_b32 {sT4}, {sA}, 9")
    E(f"s_add_u32 {sT4}, {sT4}, {WS_EP}")
    E(f"v_lshlrev_b32 v4, 3, {vLANE}")
    for st in range(8):
        E(f"s_waitcnt lgkmcnt({9 if st < 7 else 0})")
        if st + 2 < 8: g_reads(st+2)
        b = S[4] + (st % 3)*20
        for nt in range(4):
            d = AD + 4*nt
            c = "0" if st == 0 else f"v[{d}:{d+3}]"
            E(f"v_mfma_f32_16x16x32_bf16 v[{d}:{d+3}], v[{b}:{b+3}], v[{b+4+4*nt}:{b+7+4*nt}], {c}")
    E(f"v_mov_b32 v9, {sTAG}")
    for nt in range(1, 4):
        E(f"v_mov_b32_dpp v{AD}, v{AD+4*nt} quad_perm:[0,1,2,3] row_mask:{1<<nt:#x} bank_mask:0xf")
    E(f"v_mov_b32 v8, v{AD}")
    E(f"s_cmp_lt_u32 {sA}, 32")
    E(f"s_cselect_b32 {sT2}, 1, {sT2}")
    E(f"s_cmp_eq_u32 {sT2}, 0")
    E("s_cbranch_scc1 L_owner")
    E(f"buffer_store_dwordx2 v[8:9], v4, {rWS}, {sT4} offen sc1")
    stamp(1)
    E(f"s_cmp_ge_u32 {sA}, 96")
    E(f"s_cbranch_scc1 {(f'L_x{pa+la}' if ext else f'L_j{pa+la}') if nb else f'L_cu{k1}'}")
    E(("s_branch L_x4" if ext == 2 else "s_branch L_stream") if nb else "s_branch L_cu0")
    E.label("L_owner")
    E(f"s_cmp_ge_u32 {sA}, 96")
    E(f"s_cbranch_scc1 L_own2")

    def redpoll(): E(f"buffer_load_dwordx2 v[10:11], v4, {rWS}, {sT4} offen offset:512 sc1")
    if nb:
        krange(4, pa+la, da)
        E.label("L_own2")
        krange(pa+la, pb, da)
        redpoll()
        krange(pb, pb+lb, da+1)
        E(f"s_waitcnt vmcnt({lb})")
        E(f"v_cmp_ne_u32 vcc, {sTAG}, v11")
        E("s_cbranch_vccz L_gotred")
    else:
        vm[:] = ["x"]*64
        for T in range(k1): load_tile("k", T, T, dburst, f"K{T}", setp=False)
        E.label("L_own2")
        for T in range(k1, k2): load_tile("k", T, T, dburst, f"K{T}", setp=False)
    E.label("L_pollred")
    E(f"buffer_load_dwordx2 v[10:11], v4, {rWS}, {sT4} offen offset:512 sc1")
    E("s_waitcnt vmcnt(0)")
    E(f"v_cmp_ne_u32 vcc, {sTAG}, v11")
    E("s_cbranch_vccz L_gotred")
    spin_check("L_pollred")
    E.label("L_gotred")
    E(f"v_add_f32 v8, v8, v10")
    E(f"s_lshl_b32 {sT0}, {sA}, 7")
    E(f"s_add_u32 {sT0}, {sT0}, {WS_MODG}")
    E(f"v_mov_b32_dpp v10, v8 quad_perm:[1,1,3,3] {DPPM}")
    E(f"v_cvt_pk_bf16_f32 v8, v8, v10")
    E(f"s_mov_b32 exec_lo, 0x55555555")
    E(f"s_mov_b32 exec_hi, 0x55555555")
    E(f"buffer_store_dwordx2 v[8:9], v6, {rWS}, {sT0} offen sc1")
    E(f"s_mov_b64 exec, -1")
    stamp(3)
    E((f"s_branch L_x{pb+lb}" if ext else f"s_branch L_j{pb+lb}") if nb else f"s_branch L_cu{k2}")
    if nb and ext:
        for n0 in range(4 if ext == 2 else pa+la, 40, 4):
            E.label(f"L_x{n0}")
            krange(n0, n0+4, dx)
        E.label("L_x40")
        if prio == 3: E("s_setprio 2")
        E("s_branch L_v1")
    vm[:] = ["x"]*depth0
    for T in range(0 if nb else 4):
        E.label(f"L_cu{T}")
        if p0 != 3: E(f"s_setprio {p0}")
        if wmx and T >= wmx:
            E(f"s_cmp_lt_u32 {sA}, 96")
            E(f"s_cbranch_scc1 L_sk{T}")
        load_tile("k", T, T, depth0, f"K{T}", setp=False)
    E.label("L_cu4")
    assert tpwo != 2
    if not nb:
        load_tile("v", 0, 4, depth0, "V0", setp=False)
        setlight()
        E("s_branch L_v1")

    vm[:] = ["K0"]*NPRE
    E.label("L_stream")
    setlight(); light[0] = True
    load_tile("k", 0, 0, depth, "K0", lo=NPRE)
    E(f"s_cmp_lg_u32 {sW}, {99 if 'l' in dbg else fwave}")
    E("s_cbranch_scc1 L_sk1")
    for r in range(20, 24): E(f"v_mov_b32 v{r}, -1")
    E(f"s_cmp_ge_u32 {sJ}, 16")
    E("s_cbranch_scc1 L_noclr2")
    if rep:
        E(f"v_lshrrev_b32 v18, 4, {vLANE}")
        E(f"v_lshlrev_b32 v18, 15, v18")
        E(f"v_and_b32 v19, 15, {vLANE}")
        E(f"v_lshl_add_u32 v18, v19, 4, v18")
        E(f"buffer_store_dwordx4 v[20:23], v18, {rWS}, {sAOP} offen sc1")
        E(f"s_add_u32 {sT0}, {sAOP}, {4*32768}")
        E(f"buffer_store_dwordx4 v[20:23], v18, {rWS}, {sT0} offen sc1")
    else:
        E("s_mov_b64 exec, 0xffff")
        if "1" not in dbg: E(f"buffer_store_dwordx4 v[20:23], {vV}, {rWS}, {sAOP} offen sc1")
        E("s_mov_b64 exec, -1")
    E.label("L_noclr2")
    if mlite:
        E(f"s_sub_u32 {sT0}, {sJ}, 16")
        E(f"s_cmp_ge_u32 {sT0}, 7")
        E("s_cbranch_scc1 L_noclr0")
        E(f"s_add_u32 {sT0}, {sPUB}, {(jml-16)*2048}")
    else:
        E(f"s_cmp_eq_u32 {sML}, 0")
        E("s_cbranch_scc1 L_noclr0")
        E(f"s_mov_b32 {sT0}, {sPUB}")
    for i in range(0 if "2" in dbg else 2):
        E(f"buffer_store_dwordx4 v[20:23], {vV}, {rWS}, {sT0} offen offset:{1024*i} sc1")
    E.label("L_noclr0")
    if wb:
        sv = list(vm)
        load_tile("k", 1, 1, depth+wb, "K1")
        mktag()
        flag(8)
        load_tile("k", 2, 2, depth+wb, "K2")
        E("s_branch L_sk3")
        vm[:] = sv
    load_tile("k", 1, 1, depth, "K1", hi=4)
    mktag()
    if fpos < 0 and "3" not in dbg: flag(4)
    if fixw >= 0:
        E(f"s_cmp_lg_u32 s2, {fixw}")
        E("s_cbranch_scc1 L_nofw")
        E(f"v_mov_b32 v{T0}, s48")
        E(f"v_mov_b32 v{T2}, 0x800")
        E(f"buffer_store_dword v{T0}, v{T2}, {rWS}, 0 offen sc1")
        E.label("L_nofw")
    E("s_branch L_k1b")
    E.label("L_sk1")
    del vm[-4:]
    load_tile("k", 1, 1, depth, "K1", hi=4)
    mktag()
    E.label("L_k1b")
    E.raw("L_j12:")
    load_tile("k", 1, 1, depth, "K1", lo=4)
    if w1e:
        E(f"s_cmp_ge_u32 {sA}, 224")
        E(f"s_cselect_b32 {sT0}, {sML}, 0")
        E(f"s_cmp_eq_u32 {sT0}, 0")
        E("s_cbranch_scc1 L_sk2")
        w1_dma()
    E.label("L_sk2")
    E.raw("L_j16:")
    stamp("k2")
    load_tile("k", 2, 2, depth, "K2", hi=4)
    E.raw("L_j20:")
    load_tile("k", 2, 2, depth, "K2", lo=4)
    E.label("L_sk3")
    E.raw("L_j24:")
    load_tile("k", 3, 3, depth, "K3", hi=4)
    E.raw("L_j28:")
    load_tile("k", 3, 3, depth, "K3", lo=4)
    E.label("L_sk4")
    E.raw("L_j32:")
    stamp("k4")
    if nb and prio == 3: E("s_setprio 2")
    tail_dma(2)
    QP = 8
    def qloads():
        if "p" in dbg: return
        u = len(E.L)
        if not mlite:
            E(f"s_cmp_eq_u32 {sML}, 0")
            E(f"s_cbranch_scc1 L_nwf{u}")
            E(f"buffer_load_dwordx2 v[20:21], v17, {rWS}, 0 offen sc1")
            E(f"buffer_load_dwordx2 v[22:23], v17, {rWS}, 0 offen offset:1024 sc1")
            E.label(f"L_nwf{u}")
        E(f"buffer_load_dwordx4 v[{QP}:{QP+3}], v18, {rWS}, {sT2} offen sc1")
        E(f"buffer_load_dwordx4 v[{QP+4}:{QP+7}], v18, {rWS}, {sT2} offen offset:16 sc1")
        E(f"buffer_load_dwordx2 v[{T0}:{T1}], v19, {rWS}, 0 offen sc1")
    seq = [("v", 0, 4, i) for i in range(8)] + [("v", 1, 5, i) for i in range(8)] + [("v", 2, 6, i) for i in range(8)] + [("v", 3, 0, i) for i in range(8)]
    def issue(x): load_tile(x[0], x[1], x[2], (depthv if (depthv and x[1]*8+x[3] >= dvat) else depth), f"V{x[1]}", lo=x[3], hi=x[3]+1)
    for n_, x in enumerate(seq[:8]):
        if fpos == n_:
            E(f"s_cmp_lg_u32 {sW}, {fwave}")
            E("s_cbranch_scc1 L_nofl")
            flag(depth)
            E.label("L_nofl")
        if n_ == 4:
            E.raw("L_j36:")
            if nb and prio == 3: E("s_setprio 2")
        issue(x)
    E.label("L_v1")
    if wopf and wopos == 2: wo_pref()
    for x in seq[8:qat-1]: issue(x)
    E(f"v_mov_b32 v4, 1")
    E("s_mov_b64 exec, 1")
    E(f"ds_add_rtn_u32 v4, v5, v4 offset:12")
    E("s_mov_b64 exec, -1")
    issue(seq[qat-1])
    E(f"s_cmp_eq_u32 {sML}, 0")
    E("s_cbranch_scc1 L_nomdma")
    E(f"s_lshl_b32 {sT0}, {sW}, 10")
    E(f"s_add_u32 m0, {sT0}, {L_MOD}")
    E(f"s_add_u32 {sT0}, {sT0}, {WS_MODG + 4096}")
    E(f"buffer_load_dwordx4 {vV}, {rWS}, {sT0} offen sc1 lds")
    E.label("L_nomdma")
    E(f"v_lshlrev_b32 v18, 1, {vK}")
    E(f"s_lshl_b32 {sT2}, {sG}, 11")
    E(f"s_add_u32 {sT2}, {sT2}, {WS_QG}")
    E(f"v_and_b32 v19, 31, {vLANE}")
    E(f"s_lshl_b32 {sT0}, {sG}, 12")
    E(f"s_add_u32 {sT0}, {sT0}, {WS_CLR}")
    E(f"v_lshl_add_u32 v19, v19, 7, {sT0}")
    E(f"v_mov_b32 v21, {sTAG}")
    E(f"v_mov_b32 v23, {sTAG}")
    E(f"v_lshrrev_b32 v17, 3, {vLANE}")
    E(f"v_lshlrev_b32 v17, 12, v17")
    E(f"v_and_b32 v16, 7, {vLANE}")
    E(f"v_lshl_add_u32 v17, v16, 7, v17")
    E(f"v_add_u32 v17, {WS_CLR}, v17")
    E("s_waitcnt lgkmcnt(0)")
    E(f"v_readfirstlane_b32 {sSK}, v4")
    E(f"s_cmp_lg_u32 {sSK}, 0")
    E("s_cbranch_scc1 L_noqp")
    if dyn == 1:
        E(f"s_load_dwordx2 s[32:33], s[0:1], 88")
        E(f"s_mov_b32 s34, 256")
        E(f"s_lshl_b32 {sT0}, {sG}, 5")
        E(f"s_xor_b32 {sT1}, {sML}, 1")
        E(f"v_mov_b32 v24, {sT1}")
        E(f"v_mov_b32 v25, 0")
        E("s_waitcnt lgkmcnt(0)")
        E("s_mov_b64 exec, 1")
        E(f"buffer_atomic_add v24, v25, {rC}, {sT0} offen sc0 sc1")
        E("s_mov_b64 exec, -1")
    qloads()
    E.label("L_noqp")
    if dyn == 2:
        E(f"s_cmp_lg_u32 {sSK}, {dynt}")
        E("s_cbranch_scc1 L_notk")
        E(f"s_load_dwordx2 s[32:33], s[0:1], 88")
        E(f"s_mov_b32 s34, 256")
        E(f"s_lshl_b32 {sT0}, {sG}, 5")
        E(f"s_xor_b32 {sT1}, {sML}, 1")
        E(f"v_mov_b32 v24, {sT1}")
        E(f"v_mov_b32 v25, 0")
        E("s_waitcnt lgkmcnt(0)")
        E("s_mov_b64 exec, 1")
        E(f"buffer_atomic_add v24, v25, {rC}, {sT0} offen sc0 sc1")
        E("s_mov_b64 exec, -1")
        E.label("L_notk")
    for x in seq[qat:18]: issue(x)
    nxt = seq[18:]
    stamp("q0")
    if dyn == 2:
        E(f"s_cmp_lg_u32 {sSK}, {dynt}")
        E("s_cbranch_scc1 L_notk2")
        E(f"s_lshl_b32 {sT0}, {sML}, 6")
        E(f"s_add_u32 {sT0}, {sT0}, 1")
        E(f"s_waitcnt vmcnt({18-qat})")
        E(f"v_add_u32 v24, {sT0}, v24")
        E("s_mov_b64 exec, 1")
        E(f"ds_write_b32 v5, v24 offset:20")
        E("s_mov_b64 exec, -1")
        E.label("L_notk2")
    E(f"s_cmp_lg_u32 {sSK}, 0")
    E("s_cbranch_scc1 L_waitq")
    E(f"s_waitcnt vmcnt({18-qat})")
    QT = [QP+1, QP+3, QP+5, QP+7, T1, 21, 23]
    E.label("L_checkq")
    tagcheck(QT, 6)
    E("s_branch L_gotq" if "q" in dbg else "s_cbranch_vccz L_gotq")
    if slpq: E(f"s_sleep {slpq}")
    qloads()
    E("s_waitcnt vmcnt(0)")
    spin_check("L_checkq")
    E.label("L_gotq")
    E(f"v_cmp_ne_u32 vcc, {sXCC}, v{T0}")
    for i in range(4): E(f"v_mov_b32 v{Q0+i}, v{QP+2*i}")
    E(f"ds_write_b128 {vV}, v[{Q0}:{Q0+3}] offset:{L_Q}")
    E(f"s_cmp_eq_u64 vcc, 0")
    E(f"s_cselect_b32 {sPL}, {2 if fast else 1}, 1")
    if dyn == 1:
        E(f"v_readfirstlane_b32 {sJW}, v24")
        E(f"s_lshl_b32 {sT0}, {sML}, 6")
        E(f"s_or_b32 {sJW}, {sJW}, {sT0}")
        E(f"s_lshl_b32 {sT0}, {sJW}, 8")
        E(f"s_or_b32 {sT0}, {sT0}, {sPL}")
        E(f"v_mov_b32 v4, {sT0}")
    else: E(f"v_mov_b32 v4, {sPL}")
    E("s_waitcnt lgkmcnt(0)")
    E(f"ds_write_b32 v5, v4 offset:16")
    def gstore(text):
        if "s" in dbg: return
        if "f" in dbg: E(text); return
        u = len(E.L)
        E(f"s_cmp_eq_u32 {sPL}, 2")
        E(f"s_cbranch_scc1 L_gs{u}")
        E(text + " sc1")
        E(f"s_branch L_gt{u}")
        E.raw(f"L_gs{u}:")
        E(text)
        E.raw(f"L_gt{u}:")
    part_rows(6, 7)
    for r in (T0, T1, T2, T3): E(f"v_mov_b32 v{r}, -1")
    gstore(f"buffer_store_dwordx4 v[{T0}:{T3}], v6, {rWS}, {sT0} offen")
    E("s_branch L_haveq")
    E.label("L_waitq")
    E(f"ds_read_b32 v4, v5 offset:16")
    E("s_waitcnt lgkmcnt(0)")
    E(f"v_readfirstlane_b32 {sPL}, v4")
    E(f"s_cmp_lg_u32 {sPL}, 0")
    E("s_cbranch_scc1 L_readq")
    E("s_sleep 1")
    spin_check("L_waitq")
    E.label("L_readq")
    if dyn == 1:
        E(f"s_lshr_b32 {sJW}, {sPL}, 8")
        E(f"s_and_b32 {sPL}, {sPL}, 0xff")
    E(f"ds_read_b128 v[{Q0}:{Q0+3}], {vV} offset:{L_Q}")
    vmwait("K3")
    E("s_waitcnt lgkmcnt(0)")
    E.label("L_haveq")
    def role_setup():
        E(f"s_cmp_lt_u32 {sJW}, 16")
        E(f"s_cselect_b32 s86, {512*4096*2}, 0")
        E(f"s_lshl_b32 {sAOP}, {sG}, 12")
        E(f"s_lshl_b32 {sT0}, {sJW}, 8")
        E(f"s_add_u32 {sAOP}, {sAOP}, {sT0}")
        E(f"s_add_u32 {sAOP}, {sAOP}, {WS_AO}")
    if dyn == 1: role_setup()
    setlight()
    stamp(4)
    nq = len(vm)
    def sc(T, i): return 20 + i if T == 0 else S[1] + 4*i + (T-1)
    SCR = [sc(T, i) for T in range(4) for i in range(8)]
    def s_tile(T):
        for i in range(8):
            r = S[T] + 4*i
            E(f"v_mfma_f32_16x16x32_bf16 v[{r}:{r+3}], v[{r}:{r+3}], v[{Q0}:{Q0+3}], 0")
        for c in range(4):
            for i in range(8):
                r = S[T] + 4*i; d = sc(T, i)
                if c == 0: E(f"v_mov_b32_dpp v{d}, v{r} quad_perm:[0,0,0,0] {DPPM}")
                else: E(f"v_add_f32_dpp v{d}, v{r+c}, v{d} quad_perm:[{c},{c},{c},{c}] {DPPM}")
    def s_round(T):
        rs = SCR[8*T:8*T+8]
        for i in range(0, 8, 2): rb2(rs[i], rs[i+1], rs[i], rs[i+1], T0 + i//2)
        for r in rs: E(f"v_mul_f32 v{r}, {sT1}, v{r}")
        for i in range(0, 8, 2): rb2(rs[i], rs[i+1], rs[i], rs[i+1], T0 + i//2)
    E(f"s_mov_b32 {sT1}, {f32bits(128.0**-0.5):#x}")
    def more(n, leave=0):
        for _ in range(n*rate):
            if len(nxt) <= leave: return
            issue(nxt.pop(0))
    for T in range(4):
        s_tile(T); more(1)
        s_round(T); more(1 if T < 2 else 0)
    stamp("c0")
    MX, LS = 6, 7
    E(f"v_max3_f32 v{MX}, v{SCR[0]}, v{SCR[1]}, v{SCR[2]}")
    for i in range(3, 31, 2): E(f"v_max3_f32 v{MX}, v{MX}, v{SCR[i]}, v{SCR[i+1]}")
    E(f"v_max_f32 v{MX}, v{MX}, v{SCR[31]}")
    red_rows("v_max_f32", [MX], T0)
    E(f"v_mul_f32 v{MX}, {sC}, v{MX}")
    more(1)
    for r in SCR: E(f"v_fma_f32 v{r}, v{r}, {sC}, -v{MX}")
    more(1)
    for r in SCR: E(f"v_exp_f32 v{r}, v{r}")
    more(1)
    E(f"v_add_f32 v{LS}, v{SCR[0]}, v{SCR[1]}")
    E(f"v_add_f32 v{T0}, v{SCR[2]}, v{SCR[3]}")
    for i in range(4, 32, 2):
        E(f"v_add_f32 v{LS}, v{LS}, v{SCR[i]}")
        E(f"v_add_f32 v{T0}, v{T0}, v{SCR[i+1]}")
    E(f"v_add_f32 v{LS}, v{LS}, v{T0}")
    red_rows("v_add_f32", [LS], T0)
    E(f"v_and_b32 v{T0}, 12, {vLANE}")
    E(f"v_lshlrev_b32 v{T0}, 1, v{T0}")
    E(f"s_lshl_b32 {sT0}, {sW}, 5")
    E(f"v_add_u32 v{T0}, {sT0}, v{T0}")
    E(f"ds_write_b64 v{T0}, v[{MX}:{LS}] offset:{L_STATS}")
    E(f"v_mov_b32 v{T2}, 1")
    E(f"s_waitcnt vmcnt({len(vm) - nq}) lgkmcnt(0)")
    E("s_mov_b64 exec, 1")
    E(f"ds_add_rtn_u32 v{T2}, v5, v{T2}")
    E("s_mov_b64 exec, -1")
    PR = [8, 12, 20, 24]
    for T in range(4):
        for i in range(4): E(f"v_cvt_pk_bf16_f32 v{PR[T]+i}, v{SCR[8*T+2*i]}, v{SCR[8*T+2*i+1]}")
    more(1)
    E("s_waitcnt lgkmcnt(0)")
    E(f"v_readfirstlane_b32 {sLAST}, v{T2}")
    X = S[1]
    E(f"s_cmp_lg_u32 {sLAST}, 7")
    E("s_cbranch_scc1 L_nostat")
    E(f"v_and_b32 v{T0}, 31, {vLANE}")
    E(f"v_lshlrev_b32 v{T1}, 3, v{T0}")
    E(f"ds_read_b64 v[6:7], v{T1} offset:{L_STATS}")
    E(f"v_and_b32 v{T1}, 3, v{T0}")
    E(f"v_and_b32 v{T0}, 28, v{T0}")
    E(f"v_lshl_add_u32 v{T0}, v{T1}, 5, v{T0}")
    E(f"v_mov_b32 v{T2}, {sJ}")
    E(f"v_lshlrev_b32 v{T1}, 9, v{T1}")
    E(f"v_lshl_add_u32 v{T1}, v{T2}, 4, v{T1}")
    E("s_waitcnt lgkmcnt(0)")
    E(f"v_mov_b32 v16, v6")
    red_ror("v_max_f32", [16], (4, 8))
    E(f"v_mov_b32 v17, v16")
    E(f"v_permlane16_swap_b32 v16, v17")
    E(f"v_max_f32 v16, v16, v17")
    E(f"v_sub_f32 v6, v6, v16")
    E(f"v_exp_f32 v6, v6")
    E(f"v_mul_f32 v18, v6, v7")
    E(f"ds_write_b32 v{T0}, v6 offset:{L_FAC}")
    red_ror("v_add_f32", [18], (4, 8))
    E(f"v_mov_b32 v17, v18")
    E(f"v_permlane16_swap_b32 v18, v17")
    E(f"v_add_f32 v18, v17, v18")
    E(f"v_mov_b32 v17, {sTAG}")
    E(f"v_mov_b32 v19, {sTAG}")
    E(f"s_lshl_b32 {sT0}, {sG}, 11")
    E(f"s_add_u32 {sT0}, {sT0}, {WS_STAT}")
    E("s_mov_b64 exec, 15")
    gstore(f"buffer_store_dwordx4 v[16:19], v{T1}, {rWS}, {sT0} offen")
    E("s_mov_b64 exec, -1")
    E.label("L_nostat")
    stamp("c1")
    vGQ, vN, vCOL, vGAA, vCH, vU16, vOW, vT8, vL4, vGATH, vRR, vRW, vFR, vSTA, vWBW, vWBR = [X+i for i in range(16)]
    TRB = X+16; GA = X+20; GB = X+24; SP = X+24; XT = X+30; vWER = X+31
    def wcalc():
        E(f"v_mov_b32 v{T0}, v{SP}")
        red_ror("v_max_f32", [T0], (1, 2, 4, 8))
        E(f"v_mov_b32 v{T1}, v{T0}")
        E(f"v_permlane16_swap_b32 v{T0}, v{T1}")
        E(f"v_max_f32 v{T0}, v{T0}, v{T1}")
        E(f"v_sub_f32 v{SP}, v{SP}, v{T0}")
        E(f"v_exp_f32 v{SP}, v{SP}")
        E(f"v_mul_f32 v{T0}, v{SP}, v{SP+2}")
        red_ror("v_add_f32", [T0], (1, 2, 4, 8))
        E(f"v_mov_b32 v{T1}, v{T0}")
        E(f"v_permlane16_swap_b32 v{T0}, v{T1}")
        E(f"v_add_f32 v{T0}, v{T0}, v{T1}")
        E(f"v_rcp_f32 v{T0}, v{T0}")
        E(f"v_mul_f32 v{T0}, v{T0}, v{SP}")
    tail_dma(3)
    if wopf and wopos == 3: wo_pref()
    ACCO = S[2]; TP = S[3]
    first = [True]
    def pv_perm(slot, mm):
        for dw in range(4):
            a = S[slot] + (2*mm)*4 + dw; b = S[slot] + (2*mm+1)*4 + dw
            E(f"v_perm_b32 v{TP + (2*dw)*4 + mm}, v{b}, v{a}, {sSELLO}")
            E(f"v_perm_b32 v{TP + (2*dw+1)*4 + mm}, v{b}, v{a}, {sSELHI}")
    def pv_mfma(T):
        for e in range(8):
            c = "0" if first[0] else f"v[{ACCO+4*e}:{ACCO+4*e+3}]"
            E(f"v_mfma_f32_16x16x32_bf16 v[{ACCO+4*e}:{ACCO+4*e+3}], v[{PR[T]}:{PR[T]+3}], v[{TP+4*e}:{TP+4*e+3}], {c}")
        first[0] = False
    def pv(slot, T):
        for mm in range(4): pv_perm(slot, mm)
        pv_mfma(T)
    more(1)
    vmwait("V0"); pv(4, 0)
    more(1)
    vmwait("V1"); pv(5, 1)
    more(16, leave=2)
    if dyn == 2:
        E.label("L_tkw")
        E(f"ds_read_b32 v{T0}, v5 offset:20")
        E("s_waitcnt lgkmcnt(0)")
        E(f"v_readfirstlane_b32 {sJW}, v{T0}")
        E(f"s_cmp_eq_u32 {sJW}, 0")
        E("s_cbranch_scc1 L_tkw")
        E(f"s_sub_u32 {sJW}, {sJW}, 1")
        role_setup()
    if ewt:
        E(f"s_cmp_lt_u32 {sJW}, 16")
        E(f"s_cselect_b32 {sLAST}, {sLAST}, 0")
        E(f"s_cmp_lg_u32 {sLAST}, 7")
        E("s_cbranch_scc1 L_noes")
        E(f"s_lshl_b32 {sT0}, {sG}, 11")
        E(f"s_lshr_b32 {sT1}, {sJW}, 3")
        E(f"s_lshl_b32 {sT1}, {sT1}, 10")
        E(f"s_add_u32 {sT0}, {sT0}, {sT1}")
        E(f"s_add_u32 {sT0}, {sT0}, {WS_STAT}")
        E(f"buffer_load_dwordx4 v[{SP}:{SP+3}], {vV}, {rWS}, {sT0} offen sc1")
        E.label("L_noes")
        ewt_after = len(nxt)
    more(16)
    stamp("c3")
    if prio >= 2: E("s_setprio 0")
    tail_dma(4)
    if prio >= 2: E("s_setprio 3")
    vmwait("V2"); pv(6, 2)
    nyoung = len(vm) - 1 - [i for i, t in enumerate(vm) if t == "V3"][-1]
    WB = S[4]; SCF = S[5]; WT8 = S[5]; PK = S[5]+16; GBF = S[6]
    W1 = WB; W2 = S[3]+16
    E(f"v_lshrrev_b32 v{vGQ}, 4, {vLANE}")
    E(f"v_and_b32 v{vN}, 15, {vLANE}")
    E(f"s_lshl_b32 {sT0}, {sW}, 11")
    E(f"v_lshlrev_b32 v{vRR}, 5, {vLANE}")
    E(f"v_add_u32 v{vOW}, {sT0}, v{vRR}")
    E(f"v_lshlrev_b32 v{vT8}, 3, v0")
    E(f"v_lshlrev_b32 v{vL4}, 2, {vLANE}")
    E(f"s_lshl_b32 {sT1}, {sW}, 5")
    E(f"v_mov_b32 v{vFR}, {sT1}")
    E(f"v_bfe_u32 v{T1}, {vLANE}, 2, 2")
    E(f"v_lshl_add_u32 v{T2}, v{vGQ}, 3, v{T1}")
    E(f"v_lshlrev_b32 v{T2}, 7, v{T2}")
    E(f"v_and_b32 v{T3}, 3, {vLANE}")
    E(f"v_lshl_add_u32 v{T2}, v{T3}, 3, v{T2}")
    E(f"v_bfe_u32 v{T1}, {vLANE}, 3, 2")
    E(f"v_lshl_add_u32 v{T2}, v{T1}, 5, v{T2}")
    E(f"s_lshl_b32 {sT0}, {sW}, 12")
    E(f"s_add_u32 {sT0}, {sT0}, {L_WO}")
    E(f"v_add_u32 v{TRB}, {sT0}, v{T2}")
    for nt in range(1, 4): E(f"v_xor_b32 v{TRB+nt}, {nt*32}, v{TRB}")
    E(f"s_lshl_b32 {sT0}, {sG}, 2")
    E(f"s_add_u32 {sPP}, {sT0}, {sW}")
    E(f"s_lshl_b32 {sPP}, {sPP}, 13")
    E(f"s_lshr_b32 {sT1}, {sJ}, 4")
    E(f"s_lshl_b32 {sT1}, {sT1}, 12")
    E(f"s_add_u32 {sPP}, {sPP}, {sT1}")
    E(f"s_and_b32 {sT1}, {sJ}, 15")
    E(f"s_lshl_b32 {sT1}, {sT1}, 4")
    E(f"s_add_u32 {sPP}, {sPP}, {sT1}")
    E(f"s_add_u32 {sPP}, {sPP}, {WS_PART}")
    E(f"s_lshr_b32 {sT1}, {sJW}, 3")
    E(f"s_lshl_b32 {sT1}, {sT1}, 1")
    E(f"s_add_u32 {sGA0}, {sT0}, {sT1}")
    E(f"s_lshr_b32 {sT1}, {sW}, 2")
    E(f"s_add_u32 {sGA0}, {sGA0}, {sT1}")
    E(f"s_lshl_b32 {sT2}, {sGA0}, 9")
    E(f"s_add_u32 {sT2}, {sT2}, {WS_STAT}")
    E(f"s_lshl_b32 {sGA0}, {sGA0}, 13")
    E(f"s_and_b32 {sT1}, {sW}, 3")
    E(f"s_lshl_b32 {sT1}, {sT1}, 10")
    E(f"s_add_u32 {sGA0}, {sGA0}, {sT1}")
    E(f"s_add_u32 {sGA0}, {sGA0}, {WS_PART}")
    E(f"s_add_u32 {sGA1}, {sGA0}, 4096")
    E(f"v_and_b32 v{vSTA}, 31, {vLANE}")
    E(f"s_lshl_b32 {sT1}, {sW}, 7")
    E(f"v_lshl_add_u32 v{vWBW}, v{vSTA}, 2, {sT1}")
    E(f"v_lshl_add_u32 v{vWBR}, v{vGQ}, 4, {sT1}")
    E(f"v_lshlrev_b32 v{vSTA}, 4, v{vSTA}")
    E(f"s_lshr_b32 {sT1}, {sW}, 2")
    E(f"s_lshl_b32 {sT1}, {sT1}, 7")
    E(f"v_lshl_add_u32 v{vWER}, v{vGQ}, 4, {sT1}")
    E(f"v_lshrrev_b32 v{vGATH}, 2, {vLANE}")
    E(f"v_lshlrev_b32 v{vGATH}, 8, v{vGATH}")
    E(f"v_and_b32 v{T3}, 3, {vLANE}")
    E(f"v_lshl_add_u32 v{vGATH}, v{T3}, 2, v{vGATH}")
    E(f"s_lshl_b32 {sT1}, {sW}, 2")
    E(f"v_add_u32 v{vRW}, {sT1}, v{vRR}")
    E(f"s_waitcnt vmcnt({nyoung+4})")
    pv_perm(0, 0); pv_perm(0, 1)
    E(f"s_waitcnt vmcnt({nyoung+2})")
    pv_perm(0, 2)
    if ewt:
        E(f"s_cmp_lg_u32 {sLAST}, 7")
        E("s_cbranch_scc1 L_noew")
        if ewt_after < 2: E(f"s_waitcnt vmcnt({nyoung + ewt_after})")
        tagcheck([SP+1, SP+3], 6)
        E("s_cbranch_vccnz L_noew")
        wcalc()
        E(f"ds_write_b32 v{vL4}, v{T0} offset:{L_WE}")
        E(f"ds_write_b32 v5, v5 offset:8")
        E.label("L_noew")
    E(f"s_waitcnt vmcnt({nyoung})")
    stamp(5)
    pv_perm(0, 3)
    pv_mfma(3)
    for e in range(8): E(f"v_mov_b32 v{PK+e}, v{ACCO+4*e}")
    E(f"ds_write_b128 v{vOW}, v[{PK}:{PK+3}] offset:{L_ORED}")
    E(f"ds_write_b128 v{vOW}, v[{PK+4}:{PK+7}] offset:{L_ORED+16}")
    tail_dma(6)
    E("s_waitcnt lgkmcnt(0)")
    E("s_barrier")
    if hint:
        E(f"s_cmp_lg_u32 {sW}, 4")
        E("s_cbranch_scc1 L_nohint")
        E(f"s_lshl_b32 {sT0}, s2, 2")
        E(f"v_mov_b32 v{T0}, {WS_HB}")
        E(f"v_mov_b32 v{T1}, {sTAG}")
        E("s_mov_b64 exec, 1")
        E(f"buffer_store_dword v{T1}, v{T0}, {rWS}, {sT0} offen sc1")
        E("s_mov_b64 exec, -1")
        E.label("L_nohint")
    E(f"s_cmp_ge_u32 {sW}, 4")
    E("s_cbranch_scc1 L_nopart")
    R0 = S[2]; FC = S[2]+16
    E(f"ds_read_b128 v[{FC}:{FC+3}], v{vFR} offset:{L_FAC}")
    E(f"ds_read_b128 v[{FC+4}:{FC+7}], v{vFR} offset:{L_FAC+16}")
    for w in range(8): E(f"ds_read_b64 v[{R0+2*w}:{R0+2*w+1}], v{vT8} offset:{L_ORED + w*2048}")
    for w in range(8):
        if w % 2 == 0: E(f"s_waitcnt lgkmcnt({6-w})")
        a = PK + 2*(w % 2)
        op = "v_mul_f32" if w < 2 else "v_fmac_f32"
        E(f"{op} v{a}, v{R0+2*w}, v{FC+w}")
        E(f"{op} v{a+1}, v{R0+2*w+1}, v{FC+w}")
    E(f"v_pk_add_f32 v[{PK}:{PK+1}], v[{PK}:{PK+1}], v[{PK+2}:{PK+3}]")
    E(f"v_cvt_pk_bf16_f32 v{PK}, v{PK}, v{PK+1}")
    E(f"v_min_u32 v{PK}, -2, v{PK}")
    gstore(f"buffer_store_dword v{PK}, v{vGATH}, {rWS}, {sPP} offen")
    E.label("L_nopart")
    stamp(6)
    if "e" in dbg: E("s_branch L_fin")
    E(f"s_cmp_lg_u32 {sML}, 0")
    E("s_cbranch_scc1 L_stageb")
    if w1pf == 2:
        w1_pref("L_nopf2")
        E.label("L_nopf2")
    E(f"s_cmp_ge_u32 {sJW}, 16")
    E("s_cbranch_scc1 L_fin")
    tail_dma(5)
    if buddy:
        E(f"s_sub_u32 {sT0}, {sT0}, {3*8*1024}")
        E(f"s_xor_b32 {sT0}, {sT0}, {buddy}")
        E(f"s_mov_b32 m0, {L_WM}")
        for i in range(4):
            E(f"buffer_load_dwordx4 v{T2}, {rWO}, {sT0} offen lds")
            if i < 3: E(f"s_add_u32 {sT0}, {sT0}, {8*1024}")
    GA_ = S[3]
    def a_load(i): E(f"buffer_load_dwordx4 v[{GA_+4*i}:{GA_+4*i+3}], {vV}, {rWS}, {sGA1 if i else sGA0} offen {'nt' if 'n' in dbg else 'sc1'}")
    def a_loads(): a_load(0); a_load(1)
    if ewt:
        E(f"ds_read_b32 v{T0}, v5 offset:8")
        E(f"ds_read_b128 v[{WT8}:{WT8+3}], v{vWER} offset:{L_WE}")
        E(f"ds_read_b128 v[{WT8+4}:{WT8+7}], v{vWER} offset:{L_WE+64}")
        E("s_waitcnt lgkmcnt(0)")
        E(f"v_readfirstlane_b32 {sT0}, v{T0}")
        E(f"s_cmp_lg_u32 {sT0}, 0")
        E("s_cbranch_scc1 L_havew")
    E.label("L_statchk")
    E(f"buffer_load_dwordx4 v[{SP}:{SP+3}], v{vSTA}, {rWS}, {sT2} offen sc1")
    E("s_waitcnt vmcnt(0)")
    tagcheck([SP+1, SP+3], 6)
    E("s_cbranch_vccz L_gotstat")
    if slp: E(f"s_sleep {slp}")
    spin_check("L_statchk")
    E.label("L_gotstat")
    wcalc()
    E(f"ds_write_b32 v{vWBW}, v{T0} offset:{L_WB}")
    E("s_waitcnt lgkmcnt(0)")
    E(f"ds_read_b128 v[{WT8}:{WT8+3}], v{vWBR} offset:{L_WB}")
    E(f"ds_read_b128 v[{WT8+4}:{WT8+7}], v{vWBR} offset:{L_WB+64}")
    E.label("L_havew")
    if lead:
        E(f"s_and_b32 {sT0}, {sW}, 3")
        E("s_cbranch_scc0 L_lead")
        E("s_barrier")
        E.label("L_lead")
    a_loads()
    E("s_waitcnt vmcnt(2)")
    for nt in range(4):
        for q in range(2): E(f"ds_read_b64_tr_b16 v[{WB+4*nt+2*q}:{WB+4*nt+2*q+1}], v{TRB+nt} offset:{q*512}")
    stamp("w1")
    if rep:
        E(f"s_lshl_b32 {sT0}, {sW}, 15")
        E(f"s_add_u32 {sAOP}, {sAOP}, {sT0}")
    if quick: quickpoll("a", a_load, [GA_, GA_+4], "L_polla")
    pollloop("a", a_load, [range(GA_, GA_+4), range(GA_+4, GA_+8)], T0, slpa)
    if lead:
        E(f"s_and_b32 {sT0}, {sW}, 3")
        E("s_cbranch_scc1 L_lead2")
        E("s_barrier")
        E.label("L_lead2")
    stamp(7)
    E("s_waitcnt lgkmcnt(0)")
    D = S[2]
    for half in range(2):
        for nt in range(4):
            d = D + half*16 + 4*nt
            E(f"v_mfma_f32_16x16x32_bf16 v[{d}:{d+3}], v[{GA_+4*half}:{GA_+4*half+3}], v[{WB+4*nt}:{WB+4*nt+3}], 0")
    for nt in range(4): E(f"v_pk_mul_f32 v[{D+4*nt}:{D+4*nt+1}], v[{D+4*nt}:{D+4*nt+1}], v[{WT8}:{WT8+1}]")
    for nt in range(4): E(f"v_pk_fma_f32 v[{D+4*nt}:{D+4*nt+1}], v[{D+4*nt+2}:{D+4*nt+3}], v[{WT8+2}:{WT8+3}], v[{D+4*nt}:{D+4*nt+1}]")
    for nt in range(4): E(f"v_pk_fma_f32 v[{D+4*nt}:{D+4*nt+1}], v[{D+16+4*nt}:{D+16+4*nt+1}], v[{WT8+4}:{WT8+5}], v[{D+4*nt}:{D+4*nt+1}]")
    for nt in range(4): E(f"v_pk_fma_f32 v[{D+4*nt}:{D+4*nt+1}], v[{D+16+4*nt+2}:{D+16+4*nt+3}], v[{WT8+6}:{WT8+7}], v[{D+4*nt}:{D+4*nt+1}]")
    for nt in range(4): E(f"v_add_f32 v{D+4*nt}, v{D+4*nt}, v{D+4*nt+1}")
    tred4(D, D+4, D+8, D+12)
    E(f"ds_write_b32 v{vRW}, v{D} offset:{L_RED}")
    E("s_waitcnt lgkmcnt(0)")
    E("s_barrier")
    if not rep:
        E(f"s_cmp_lg_u32 {sW}, 0")
        E("s_cbranch_scc1 L_fin")
    D = PK
    E(f"ds_read_b128 v[{D}:{D+3}], v{vRR} offset:{L_RED}")
    E(f"ds_read_b128 v[{D+4}:{D+7}], v{vRR} offset:{L_RED+16}")
    E("s_waitcnt lgkmcnt(0)")
    E(f"v_pk_add_f32 v[{D}:{D+1}], v[{D}:{D+1}], v[{D+4}:{D+5}]")
    E(f"v_pk_add_f32 v[{D+2}:{D+3}], v[{D+2}:{D+3}], v[{D+6}:{D+7}]")
    E(f"v_pk_add_f32 v[{D}:{D+1}], v[{D}:{D+1}], v[{D+2}:{D+3}]")
    E(f"v_add_f32 v{D}, v{D}, v{D+1}")
    E(f"v_min_u32 v{D}, -2, v{D}")
    E(f"buffer_store_dword v{D}, v{vL4}, {rWS}, {sAOP} offen sc1")
    stamp(8)
    E("s_branch L_fin")
    E.label("L_stageb")
    if "x" in dbg: E("s_branch L_fin")
    if w1e:
        E(f"s_cmp_ge_u32 {sA}, 224")
        E("s_cbranch_scc1 L_now1")
    if mlearly != 2: w2_dma()
    if w1dl: E(f"s_sleep {w1dl}")
    if mlearly != 1: w1_dma()
    E.label("L_now1")
    GBR = S[3]
    E(f"v_lshlrev_b32 v{vSTA}, 11, v{vGQ}")
    E(f"v_lshl_add_u32 v{vSTA}, v{vN}, 4, v{vSTA}")
    E(f"s_lshl_b32 {sT0}, {sW}, 8")
    if rep:
        E(f"s_lshl_b32 {sT1}, {sG}, 15")
        E(f"s_add_u32 {sT0}, {sT0}, {sT1}")
    bs = ["s88", "s89", "s90", "s95"]
    for i in range(4): E(f"s_add_u32 {bs[i]}, {sT0}, {WS_AO + 8192*i}")
    def b_load(i): E(f"buffer_load_dwordx4 v[{S[3]+4*i}:{S[3]+4*i+3}], v{vSTA}, {rWS}, {bs[i]} offen sc1")
    def b_loads():
        for i in range(4): b_load(i)
    E(f"v_lshl_add_u32 v{vCOL}, v{vN}, 2, v{vGQ}")
    E(f"s_lshl_b32 {sT0}, {sW}, 6")
    E(f"v_add_u32 v{vCOL}, {sT0}, v{vCOL}")
    E(f"v_lshlrev_b32 v{vGAA}, 1, v{vCOL}")
    E(f"buffer_load_ushort v{XT}, v{vGAA}, {rX}, 0 offen")
    if mlite:
        E(f"v_lshrrev_b32 v{TRB}, 1, v{vN}")
        E(f"v_lshlrev_b32 v{TRB}, 12, v{TRB}")
        E(f"v_and_b32 v{TRB+1}, 1, v{vN}")
        E(f"v_lshl_add_u32 v{TRB}, v{TRB+1}, 10, v{TRB}")
        E(f"s_lshl_b32 {sT4}, {sW}, 7")
        E(f"s_add_u32 {sT4}, {sT4}, {WS_CLR}")
        E(f"buffer_load_dwordx2 v[{TRB+2}:{TRB+3}], v{TRB}, {rWS}, {sT4} offen sc1")
    if outpf: E(f"buffer_load_ushort v{TRB}, v{vGAA}, {rOUT}, 0 offen")
    E(f"v_and_b32 v{vGAA}, 0x1fe, v{vCOL}")
    E(f"v_lshlrev_b32 v{vGAA}, 2, v{vGAA}")
    E(f"s_mul_i32 {sU}, {sW}, 56")
    E(f"s_add_u32 {sU}, {sU}, {sM}")
    E(f"s_lshl_b32 {sU16}, {sU}, 4")
    E(f"s_and_b32 {sU16}, {sU16}, 0x7ff")
    E(f"v_mov_b32 v{vU16}, {sU16}")
    E(f"s_lshl_b32 {sT0}, {sW}, 2")
    E(f"v_add_u32 v{vCH}, {sT0}, v{vN}")
    E(f"v_and_b32 v{vCH}, 15, v{vCH}")
    E(f"v_lshl_add_u32 v{vCH}, v{vGQ}, 4, v{vCH}")
    E(f"v_lshlrev_b32 v{vCH}, 5, v{vCH}")
    SG = S[6]+8
    E(f"ds_read_b64 v[{GA}:{GA+1}], v{vGAA} offset:{L_MOD}")
    for i in range(4): E(f"ds_read_b128 v[{SG+4*i}:{SG+4*i+3}], v{vCH} offset:{L_MOD + 2048 + (i//2)*2048 + (i%2)*16}")
    E(f"ds_read_b128 v[{GB}:{GB+3}], v{vU16} offset:{L_MOD + 6144}")
    E(f"s_lshl_b32 {sT3}, {sW}, 13")
    E(f"s_add_u32 {sT3}, {sT3}, {L_WT}")
    E(f"v_bfe_u32 v{T0}, {vLANE}, 2, 2")
    E(f"v_and_b32 v{T1}, 3, {vLANE}")
    E(f"v_lshlrev_b32 v{T1}, 3, v{T1}")
    E(f"v_lshl_add_u32 v{T2}, v{T0}, 6, v{T1}")
    E(f"v_lshl_add_u32 v{T2}, v{vGQ}, 10, v{T2}")
    E(f"s_and_b32 {sT1}, {sW}, 3")
    E(f"s_lshl_b32 {sT1}, {sT1}, 14")
    E(f"s_add_u32 {sT1}, {sT1}, {L_WT}")
    E(f"v_add_u32 v{T2}, {sT1}, v{T2}")
    E(f"v_lshl_add_u32 v{T0}, v{T0}, 7, v{T1}")
    E(f"v_lshl_add_u32 v{T0}, v{vGQ}, 5, v{T0}")
    E(f"v_add_u32 v{T0}, {sT3}, v{T0}")
    E(f"v_lshlrev_b32 v{vRR}, 5, v{vN}")
    E(f"v_lshlrev_b32 v{vRW}, 4, v{vN}")
    E(f"s_lshl_b32 {sT1}, {sW}, 2")
    E(f"v_add_u32 v{vRW}, {sT1}, v{vRW}")
    E(f"v_lshlrev_b32 v{vGATH}, 2, v0")
    E(f"v_mov_b32 v{vWBR}, 0")
    E("s_waitcnt lgkmcnt(0)")
    E.label("L_modchk")
    tagcheck([GA+1, GB+1, GB+3] + [SG+1+2*i for i in range(8)], 6)
    E("s_cbranch_vccz L_gotmd")
    E(f"s_mov_b32 {sT0}, {WS_MODG + 4096}")
    E(f"buffer_load_dwordx2 v[{GA}:{GA+1}], v{vGAA}, {rWS}, {sT0} offen sc1")
    E(f"buffer_load_dwordx4 v[{SG}:{SG+3}], v{vCH}, {rWS}, {sT0} offen offset:2048 sc1")
    E(f"buffer_load_dwordx4 v[{SG+4}:{SG+7}], v{vCH}, {rWS}, {sT0} offen offset:2064 sc1")
    E(f"s_mov_b32 {sT0}, {WS_MODG + 8192}")
    E(f"buffer_load_dwordx4 v[{SG+8}:{SG+11}], v{vCH}, {rWS}, {sT0} offen sc1")
    E(f"buffer_load_dwordx4 v[{SG+12}:{SG+15}], v{vCH}, {rWS}, {sT0} offen offset:16 sc1")
    E(f"buffer_load_dwordx4 v[{GB}:{GB+3}], v{vU16}, {rWS}, {sT0} offen offset:2048 sc1")
    E("s_waitcnt vmcnt(0)")
    spin_check("L_modchk")
    E.label("L_gotmd")
    E(f"v_and_b32 v6, 1, v{vCOL}")
    E(f"v_lshlrev_b32 v{vCOL}, 2, v{vCOL}")
    E(f"v_cmp_eq_u32 vcc, 0, v6")
    E(f"v_lshlrev_b32 v6, 16, v{GA}")
    E(f"v_and_b32 v7, 0xffff0000, v{GA}")
    E(f"v_cndmask_b32 v{GA}, v7, v6, vcc")
    for i in range(4):
        c0, c1, s0, s1_ = SCF+2*i, SCF+2*i+1, SCF+8+2*i, SCF+8+2*i+1
        E(f"v_lshlrev_b32 v{s0}, 16, v{SG+2*i}")
        E(f"v_and_b32 v{s1_}, 0xffff0000, v{SG+2*i}")
        E(f"v_lshlrev_b32 v{c0}, 16, v{SG+8+2*i}")
        E(f"v_and_b32 v{c1}, 0xffff0000, v{SG+8+2*i}")
        E(f"v_add_f32 v{c0}, 1.0, v{c0}")
        E(f"v_add_f32 v{c1}, 1.0, v{c1}")
        rb2(c0, c1, c0, c1, 6)
    E(f"v_lshlrev_b32 v{GBF}, 16, v{GB}")
    E(f"v_and_b32 v{GBF+1}, 0xffff0000, v{GB}")
    E(f"v_lshlrev_b32 v{GBF+2}, 16, v{GB+2}")
    E(f"v_and_b32 v{GBF+3}, 0xffff0000, v{GB+2}")
    for r in range(1, 4):
        E(f"v_mov_b32_dpp v{GBF}, v{GBF+r} quad_perm:[0,1,2,3] row_mask:{1<<r:#x} bank_mask:0xf")
    E(f"v_lshl_add_u32 v{vU16}, v{vGQ}, 2, v{vU16}")
    E("s_waitcnt vmcnt(0)")
    if mlite:
        E.label("L_flchk")
        E(f"v_cmp_ne_u32 vcc, {sTAG}, v{TRB+3}")
        E("s_cbranch_vccz L_flok")
        E(f"buffer_load_dwordx2 v[{TRB+2}:{TRB+3}], v{TRB}, {rWS}, {sT4} offen sc1")
        E("s_waitcnt vmcnt(0)")
        spin_check("L_flchk")
        E.label("L_flok")
    if not hint: b_loads()
    stamp("w2")
    E("s_barrier")
    for nt in range(2):
        for q in range(8):
            r = W1 + nt*16 + q*2
            E(f"ds_read_b64_tr_b16 v[{r}:{r+1}], v{T2} offset:{(q>>2)*8192 + (q&3)*256 + nt*32}")
    for q in range(8):
        E(f"ds_read_b64_tr_b16 v[{W2+2*q}:{W2+2*q+1}], v{T0} offset:{4096 + q*512}")
    E(f"v_lshlrev_b32 v{XT}, 16, v{XT}")
    if touch:
        E("s_mov_b64 exec, 0")
        E("s_branch L_tb_0")
        E.label("L_tbret")
        E("s_mov_b64 exec, -1")
    G2 = S[0]
    if hint:
        if hint == 2:
            E(f"s_cmp_lg_u32 {sW}, 7")
            E("s_cbranch_scc1 L_goth")
        E(f"s_mov_b32 {sT0}, {WS_HB}")
        E.label("L_pollh")
        E(f"buffer_load_dwordx4 v[{G2}:{G2+3}], {vV}, {rWS}, {sT0} offen sc1")
        E("s_waitcnt vmcnt(0)")
        tagcheck([G2, G2+1, G2+2, G2+3], 6)
        E("s_cbranch_vccz L_goth")
        spin_check("L_pollh")
        E.label("L_goth")
        if hint == 2: E("s_barrier")
        stamp("h")
        if hdl: E(f"s_sleep {hdl}")
        b_loads()
    if quick: quickpoll("b", b_load, [GBR+4*i for i in range(4)], "L_pollb")
    E.label("L_pollb")
    E(f"s_waitcnt vmcnt(0)")
    for i in range(0, 8, 2): E(f"v_pk_add_f32 v[{G2+i}:{G2+i+1}], v[{GBR+i}:{GBR+i+1}], v[{GBR+8+i}:{GBR+8+i+1}]")
    for i in range(0, 4, 2): E(f"v_pk_add_f32 v[{G2+i}:{G2+i+1}], v[{G2+i}:{G2+i+1}], v[{G2+4+i}:{G2+4+i+1}]")
    E(f"v_pk_add_f32 v[{G2+4}:{G2+5}], v[{G2}:{G2+1}], v[{G2+2}:{G2+3}]")
    E(f"v_cmp_u_f32 vcc, v{G2+4}, v{G2+5}")
    E("s_cbranch_vccz L_gotb")
    for i in range(4): maxall(range(GBR+4*i, GBR+4*i+4), 16+i)
    maxall(range(16, 20), 6)
    E(f"v_cmp_eq_u32 vcc, -1, v6")
    E("s_cbranch_vccz L_gotb")
    if slpb: E(f"s_sleep {slpb}")
    for i in range(4):
        E(f"v_cmp_eq_u32 vcc, -1, v{16+i}")
        E(f"s_mov_b64 exec, vcc")
        b_load(i)
        E("s_mov_b64 exec, -1")
    spin_check("L_pollb")
    E.label("L_gotb")
    if touch: E.touch_begin("L_tb", touch)
    stamp(9)
    GBR = G2
    tred4(GBR, GBR+1, GBR+2, GBR+3)
    rb1(GBR, GBR)
    E(f"v_mul_f32 v{GBR}, v{GBR}, v{GA}")
    rb1(GBR, GBR)
    E(f"v_add_f32 v{GBR}, v{GBR}, v{XT}")
    rb1(GBR, GBR)
    E(f"ds_write_b32 v{vCOL}, v{GBR} offset:{L_X2}")
    E("s_waitcnt lgkmcnt(0)")
    E("s_barrier")
    stamp("b1")
    X2 = S[2]; X2F = S[2]+8; KS = S[2]+12
    if epe:
        E(f"s_cmp_lg_u32 {sU}, {7*56}")
        E("s_cbranch_scc1 L_noep")
        E(f"v_mov_b32 v7, {sTAG}")
        E("s_mov_b64 exec, 1")
        E(f"buffer_store_dword v7, v{vWBR}, {rWS}, 0 offen sc1")
        E("s_mov_b64 exec, -1")
        E.label("L_noep")
    E(f"s_cmp_ge_u32 {sW}, 4")
    E("s_cbranch_scc1 L_b4")
    E(f"ds_read_b32 v{KS}, v{vWBR} offset:{L_X2}")
    E(f"ds_read_b128 v[{X2}:{X2+3}], v{vCH} offset:{L_X2}")
    E(f"ds_read_b128 v[{X2+4}:{X2+7}], v{vCH} offset:{L_X2+16}")
    E(f"ds_read_b32 v{X2F}, v{vU16} offset:{L_X2}")
    E("s_waitcnt lgkmcnt(0)" if (stamps and "b1" in stamps) else "s_waitcnt lgkmcnt(1)")
    DD = S[2]+16
    NEGB = "op_sel_hi:[1,0] neg_lo:[0,1] neg_hi:[0,1]"
    for i in range(0, 8, 2): E(f"v_pk_add_f32 v[{DD+i}:{DD+i+1}], v[{X2+i}:{X2+i+1}], v[{KS}:{KS+1}] {NEGB}")
    s1, s2, s3 = 16, 18, T0
    E(f"v_pk_add_f32 v[{s1}:{s1+1}], v[{DD}:{DD+1}], v[{DD+2}:{DD+3}]")
    E(f"v_pk_mul_f32 v[{s2}:{s2+1}], v[{DD}:{DD+1}], v[{DD}:{DD+1}]")
    E(f"v_pk_add_f32 v[{s3}:{s3+1}], v[{DD+4}:{DD+5}], v[{DD+6}:{DD+7}]")
    E(f"v_pk_mul_f32 v[{s3+2}:{s3+3}], v[{DD+4}:{DD+5}], v[{DD+4}:{DD+5}]")
    E(f"v_pk_fma_f32 v[{s2}:{s2+1}], v[{DD+2}:{DD+3}], v[{DD+2}:{DD+3}], v[{s2}:{s2+1}]")
    E(f"v_pk_fma_f32 v[{s3+2}:{s3+3}], v[{DD+6}:{DD+7}], v[{DD+6}:{DD+7}], v[{s3+2}:{s3+3}]")
    E(f"v_pk_add_f32 v[{s1}:{s1+1}], v[{s1}:{s1+1}], v[{s3}:{s3+1}]")
    E(f"v_pk_add_f32 v[{s2}:{s2+1}], v[{s2}:{s2+1}], v[{s3+2}:{s3+3}]")
    E(f"v_permlane16_swap_b32 v{s1}, v{s2}")
    E(f"v_permlane16_swap_b32 v{s1+1}, v{s2+1}")
    E(f"v_pk_add_f32 v[{s1}:{s1+1}], v[{s1}:{s1+1}], v[{s2}:{s2+1}]")
    E(f"v_add_f32 v{s1}, v{s1}, v{s1+1}")
    E(f"v_mov_b32 v{s2}, v{s1}")
    E(f"v_permlane32_swap_b32 v{s1}, v{s2}")
    E(f"v_add_f32 v{s1}, v{s1}, v{s2}")
    red_ror("v_add_f32", [s1], (1, 2, 4, 8))
    E(f"v_mul_f32 v{s1}, {f32bits(1.0/512):#x}, v{s1}")
    E(f"v_mov_b32 v{s2}, v{s1}")
    E(f"v_permlane16_swap_b32 v{s1}, v{s2}")
    E(f"v_fma_f32 v{s2}, -v{s1}, v{s1}, v{s2}")
    E(f"v_add_f32 v{s1}, v{s1}, v{KS}")
    E(f"v_max_f32 v{s2}, 0, v{s2}")
    E(f"v_cvt_pk_bf16_f32 v{s3}, v{s1}, v{s2}")
    E(f"v_and_b32 v{s2}, 0xffff0000, v{s3}")
    E(f"v_lshlrev_b32 v{s1}, 16, v{s3}")
    E(f"v_add_f32 v{s2}, {f32bits(1e-5):#x}, v{s2}")
    E(f"v_pk_add_f32 v[{X2}:{X2+1}], v[{X2}:{X2+1}], v[{s1}:{s1+1}] {NEGB}")
    E(f"v_cvt_pk_bf16_f32 v{s2}, v{s2}, v{s2}")
    E(f"v_pk_add_f32 v[{X2+2}:{X2+3}], v[{X2+2}:{X2+3}], v[{s1}:{s1+1}] {NEGB}")
    E(f"v_lshlrev_b32 v{s2}, 16, v{s2}")
    E(f"v_pk_add_f32 v[{X2+4}:{X2+5}], v[{X2+4}:{X2+5}], v[{s1}:{s1+1}] {NEGB}")
    E(f"v_sqrt_f32 v{s2}, v{s2}")
    E(f"v_pk_add_f32 v[{X2+6}:{X2+7}], v[{X2+6}:{X2+7}], v[{s1}:{s1+1}] {NEGB}")
    E(f"v_pk_mul_f32 v[{X2}:{X2+1}], v[{X2}:{X2+1}], v[{SCF}:{SCF+1}]")
    E(f"v_cvt_pk_bf16_f32 v{s2}, v{s2}, v{s2}")
    E(f"v_pk_mul_f32 v[{X2+2}:{X2+3}], v[{X2+2}:{X2+3}], v[{SCF+2}:{SCF+3}]")
    E(f"v_lshlrev_b32 v{s2}, 16, v{s2}")
    E(f"v_pk_mul_f32 v[{X2+4}:{X2+5}], v[{X2+4}:{X2+5}], v[{SCF+4}:{SCF+5}]")
    E(f"v_rcp_f32 v{s2}, v{s2}")
    E(f"v_pk_mul_f32 v[{X2+6}:{X2+7}], v[{X2+6}:{X2+7}], v[{SCF+6}:{SCF+7}]")
    for i in range(0, 8, 2): E(f"v_pk_fma_f32 v[{X2+i}:{X2+i+1}], v[{X2+i}:{X2+i+1}], v[{s2}:{s2+1}], v[{SCF+8+i}:{SCF+8+i+1}] op_sel_hi:[1,0,1]")
    H2 = PK
    for p in range(4): E(f"v_cvt_pk_bf16_f32 v{H2+p}, v{X2+2*p}, v{X2+2*p+1}")
    DM = S[0]
    for s_ in range(4):
        for nt in range(2):
            d = DM + (nt*4+s_)*4; b = W1 + nt*16 + s_*4
            E(f"v_mfma_f32_16x16x32_bf16 v[{d}:{d+3}], v[{H2}:{H2+3}], v[{b}:{b+3}], 0")
    E("s_mov_b64 exec, 0xffff")
    for nt in range(2): E(f"v_add_f32 v{DM+16*nt}, v{DM+16*nt}, v{DM+16*nt+5}")
    for nt in range(2): E(f"v_add_f32 v{DM+16*nt}, v{DM+16*nt}, v{DM+16*nt+10}")
    for nt in range(2): E(f"v_add_f32 v{DM+16*nt}, v{DM+16*nt}, v{DM+16*nt+15}")
    E(f"ds_write2st64_b32 v{vRW}, v{DM}, v{DM+16} offset0:{L_RED//256} offset1:{L_RED//256+1}")
    E("s_mov_b64 exec, -1")
    E("s_waitcnt lgkmcnt(0)")
    E.label("L_b4")
    E(f"v_mov_b32 v{T0}, 0")
    E(f"v_mov_b32 v{T1}, 0")
    E("s_barrier")
    stamp("b2")
    D = S[0]
    E(f"ds_read_b128 v[{D}:{D+3}], v{vRR} offset:{L_RED}")
    E(f"ds_read_b128 v[{D+8}:{D+11}], v{vRR} offset:{L_RED+16}")
    E("s_waitcnt lgkmcnt(0)")
    for b in (D, D+8): E(f"v_pk_add_f32 v[{b}:{b+1}], v[{b}:{b+1}], v[{b+2}:{b+3}]")
    for b in (D, D+8): E(f"v_add_f32 v{b}, v{b}, v{b+1}")
    E(f"v_max_f32 v{D}, 0, v{D}")
    E(f"v_max_f32 v{D+8}, 0, v{D+8}")
    E(f"v_cvt_pk_bf16_f32 v{D}, v{D}, v{D+8}")
    for k in range(16):
        E(f"v_dot2c_f32_bf16_dpp v{T0+(k&1)}, v{D}, v{W2+k} row_newbcast:{k} {DPPM}")
    E(f"v_add_f32 v{T0}, v{T0}, v{T1}")
    E(f"v_min_u32 v{T0}, -2, v{T0}")
    E(f"buffer_store_dword v{T0}, v{vGATH}, {rWS}, {sPUB} offen sc1")
    stamp(10)
    E(f"s_cmp_ge_u32 {sU}, 128")
    E("s_cbranch_scc1 L_fin")
    C0 = S[0]+16
    E(f"v_lshlrev_b32 v{vSTA}, 11, {vLANE}")
    E(f"s_add_u32 {sT2}, {sU16}, {WS_MO}")
    for i in range(4): E(f"v_mov_b32 v{C0+i}, 0")
    def c_loads(): E(f"buffer_load_dwordx4 v[{C0}:{C0+3}], v{vSTA}, {rWS}, {sT2} offen sc1")
    if cdelay > 0: E(f"s_sleep {cdelay}")
    if cdelay < 0: E("s_waitcnt vmcnt(0)")
    E(f"s_mov_b32 {sSPIN}, 0x40000")
    E(f"s_mov_b32 exec_hi, 0xffffff")
    c_loads()
    E(f"s_mov_b64 exec, -1")
    E(f"s_lshl_b32 {sT0}, {sU}, 3")
    E(f"v_mov_b32 v6, 0")
    E(f"v_mov_b32 v7, {sTAG}")
    E(f"v_lshlrev_b32 v{T0}, 1, v{vGQ}")
    E.tpause = True
    E.label("L_pollc")
    E("s_waitcnt vmcnt(0)")
    maxall(range(C0, C0+4), T2)
    E(f"v_cmp_eq_u32 vcc, -1, v{T2}")
    E("s_cbranch_vccz L_gotc")
    E(f"s_mov_b64 exec, vcc")
    c_loads()
    E("s_mov_b64 exec, -1")
    spin_check("L_pollc")
    E.label("L_gotc")
    E.tpause = False
    if fixt:
        if fixw >= 0:
            E(f"v_mov_b32 v{T2}, 0x800")
            E(f"buffer_load_dword v{T3}, v{T2}, {rWS}, 0 offen sc1")
            E("s_waitcnt vmcnt(0)")
            E(f"v_readfirstlane_b32 s48, v{T3}")
        E.label("L_fix")
        E("s_memrealtime s[50:51]")
        E("s_waitcnt lgkmcnt(0)")
        E("s_sub_u32 s50, s50, s48")
        E(f"s_cmp_lt_u32 s50, {fixt*100}")
        E("s_cbranch_scc1 L_fix")
    stamp(11)
    tred4(C0, C0+1, C0+2, C0+3)
    red_ror("v_add_f32", [C0], (1, 2, 4, 8))
    rb1(C0, C0)
    E(f"v_mul_f32 v{C0}, v{C0}, v{GBF}")
    rb1(C0, C0)
    E(f"v_add_f32 v{C0}, v{C0}, v{X2F}")
    E(f"v_cvt_pk_bf16_f32 v{C0}, v{C0}, v{C0}")
    if touch: E.touch_end("L_tbret")
    E("s_mov_b32 exec_lo, 0x10001")
    E("s_mov_b32 exec_hi, 0x10001")
    E(f"buffer_store_short v{C0}, v{T0}, {rOUT}, {sT0} offen {outf}")
    if not epe:
        E("s_mov_b64 exec, 1")
        E(f"s_cmp_lg_u32 {sU}, 0")
        E("s_cbranch_scc1 L_fin")
        E(f"buffer_store_dword v7, v6, {rWS}, 0 offen sc1")
    E.label("L_fin")
    if stamps:
        stamp(12)
        E("s_mov_b64 exec, 1")
        E("s_waitcnt lgkmcnt(0)")
        E(f"s_lshl_b32 {sT0}, s2, 3")
        E(f"s_add_u32 {sT0}, {sT0}, {sW}")
        E(f"s_lshl_b32 {sT0}, {sT0}, 7")
        E(f"s_add_u32 {sT0}, {sT0}, {WS_STAMP}")
        if 1:
            E("s_sleep 127"); E("s_sleep 127"); E("s_sleep 127")
        E("v_mov_b32 v6, 0")
        for i in range(13):
            E(f"v_mov_b32 v8, s{52+2*i}")
            E(f"v_mov_b32 v9, s{53+2*i}")
            E(f"buffer_store_dwordx2 v[8:9], v6, {rWS}, {sT0} offen offset:{8*i}")
            E("s_nop 1")
        E(f"v_mov_b32 v8, {sSPIN}")
        E(f"v_mov_b32 v9, 0")
        E(f"buffer_store_dwordx2 v[8:9], v6, {rWS}, {sT0} offen offset:{8*13}")
    E.label("L_end")
    E("s_endpgm")
    if aslist == 2:
        E.raw(".globl warm_kernel\n.p2align 8\n.type warm_kernel,@function\nwarm_kernel:\n    s_endpgm")
        E.raw('.section .rodata,"a"\n.p2align 6\n.amdhsa_kernel warm_kernel\n  .amdhsa_next_free_vgpr 8\n  .amdhsa_next_free_sgpr 16\n  .amdhsa_accum_offset 8\n  .amdhsa_group_segment_fixed_size 0\n  .amdhsa_kernarg_size 104\n  .amdhsa_user_sgpr_count 2\n  .amdhsa_user_sgpr_kernarg_segment_ptr 1\n  .amdhsa_system_sgpr_workgroup_id_x 1\n.end_amdhsa_kernel')
    E.raw(f'.section .rodata,"a"\n.p2align 6\n.amdhsa_kernel {KN}')
    E.raw("  .amdhsa_next_free_vgpr 256\n  .amdhsa_next_free_sgpr 102\n  .amdhsa_accum_offset 256\n  .amdhsa_group_segment_fixed_size 0\n  .amdhsa_kernarg_size 104\n  .amdhsa_user_sgpr_count 2\n  .amdhsa_user_sgpr_kernarg_segment_ptr 1\n  .amdhsa_system_sgpr_workgroup_id_x 1\n  .amdhsa_float_denorm_mode_32 3\n.end_amdhsa_kernel")
    return E.text()

if __name__ == "__main__":
    import argparse, inspect
    ap = argparse.ArgumentParser()
    ap.add_argument("out")
    for n, p in inspect.signature(gen).parameters.items():
        if n == "stamps": ap.add_argument("--stamps", default="")
        else: ap.add_argument("--"+n, type=type(p.default), default=p.default)
    a = vars(ap.parse_args())
    out = a.pop("out")
    a["stamps"] = a["stamps"].split(",") if a["stamps"] else None
    open(out, "w").write(gen(**a))
```

```python
import sys, math, struct
from emit import Emit
KN = "adaLN_cond__gqa_block_cached__dense_activation_relu__decode_kernel"

WS_EPOCH = 0x0
WS_MODG  = 0x1000
WS_CLR   = 0x10000
WS_STAT  = 0x8000
WS_AO    = 0x100000
WS_PART  = 0x20000
WS_MO    = 0x60000
WS_HB    = 0x18000
WS_EP    = 0xC0000
WS_QG    = WS_MODG + 48*256
WS_STAMP = 0x8000000
L_STATS = 0
L_CNT   = 256
L_FAC   = 384
L_WB    = 512
L_WE    = 1536
L_X2    = 2048
L_RED   = 4096
L_ACT   = 6144
L_Q     = 7168
L_ORED  = 8192
L_MOD   = 24576
L_WM    = 32768
L_WT    = 65536

DPPM = "row_mask:0xf bank_mask:0xf"
def f32bits(x): return struct.unpack("<I", struct.pack("<f", x))[0]

def gen(depth=6, kvflags="nt", wflags="", stamps=None, swave=0, tpwo=4, mlearly=0, slp=2, slpa=0, slpb=0, codepf=2, dbg="",
        k1=2, k2=3, slpq=4, prio=3, fixt=0, jml=24, fast=1, rate=1, cdelay=-1, ewt=1, rot=0, qat=12, depth0=9, young="", depthe=0, emask=255, swapq=1, lead=0, touch=0, w1e=0, w1pf=2, rep=0, w1dl=0, buddy=0, wopf=0, wopos=3, fixw=-1, aslist=0, fpos=-1, fwave=1, dyn=0, pfirst=1, tlb=0, eflags="nt", oflags="nt", quick=1, epe=1, outpf=0, outf="", depthv=0, dvat=18, p0=3, dynt=7, wmx=3, dburst=0, wb=0, nb=0, pa=12, la=8, pb=24, lb=8, pc=12, da=8, ext=0, dx=8, fmap=0, jperm=0, mlite=0, emap=0, esw=0, hint=0, hdl=0, aost="sc1", aold="sc1", ml6=0):
    E = Emit()
    L_WO = L_WT + 65536
    LDS_BYTES = max(L_WT + 65536, L_WO + 32768)
    sW, sG, sJ, sTAG, sSPIN = "s3", "s4", "s5", "s6", "s7"
    rK, rV, rWS, rWT, rW2, rX, rC, rOUT = [f"s[{i}:{i+3}]" for i in range(8, 40, 4)]
    rWO = "s[84:87]"
    sSELLO, sSELHI, sC, sBASE, sM, sT0, sT1, sT2 = "s78", "s79", "s80", "s81", "s82", "s83", "s100", "s101"
    sA, sPL, sPUB, sLAST, sU, sU16, sT3, sT4, sEP = "s40", "s41", "s42", "s95", "s98", "s99", "s96", "s97", "s93"
    sPP, sGA0, sGA1, sLD, sML, sXCC, sAOP, sSK = "s43", "s44", "s45", "s46", "s47", "s91", "s92", "s90"
    sJW = "s94" if dyn else sJ
    vLANE, vK, vV = "v1", "v2", "v3"
    Q0 = 16
    T0, T1, T2, T3 = 28, 29, 30, 31
    S = [32 + 32*i for i in range(7)]
    def stamp(i):
        if "j" in dbg and str(i) not in ("0", "b1", "a2"):
            u = len(E.L)
            E("s_memtime s[52:53]")
            E("s_waitcnt lgkmcnt(0)")
            E("s_mul_i32 s52, s52, 0x9E3779B1")
            E("s_lshr_b32 s52, s52, 26")
            E("s_cmp_lt_u32 s52, 48")
            E(f"s_cbranch_scc1 L_jt{u}")
            E(f"s_sub_u32 s52, s52, 47")
            E.label(f"L_ju{u}")
            E("s_sleep 32")
            E("s_sub_u32 s52, s52, 1")
            E("s_cmp_lg_u32 s52, 0")
            E(f"s_cbranch_scc1 L_ju{u}")
            E.label(f"L_jt{u}")
            return
        if stamps and str(i) in stamps:
            k = stamps.index(str(i))
            E(f"s_memrealtime s[{52+2*k}:{53+2*k}]")
    vm = []
    light = [False]
    def setlight():
        if depthe:
            if emask == 0: E(f"s_cmp_ge_u32 {sJ}, 16")
            else:
                E(f"s_lshr_b32 {sT0}, {emask}, {sW}")
                E(f"s_andn2_b32 {sT0}, {sT0}, {sG}")
                E(f"s_bitcmp1_b32 {sT0}, 0")
            E(f"s_cselect_b64 vcc, 1, 0")
    def vmop(tag, text):
        E(text); vm.append(tag)
    def vmwait(tag):
        idx = [i for i, t in enumerate(vm) if t == tag][-1]
        E(f"s_waitcnt vmcnt({min(len(vm) - 1 - idx, 62)})")
    def spin_check(lbl_loop):
        E(f"s_sub_u32 {sSPIN}, {sSPIN}, 1")
        E(f"s_cbranch_scc0 {lbl_loop}")
        E(f"s_branch L_end")
    PRI = {1: {("k",0):3, ("k",2):2, ("v",0):1, ("v",2):0}, 2: {("k",0):3, ("v",0):2, ("v",2):1}, 3: {("k",0):3, ("k",3):2, ("v",2):1}, 0: {},
           4: {("k",0):1, ("k",1):1, ("k",2):1, ("k",3):1, ("v",0):1, ("v",1):1, ("v",2):1, ("v",3):1}}[prio]
    def load_tile(kind, T, slot, dep, tag, mid=None, lo=0, hi=8, setp=True):
        srd = rK if kind == "k" else rV
        va = vK if (kind == "k" and "k" not in dbg) else vV
        if setp and lo == 0 and (kind, T) in PRI:
            E(f"s_setprio {PRI[(kind, T)]}")
        if setp and lo == 0 and f"{kind}{T}" in young.split(","):
            u = len(E.L)
            base = [v for k, v in PRI.items() if (k[0] == "k" and kind == "v") or (k[0] == kind and k[1] <= T)]
            b = min(base) if base else 1
            E(f"s_cmp_lt_u32 {sW}, 4")
            E(f"s_cbranch_scc1 L_yp{u}")
            E(f"s_setprio {min(3, b+1)}")
            E.raw(f"L_yp{u}:")
        for i in range(lo, hi):
            if i == 4 and mid: mid()
            if rot:
                E(f"s_xor_b32 {sLD}, {sBASE}, {T*0x200000 + i*1024}")
            elif i == 0 or i == 4 or hi - lo == 1: E(f"s_add_u32 {sLD}, {sBASE}, {T*0x200000 + (i//4)*4096}")
            if depthe and light[0] and dep and len(vm) >= depthe:
                u = len(E.L)
                E.raw(f"    s_cbranch_vccz L_lt{u}"); E._push(None)
                E(f"s_waitcnt vmcnt({depthe-1})")
                E.raw(f"L_lt{u}:")
            if dep and len(vm) >= dep: E(f"s_waitcnt vmcnt({dep-1})")
            r = S[slot] + i*4
            vmop(tag, f"buffer_load_dwordx4 v[{r}:{r+3}], {va}, {srd}, {sLD} offen offset:{0 if rot else (i%4)*1024} {kvflags}")
    def krange(a, b, dep):
        vm[:] = ["x"]*64
        for n_ in range(a, b):
            kind, T = ("k", n_//8) if n_ < 32 else ("v", n_//8 - 4)
            load_tile(kind, T, n_//8, dep, "K", lo=n_%8, hi=n_%8+1, setp=False)
    def red_rows(op, regs, tmp):
        for sw in ("v_permlane16_swap_b32", "v_permlane32_swap_b32"):
            for i, r in enumerate(regs): E(f"v_mov_b32 v{tmp+i}, v{r}")
            for i, r in enumerate(regs): E(f"{sw} v{r}, v{tmp+i}")
            for i, r in enumerate(regs): E(f"{op} v{r}, v{r}, v{tmp+i}")
    def red_ror(op, regs, rors):
        for k in rors:
            for r in regs: E(f"{op}_dpp v{r}, v{r}, v{r} row_ror:{k} {DPPM}")
    def tred4(a0, a1, a2, a3):
        E(f"v_permlane16_swap_b32 v{a0}, v{a1}")
        E(f"v_permlane16_swap_b32 v{a2}, v{a3}")
        E(f"v_add_f32 v{a0}, v{a0}, v{a1}")
        E(f"v_add_f32 v{a2}, v{a2}, v{a3}")
        E(f"v_permlane32_swap_b32 v{a0}, v{a2}")
        E(f"v_add_f32 v{a0}, v{a0}, v{a2}")
    def rb1(dst, src):
        E(f"v_cvt_pk_bf16_f32 v{dst}, v{src}, v{src}")
        E(f"v_lshlrev_b32 v{dst}, 16, v{dst}")
    def rb2(d0, d1, s0, s1, t):
        E(f"v_cvt_pk_bf16_f32 v{t}, v{s0}, v{s1}")
        E(f"v_lshlrev_b32 v{d0}, 16, v{t}")
        E(f"v_and_b32 v{d1}, 0xffff0000, v{t}")
    def tagcheck(regs, t):
        regs = [f"v{r}" for r in regs] + [sTAG]
        if len(regs) % 2 == 0: regs.insert(0, regs[0])
        E(f"v_max3_u32 v{t}, {regs[0]}, {regs[1]}, {regs[2]}")
        E(f"v_min3_u32 v{t+1}, {regs[0]}, {regs[1]}, {regs[2]}")
        for i in range(3, len(regs), 2):
            E(f"v_max3_u32 v{t}, v{t}, {regs[i]}, {regs[i+1]}")
            E(f"v_min3_u32 v{t+1}, v{t+1}, {regs[i]}, {regs[i+1]}")
        E(f"v_cmp_ne_u32 vcc, v{t}, v{t+1}")
    def maxall(regs, t):
        regs = list(regs)
        E(f"v_max3_u32 v{t}, v{regs[0]}, v{regs[1]}, v{regs[2]}")
        i = 3
        while i + 1 < len(regs):
            E(f"v_max3_u32 v{t}, v{t}, v{regs[i]}, v{regs[i+1]}"); i += 2
        if i < len(regs): E(f"v_max_u32 v{t}, v{t}, v{regs[i]}")
    def pollloop(name, load1, groups, tmp, sl):
        n = len(groups)
        E.label(f"L_poll{name}")
        E(f"s_waitcnt vmcnt(0)")
        for i, g in enumerate(groups): maxall(g, tmp+i)
        if n == 2: E(f"v_max_u32 v6, v{tmp}, v{tmp+1}")
        else: maxall(range(tmp, tmp+n), 6)
        E(f"v_cmp_eq_u32 vcc, -1, v6")
        E(f"s_cbranch_vccz L_got{name}")
        if sl: E(f"s_sleep {sl}")
        for i in range(n):
            E(f"v_cmp_eq_u32 vcc, -1, v{tmp+i}")
            E(f"s_mov_b64 exec, vcc")
            load1(i)
            E("s_mov_b64 exec, -1")
        spin_check(f"L_poll{name}")
        E.label(f"L_got{name}")
    def quickpoll(name, load1, firsts, back):
        n = len(firsts)
        mk = [f"s[{8+2*i}:{9+2*i}]" for i in range(n)]
        E.label(f"L_qp{name}")
        E("s_waitcnt vmcnt(0)")
        for i, r in enumerate(firsts): E(f"v_cmp_eq_u32 {mk[i]}, -1, v{r}")
        E(f"s_or_b64 vcc, {mk[0]}, {mk[1]}")
        for i in range(2, n): E(f"s_or_b64 vcc, vcc, {mk[i]}")
        E.raw(f"    s_cbranch_scc0 {back}"); E._push(None)
        for i in range(n):
            E(f"s_mov_b64 exec, {mk[i]}")
            load1(i)
        E("s_mov_b64 exec, -1")
        E(f"s_sub_u32 {sSPIN}, {sSPIN}, 1")
        E.raw(f"    s_cbranch_scc0 L_qp{name}"); E._push(None)
        E("s_branch L_end")
    def mktag():
        E("s_waitcnt lgkmcnt(0)")
        E(f"s_mul_i32 {sTAG}, {sEP}, 0x9E3779B1")
        E(f"s_add_u32 {sTAG}, {sTAG}, 0x7F4A7C15")
    def slice_dma(srd, rowb, soff, lds, n=2):
        if rowb & (rowb-1) == 0: E(f"v_lshl_add_u32 v{T2}, v{T0}, {rowb.bit_length()-1}, v{T1}")
        else:
            E(f"v_mul_u32_u24 v{T2}, {rowb}, v{T0}")
            E(f"v_add_u32 v{T2}, v{T2}, v{T1}")
        E(f"v_xor_b32 v{T3}, 64, v{T2}")
        E(f"s_mul_i32 {sT1}, {sW}, {8*n*rowb}")
        E(f"s_add_u32 {soff}, {soff}, {sT1}")
        E(f"s_mul_i32 {sT1}, {sW}, {1024*n}")
        E(f"s_add_u32 m0, {sT1}, {lds}")
        for i in range(n):
            E(f"buffer_load_dwordx4 v{T2 + i%2}, {srd}, {soff} offen {oflags} lds")
            if i < n-1:
                E(f"s_add_u32 {soff}, {soff}, {8*rowb}")
                E(f"s_add_u32 m0, m0, 1024")
    def part_rows(va, vt):
        E(f"v_lshrrev_b32 v{vt}, 4, {vLANE}")
        E(f"v_lshlrev_b32 v{va}, 13, v{vt}")
        E(f"v_and_b32 v{vt}, 15, {vLANE}")
        E(f"v_lshl_add_u32 v{va}, v{vt}, 8, v{va}")
        E(f"s_lshl_b32 {sT0}, {sG}, 15")
        E(f"s_lshr_b32 {sT1}, {sJ}, 4")
        E(f"s_lshl_b32 {sT1}, {sT1}, 12")
        E(f"s_add_u32 {sT0}, {sT0}, {sT1}")
        E(f"s_and_b32 {sT1}, {sJ}, 15")
        E(f"s_lshl_b32 {sT1}, {sT1}, 4")
        E(f"s_add_u32 {sT0}, {sT0}, {sT1}")
        E(f"s_add_u32 {sT0}, {sT0}, {WS_PART}")
    def slice_prep():
        E(f"v_lshrrev_b32 v{T0}, 3, {vLANE}")
        E(f"v_and_b32 v{T1}, 2, v{T0}")
        E(f"v_and_b32 v{T2}, 7, {vLANE}")
        E(f"v_xor_b32 v{T1}, v{T2}, v{T1}")
        E(f"v_lshlrev_b32 v{T1}, 4, v{T1}")

    hdr = []
    hdr.append("""; Fused adaLN + GQA decode attention + ReLU MLP in one launch: 256 workgroups (one per CU) x 8 waves.
;   d_ws as {data, tag} granules (tag = hash of an epoch word found in d_ws, advanced once per launch).
;   Hand-offs inside a group use plain stores only when every workgroup of the group reported the same die id.""")
    if aslist == 2: hdr.append(f"; @launch kernel=warm_kernel grid=(256,1,1) block=(64,1,1) lds=0")
    if aslist: hdr.append(f"; @launch kernel={KN} grid=(256,1,1) block=(512,1,1) lds={LDS_BYTES}")
    else: hdr.append(f"; @launch grid=(256,1,1) block=(512,1,1) lds={LDS_BYTES}")
    hdr.append('.amdgcn_target "amdgcn-amd-amdhsa--gfx950"\n.text')
    hdr.append(f".globl {KN}\n.p2align 8\n.type {KN},@function\n{KN}:")
    E.raw("\n".join(hdr))
    E("s_cmp_ge_u32 s2, 256")
    E("s_cbranch_scc1 L_end")
    if fixt or (stamps and "e" in stamps): E("s_memrealtime s[48:49]")
    E("s_load_dwordx2 s[8:9], s[0:1], 8")
    if codepf:
        if codepf < 32:
            E(f"s_cmp_ge_u32 s2, {8*codepf}" if pfirst else f"s_cmp_lt_u32 s2, {256-8*codepf}")
            E("s_cbranch_scc1 L_nopf")
        E("s_getpc_b64 s[88:89]")
        E.raw("L_pc:")
        E(f"v_lshlrev_b32 v6, 6, v0")
        E(f"v_min_u32 v6, L_end-L_pc, v6")
        E(f"v_mov_b32 v9, s89")
        E(f"v_add_co_u32 v8, vcc, s88, v6")
        E(f"v_addc_co_u32 v9, vcc, 0, v9, vcc")
        E(f"global_load_dword v24, v[8:9], off")
        E.label("L_nopf")
    E(f"s_and_b32 {sG}, s2, 7")
    if jperm:
        E(f"s_lshr_b32 {sJ}, s2, 4")
        E(f"s_bfe_u32 {sT0}, s2, 0x10003")
        E(f"s_lshl_b32 {sT0}, {sT0}, 4")
        E(f"s_or_b32 {sJ}, {sJ}, {sT0}")
    else: E(f"s_lshr_b32 {sJ}, s2, 3")
    sJE = sJ
    if esw:
        sJE = sT4
        E(f"s_mov_b32 {sJE}, {sJ}")
        for x, y in ((3, 31), (11, 30))[:esw]:
            E(f"s_cmp_eq_u32 {sJ}, {x}")
            E(f"s_cselect_b32 {sJE}, {y}, {sJE}")
            E(f"s_cmp_eq_u32 {sJ}, {y}")
            E(f"s_cselect_b32 {sJE}, {x}, {sJE}")
    if emap:
        E(f"s_and_b32 {sT1}, {sG}, 1")
        E(f"s_lshl_b32 {sT1}, {sT1}, 1")
        E(f"s_sub_u32 {sT0}, {sJE}, 8")
        E(f"s_add_u32 {sT0}, {sT0}, {sT1}")
        E(f"s_cmp_lt_u32 {sJE}, 16")
        E(f"s_cselect_b32 {sT0}, {sJE}, {sT0}")
        E(f"s_add_u32 {sA}, {sT0}, 2")
        E(f"s_mul_i32 {sA}, {sA}, 86")
        E(f"s_lshr_b32 {sA}, {sA}, 8")
        E(f"s_add_u32 {sT0}, {sT0}, {sA}")
        E(f"s_sub_u32 {sA}, {sJE}, 16")
        E(f"s_sub_u32 {sT1}, 8, {sT1}")
        E(f"s_cmp_lt_u32 {sA}, {sT1}")
        E(f"s_lshl_b32 {sA}, {sA}, 2")
        E(f"s_add_u32 {sA}, {sA}, 1")
        E(f"s_sub_u32 {sT3}, {sJE}, 16")
        E(f"s_cmp_lt_u32 {sT3}, {sT1}")
        E(f"s_cselect_b32 {sT0}, {sA}, {sT0}")
        E(f"s_lshl_b32 {sT0}, {sT0}, 2")
        E(f"s_lshr_b32 {sA}, {sG}, 1")
    else:
        E(f"s_lshr_b32 {sA}, {sG}, 1")
        E(f"s_lshl_b32 {sT0}, {sJE}, 2")
    E(f"s_add_u32 {sA}, {sA}, {sT0}")
    if swapq:
        if fmap == 0:
            E(f"s_cmp_lt_u32 {sA}, 96")
            E(f"s_cselect_b32 {sT0}, {sA}, 255")
        else:
            E(f"s_lshl_b32 {sT1}, {sJ}, 1")
            E(f"s_sub_u32 {sT1}, {sA}, {sT1}")
            E(f"s_bitcmp1_b32 {sJ}, 0")
            E(f"s_cselect_b32 {sT1}, 255, {sT1}")
            E(f"s_sub_u32 {sT0}, {sA}, 32")
            E(f"s_cmp_lt_u32 {sJ}, 16")
            E(f"s_cselect_b32 {sT0}, {sT1}, {sT0}")
        E(f"s_add_u32 {sA}, {sA}, 96")
    else: E(f"s_add_u32 {sT0}, {sA}, 128")
    E(f"s_bitcmp1_b32 {sG}, 0")
    E(f"s_cselect_b32 {sA}, {sT0}, {sA}")
    if "a" in dbg: E(f"s_mov_b32 {sA}, 255")
    if "g" in dbg:
        E(f"s_sub_u32 {sT0}, {sA}, 32")
        E(f"s_cmp_lt_u32 {sT0}, 64")
        E(f"s_cselect_b32 {sA}, 255, {sA}")
    E(f"s_cmp_lt_u32 {sA}, 96")
    E(f"s_cselect_b32 {sT0}, 72, 24")
    E(f"s_load_dwordx2 s[20:21], s[0:1], {sT0}")
    E("s_load_dwordx16 s[52:67], s[0:1], 0")
    E("s_load_dwordx8 s[68:75], s[0:1], 64")
    E("s_load_dwordx2 s[76:77], s[0:1], 96")
    E(f"s_cselect_b32 {sT4}, 48, 64")
    E(f"s_cselect_b32 {sT3}, 0, 48")
    E(f"v_lshrrev_b32 v4, 6, v0")
    E(f"v_and_b32 {vLANE}, 63, v0")
    E(f"v_readfirstlane_b32 {sW}, v4")
    slice_prep()
    E(f"s_lshl_b32 {sT4}, {sT4}, 7")
    E(f"s_lshl_b32 s22, {sT4}, 9")
    E(f"s_cmp_lt_u32 {sA}, 224")
    E(f"s_cselect_b32 s22, s22, 0")
    E(f"s_mov_b32 s23, 0x20000")
    E(f"s_lshr_b32 {sT0}, {sA}, 1")
    E(f"s_sub_u32 {sT3}, {sT0}, {sT3}")
    E(f"s_lshl_b32 {sT3}, {sT3}, 7")
    E(f"s_and_b32 {sT2}, {sA}, 1")
    E(f"s_lshl_b32 {sT0}, {sT2}, 3")
    E(f"s_add_u32 {sT0}, {sT0}, {sW}")
    E(f"s_lshl_b32 {sT0}, {sT0}, 5")
    E(f"s_mul_i32 {sT0}, {sT0}, {sT4}")
    E(f"s_add_u32 {sT3}, {sT3}, {sT0}")
    E(f"v_mul_u32_u24 v{T2}, {sT4}, v{T0}")
    E(f"v_add_u32 v{T2}, v{T2}, v{T1}")
    E(f"v_xor_b32 v{T3}, 64, v{T2}")
    E(f"s_lshl_b32 {sT4}, {sT4}, 3")
    E(f"s_lshl_b32 {sT0}, {sW}, 12")
    E(f"s_add_u32 m0, {sT0}, {L_WM}")
    E(f"v_and_b32 v4, 12, {vLANE}")
    E(f"v_lshlrev_b32 {vK}, 6, v4")
    E(f"v_lshrrev_b32 v4, 4, {vLANE}")
    E(f"v_lshl_add_u32 {vK}, v4, 6, {vK}")
    E(f"v_and_b32 v4, 3, {vLANE}")
    E(f"v_lshl_add_u32 {vK}, v4, 4, {vK}")
    E(f"s_lshl_b32 {sBASE}, {sG}, 23")
    E(f"s_andn2_b32 {sT0}, s2, 7")
    E(f"s_add_u32 {sT0}, {sT0}, {sW}")
    E(f"s_lshl_b32 {sT0}, {sT0}, 13")
    E(f"s_add_u32 {sBASE}, {sBASE}, {sT0}")
    E(f"s_mov_b32 s10, 0x4000000")
    E(f"s_mov_b32 s11, 0x20000")
    E(f"v_mov_b32 v5, {L_CNT}")
    for r in range(20, 24): E(f"v_mov_b32 v{r}, 0")
    E(f"ds_write_b128 v5, v[20:23]")
    E(f"ds_write_b64 v5, v[20:21] offset:16")
    E("s_setprio 3")
    E("s_waitcnt lgkmcnt(0)")
    if "4" in dbg:
        E(f"s_cmp_lg_u32 {sW}, 7")
        E("s_cbranch_scc1 L_nb")
        E("v_mov_b32 v6, s2")
        E("v_mov_b32 v7, 0x80")
        E("s_mov_b64 exec, 1")
        E("global_store_byte v6, v7, s[74:75] sc1")
        E("s_mov_b64 exec, -1")
        E.label("L_nb")
    for i in range(4):
        E(f"buffer_load_dwordx4 v{T2 + i%2}, {rWT}, {sT3} offen {eflags} lds")
        if i < 3:
            E(f"s_add_u32 m0, m0, 1024")
            E(f"s_add_u32 {sT3}, {sT3}, {sT4}")
    if "b" not in dbg: E("s_barrier")
    def srd_setup():
        E(f"s_load_dword {sEP}, s[76:77], {WS_EPOCH}")
        E(f"v_lshlrev_b32 {vV}, 4, {vLANE}")
        for d, sr in ((28, 52), (32, 68), (16, 76), (12, 56), (24, 66), (36, 72), (84, 60), (20, 64)):
            E(f"s_mov_b64 s[{d}:{d+1}], s[{sr}:{sr+1}]")
        for d, z in ((28, 1024), (32, 1024), (12, 0x4000000), (16, 0x10000000), (20, 512*1792*2), (24, 512*1792*2), (36, 1024)):
            E(f"s_mov_b32 s{d+2}, {z:#x}")
        for d in (28, 32, 12, 16, 24, 36): E(f"s_mov_b32 s{d+3}, 0x20000")
        stamp(0)
        if stamps and "e" in stamps: E(f"s_mov_b64 s[{52+2*stamps.index('e')}:{53+2*stamps.index('e')}], s[48:49]")
    def late_setup():
        E(f"s_mov_b32 {sSELLO}, 0x05040100")
        E(f"s_mov_b32 {sSELHI}, 0x07060302")
        E(f"s_mov_b32 {sC}, {f32bits(math.log2(math.e)):#x}")
        E(f"s_mov_b32 {sSPIN}, 0x40000")
        E(f"s_getreg_b32 {sXCC}, hwreg(HW_REG_XCC_ID)")
        E(f"s_sub_u32 {sT0}, {sJ}, {jml}")
        E(f"s_cmp_lt_u32 {sT0}, 7")
        E(f"s_cselect_b32 {sML}, 1, 0")
        E(f"s_mul_i32 {sM}, {sG}, 7")
        E(f"s_add_u32 {sM}, {sM}, {sT0}")
        E(f"s_lshl_b32 {sPUB}, {sM}, 11")
        E(f"s_add_u32 {sPUB}, {sPUB}, {WS_MO}")
        E(f"s_cmp_lt_u32 {sJ}, 16")
        E(f"s_cselect_b32 s86, {512*4096*2}, 0")
        E(f"s_mov_b32 s87, 0x20000")
        E(f"s_lshl_b32 {sAOP}, {sG}, 12")
        E(f"s_lshl_b32 {sT0}, {sJ}, 8")
        E(f"s_add_u32 {sAOP}, {sAOP}, {sT0}")
        E(f"s_add_u32 {sAOP}, {sAOP}, {WS_AO}")
    E(f"s_cmp_lt_u32 {sA}, 224")
    E(f"s_cselect_b32 {sT0}, {sW}, 1")
    E(f"s_cmp_eq_u32 {sT0}, 0")
    E("s_cbranch_scc1 L_aux")
    NPRE = 4
    if tlb:
        E(f"s_cmp_lg_u32 {sW}, 1")
        E("s_cbranch_scc1 L_notlb")
        if tlb < 32:
            E(f"s_cmp_ge_u32 {sJ}, {tlb}")
            E("s_cbranch_scc1 L_notlb")
        E(f"v_lshlrev_b32 v6, 21, {vLANE}")
        E(f"s_mov_b64 s[12:13], s[56:57]")
        E(f"s_mov_b32 s14, 0x4000000")
        E(f"s_mov_b32 s15, 0x20000")
        E("s_mov_b64 exec, 15")
        E(f"buffer_load_dword v25, v6, {rK}, {sBASE} offen nt")
        E(f"buffer_load_dword v25, v6, {rV}, {sBASE} offen nt")
        E("s_mov_b64 exec, 1")
        E(f"s_lshl_b32 {sT0}, {sG}, 19")
        E(f"v_mov_b32 v7, {sT0}")
        for pr in (60, 64, 66, 72, 76):
            E(f"global_load_dword v25, {'v7' if pr == 60 else 'v6'}, s[{pr}:{pr+1}]")
        E("s_mov_b64 exec, -1")
        E.label("L_notlb")
    load_tile("k", 0, 0, 0, "K0", hi=NPRE, setp=False)
    srd_setup()
    late_setup()
    E(f"v_mov_b32 v19, 1")
    E("s_mov_b64 exec, 1")
    E(f"s_waitcnt vmcnt({NPRE})")
    E(f"ds_add_u32 v5, v19 offset:4")
    E("s_mov_b64 exec, -1")
    stamp("d")
    E("s_branch L_stream")

    def flag(n):
        E(f"s_lshl_b32 {sT0}, {sJ}, 7")
        E(f"s_lshl_b32 {sT1}, {sG}, 12")
        E(f"s_add_u32 {sT0}, {sT0}, {sT1}")
        E(f"s_add_u32 {sT0}, {sT0}, {WS_CLR}")
        E(f"v_mov_b32 v{T0}, {sXCC}")
        E(f"v_mov_b32 v{T1}, {sTAG}")
        E(f"v_mov_b32 v{T2}, {sXCC}")
        E(f"v_mov_b32 v{T3}, {sTAG}")
        E("s_mov_b64 exec, 0xff")
        E(f"s_waitcnt vmcnt({n})")
        E(f"buffer_store_dwordx4 v[{T0}:{T3}], {vV}, {rWS}, {sT0} offen {'' if '5' in dbg else 'sc1'}")
        E("s_mov_b64 exec, -1")
    def w1_dma():
        E(f"v_lshrrev_b32 v{T0}, 2, {vLANE}")
        E(f"v_mul_u32_u24 v{T0}, 3584, v{T0}")
        E(f"v_and_b32 v{T1}, 3, {vLANE}")
        E(f"v_lshl_add_u32 v{T0}, v{T1}, 4, v{T0}")
        E(f"s_mul_i32 {sT0}, {sW}, {16*3584}")
        E(f"s_lshl_b32 {sT1}, {sM}, 6")
        E(f"s_add_u32 {sT0}, {sT0}, {sT1}")
        E(f"s_lshl_b32 {sT3}, {sW}, 13")
        E(f"s_add_u32 m0, {sT3}, {L_WT}")
        for i in range(4):
            E(f"buffer_load_dwordx4 v{T0}, {rWT}, {sT0} offen {wflags} lds")
            if i < 3:
                E(f"s_add_u32 {sT0}, {sT0}, {128*3584}")
                E(f"s_add_u32 m0, m0, 1024")
    def w2_dma():
        E(f"v_lshrrev_b32 v{T0}, 3, {vLANE}")
        E(f"v_and_b32 v{T1}, 7, {vLANE}")
        E(f"v_lshlrev_b32 v{T1}, 4, v{T1}")
        E(f"v_lshl_add_u32 v{T0}, v{T0}, 10, v{T1}")
        E(f"s_lshl_b32 {sT0}, {sM}, 15")
        E(f"s_lshl_b32 {sT1}, {sW}, 7")
        E(f"s_add_u32 {sT0}, {sT0}, {sT1}")
        E(f"s_lshl_b32 {sT3}, {sW}, 13")
        E(f"s_add_u32 m0, {sT3}, {L_WT + 4096}")
        for i in range(4):
            E(f"buffer_load_dwordx4 v{T0}, {rW2}, {sT0} offen {oflags} lds")
            if i < 3:
                E(f"s_add_u32 {sT0}, {sT0}, 8192")
                E(f"s_add_u32 m0, m0, 1024")
    def w1_pref(skip):
        E(f"s_sub_u32 {sT3}, {sJW}, 16")
        E(f"s_cmp_ge_u32 {sT3}, 8")
        E(f"s_cbranch_scc1 {skip}")
        E(f"v_lshrrev_b32 v{T0}, 5, {vLANE}")
        E(f"v_mul_u32_u24 v{T0}, 3584, v{T0}")
        E(f"v_and_b32 v{T1}, 31, {vLANE}")
        E(f"v_lshl_add_u32 v{T0}, v{T1}, 4, v{T0}")
        E(f"s_lshl_b32 {sT3}, {sT3}, 3")
        E(f"s_add_u32 {sT3}, {sT3}, {sW}")
        E(f"s_mul_i32 {sT0}, {sT3}, {8*3584}")
        E(f"s_mul_i32 {sT1}, {sG}, 448")
        E(f"s_and_b32 {sT1}, {sT1}, 0xffffff80")
        E(f"s_add_u32 {sT0}, {sT0}, {sT1}")
        E(f"s_mov_b32 m0, {L_WO}")
        for i in range(4):
            E(f"buffer_load_dwordx4 v{T0}, {rWT}, {sT0} offen lds")
            if i < 3: E(f"s_add_u32 {sT0}, {sT0}, {2*3584}")
    def wo_pref():
        u = len(E.L)
        E(f"s_cmp_lt_u32 {sJ}, 16")
        E(f"s_cbranch_scc1 L_wp{u}")
        E(f"v_lshrrev_b32 v{T0}, 3, {vLANE}")
        E(f"v_and_b32 v{T1}, 7, {vLANE}")
        E(f"v_lshlrev_b32 v{T1}, 4, v{T1}")
        E(f"v_lshl_add_u32 v{T0}, v{T0}, 10, v{T1}")
        E(f"s_lshl_b32 {sT0}, {sG}, 19")
        E(f"s_bfe_u32 {sT1}, {sJ}, 0x10003")
        E(f"s_lshl_b32 {sT1}, {sT1}, 18")
        E(f"s_add_u32 {sT0}, {sT0}, {sT1}")
        E(f"s_and_b32 {sT1}, {sJ}, 7")
        E(f"s_lshl_b32 {sT1}, {sT1}, 7")
        E(f"s_add_u32 {sT0}, {sT0}, {sT1}")
        E(f"s_lshl_b32 {sT1}, {sW}, 15")
        E(f"s_add_u32 {sT0}, {sT0}, {sT1}")
        E(f"s_mov_b32 s86, {512*4096*2}")
        E(f"s_mov_b32 m0, {L_WO}")
        for i in range(wopf):
            E(f"buffer_load_dwordx4 v{T0}, {rWO}, {sT0} offen lds")
            if i < wopf-1: E(f"s_add_u32 {sT0}, {sT0}, 8192")
        E(f"s_mov_b32 s86, 0")
        E.label(f"L_wp{u}")
    def tail_dma(pos):
        if tpwo != pos or "o" in dbg: return
        u = len(E.L)
        if mlearly:
            E(f"s_cmp_eq_u32 {sML}, 0")
            E(f"s_cbranch_scc1 L_ta{u}")
            (w1_dma if mlearly == 1 else w2_dma)()
            E(f"s_branch L_tb{u}")
            E.label(f"L_ta{u}")
        if w1pf == 1:
            w1_pref(f"L_tc{u}")
            E(f"s_branch L_tb{u}")
            E.label(f"L_tc{u}")
        slice_prep()
        E(f"s_lshl_b32 {sT0}, {sG}, 19")
        E(f"s_lshr_b32 {sT1}, {sJW}, 3")
        E(f"s_lshl_b32 {sT1}, {sT1}, 18")
        E(f"s_add_u32 {sT0}, {sT0}, {sT1}")
        E(f"s_and_b32 {sT1}, {sJW}, 7")
        E(f"s_lshl_b32 {sT1}, {sT1}, 7")
        E(f"s_add_u32 {sT0}, {sT0}, {sT1}")
        slice_dma(rWO, 1024, sT0, L_WO, 4)
        E.label(f"L_tb{u}")
        vm.extend(["WO"]*4)

    E.label("L_aux")
    srd_setup()
    CR = 8; XQ = 12; TRA = 16; XF = 20
    G6 = S[6]; AD = S[6] + 16
    E(f"v_and_b32 v4, 31, {vLANE}")
    E(f"v_lshlrev_b32 v4, 4, v4")
    E(f"v_lshlrev_b32 v6, 2, {vLANE}")
    E(f"s_lshl_b32 {sT0}, {sT2}, 9")
    E(f"s_cmp_ge_u32 {sA}, 96")
    E("s_cbranch_scc1 L_ax")
    E(f"buffer_load_dwordx4 v[{CR}:{CR+3}], v4, {rC}, {sT0} offen")
    E("s_branch L_ay")
    E.label("L_ax")
    E(f"buffer_load_dwordx4 v[{CR}:{CR+3}], {vV}, {rX}, 0 offen")
    E(f"buffer_load_dword v{XQ}, v6, {rX}, {sT0} offen")
    E(f"buffer_load_dword v{XQ+1}, v6, {rX}, {sT0} offen offset:256")
    E.label("L_ay")
    if nb: krange(0, 4, 0)
    late_setup()

    E(f"v_lshrrev_b32 v{T0}, 4, {vLANE}")
    E(f"v_bfe_u32 v{T1}, {vLANE}, 2, 2")
    E(f"v_lshl_add_u32 v{T2}, v{T0}, 3, v{T1}")
    E(f"v_lshlrev_b32 v{T2}, 7, v{T2}")
    E(f"v_and_b32 v{T3}, 3, {vLANE}")
    E(f"v_lshl_add_u32 v{T2}, v{T3}, 3, v{T2}")
    E(f"v_bfe_u32 v{T1}, {vLANE}, 3, 2")
    E(f"v_lshl_add_u32 v{TRA}, v{T1}, 5, v{T2}")
    for nt in range(1, 4): E(f"v_xor_b32 v{TRA+nt}, {nt*32}, v{TRA}")
    vAR = 7
    E(f"v_lshlrev_b32 v{vAR}, 4, v{T0}")
    E(f"s_waitcnt vmcnt({4 if nb else 0})")
    mktag()
    stamp("a0")
    for p in range(4):
        E(f"v_lshlrev_b32 v{XF+2*p}, 16, v{CR+p}")
        E(f"v_and_b32 v{XF+2*p+1}, 0xffff0000, v{CR+p}")
    E(f"s_cmp_ge_u32 {sA}, 96")
    E("s_cbranch_scc1 L_auxq")
    E(f"s_mov_b32 {sT0}, {f32bits(-math.log2(math.e)):#x}")
    for i in range(8): E(f"v_mul_f32 v{G6+i}, {sT0}, v{XF+i}")
    for i in range(8): E(f"v_exp_f32 v{G6+i}, v{G6+i}")
    for i in range(8): E(f"v_add_f32 v{G6+i}, 1.0, v{G6+i}")
    for i in range(8): E(f"v_rcp_f32 v{G6+i}, v{G6+i}")
    for i in range(8): E(f"v_mul_f32 v{XF+i}, v{XF+i}, v{G6+i}")
    for p in range(4): E(f"v_cvt_pk_bf16_f32 v{CR+p}, v{XF+2*p}, v{XF+2*p+1}")
    E(f"ds_write_b128 v4, v[{CR}:{CR+3}] offset:{L_ACT}")
    E("s_branch L_gemv")
    E.label("L_auxq")
    vm[:] = ["x"]*64
    if nb: krange(4, 8, da)
    else:
        for T in range(k1): load_tile("k", T, T, dburst, f"K{T}", setp=False)
    m, v, t = 8, 9, 10
    vals = list(range(XF, XF+8))
    E(f"v_add_f32 v{m}, v{vals[0]}, v{vals[1]}")
    for r in vals[2:]: E(f"v_add_f32 v{m}, v{m}, v{r}")
    red_ror("v_add_f32", [m], (1, 2, 4, 8)); red_rows("v_add_f32", [m], t)
    E(f"v_mul_f32 v{m}, {f32bits(1.0/512):#x}, v{m}")
    for i, r in enumerate(vals):
        E(f"v_sub_f32 v{t}, v{r}, v{m}")
        E(f"v_mul_f32 v{v}, v{t}, v{t}" if i == 0 else f"v_fmac_f32 v{v}, v{t}, v{t}")
    red_ror("v_add_f32", [v], (1, 2, 4, 8)); red_rows("v_add_f32", [v], t)
    E(f"v_mul_f32 v{v}, {f32bits(1.0/512):#x}, v{v}")
    rb2(m, v, m, v, t)
    E(f"v_add_f32 v{v}, {f32bits(1e-5):#x}, v{v}")
    rb1(v, v)
    E(f"v_sqrt_f32 v{v}, v{v}")
    rb1(v, v)
    E(f"v_rcp_f32 v{v}, v{v}")
    for u in range(2):
        n0, n1 = XF+2*u, XF+2*u+1
        E(f"v_lshlrev_b32 v{n0}, 16, v{XQ+u}")
        E(f"v_and_b32 v{n1}, 0xffff0000, v{XQ+u}")
        E(f"v_sub_f32 v{n0}, v{n0}, v{m}")
        E(f"v_sub_f32 v{n1}, v{n1}, v{m}")
        rb2(n0, n1, n0, n1, t)
        E(f"v_mul_f32 v{n0}, v{n0}, v{v}")
        E(f"v_mul_f32 v{n1}, v{n1}, v{v}")
        rb2(n0, n1, n0, n1, t)
    E(f"v_lshrrev_b32 v{T0}, 5, {vLANE}")
    E(f"v_lshl_add_u32 v4, v{T0}, 10, v4")
    E(f"s_lshl_b32 {sT4}, {sT2}, 12")
    E(f"s_add_u32 {sT4}, {sT4}, {WS_EP}")
    E(f"s_add_u32 {sT3}, {sT4}, 8192")
    def modpoll():
        for arr in range(2):
            for u in range(2):
                for part in range(2):
                    r = G6 + (arr*4 + u*2 + part)*4
                    E(f"buffer_load_dwordx4 v[{r}:{r+3}], v4, {rWS}, {sT3 if arr else sT4} offen offset:{u*2048 + part*512} sc1")
    if nb:
        krange(8, pa, da)
        modpoll()
        krange(pa, pa+la, da+8)
        E(f"s_waitcnt vmcnt({la})")
        tagcheck([G6+1+2*i for i in range(16)], T0)
        E("s_cbranch_vccz L_gotmod")
    E.label("L_pollmod")
    modpoll()
    E("s_waitcnt vmcnt(0)")
    tagcheck([G6+1+2*i for i in range(16)], T0)
    E("s_cbranch_vccz L_gotmod")
    if slp: E(f"s_sleep {slp}")
    spin_check("L_pollmod")
    E.label("L_gotmod")
    stamp(2)
    for u in range(2):
        n0, n1 = XF+2*u, XF+2*u+1
        s0 = G6 + u*8; s1 = s0+2; c0 = G6 + 16 + u*8; c1 = c0+2
        for r in (s0, s1, c0, c1): E(f"v_add_f32 v{r}, v{r}, v{r+4}")
        rb2(s0, s1, s0, s1, t); rb2(c0, c1, c0, c1, t)
        E(f"v_add_f32 v{c0}, 1.0, v{c0}")
        E(f"v_add_f32 v{c1}, 1.0, v{c1}")
        rb2(c0, c1, c0, c1, t)
        E(f"v_mul_f32 v{n0}, v{n0}, v{c0}")
        E(f"v_mul_f32 v{n1}, v{n1}, v{c1}")
        rb2(n0, n1, n0, n1, t)
        E(f"v_add_f32 v{n0}, v{n0}, v{s0}")
        E(f"v_add_f32 v{n1}, v{n1}, v{s1}")
        E(f"v_cvt_pk_bf16_f32 v{n0}, v{n0}, v{n1}")
        E(f"ds_write_b32 v6, v{n0} offset:{L_ACT + u*256}")
    E.label("L_gemv")
    E(f"ds_read_b32 v{T0}, v5 offset:4")
    E("s_waitcnt lgkmcnt(0)")
    E(f"v_readfirstlane_b32 {sT1}, v{T0}")
    E(f"s_cmp_lg_u32 {sT1}, 7")
    E(f"s_cbranch_scc1 L_gemv")
    stamp("a2")
    if stamps: E("s_waitcnt lgkmcnt(0)")
    def g_reads(st):
        b = S[4] + (st % 3)*20
        E(f"ds_read_b128 v[{b}:{b+3}], v{vAR} offset:{L_ACT + st*64}")
        for nt in range(4):
            for q in range(2):
                r = b + 4 + nt*4 + q*2
                E(f"ds_read_b64_tr_b16 v[{r}:{r+1}], v{TRA+nt} offset:{L_WM + st*4096 + q*512}")
    g_reads(0); g_reads(1)
    E(f"s_lshl_b32 {sT4}, {sA}, 9")
    E(f"s_add_u32 {sT4}, {sT4}, {WS_EP}")
    E(f"v_lshlrev_b32 v4, 3, {vLANE}")
    for st in range(8):
        E(f"s_waitcnt lgkmcnt({9 if st < 7 else 0})")
        if st + 2 < 8: g_reads(st+2)
        b = S[4] + (st % 3)*20
        for nt in range(4):
            d = AD + 4*nt
            c = "0" if st == 0 else f"v[{d}:{d+3}]"
            E(f"v_mfma_f32_16x16x32_bf16 v[{d}:{d+3}], v[{b}:{b+3}], v[{b+4+4*nt}:{b+7+4*nt}], {c}")
    E(f"v_mov_b32 v9, {sTAG}")
    for nt in range(1, 4):
        E(f"v_mov_b32_dpp v{AD}, v{AD+4*nt} quad_perm:[0,1,2,3] row_mask:{1<<nt:#x} bank_mask:0xf")
    E(f"v_mov_b32 v8, v{AD}")
    E(f"s_cmp_lt_u32 {sA}, 32")
    E(f"s_cselect_b32 {sT2}, 1, {sT2}")
    E(f"s_cmp_eq_u32 {sT2}, 0")
    E("s_cbranch_scc1 L_owner")
    E(f"buffer_store_dwordx2 v[8:9], v4, {rWS}, {sT4} offen sc1")
    stamp(1)
    E(f"s_cmp_ge_u32 {sA}, 96")
    E(f"s_cbranch_scc1 {(f'L_x{pa+la}' if ext else f'L_j{pa+la}') if nb else f'L_cu{k1}'}")
    E(("s_branch L_x4" if ext == 2 else "s_branch L_stream") if nb else "s_branch L_cu0")
    E.label("L_owner")
    E(f"s_cmp_ge_u32 {sA}, 96")
    E(f"s_cbranch_scc1 L_own2")

    def redpoll(): E(f"buffer_load_dwordx2 v[10:11], v4, {rWS}, {sT4} offen offset:512 sc1")
    if nb:
        krange(4, pa+la, da)
        E.label("L_own2")
        krange(pa+la, pb, da)
        redpoll()
        krange(pb, pb+lb, da+1)
        E(f"s_waitcnt vmcnt({lb})")
        E(f"v_cmp_ne_u32 vcc, {sTAG}, v11")
        E("s_cbranch_vccz L_gotred")
    else:
        vm[:] = ["x"]*64
        for T in range(k1): load_tile("k", T, T, dburst, f"K{T}", setp=False)
        E.label("L_own2")
        for T in range(k1, k2): load_tile("k", T, T, dburst, f"K{T}", setp=False)
    E.label("L_pollred")
    E(f"buffer_load_dwordx2 v[10:11], v4, {rWS}, {sT4} offen offset:512 sc1")
    E("s_waitcnt vmcnt(0)")
    E(f"v_cmp_ne_u32 vcc, {sTAG}, v11")
    E("s_cbranch_vccz L_gotred")
    spin_check("L_pollred")
    E.label("L_gotred")
    E(f"v_add_f32 v8, v8, v10")
    E(f"s_lshl_b32 {sT0}, {sA}, 7")
    E(f"s_add_u32 {sT0}, {sT0}, {WS_MODG}")
    E(f"v_mov_b32_dpp v10, v8 quad_perm:[1,1,3,3] {DPPM}")
    E(f"v_cvt_pk_bf16_f32 v8, v8, v10")
    E(f"s_mov_b32 exec_lo, 0x55555555")
    E(f"s_mov_b32 exec_hi, 0x55555555")
    E(f"buffer_store_dwordx2 v[8:9], v6, {rWS}, {sT0} offen sc1")
    E(f"s_mov_b64 exec, -1")
    stamp(3)
    E((f"s_branch L_x{pb+lb}" if ext else f"s_branch L_j{pb+lb}") if nb else f"s_branch L_cu{k2}")
    if nb and ext:
        for n0 in range(4 if ext == 2 else pa+la, 40, 4):
            E.label(f"L_x{n0}")
            krange(n0, n0+4, dx)
        E.label("L_x40")
        if prio == 3: E("s_setprio 2")
        E("s_branch L_v1")
    vm[:] = ["x"]*depth0
    for T in range(0 if nb else 4):
        E.label(f"L_cu{T}")
        if p0 != 3: E(f"s_setprio {p0}")
        if wmx and T >= wmx:
            E(f"s_cmp_lt_u32 {sA}, 96")
            E(f"s_cbranch_scc1 L_sk{T}")
        load_tile("k", T, T, depth0, f"K{T}", setp=False)
    E.label("L_cu4")
    assert tpwo != 2
    if not nb:
        load_tile("v", 0, 4, depth0, "V0", setp=False)
        setlight()
        E("s_branch L_v1")

    vm[:] = ["K0"]*NPRE
    E.label("L_stream")
    setlight(); light[0] = True
    load_tile("k", 0, 0, depth, "K0", lo=NPRE)
    E(f"s_cmp_lg_u32 {sW}, {99 if 'l' in dbg else fwave}")
    E("s_cbranch_scc1 L_sk1")
    for r in range(20, 24): E(f"v_mov_b32 v{r}, -1")
    E(f"s_cmp_ge_u32 {sJ}, 16")
    E("s_cbranch_scc1 L_noclr2")
    if rep:
        E(f"v_lshrrev_b32 v18, 4, {vLANE}")
        E(f"v_lshlrev_b32 v18, 15, v18")
        E(f"v_and_b32 v19, 15, {vLANE}")
        E(f"v_lshl_add_u32 v18, v19, 4, v18")
        E(f"buffer_store_dwordx4 v[20:23], v18, {rWS}, {sAOP} offen sc1")
        E(f"s_add_u32 {sT0}, {sAOP}, {4*32768}")
        E(f"buffer_store_dwordx4 v[20:23], v18, {rWS}, {sT0} offen sc1")
    else:
        E("s_mov_b64 exec, 0xffff")
        if "1" not in dbg: E(f"buffer_store_dwordx4 v[20:23], {vV}, {rWS}, {sAOP} offen sc1")
        E("s_mov_b64 exec, -1")
    E.label("L_noclr2")
    if mlite:
        E(f"s_sub_u32 {sT0}, {sJ}, 16")
        E(f"s_cmp_ge_u32 {sT0}, 7")
        E("s_cbranch_scc1 L_noclr0")
        E(f"s_add_u32 {sT0}, {sPUB}, {(jml-16)*2048}")
    else:
        E(f"s_cmp_eq_u32 {sML}, 0")
        E("s_cbranch_scc1 L_noclr0")
        E(f"s_mov_b32 {sT0}, {sPUB}")
    for i in range(0 if "2" in dbg else 2):
        E(f"buffer_store_dwordx4 v[20:23], {vV}, {rWS}, {sT0} offen offset:{1024*i} sc1")
    E.label("L_noclr0")
    if wb:
        sv = list(vm)
        load_tile("k", 1, 1, depth+wb, "K1")
        mktag()
        flag(8)
        load_tile("k", 2, 2, depth+wb, "K2")
        E("s_branch L_sk3")
        vm[:] = sv
    load_tile("k", 1, 1, depth, "K1", hi=4)
    mktag()
    if fpos < 0 and "3" not in dbg: flag(4)
    if fixw >= 0:
        E(f"s_cmp_lg_u32 s2, {fixw}")
        E("s_cbranch_scc1 L_nofw")
        E(f"v_mov_b32 v{T0}, s48")
        E(f"v_mov_b32 v{T2}, 0x800")
        E(f"buffer_store_dword v{T0}, v{T2}, {rWS}, 0 offen sc1")
        E.label("L_nofw")
    E("s_branch L_k1b")
    E.label("L_sk1")
    del vm[-4:]
    load_tile("k", 1, 1, depth, "K1", hi=4)
    mktag()
    E.label("L_k1b")
    E.raw("L_j12:")
    load_tile("k", 1, 1, depth, "K1", lo=4)
    if w1e:
        E(f"s_cmp_ge_u32 {sA}, 224")
        E(f"s_cselect_b32 {sT0}, {sML}, 0")
        E(f"s_cmp_eq_u32 {sT0}, 0")
        E("s_cbranch_scc1 L_sk2")
        w1_dma()
    E.label("L_sk2")
    E.raw("L_j16:")
    stamp("k2")
    load_tile("k", 2, 2, depth, "K2", hi=4)
    E.raw("L_j20:")
    load_tile("k", 2, 2, depth, "K2", lo=4)
    E.label("L_sk3")
    E.raw("L_j24:")
    load_tile("k", 3, 3, depth, "K3", hi=4)
    E.raw("L_j28:")
    load_tile("k", 3, 3, depth, "K3", lo=4)
    E.label("L_sk4")
    E.raw("L_j32:")
    stamp("k4")
    if nb and prio == 3: E("s_setprio 2")
    tail_dma(2)
    QP = 8
    def qloads():
        if "p" in dbg: return
        u = len(E.L)
        if not mlite:
            E(f"s_cmp_eq_u32 {sML}, 0")
            E(f"s_cbranch_scc1 L_nwf{u}")
            E(f"buffer_load_dwordx2 v[20:21], v17, {rWS}, 0 offen sc1")
            E(f"buffer_load_dwordx2 v[22:23], v17, {rWS}, 0 offen offset:1024 sc1")
            E.label(f"L_nwf{u}")
        E(f"buffer_load_dwordx4 v[{QP}:{QP+3}], v18, {rWS}, {sT2} offen sc1")
        E(f"buffer_load_dwordx4 v[{QP+4}:{QP+7}], v18, {rWS}, {sT2} offen offset:16 sc1")
        E(f"buffer_load_dwordx2 v[{T0}:{T1}], v19, {rWS}, 0 offen sc1")
    seq = [("v", 0, 4, i) for i in range(8)] + [("v", 1, 5, i) for i in range(8)] + [("v", 2, 6, i) for i in range(8)] + [("v", 3, 0, i) for i in range(8)]
    def issue(x): load_tile(x[0], x[1], x[2], (depthv if (depthv and x[1]*8+x[3] >= dvat) else depth), f"V{x[1]}", lo=x[3], hi=x[3]+1)
    for n_, x in enumerate(seq[:8]):
        if fpos == n_:
            E(f"s_cmp_lg_u32 {sW}, {fwave}")
            E("s_cbranch_scc1 L_nofl")
            flag(depth)
            E.label("L_nofl")
        if n_ == 4:
            E.raw("L_j36:")
            if nb and prio == 3: E("s_setprio 2")
        issue(x)
    E.label("L_v1")
    if wopf and wopos == 2: wo_pref()
    for x in seq[8:qat-1]: issue(x)
    E(f"v_mov_b32 v4, 1")
    E("s_mov_b64 exec, 1")
    E(f"ds_add_rtn_u32 v4, v5, v4 offset:12")
    E("s_mov_b64 exec, -1")
    issue(seq[qat-1])
    E(f"s_cmp_eq_u32 {sML}, 0")
    E("s_cbranch_scc1 L_nomdma")
    E(f"s_lshl_b32 {sT0}, {sW}, 10")
    E(f"s_add_u32 m0, {sT0}, {L_MOD}")
    E(f"s_add_u32 {sT0}, {sT0}, {WS_MODG + 4096}")
    E(f"buffer_load_dwordx4 {vV}, {rWS}, {sT0} offen sc1 lds")
    E.label("L_nomdma")
    E(f"v_lshlrev_b32 v18, 1, {vK}")
    E(f"s_lshl_b32 {sT2}, {sG}, 11")
    E(f"s_add_u32 {sT2}, {sT2}, {WS_QG}")
    E(f"v_and_b32 v19, 31, {vLANE}")
    E(f"s_lshl_b32 {sT0}, {sG}, 12")
    E(f"s_add_u32 {sT0}, {sT0}, {WS_CLR}")
    E(f"v_lshl_add_u32 v19, v19, 7, {sT0}")
    E(f"v_mov_b32 v21, {sTAG}")
    E(f"v_mov_b32 v23, {sTAG}")
    E(f"v_lshrrev_b32 v17, 3, {vLANE}")
    E(f"v_lshlrev_b32 v17, 12, v17")
    E(f"v_and_b32 v16, 7, {vLANE}")
    E(f"v_lshl_add_u32 v17, v16, 7, v17")
    E(f"v_add_u32 v17, {WS_CLR}, v17")
    E("s_waitcnt lgkmcnt(0)")
    E(f"v_readfirstlane_b32 {sSK}, v4")
    E(f"s_cmp_lg_u32 {sSK}, 0")
    E("s_cbranch_scc1 L_noqp")
    if dyn == 1:
        E(f"s_load_dwordx2 s[32:33], s[0:1], 88")
        E(f"s_mov_b32 s34, 256")
        E(f"s_lshl_b32 {sT0}, {sG}, 5")
        E(f"s_xor_b32 {sT1}, {sML}, 1")
        E(f"v_mov_b32 v24, {sT1}")
        E(f"v_mov_b32 v25, 0")
        E("s_waitcnt lgkmcnt(0)")
        E("s_mov_b64 exec, 1")
        E(f"buffer_atomic_add v24, v25, {rC}, {sT0} offen sc0 sc1")
        E("s_mov_b64 exec, -1")
    qloads()
    E.label("L_noqp")
    if dyn == 2:
        E(f"s_cmp_lg_u32 {sSK}, {dynt}")
        E("s_cbranch_scc1 L_notk")
        E(f"s_load_dwordx2 s[32:33], s[0:1], 88")
        E(f"s_mov_b32 s34, 256")
        E(f"s_lshl_b32 {sT0}, {sG}, 5")
        E(f"s_xor_b32 {sT1}, {sML}, 1")
        E(f"v_mov_b32 v24, {sT1}")
        E(f"v_mov_b32 v25, 0")
        E("s_waitcnt lgkmcnt(0)")
        E("s_mov_b64 exec, 1")
        E(f"buffer_atomic_add v24, v25, {rC}, {sT0} offen sc0 sc1")
        E("s_mov_b64 exec, -1")
        E.label("L_notk")
    for x in seq[qat:18]: issue(x)
    nxt = seq[18:]
    stamp("q0")
    if dyn == 2:
        E(f"s_cmp_lg_u32 {sSK}, {dynt}")
        E("s_cbranch_scc1 L_notk2")
        E(f"s_lshl_b32 {sT0}, {sML}, 6")
        E(f"s_add_u32 {sT0}, {sT0}, 1")
        E(f"s_waitcnt vmcnt({18-qat})")
        E(f"v_add_u32 v24, {sT0}, v24")
        E("s_mov_b64 exec, 1")
        E(f"ds_write_b32 v5, v24 offset:20")
        E("s_mov_b64 exec, -1")
        E.label("L_notk2")
    E(f"s_cmp_lg_u32 {sSK}, 0")
    E("s_cbranch_scc1 L_waitq")
    E(f"s_waitcnt vmcnt({18-qat})")
    QT = [QP+1, QP+3, QP+5, QP+7, T1, 21, 23]
    E.label("L_checkq")
    tagcheck(QT, 6)
    E("s_branch L_gotq" if "q" in dbg else "s_cbranch_vccz L_gotq")
    if slpq: E(f"s_sleep {slpq}")
    qloads()
    E("s_waitcnt vmcnt(0)")
    spin_check("L_checkq")
    E.label("L_gotq")
    E(f"v_cmp_ne_u32 vcc, {sXCC}, v{T0}")
    for i in range(4): E(f"v_mov_b32 v{Q0+i}, v{QP+2*i}")
    E(f"ds_write_b128 {vV}, v[{Q0}:{Q0+3}] offset:{L_Q}")
    E(f"s_cmp_eq_u64 vcc, 0")
    E(f"s_cselect_b32 {sPL}, {2 if fast else 1}, 1")
    if dyn == 1:
        E(f"v_readfirstlane_b32 {sJW}, v24")
        E(f"s_lshl_b32 {sT0}, {sML}, 6")
        E(f"s_or_b32 {sJW}, {sJW}, {sT0}")
        E(f"s_lshl_b32 {sT0}, {sJW}, 8")
        E(f"s_or_b32 {sT0}, {sT0}, {sPL}")
        E(f"v_mov_b32 v4, {sT0}")
    else: E(f"v_mov_b32 v4, {sPL}")
    E("s_waitcnt lgkmcnt(0)")
    E(f"ds_write_b32 v5, v4 offset:16")
    def gstore(text):
        if "s" in dbg: return
        if "f" in dbg: E(text); return
        u = len(E.L)
        E(f"s_cmp_eq_u32 {sPL}, 2")
        E(f"s_cbranch_scc1 L_gs{u}")
        E(text + " sc1")
        E(f"s_branch L_gt{u}")
        E.raw(f"L_gs{u}:")
        E(text)
        E.raw(f"L_gt{u}:")
    part_rows(6, 7)
    for r in (T0, T1, T2, T3): E(f"v_mov_b32 v{r}, -1")
    gstore(f"buffer_store_dwordx4 v[{T0}:{T3}], v6, {rWS}, {sT0} offen")
    E("s_branch L_haveq")
    E.label("L_waitq")
    E(f"ds_read_b32 v4, v5 offset:16")
    E("s_waitcnt lgkmcnt(0)")
    E(f"v_readfirstlane_b32 {sPL}, v4")
    E(f"s_cmp_lg_u32 {sPL}, 0")
    E("s_cbranch_scc1 L_readq")
    E("s_sleep 1")
    spin_check("L_waitq")
    E.label("L_readq")
    if dyn == 1:
        E(f"s_lshr_b32 {sJW}, {sPL}, 8")
        E(f"s_and_b32 {sPL}, {sPL}, 0xff")
    E(f"ds_read_b128 v[{Q0}:{Q0+3}], {vV} offset:{L_Q}")
    vmwait("K3")
    E("s_waitcnt lgkmcnt(0)")
    E.label("L_haveq")
    def role_setup():
        E(f"s_cmp_lt_u32 {sJW}, 16")
        E(f"s_cselect_b32 s86, {512*4096*2}, 0")
        E(f"s_lshl_b32 {sAOP}, {sG}, 12")
        E(f"s_lshl_b32 {sT0}, {sJW}, 8")
        E(f"s_add_u32 {sAOP}, {sAOP}, {sT0}")
        E(f"s_add_u32 {sAOP}, {sAOP}, {WS_AO}")
    if dyn == 1: role_setup()
    setlight()
    stamp(4)
    nq = len(vm)
    def sc(T, i): return 20 + i if T == 0 else S[1] + 4*i + (T-1)
    SCR = [sc(T, i) for T in range(4) for i in range(8)]
    def s_tile(T):
        for i in range(8):
            r = S[T] + 4*i
            E(f"v_mfma_f32_16x16x32_bf16 v[{r}:{r+3}], v[{r}:{r+3}], v[{Q0}:{Q0+3}], 0")
        for c in range(4):
            for i in range(8):
                r = S[T] + 4*i; d = sc(T, i)
                if c == 0: E(f"v_mov_b32_dpp v{d}, v{r} quad_perm:[0,0,0,0] {DPPM}")
                else: E(f"v_add_f32_dpp v{d}, v{r+c}, v{d} quad_perm:[{c},{c},{c},{c}] {DPPM}")
    def s_round(T):
        rs = SCR[8*T:8*T+8]
        for i in range(0, 8, 2): rb2(rs[i], rs[i+1], rs[i], rs[i+1], T0 + i//2)
        for r in rs: E(f"v_mul_f32 v{r}, {sT1}, v{r}")
        for i in range(0, 8, 2): rb2(rs[i], rs[i+1], rs[i], rs[i+1], T0 + i//2)
    E(f"s_mov_b32 {sT1}, {f32bits(128.0**-0.5):#x}")
    def more(n, leave=0):
        for _ in range(n*rate):
            if len(nxt) <= leave: return
            issue(nxt.pop(0))
    for T in range(4):
        s_tile(T); more(1)
        s_round(T); more(1 if T < 2 else 0)
    stamp("c0")
    MX, LS = 6, 7
    E(f"v_max3_f32 v{MX}, v{SCR[0]}, v{SCR[1]}, v{SCR[2]}")
    for i in range(3, 31, 2): E(f"v_max3_f32 v{MX}, v{MX}, v{SCR[i]}, v{SCR[i+1]}")
    E(f"v_max_f32 v{MX}, v{MX}, v{SCR[31]}")
    red_rows("v_max_f32", [MX], T0)
    E(f"v_mul_f32 v{MX}, {sC}, v{MX}")
    more(1)
    for r in SCR: E(f"v_fma_f32 v{r}, v{r}, {sC}, -v{MX}")
    more(1)
    for r in SCR: E(f"v_exp_f32 v{r}, v{r}")
    more(1)
    E(f"v_add_f32 v{LS}, v{SCR[0]}, v{SCR[1]}")
    E(f"v_add_f32 v{T0}, v{SCR[2]}, v{SCR[3]}")
    for i in range(4, 32, 2):
        E(f"v_add_f32 v{LS}, v{LS}, v{SCR[i]}")
        E(f"v_add_f32 v{T0}, v{T0}, v{SCR[i+1]}")
    E(f"v_add_f32 v{LS}, v{LS}, v{T0}")
    red_rows("v_add_f32", [LS], T0)
    E(f"v_and_b32 v{T0}, 12, {vLANE}")
    E(f"v_lshlrev_b32 v{T0}, 1, v{T0}")
    E(f"s_lshl_b32 {sT0}, {sW}, 5")
    E(f"v_add_u32 v{T0}, {sT0}, v{T0}")
    E(f"ds_write_b64 v{T0}, v[{MX}:{LS}] offset:{L_STATS}")
    E(f"v_mov_b32 v{T2}, 1")
    E(f"s_waitcnt vmcnt({len(vm) - nq}) lgkmcnt(0)")
    E("s_mov_b64 exec, 1")
    E(f"ds_add_rtn_u32 v{T2}, v5, v{T2}")
    E("s_mov_b64 exec, -1")
    PR = [8, 12, 20, 24]
    for T in range(4):
        for i in range(4): E(f"v_cvt_pk_bf16_f32 v{PR[T]+i}, v{SCR[8*T+2*i]}, v{SCR[8*T+2*i+1]}")
    more(1)
    E("s_waitcnt lgkmcnt(0)")
    E(f"v_readfirstlane_b32 {sLAST}, v{T2}")
    X = S[1]
    E(f"s_cmp_lg_u32 {sLAST}, 7")
    E("s_cbranch_scc1 L_nostat")
    E(f"v_and_b32 v{T0}, 31, {vLANE}")
    E(f"v_lshlrev_b32 v{T1}, 3, v{T0}")
    E(f"ds_read_b64 v[6:7], v{T1} offset:{L_STATS}")
    E(f"v_and_b32 v{T1}, 3, v{T0}")
    E(f"v_and_b32 v{T0}, 28, v{T0}")
    E(f"v_lshl_add_u32 v{T0}, v{T1}, 5, v{T0}")
    E(f"v_mov_b32 v{T2}, {sJ}")
    E(f"v_lshlrev_b32 v{T1}, 9, v{T1}")
    E(f"v_lshl_add_u32 v{T1}, v{T2}, 4, v{T1}")
    E("s_waitcnt lgkmcnt(0)")
    E(f"v_mov_b32 v16, v6")
    red_ror("v_max_f32", [16], (4, 8))
    E(f"v_mov_b32 v17, v16")
    E(f"v_permlane16_swap_b32 v16, v17")
    E(f"v_max_f32 v16, v16, v17")
    E(f"v_sub_f32 v6, v6, v16")
    E(f"v_exp_f32 v6, v6")
    E(f"v_mul_f32 v18, v6, v7")
    E(f"ds_write_b32 v{T0}, v6 offset:{L_FAC}")
    red_ror("v_add_f32", [18], (4, 8))
    E(f"v_mov_b32 v17, v18")
    E(f"v_permlane16_swap_b32 v18, v17")
    E(f"v_add_f32 v18, v17, v18")
    E(f"v_mov_b32 v17, {sTAG}")
    E(f"v_mov_b32 v19, {sTAG}")
    E(f"s_lshl_b32 {sT0}, {sG}, 11")
    E(f"s_add_u32 {sT0}, {sT0}, {WS_STAT}")
    E("s_mov_b64 exec, 15")
    gstore(f"buffer_store_dwordx4 v[16:19], v{T1}, {rWS}, {sT0} offen")
    E("s_mov_b64 exec, -1")
    E.label("L_nostat")
    stamp("c1")
    vGQ, vN, vCOL, vGAA, vCH, vU16, vOW, vT8, vL4, vGATH, vRR, vRW, vFR, vSTA, vWBW, vWBR = [X+i for i in range(16)]
    TRB = X+16; GA = X+20; GB = X+24; SP = X+24; XT = X+30; vWER = X+31
    def wcalc():
        E(f"v_mov_b32 v{T0}, v{SP}")
        red_ror("v_max_f32", [T0], (1, 2, 4, 8))
        E(f"v_mov_b32 v{T1}, v{T0}")
        E(f"v_permlane16_swap_b32 v{T0}, v{T1}")
        E(f"v_max_f32 v{T0}, v{T0}, v{T1}")
        E(f"v_sub_f32 v{SP}, v{SP}, v{T0}")
        E(f"v_exp_f32 v{SP}, v{SP}")
        E(f"v_mul_f32 v{T0}, v{SP}, v{SP+2}")
        red_ror("v_add_f32", [T0], (1, 2, 4, 8))
        E(f"v_mov_b32 v{T1}, v{T0}")
        E(f"v_permlane16_swap_b32 v{T0}, v{T1}")
        E(f"v_add_f32 v{T0}, v{T0}, v{T1}")
        E(f"v_rcp_f32 v{T0}, v{T0}")
        E(f"v_mul_f32 v{T0}, v{T0}, v{SP}")
    tail_dma(3)
    if wopf and wopos == 3: wo_pref()
    ACCO = S[2]; TP = S[3]
    first = [True]
    def pv_perm(slot, mm):
        for dw in range(4):
            a = S[slot] + (2*mm)*4 + dw; b = S[slot] + (2*mm+1)*4 + dw
            E(f"v_perm_b32 v{TP + (2*dw)*4 + mm}, v{b}, v{a}, {sSELLO}")
            E(f"v_perm_b32 v{TP + (2*dw+1)*4 + mm}, v{b}, v{a}, {sSELHI}")
    def pv_mfma(T):
        for e in range(8):
            c = "0" if first[0] else f"v[{ACCO+4*e}:{ACCO+4*e+3}]"
            E(f"v_mfma_f32_16x16x32_bf16 v[{ACCO+4*e}:{ACCO+4*e+3}], v[{PR[T]}:{PR[T]+3}], v[{TP+4*e}:{TP+4*e+3}], {c}")
        first[0] = False
    def pv(slot, T):
        for mm in range(4): pv_perm(slot, mm)
        pv_mfma(T)
    more(1)
    vmwait("V0"); pv(4, 0)
    more(1)
    vmwait("V1"); pv(5, 1)
    more(16, leave=2)
    if dyn == 2:
        E.label("L_tkw")
        E(f"ds_read_b32 v{T0}, v5 offset:20")
        E("s_waitcnt lgkmcnt(0)")
        E(f"v_readfirstlane_b32 {sJW}, v{T0}")
        E(f"s_cmp_eq_u32 {sJW}, 0")
        E("s_cbranch_scc1 L_tkw")
        E(f"s_sub_u32 {sJW}, {sJW}, 1")
        role_setup()
    if ewt:
        E(f"s_cmp_lt_u32 {sJW}, 16")
        E(f"s_cselect_b32 {sLAST}, {sLAST}, 0")
        E(f"s_cmp_lg_u32 {sLAST}, 7")
        E("s_cbranch_scc1 L_noes")
        E(f"s_lshl_b32 {sT0}, {sG}, 11")
        E(f"s_lshr_b32 {sT1}, {sJW}, 3")
        E(f"s_lshl_b32 {sT1}, {sT1}, 10")
        E(f"s_add_u32 {sT0}, {sT0}, {sT1}")
        E(f"s_add_u32 {sT0}, {sT0}, {WS_STAT}")
        E(f"buffer_load_dwordx4 v[{SP}:{SP+3}], {vV}, {rWS}, {sT0} offen sc1")
        E.label("L_noes")
        ewt_after = len(nxt)
    more(16)
    stamp("c3")
    if prio >= 2: E("s_setprio 0")
    tail_dma(4)
    if prio >= 2: E("s_setprio 3")
    vmwait("V2"); pv(6, 2)
    nyoung = len(vm) - 1 - [i for i, t in enumerate(vm) if t == "V3"][-1]
    WB = S[4]; SCF = S[5]; WT8 = S[5]; PK = S[5]+16; GBF = S[6]
    W1 = WB; W2 = S[3]+16
    E(f"v_lshrrev_b32 v{vGQ}, 4, {vLANE}")
    E(f"v_and_b32 v{vN}, 15, {vLANE}")
    E(f"s_lshl_b32 {sT0}, {sW}, 11")
    E(f"v_lshlrev_b32 v{vRR}, 5, {vLANE}")
    E(f"v_add_u32 v{vOW}, {sT0}, v{vRR}")
    E(f"v_lshlrev_b32 v{vT8}, 3, v0")
    E(f"v_lshlrev_b32 v{vL4}, 2, {vLANE}")
    E(f"s_lshl_b32 {sT1}, {sW}, 5")
    E(f"v_mov_b32 v{vFR}, {sT1}")
    E(f"v_bfe_u32 v{T1}, {vLANE}, 2, 2")
    E(f"v_lshl_add_u32 v{T2}, v{vGQ}, 3, v{T1}")
    E(f"v_lshlrev_b32 v{T2}, 7, v{T2}")
    E(f"v_and_b32 v{T3}, 3, {vLANE}")
    E(f"v_lshl_add_u32 v{T2}, v{T3}, 3, v{T2}")
    E(f"v_bfe_u32 v{T1}, {vLANE}, 3, 2")
    E(f"v_lshl_add_u32 v{T2}, v{T1}, 5, v{T2}")
    E(f"s_lshl_b32 {sT0}, {sW}, 12")
    E(f"s_add_u32 {sT0}, {sT0}, {L_WO}")
    E(f"v_add_u32 v{TRB}, {sT0}, v{T2}")
    for nt in range(1, 4): E(f"v_xor_b32 v{TRB+nt}, {nt*32}, v{TRB}")
    E(f"s_lshl_b32 {sT0}, {sG}, 2")
    E(f"s_add_u32 {sPP}, {sT0}, {sW}")
    E(f"s_lshl_b32 {sPP}, {sPP}, 13")
    E(f"s_lshr_b32 {sT1}, {sJ}, 4")
    E(f"s_lshl_b32 {sT1}, {sT1}, 12")
    E(f"s_add_u32 {sPP}, {sPP}, {sT1}")
    E(f"s_and_b32 {sT1}, {sJ}, 15")
    E(f"s_lshl_b32 {sT1}, {sT1}, 4")
    E(f"s_add_u32 {sPP}, {sPP}, {sT1}")
    E(f"s_add_u32 {sPP}, {sPP}, {WS_PART}")
    E(f"s_lshr_b32 {sT1}, {sJW}, 3")
    E(f"s_lshl_b32 {sT1}, {sT1}, 1")
    E(f"s_add_u32 {sGA0}, {sT0}, {sT1}")
    E(f"s_lshr_b32 {sT1}, {sW}, 2")
    E(f"s_add_u32 {sGA0}, {sGA0}, {sT1}")
    E(f"s_lshl_b32 {sT2}, {sGA0}, 9")
    E(f"s_add_u32 {sT2}, {sT2}, {WS_STAT}")
    E(f"s_lshl_b32 {sGA0}, {sGA0}, 13")
    E(f"s_and_b32 {sT1}, {sW}, 3")
    E(f"s_lshl_b32 {sT1}, {sT1}, 10")
    E(f"s_add_u32 {sGA0}, {sGA0}, {sT1}")
    E(f"s_add_u32 {sGA0}, {sGA0}, {WS_PART}")
    E(f"s_add_u32 {sGA1}, {sGA0}, 4096")
    E(f"v_and_b32 v{vSTA}, 31, {vLANE}")
    E(f"s_lshl_b32 {sT1}, {sW}, 7")
    E(f"v_lshl_add_u32 v{vWBW}, v{vSTA}, 2, {sT1}")
    E(f"v_lshl_add_u32 v{vWBR}, v{vGQ}, 4, {sT1}")
    E(f"v_lshlrev_b32 v{vSTA}, 4, v{vSTA}")
    E(f"s_lshr_b32 {sT1}, {sW}, 2")
    E(f"s_lshl_b32 {sT1}, {sT1}, 7")
    E(f"v_lshl_add_u32 v{vWER}, v{vGQ}, 4, {sT1}")
    E(f"v_lshrrev_b32 v{vGATH}, 2, {vLANE}")
    E(f"v_lshlrev_b32 v{vGATH}, 8, v{vGATH}")
    E(f"v_and_b32 v{T3}, 3, {vLANE}")
    E(f"v_lshl_add_u32 v{vGATH}, v{T3}, 2, v{vGATH}")
    E(f"s_lshl_b32 {sT1}, {sW}, 2")
    E(f"v_add_u32 v{vRW}, {sT1}, v{vRR}")
    E(f"s_waitcnt vmcnt({nyoung+4})")
    pv_perm(0, 0); pv_perm(0, 1)
    E(f"s_waitcnt vmcnt({nyoung+2})")
    pv_perm(0, 2)
    if ewt:
        E(f"s_cmp_lg_u32 {sLAST}, 7")
        E("s_cbranch_scc1 L_noew")
        if ewt_after < 2: E(f"s_waitcnt vmcnt({nyoung + ewt_after})")
        tagcheck([SP+1, SP+3], 6)
        E("s_cbranch_vccnz L_noew")
        wcalc()
        E(f"ds_write_b32 v{vL4}, v{T0} offset:{L_WE}")
        E(f"ds_write_b32 v5, v5 offset:8")
        E.label("L_noew")
    E(f"s_waitcnt vmcnt({nyoung})")
    stamp(5)
    pv_perm(0, 3)
    pv_mfma(3)
    for e in range(8): E(f"v_mov_b32 v{PK+e}, v{ACCO+4*e}")
    E(f"ds_write_b128 v{vOW}, v[{PK}:{PK+3}] offset:{L_ORED}")
    E(f"ds_write_b128 v{vOW}, v[{PK+4}:{PK+7}] offset:{L_ORED+16}")
    tail_dma(6)
    if ml6:
        E(f"s_cmp_eq_u32 {sML}, 0")
        E("s_cbranch_scc1 L_no6")
        E("s_setprio 0")
        w2_dma()
        if ml6 == 2: w1_dma()
        E("s_setprio 3")
        E.label("L_no6")
    E("s_waitcnt lgkmcnt(0)")
    E("s_barrier")
    if hint:
        E(f"s_cmp_lg_u32 {sW}, 4")
        E("s_cbranch_scc1 L_nohint")
        E(f"s_lshl_b32 {sT0}, s2, 2")
        E(f"v_mov_b32 v{T0}, {WS_HB}")
        E(f"v_mov_b32 v{T1}, {sTAG}")
        E("s_mov_b64 exec, 1")
        E(f"buffer_store_dword v{T1}, v{T0}, {rWS}, {sT0} offen sc1")
        E("s_mov_b64 exec, -1")
        E.label("L_nohint")
    E(f"s_cmp_ge_u32 {sW}, 4")
    E("s_cbranch_scc1 L_nopart")
    R0 = S[2]; FC = S[2]+16
    E(f"ds_read_b128 v[{FC}:{FC+3}], v{vFR} offset:{L_FAC}")
    E(f"ds_read_b128 v[{FC+4}:{FC+7}], v{vFR} offset:{L_FAC+16}")
    for w in range(8): E(f"ds_read_b64 v[{R0+2*w}:{R0+2*w+1}], v{vT8} offset:{L_ORED + w*2048}")
    for w in range(8):
        if w % 2 == 0: E(f"s_waitcnt lgkmcnt({6-w})")
        a = PK + 2*(w % 2)
        op = "v_mul_f32" if w < 2 else "v_fmac_f32"
        E(f"{op} v{a}, v{R0+2*w}, v{FC+w}")
        E(f"{op} v{a+1}, v{R0+2*w+1}, v{FC+w}")
    E(f"v_pk_add_f32 v[{PK}:{PK+1}], v[{PK}:{PK+1}], v[{PK+2}:{PK+3}]")
    E(f"v_cvt_pk_bf16_f32 v{PK}, v{PK}, v{PK+1}")
    E(f"v_min_u32 v{PK}, -2, v{PK}")
    gstore(f"buffer_store_dword v{PK}, v{vGATH}, {rWS}, {sPP} offen")
    E.label("L_nopart")
    stamp(6)
    if "e" in dbg: E("s_branch L_fin")
    E(f"s_cmp_lg_u32 {sML}, 0")
    E("s_cbranch_scc1 L_stageb")
    if w1pf == 2:
        w1_pref("L_nopf2")
        E.label("L_nopf2")
    E(f"s_cmp_ge_u32 {sJW}, 16")
    E("s_cbranch_scc1 L_fin")
    tail_dma(5)
    if buddy:
        E(f"s_sub_u32 {sT0}, {sT0}, {3*8*1024}")
        E(f"s_xor_b32 {sT0}, {sT0}, {buddy}")
        E(f"s_mov_b32 m0, {L_WM}")
        for i in range(4):
            E(f"buffer_load_dwordx4 v{T2}, {rWO}, {sT0} offen lds")
            if i < 3: E(f"s_add_u32 {sT0}, {sT0}, {8*1024}")
    GA_ = S[3]
    def a_load(i): E(f"buffer_load_dwordx4 v[{GA_+4*i}:{GA_+4*i+3}], {vV}, {rWS}, {sGA1 if i else sGA0} offen {'nt' if 'n' in dbg else 'sc1'}")
    def a_loads(): a_load(0); a_load(1)
    if ewt:
        E(f"ds_read_b32 v{T0}, v5 offset:8")
        E(f"ds_read_b128 v[{WT8}:{WT8+3}], v{vWER} offset:{L_WE}")
        E(f"ds_read_b128 v[{WT8+4}:{WT8+7}], v{vWER} offset:{L_WE+64}")
        E("s_waitcnt lgkmcnt(0)")
        E(f"v_readfirstlane_b32 {sT0}, v{T0}")
        E(f"s_cmp_lg_u32 {sT0}, 0")
        E("s_cbranch_scc1 L_havew")
    E.label("L_statchk")
    E(f"buffer_load_dwordx4 v[{SP}:{SP+3}], v{vSTA}, {rWS}, {sT2} offen sc1")
    E("s_waitcnt vmcnt(0)")
    tagcheck([SP+1, SP+3], 6)
    E("s_cbranch_vccz L_gotstat")
    if slp: E(f"s_sleep {slp}")
    spin_check("L_statchk")
    E.label("L_gotstat")
    wcalc()
    E(f"ds_write_b32 v{vWBW}, v{T0} offset:{L_WB}")
    E("s_waitcnt lgkmcnt(0)")
    E(f"ds_read_b128 v[{WT8}:{WT8+3}], v{vWBR} offset:{L_WB}")
    E(f"ds_read_b128 v[{WT8+4}:{WT8+7}], v{vWBR} offset:{L_WB+64}")
    E.label("L_havew")
    if lead:
        E(f"s_and_b32 {sT0}, {sW}, 3")
        E("s_cbranch_scc0 L_lead")
        E("s_barrier")
        E.label("L_lead")
    a_loads()
    E("s_waitcnt vmcnt(2)")
    for nt in range(4):
        for q in range(2): E(f"ds_read_b64_tr_b16 v[{WB+4*nt+2*q}:{WB+4*nt+2*q+1}], v{TRB+nt} offset:{q*512}")
    stamp("w1")
    if rep:
        E(f"s_lshl_b32 {sT0}, {sW}, 15")
        E(f"s_add_u32 {sAOP}, {sAOP}, {sT0}")
    if quick: quickpoll("a", a_load, [GA_, GA_+4], "L_polla")
    pollloop("a", a_load, [range(GA_, GA_+4), range(GA_+4, GA_+8)], T0, slpa)
    if lead:
        E(f"s_and_b32 {sT0}, {sW}, 3")
        E("s_cbranch_scc1 L_lead2")
        E("s_barrier")
        E.label("L_lead2")
    stamp(7)
    E("s_waitcnt lgkmcnt(0)")
    D = S[2]
    for half in range(2):
        for nt in range(4):
            d = D + half*16 + 4*nt
            E(f"v_mfma_f32_16x16x32_bf16 v[{d}:{d+3}], v[{GA_+4*half}:{GA_+4*half+3}], v[{WB+4*nt}:{WB+4*nt+3}], 0")
    for nt in range(4): E(f"v_pk_mul_f32 v[{D+4*nt}:{D+4*nt+1}], v[{D+4*nt}:{D+4*nt+1}], v[{WT8}:{WT8+1}]")
    for nt in range(4): E(f"v_pk_fma_f32 v[{D+4*nt}:{D+4*nt+1}], v[{D+4*nt+2}:{D+4*nt+3}], v[{WT8+2}:{WT8+3}], v[{D+4*nt}:{D+4*nt+1}]")
    for nt in range(4): E(f"v_pk_fma_f32 v[{D+4*nt}:{D+4*nt+1}], v[{D+16+4*nt}:{D+16+4*nt+1}], v[{WT8+4}:{WT8+5}], v[{D+4*nt}:{D+4*nt+1}]")
    for nt in range(4): E(f"v_pk_fma_f32 v[{D+4*nt}:{D+4*nt+1}], v[{D+16+4*nt+2}:{D+16+4*nt+3}], v[{WT8+6}:{WT8+7}], v[{D+4*nt}:{D+4*nt+1}]")
    for nt in range(4): E(f"v_add_f32 v{D+4*nt}, v{D+4*nt}, v{D+4*nt+1}")
    tred4(D, D+4, D+8, D+12)
    E(f"ds_write_b32 v{vRW}, v{D} offset:{L_RED}")
    E("s_waitcnt lgkmcnt(0)")
    E("s_barrier")
    if not rep:
        E(f"s_cmp_lg_u32 {sW}, 0")
        E("s_cbranch_scc1 L_fin")
    D = PK
    E(f"ds_read_b128 v[{D}:{D+3}], v{vRR} offset:{L_RED}")
    E(f"ds_read_b128 v[{D+4}:{D+7}], v{vRR} offset:{L_RED+16}")
    E("s_waitcnt lgkmcnt(0)")
    E(f"v_pk_add_f32 v[{D}:{D+1}], v[{D}:{D+1}], v[{D+4}:{D+5}]")
    E(f"v_pk_add_f32 v[{D+2}:{D+3}], v[{D+2}:{D+3}], v[{D+6}:{D+7}]")
    E(f"v_pk_add_f32 v[{D}:{D+1}], v[{D}:{D+1}], v[{D+2}:{D+3}]")
    E(f"v_add_f32 v{D}, v{D}, v{D+1}")
    E(f"v_min_u32 v{D}, -2, v{D}")
    E(f"buffer_store_dword v{D}, v{vL4}, {rWS}, {sAOP} offen {aost}")
    stamp(8)
    E("s_branch L_fin")
    E.label("L_stageb")
    if "x" in dbg: E("s_branch L_fin")
    if w1e:
        E(f"s_cmp_ge_u32 {sA}, 224")
        E("s_cbranch_scc1 L_now1")
    if mlearly != 2 and not ml6: w2_dma()
    if w1dl: E(f"s_sleep {w1dl}")
    if mlearly != 1 and ml6 != 2: w1_dma()
    E.label("L_now1")
    GBR = S[3]
    E(f"v_lshlrev_b32 v{vSTA}, 11, v{vGQ}")
    E(f"v_lshl_add_u32 v{vSTA}, v{vN}, 4, v{vSTA}")
    E(f"s_lshl_b32 {sT0}, {sW}, 8")
    if rep:
        E(f"s_lshl_b32 {sT1}, {sG}, 15")
        E(f"s_add_u32 {sT0}, {sT0}, {sT1}")
    bs = ["s88", "s89", "s90", "s95"]
    for i in range(4): E(f"s_add_u32 {bs[i]}, {sT0}, {WS_AO + 8192*i}")
    def b_load(i): E(f"buffer_load_dwordx4 v[{S[3]+4*i}:{S[3]+4*i+3}], v{vSTA}, {rWS}, {bs[i]} offen {aold}")
    def b_loads():
        for i in range(4): b_load(i)
    E(f"v_lshl_add_u32 v{vCOL}, v{vN}, 2, v{vGQ}")
    E(f"s_lshl_b32 {sT0}, {sW}, 6")
    E(f"v_add_u32 v{vCOL}, {sT0}, v{vCOL}")
    E(f"v_lshlrev_b32 v{vGAA}, 1, v{vCOL}")
    E(f"buffer_load_ushort v{XT}, v{vGAA}, {rX}, 0 offen")
    if mlite:
        E(f"v_lshrrev_b32 v{TRB}, 1, v{vN}")
        E(f"v_lshlrev_b32 v{TRB}, 12, v{TRB}")
        E(f"v_and_b32 v{TRB+1}, 1, v{vN}")
        E(f"v_lshl_add_u32 v{TRB}, v{TRB+1}, 10, v{TRB}")
        E(f"s_lshl_b32 {sT4}, {sW}, 7")
        E(f"s_add_u32 {sT4}, {sT4}, {WS_CLR}")
        E(f"buffer_load_dwordx2 v[{TRB+2}:{TRB+3}], v{TRB}, {rWS}, {sT4} offen sc1")
    if outpf: E(f"buffer_load_ushort v{TRB}, v{vGAA}, {rOUT}, 0 offen")
    E(f"v_and_b32 v{vGAA}, 0x1fe, v{vCOL}")
    E(f"v_lshlrev_b32 v{vGAA}, 2, v{vGAA}")
    E(f"s_mul_i32 {sU}, {sW}, 56")
    E(f"s_add_u32 {sU}, {sU}, {sM}")
    E(f"s_lshl_b32 {sU16}, {sU}, 4")
    E(f"s_and_b32 {sU16}, {sU16}, 0x7ff")
    E(f"v_mov_b32 v{vU16}, {sU16}")
    E(f"s_lshl_b32 {sT0}, {sW}, 2")
    E(f"v_add_u32 v{vCH}, {sT0}, v{vN}")
    E(f"v_and_b32 v{vCH}, 15, v{vCH}")
    E(f"v_lshl_add_u32 v{vCH}, v{vGQ}, 4, v{vCH}")
    E(f"v_lshlrev_b32 v{vCH}, 5, v{vCH}")
    SG = S[6]+8
    E(f"ds_read_b64 v[{GA}:{GA+1}], v{vGAA} offset:{L_MOD}")
    for i in range(4): E(f"ds_read_b128 v[{SG+4*i}:{SG+4*i+3}], v{vCH} offset:{L_MOD + 2048 + (i//2)*2048 + (i%2)*16}")
    E(f"ds_read_b128 v[{GB}:{GB+3}], v{vU16} offset:{L_MOD + 6144}")
    E(f"s_lshl_b32 {sT3}, {sW}, 13")
    E(f"s_add_u32 {sT3}, {sT3}, {L_WT}")
    E(f"v_bfe_u32 v{T0}, {vLANE}, 2, 2")
    E(f"v_and_b32 v{T1}, 3, {vLANE}")
    E(f"v_lshlrev_b32 v{T1}, 3, v{T1}")
    E(f"v_lshl_add_u32 v{T2}, v{T0}, 6, v{T1}")
    E(f"v_lshl_add_u32 v{T2}, v{vGQ}, 10, v{T2}")
    E(f"s_and_b32 {sT1}, {sW}, 3")
    E(f"s_lshl_b32 {sT1}, {sT1}, 14")
    E(f"s_add_u32 {sT1}, {sT1}, {L_WT}")
    E(f"v_add_u32 v{T2}, {sT1}, v{T2}")
    E(f"v_lshl_add_u32 v{T0}, v{T0}, 7, v{T1}")
    E(f"v_lshl_add_u32 v{T0}, v{vGQ}, 5, v{T0}")
    E(f"v_add_u32 v{T0}, {sT3}, v{T0}")
    E(f"v_lshlrev_b32 v{vRR}, 5, v{vN}")
    E(f"v_lshlrev_b32 v{vRW}, 4, v{vN}")
    E(f"s_lshl_b32 {sT1}, {sW}, 2")
    E(f"v_add_u32 v{vRW}, {sT1}, v{vRW}")
    E(f"v_lshlrev_b32 v{vGATH}, 2, v0")
    E(f"v_mov_b32 v{vWBR}, 0")
    E("s_waitcnt lgkmcnt(0)")
    E.label("L_modchk")
    tagcheck([GA+1, GB+1, GB+3] + [SG+1+2*i for i in range(8)], 6)
    E("s_cbranch_vccz L_gotmd")
    E(f"s_mov_b32 {sT0}, {WS_MODG + 4096}")
    E(f"buffer_load_dwordx2 v[{GA}:{GA+1}], v{vGAA}, {rWS}, {sT0} offen sc1")
    E(f"buffer_load_dwordx4 v[{SG}:{SG+3}], v{vCH}, {rWS}, {sT0} offen offset:2048 sc1")
    E(f"buffer_load_dwordx4 v[{SG+4}:{SG+7}], v{vCH}, {rWS}, {sT0} offen offset:2064 sc1")
    E(f"s_mov_b32 {sT0}, {WS_MODG + 8192}")
    E(f"buffer_load_dwordx4 v[{SG+8}:{SG+11}], v{vCH}, {rWS}, {sT0} offen sc1")
    E(f"buffer_load_dwordx4 v[{SG+12}:{SG+15}], v{vCH}, {rWS}, {sT0} offen offset:16 sc1")
    E(f"buffer_load_dwordx4 v[{GB}:{GB+3}], v{vU16}, {rWS}, {sT0} offen offset:2048 sc1")
    E("s_waitcnt vmcnt(0)")
    spin_check("L_modchk")
    E.label("L_gotmd")
    E(f"v_and_b32 v6, 1, v{vCOL}")
    E(f"v_lshlrev_b32 v{vCOL}, 2, v{vCOL}")
    E(f"v_cmp_eq_u32 vcc, 0, v6")
    E(f"v_lshlrev_b32 v6, 16, v{GA}")
    E(f"v_and_b32 v7, 0xffff0000, v{GA}")
    E(f"v_cndmask_b32 v{GA}, v7, v6, vcc")
    for i in range(4):
        c0, c1, s0, s1_ = SCF+2*i, SCF+2*i+1, SCF+8+2*i, SCF+8+2*i+1
        E(f"v_lshlrev_b32 v{s0}, 16, v{SG+2*i}")
        E(f"v_and_b32 v{s1_}, 0xffff0000, v{SG+2*i}")
        E(f"v_lshlrev_b32 v{c0}, 16, v{SG+8+2*i}")
        E(f"v_and_b32 v{c1}, 0xffff0000, v{SG+8+2*i}")
        E(f"v_add_f32 v{c0}, 1.0, v{c0}")
        E(f"v_add_f32 v{c1}, 1.0, v{c1}")
        rb2(c0, c1, c0, c1, 6)
    E(f"v_lshlrev_b32 v{GBF}, 16, v{GB}")
    E(f"v_and_b32 v{GBF+1}, 0xffff0000, v{GB}")
    E(f"v_lshlrev_b32 v{GBF+2}, 16, v{GB+2}")
    E(f"v_and_b32 v{GBF+3}, 0xffff0000, v{GB+2}")
    for r in range(1, 4):
        E(f"v_mov_b32_dpp v{GBF}, v{GBF+r} quad_perm:[0,1,2,3] row_mask:{1<<r:#x} bank_mask:0xf")
    E(f"v_lshl_add_u32 v{vU16}, v{vGQ}, 2, v{vU16}")
    E("s_waitcnt vmcnt(0)")
    if mlite:
        E.label("L_flchk")
        E(f"v_cmp_ne_u32 vcc, {sTAG}, v{TRB+3}")
        E("s_cbranch_vccz L_flok")
        E(f"buffer_load_dwordx2 v[{TRB+2}:{TRB+3}], v{TRB}, {rWS}, {sT4} offen sc1")
        E("s_waitcnt vmcnt(0)")
        spin_check("L_flchk")
        E.label("L_flok")
    if not hint: b_loads()
    stamp("w2")
    E("s_barrier")
    for nt in range(2):
        for q in range(8):
            r = W1 + nt*16 + q*2
            E(f"ds_read_b64_tr_b16 v[{r}:{r+1}], v{T2} offset:{(q>>2)*8192 + (q&3)*256 + nt*32}")
    for q in range(8):
        E(f"ds_read_b64_tr_b16 v[{W2+2*q}:{W2+2*q+1}], v{T0} offset:{4096 + q*512}")
    E(f"v_lshlrev_b32 v{XT}, 16, v{XT}")
    if touch:
        E("s_mov_b64 exec, 0")
        E("s_branch L_tb_0")
        E.label("L_tbret")
        E("s_mov_b64 exec, -1")
    G2 = S[0]
    if hint:
        if hint == 2:
            E(f"s_cmp_lg_u32 {sW}, 7")
            E("s_cbranch_scc1 L_goth")
        E(f"s_mov_b32 {sT0}, {WS_HB}")
        E.label("L_pollh")
        E(f"buffer_load_dwordx4 v[{G2}:{G2+3}], {vV}, {rWS}, {sT0} offen sc1")
        E("s_waitcnt vmcnt(0)")
        tagcheck([G2, G2+1, G2+2, G2+3], 6)
        E("s_cbranch_vccz L_goth")
        spin_check("L_pollh")
        E.label("L_goth")
        if hint == 2: E("s_barrier")
        stamp("h")
        if hdl: E(f"s_sleep {hdl}")
        b_loads()
    if quick: quickpoll("b", b_load, [GBR+4*i for i in range(4)], "L_pollb")
    E.label("L_pollb")
    E(f"s_waitcnt vmcnt(0)")
    for i in range(0, 8, 2): E(f"v_pk_add_f32 v[{G2+i}:{G2+i+1}], v[{GBR+i}:{GBR+i+1}], v[{GBR+8+i}:{GBR+8+i+1}]")
    for i in range(0, 4, 2): E(f"v_pk_add_f32 v[{G2+i}:{G2+i+1}], v[{G2+i}:{G2+i+1}], v[{G2+4+i}:{G2+4+i+1}]")
    E(f"v_pk_add_f32 v[{G2+4}:{G2+5}], v[{G2}:{G2+1}], v[{G2+2}:{G2+3}]")
    E(f"v_cmp_u_f32 vcc, v{G2+4}, v{G2+5}")
    E("s_cbranch_vccz L_gotb")
    for i in range(4): maxall(range(GBR+4*i, GBR+4*i+4), 16+i)
    maxall(range(16, 20), 6)
    E(f"v_cmp_eq_u32 vcc, -1, v6")
    E("s_cbranch_vccz L_gotb")
    if slpb: E(f"s_sleep {slpb}")
    for i in range(4):
        E(f"v_cmp_eq_u32 vcc, -1, v{16+i}")
        E(f"s_mov_b64 exec, vcc")
        b_load(i)
        E("s_mov_b64 exec, -1")
    spin_check("L_pollb")
    E.label("L_gotb")
    if touch: E.touch_begin("L_tb", touch)
    stamp(9)
    GBR = G2
    tred4(GBR, GBR+1, GBR+2, GBR+3)
    rb1(GBR, GBR)
    E(f"v_mul_f32 v{GBR}, v{GBR}, v{GA}")
    rb1(GBR, GBR)
    E(f"v_add_f32 v{GBR}, v{GBR}, v{XT}")
    rb1(GBR, GBR)
    E(f"ds_write_b32 v{vCOL}, v{GBR} offset:{L_X2}")
    E("s_waitcnt lgkmcnt(0)")
    E("s_barrier")
    stamp("b1")
    X2 = S[2]; X2F = S[2]+8; KS = S[2]+12
    if epe:
        E(f"s_cmp_lg_u32 {sU}, {7*56}")
        E("s_cbranch_scc1 L_noep")
        E(f"v_mov_b32 v7, {sTAG}")
        E("s_mov_b64 exec, 1")
        E(f"buffer_store_dword v7, v{vWBR}, {rWS}, 0 offen sc1")
        E("s_mov_b64 exec, -1")
        E.label("L_noep")
    E(f"s_cmp_ge_u32 {sW}, 4")
    E("s_cbranch_scc1 L_b4")
    E(f"ds_read_b32 v{KS}, v{vWBR} offset:{L_X2}")
    E(f"ds_read_b128 v[{X2}:{X2+3}], v{vCH} offset:{L_X2}")
    E(f"ds_read_b128 v[{X2+4}:{X2+7}], v{vCH} offset:{L_X2+16}")
    E(f"ds_read_b32 v{X2F}, v{vU16} offset:{L_X2}")
    E("s_waitcnt lgkmcnt(0)" if (stamps and "b1" in stamps) else "s_waitcnt lgkmcnt(1)")
    DD = S[2]+16
    NEGB = "op_sel_hi:[1,0] neg_lo:[0,1] neg_hi:[0,1]"
    for i in range(0, 8, 2): E(f"v_pk_add_f32 v[{DD+i}:{DD+i+1}], v[{X2+i}:{X2+i+1}], v[{KS}:{KS+1}] {NEGB}")
    s1, s2, s3 = 16, 18, T0
    E(f"v_pk_add_f32 v[{s1}:{s1+1}], v[{DD}:{DD+1}], v[{DD+2}:{DD+3}]")
    E(f"v_pk_mul_f32 v[{s2}:{s2+1}], v[{DD}:{DD+1}], v[{DD}:{DD+1}]")
    E(f"v_pk_add_f32 v[{s3}:{s3+1}], v[{DD+4}:{DD+5}], v[{DD+6}:{DD+7}]")
    E(f"v_pk_mul_f32 v[{s3+2}:{s3+3}], v[{DD+4}:{DD+5}], v[{DD+4}:{DD+5}]")
    E(f"v_pk_fma_f32 v[{s2}:{s2+1}], v[{DD+2}:{DD+3}], v[{DD+2}:{DD+3}], v[{s2}:{s2+1}]")
    E(f"v_pk_fma_f32 v[{s3+2}:{s3+3}], v[{DD+6}:{DD+7}], v[{DD+6}:{DD+7}], v[{s3+2}:{s3+3}]")
    E(f"v_pk_add_f32 v[{s1}:{s1+1}], v[{s1}:{s1+1}], v[{s3}:{s3+1}]")
    E(f"v_pk_add_f32 v[{s2}:{s2+1}], v[{s2}:{s2+1}], v[{s3+2}:{s3+3}]")
    E(f"v_permlane16_swap_b32 v{s1}, v{s2}")
    E(f"v_permlane16_swap_b32 v{s1+1}, v{s2+1}")
    E(f"v_pk_add_f32 v[{s1}:{s1+1}], v[{s1}:{s1+1}], v[{s2}:{s2+1}]")
    E(f"v_add_f32 v{s1}, v{s1}, v{s1+1}")
    E(f"v_mov_b32 v{s2}, v{s1}")
    E(f"v_permlane32_swap_b32 v{s1}, v{s2}")
    E(f"v_add_f32 v{s1}, v{s1}, v{s2}")
    red_ror("v_add_f32", [s1], (1, 2, 4, 8))
    E(f"v_mul_f32 v{s1}, {f32bits(1.0/512):#x}, v{s1}")
    E(f"v_mov_b32 v{s2}, v{s1}")
    E(f"v_permlane16_swap_b32 v{s1}, v{s2}")
    E(f"v_fma_f32 v{s2}, -v{s1}, v{s1}, v{s2}")
    E(f"v_add_f32 v{s1}, v{s1}, v{KS}")
    E(f"v_max_f32 v{s2}, 0, v{s2}")
    E(f"v_cvt_pk_bf16_f32 v{s3}, v{s1}, v{s2}")
    E(f"v_and_b32 v{s2}, 0xffff0000, v{s3}")
    E(f"v_lshlrev_b32 v{s1}, 16, v{s3}")
    E(f"v_add_f32 v{s2}, {f32bits(1e-5):#x}, v{s2}")
    E(f"v_pk_add_f32 v[{X2}:{X2+1}], v[{X2}:{X2+1}], v[{s1}:{s1+1}] {NEGB}")
    E(f"v_cvt_pk_bf16_f32 v{s2}, v{s2}, v{s2}")
    E(f"v_pk_add_f32 v[{X2+2}:{X2+3}], v[{X2+2}:{X2+3}], v[{s1}:{s1+1}] {NEGB}")
    E(f"v_lshlrev_b32 v{s2}, 16, v{s2}")
    E(f"v_pk_add_f32 v[{X2+4}:{X2+5}], v[{X2+4}:{X2+5}], v[{s1}:{s1+1}] {NEGB}")
    E(f"v_sqrt_f32 v{s2}, v{s2}")
    E(f"v_pk_add_f32 v[{X2+6}:{X2+7}], v[{X2+6}:{X2+7}], v[{s1}:{s1+1}] {NEGB}")
    E(f"v_pk_mul_f32 v[{X2}:{X2+1}], v[{X2}:{X2+1}], v[{SCF}:{SCF+1}]")
    E(f"v_cvt_pk_bf16_f32 v{s2}, v{s2}, v{s2}")
    E(f"v_pk_mul_f32 v[{X2+2}:{X2+3}], v[{X2+2}:{X2+3}], v[{SCF+2}:{SCF+3}]")
    E(f"v_lshlrev_b32 v{s2}, 16, v{s2}")
    E(f"v_pk_mul_f32 v[{X2+4}:{X2+5}], v[{X2+4}:{X2+5}], v[{SCF+4}:{SCF+5}]")
    E(f"v_rcp_f32 v{s2}, v{s2}")
    E(f"v_pk_mul_f32 v[{X2+6}:{X2+7}], v[{X2+6}:{X2+7}], v[{SCF+6}:{SCF+7}]")
    for i in range(0, 8, 2): E(f"v_pk_fma_f32 v[{X2+i}:{X2+i+1}], v[{X2+i}:{X2+i+1}], v[{s2}:{s2+1}], v[{SCF+8+i}:{SCF+8+i+1}] op_sel_hi:[1,0,1]")
    H2 = PK
    for p in range(4): E(f"v_cvt_pk_bf16_f32 v{H2+p}, v{X2+2*p}, v{X2+2*p+1}")
    DM = S[0]
    for s_ in range(4):
        for nt in range(2):
            d = DM + (nt*4+s_)*4; b = W1 + nt*16 + s_*4
            E(f"v_mfma_f32_16x16x32_bf16 v[{d}:{d+3}], v[{H2}:{H2+3}], v[{b}:{b+3}], 0")
    E("s_mov_b64 exec, 0xffff")
    for nt in range(2): E(f"v_add_f32 v{DM+16*nt}, v{DM+16*nt}, v{DM+16*nt+5}")
    for nt in range(2): E(f"v_add_f32 v{DM+16*nt}, v{DM+16*nt}, v{DM+16*nt+10}")
    for nt in range(2): E(f"v_add_f32 v{DM+16*nt}, v{DM+16*nt}, v{DM+16*nt+15}")
    E(f"ds_write2st64_b32 v{vRW}, v{DM}, v{DM+16} offset0:{L_RED//256} offset1:{L_RED//256+1}")
    E("s_mov_b64 exec, -1")
    E("s_waitcnt lgkmcnt(0)")
    E.label("L_b4")
    E(f"v_mov_b32 v{T0}, 0")
    E(f"v_mov_b32 v{T1}, 0")
    E("s_barrier")
    stamp("b2")
    D = S[0]
    E(f"ds_read_b128 v[{D}:{D+3}], v{vRR} offset:{L_RED}")
    E(f"ds_read_b128 v[{D+8}:{D+11}], v{vRR} offset:{L_RED+16}")
    E("s_waitcnt lgkmcnt(0)")
    for b in (D, D+8): E(f"v_pk_add_f32 v[{b}:{b+1}], v[{b}:{b+1}], v[{b+2}:{b+3}]")
    for b in (D, D+8): E(f"v_add_f32 v{b}, v{b}, v{b+1}")
    E(f"v_max_f32 v{D}, 0, v{D}")
    E(f"v_max_f32 v{D+8}, 0, v{D+8}")
    E(f"v_cvt_pk_bf16_f32 v{D}, v{D}, v{D+8}")
    for k in range(16):
        E(f"v_dot2c_f32_bf16_dpp v{T0+(k&1)}, v{D}, v{W2+k} row_newbcast:{k} {DPPM}")
    E(f"v_add_f32 v{T0}, v{T0}, v{T1}")
    E(f"v_min_u32 v{T0}, -2, v{T0}")
    E(f"buffer_store_dword v{T0}, v{vGATH}, {rWS}, {sPUB} offen sc1")
    stamp(10)
    E(f"s_cmp_ge_u32 {sU}, 128")
    E("s_cbranch_scc1 L_fin")
    C0 = S[0]+16
    E(f"v_lshlrev_b32 v{vSTA}, 11, {vLANE}")
    E(f"s_add_u32 {sT2}, {sU16}, {WS_MO}")
    for i in range(4): E(f"v_mov_b32 v{C0+i}, 0")
    def c_loads(): E(f"buffer_load_dwordx4 v[{C0}:{C0+3}], v{vSTA}, {rWS}, {sT2} offen sc1")
    if cdelay > 0: E(f"s_sleep {cdelay}")
    if cdelay < 0: E("s_waitcnt vmcnt(0)")
    E(f"s_mov_b32 {sSPIN}, 0x40000")
    E(f"s_mov_b32 exec_hi, 0xffffff")
    c_loads()
    E(f"s_mov_b64 exec, -1")
    E(f"s_lshl_b32 {sT0}, {sU}, 3")
    E(f"v_mov_b32 v6, 0")
    E(f"v_mov_b32 v7, {sTAG}")
    E(f"v_lshlrev_b32 v{T0}, 1, v{vGQ}")
    E.tpause = True
    E.label("L_pollc")
    E("s_waitcnt vmcnt(0)")
    maxall(range(C0, C0+4), T2)
    E(f"v_cmp_eq_u32 vcc, -1, v{T2}")
    E("s_cbranch_vccz L_gotc")
    E(f"s_mov_b64 exec, vcc")
    c_loads()
    E("s_mov_b64 exec, -1")
    spin_check("L_pollc")
    E.label("L_gotc")
    E.tpause = False
    if fixt:
        if fixw >= 0:
            E(f"v_mov_b32 v{T2}, 0x800")
            E(f"buffer_load_dword v{T3}, v{T2}, {rWS}, 0 offen sc1")
            E("s_waitcnt vmcnt(0)")
            E(f"v_readfirstlane_b32 s48, v{T3}")
        E.label("L_fix")
        E("s_memrealtime s[50:51]")
        E("s_waitcnt lgkmcnt(0)")
        E("s_sub_u32 s50, s50, s48")
        E(f"s_cmp_lt_u32 s50, {fixt*100}")
        E("s_cbranch_scc1 L_fix")
    stamp(11)
    tred4(C0, C0+1, C0+2, C0+3)
    red_ror("v_add_f32", [C0], (1, 2, 4, 8))
    rb1(C0, C0)
    E(f"v_mul_f32 v{C0}, v{C0}, v{GBF}")
    rb1(C0, C0)
    E(f"v_add_f32 v{C0}, v{C0}, v{X2F}")
    E(f"v_cvt_pk_bf16_f32 v{C0}, v{C0}, v{C0}")
    if touch: E.touch_end("L_tbret")
    E("s_mov_b32 exec_lo, 0x10001")
    E("s_mov_b32 exec_hi, 0x10001")
    E(f"buffer_store_short v{C0}, v{T0}, {rOUT}, {sT0} offen {outf}")
    if not epe:
        E("s_mov_b64 exec, 1")
        E(f"s_cmp_lg_u32 {sU}, 0")
        E("s_cbranch_scc1 L_fin")
        E(f"buffer_store_dword v7, v6, {rWS}, 0 offen sc1")
    E.label("L_fin")
    if stamps:
        stamp(12)
        E("s_mov_b64 exec, 1")
        E("s_waitcnt lgkmcnt(0)")
        E(f"s_lshl_b32 {sT0}, s2, 3")
        E(f"s_add_u32 {sT0}, {sT0}, {sW}")
        E(f"s_lshl_b32 {sT0}, {sT0}, 7")
        E(f"s_add_u32 {sT0}, {sT0}, {WS_STAMP}")
        if 1:
            E("s_sleep 127"); E("s_sleep 127"); E("s_sleep 127")
        E("v_mov_b32 v6, 0")
        for i in range(13):
            E(f"v_mov_b32 v8, s{52+2*i}")
            E(f"v_mov_b32 v9, s{53+2*i}")
            E(f"buffer_store_dwordx2 v[8:9], v6, {rWS}, {sT0} offen offset:{8*i}")
            E("s_nop 1")
        E(f"v_mov_b32 v8, {sSPIN}")
        E(f"v_mov_b32 v9, 0")
        E(f"buffer_store_dwordx2 v[8:9], v6, {rWS}, {sT0} offen offset:{8*13}")
    E.label("L_end")
    E("s_endpgm")
    if aslist == 2:
        E.raw(".globl warm_kernel\n.p2align 8\n.type warm_kernel,@function\nwarm_kernel:\n    s_endpgm")
        E.raw('.section .rodata,"a"\n.p2align 6\n.amdhsa_kernel warm_kernel\n  .amdhsa_next_free_vgpr 8\n  .amdhsa_next_free_sgpr 16\n  .amdhsa_accum_offset 8\n  .amdhsa_group_segment_fixed_size 0\n  .amdhsa_kernarg_size 104\n  .amdhsa_user_sgpr_count 2\n  .amdhsa_user_sgpr_kernarg_segment_ptr 1\n  .amdhsa_system_sgpr_workgroup_id_x 1\n.end_amdhsa_kernel')
    E.raw(f'.section .rodata,"a"\n.p2align 6\n.amdhsa_kernel {KN}')
    E.raw("  .amdhsa_next_free_vgpr 256\n  .amdhsa_next_free_sgpr 102\n  .amdhsa_accum_offset 256\n  .amdhsa_group_segment_fixed_size 0\n  .amdhsa_kernarg_size 104\n  .amdhsa_user_sgpr_count 2\n  .amdhsa_user_sgpr_kernarg_segment_ptr 1\n  .amdhsa_system_sgpr_workgroup_id_x 1\n  .amdhsa_float_denorm_mode_32 3\n.end_amdhsa_kernel")
    return E.text()

if __name__ == "__main__":
    import argparse, inspect
    ap = argparse.ArgumentParser()
    ap.add_argument("out")
    for n, p in inspect.signature(gen).parameters.items():
        if n == "stamps": ap.add_argument("--stamps", default="")
        else: ap.add_argument("--"+n, type=type(p.default), default=p.default)
    a = vars(ap.parse_args())
    out = a.pop("out")
    a["stamps"] = a["stamps"].split(",") if a["stamps"] else None
    open(out, "w").write(gen(**a))
```

```python
import sys, math, struct
from emit import Emit
KN = "adaLN_cond__gqa_block_cached__dense_activation_relu__decode_kernel"

WS_EPOCH = 0x0
WS_MODG  = 0x1000
WS_CLR   = 0x10000
WS_STAT  = 0x8000
WS_AO    = 0x100000
WS_PART  = 0x20000
WS_MO    = 0x60000
WS_HB    = 0x18000
WS_EP    = 0xC0000
WS_QG    = WS_MODG + 48*256
WS_STAMP = 0x8000000
L_STATS = 0
L_CNT   = 256
L_FAC   = 384
L_WB    = 512
L_WE    = 1536
L_X2    = 2048
L_RED   = 4096
L_ACT   = 6144
L_Q     = 7168
L_ORED  = 8192
L_MOD   = 24576
L_WM    = 32768
L_WT    = 65536

DPPM = "row_mask:0xf bank_mask:0xf"
def f32bits(x): return struct.unpack("<I", struct.pack("<f", x))[0]

def gen(depth=6, kvflags="nt", wflags="", stamps=None, swave=0, tpwo=4, mlearly=0, slp=2, slpa=0, slpb=0, codepf=2, dbg="",
        k1=2, k2=3, slpq=4, prio=3, fixt=0, jml=24, fast=1, rate=1, cdelay=-1, ewt=1, rot=0, qat=12, depth0=9, young="", depthe=0, emask=255, swapq=1, lead=0, touch=0, w1e=0, w1pf=2, rep=0, w1dl=0, buddy=0, wopf=0, wopos=3, fixw=-1, aslist=0, fpos=-1, fwave=1, dyn=0, pfirst=1, tlb=0, eflags="nt", oflags="nt", quick=1, epe=1, outpf=0, outf="", depthv=0, dvat=18, p0=3, dynt=7, wmx=3, dburst=0, wb=0, nb=0, pa=12, la=8, pb=24, lb=8, pc=12, da=8, ext=0, dx=8, fmap=0, jperm=0, mlite=0, emap=0, esw=0, hint=0, hdl=0):
    E = Emit()
    L_WO = L_WT + 65536
    LDS_BYTES = max(L_WT + 65536, L_WO + 32768)
    sW, sG, sJ, sTAG, sSPIN = "s3", "s4", "s5", "s6", "s7"
    rK, rV, rWS, rWT, rW2, rX, rC, rOUT = [f"s[{i}:{i+3}]" for i in range(8, 40, 4)]
    rWO = "s[84:87]"
    sSELLO, sSELHI, sC, sBASE, sM, sT0, sT1, sT2 = "s78", "s79", "s80", "s81", "s82", "s83", "s100", "s101"
    sA, sPL, sPUB, sLAST, sU, sU16, sT3, sT4, sEP = "s40", "s41", "s42", "s95", "s98", "s99", "s96", "s97", "s93"
    sPP, sGA0, sGA1, sLD, sML, sXCC, sAOP, sSK = "s43", "s44", "s45", "s46", "s47", "s91", "s92", "s90"
    sJW = "s94" if dyn else sJ
    vLANE, vK, vV = "v1", "v2", "v3"
    Q0 = 16
    T0, T1, T2, T3 = 28, 29, 30, 31
    S = [32 + 32*i for i in range(7)]
    def stamp(i):
        if stamps and str(i) in stamps:
            k = stamps.index(str(i))
            E(f"s_memrealtime s[{52+2*k}:{53+2*k}]")
    vm = []
    light = [False]
    def setlight():
        if depthe:
            if emask == 0: E(f"s_cmp_ge_u32 {sJ}, 16")
            else:
                E(f"s_lshr_b32 {sT0}, {emask}, {sW}")
                E(f"s_andn2_b32 {sT0}, {sT0}, {sG}")
                E(f"s_bitcmp1_b32 {sT0}, 0")
            E(f"s_cselect_b64 vcc, 1, 0")
    def vmop(tag, text):
        E(text); vm.append(tag)
    def vmwait(tag):
        idx = [i for i, t in enumerate(vm) if t == tag][-1]
        E(f"s_waitcnt vmcnt({min(len(vm) - 1 - idx, 62)})")
    def spin_check(lbl_loop):
        E(f"s_sub_u32 {sSPIN}, {sSPIN}, 1")
        E(f"s_cbranch_scc0 {lbl_loop}")
        E(f"s_branch L_end")
    PRI = {1: {("k",0):3, ("k",2):2, ("v",0):1, ("v",2):0}, 2: {("k",0):3, ("v",0):2, ("v",2):1}, 3: {("k",0):3, ("k",3):2, ("v",2):1}, 0: {},
           4: {("k",0):1, ("k",1):1, ("k",2):1, ("k",3):1, ("v",0):1, ("v",1):1, ("v",2):1, ("v",3):1}}[prio]
    def load_tile(kind, T, slot, dep, tag, mid=None, lo=0, hi=8, setp=True):
        srd = rK if kind == "k" else rV
        va = vK if (kind == "k" and "k" not in dbg) else vV
        if setp and lo == 0 and (kind, T) in PRI:
            E(f"s_setprio {PRI[(kind, T)]}")
        if setp and lo == 0 and f"{kind}{T}" in young.split(","):
            u = len(E.L)
            base = [v for k, v in PRI.items() if (k[0] == "k" and kind == "v") or (k[0] == kind and k[1] <= T)]
            b = min(base) if base else 1
            E(f"s_cmp_lt_u32 {sW}, 4")
            E(f"s_cbranch_scc1 L_yp{u}")
            E(f"s_setprio {min(3, b+1)}")
            E.raw(f"L_yp{u}:")
        for i in range(lo, hi):
            if i == 4 and mid: mid()
            if rot:
                E(f"s_xor_b32 {sLD}, {sBASE}, {T*0x200000 + i*1024}")
            elif i == 0 or i == 4 or hi - lo == 1: E(f"s_add_u32 {sLD}, {sBASE}, {T*0x200000 + (i//4)*4096}")
            if depthe and light[0] and dep and len(vm) >= depthe:
                u = len(E.L)
                E.raw(f"    s_cbranch_vccz L_lt{u}"); E._push(None)
                E(f"s_waitcnt vmcnt({depthe-1})")
                E.raw(f"L_lt{u}:")
            if dep and len(vm) >= dep: E(f"s_waitcnt vmcnt({dep-1})")
            r = S[slot] + i*4
            vmop(tag, f"buffer_load_dwordx4 v[{r}:{r+3}], {va}, {srd}, {sLD} offen offset:{0 if rot else (i%4)*1024} {kvflags}")
    def krange(a, b, dep):
        vm[:] = ["x"]*64
        for n_ in range(a, b):
            kind, T = ("k", n_//8) if n_ < 32 else ("v", n_//8 - 4)
            load_tile(kind, T, n_//8, dep, "K", lo=n_%8, hi=n_%8+1, setp=False)
    def red_rows(op, regs, tmp):
        for sw in ("v_permlane16_swap_b32", "v_permlane32_swap_b32"):
            for i, r in enumerate(regs): E(f"v_mov_b32 v{tmp+i}, v{r}")
            for i, r in enumerate(regs): E(f"{sw} v{r}, v{tmp+i}")
            for i, r in enumerate(regs): E(f"{op} v{r}, v{r}, v{tmp+i}")
    def red_ror(op, regs, rors):
        for k in rors:
            for r in regs: E(f"{op}_dpp v{r}, v{r}, v{r} row_ror:{k} {DPPM}")
    def tred4(a0, a1, a2, a3):
        E(f"v_permlane16_swap_b32 v{a0}, v{a1}")
        E(f"v_permlane16_swap_b32 v{a2}, v{a3}")
        E(f"v_add_f32 v{a0}, v{a0}, v{a1}")
        E(f"v_add_f32 v{a2}, v{a2}, v{a3}")
        E(f"v_permlane32_swap_b32 v{a0}, v{a2}")
        E(f"v_add_f32 v{a0}, v{a0}, v{a2}")
    def rb1(dst, src):
        E(f"v_cvt_pk_bf16_f32 v{dst}, v{src}, v{src}")
        E(f"v_lshlrev_b32 v{dst}, 16, v{dst}")
    def rb2(d0, d1, s0, s1, t):
        E(f"v_cvt_pk_bf16_f32 v{t}, v{s0}, v{s1}")
        E(f"v_lshlrev_b32 v{d0}, 16, v{t}")
        E(f"v_and_b32 v{d1}, 0xffff0000, v{t}")
    def tagcheck(regs, t):
        regs = [f"v{r}" for r in regs] + [sTAG]
        if len(regs) % 2 == 0: regs.insert(0, regs[0])
        E(f"v_max3_u32 v{t}, {regs[0]}, {regs[1]}, {regs[2]}")
        E(f"v_min3_u32 v{t+1}, {regs[0]}, {regs[1]}, {regs[2]}")
        for i in range(3, len(regs), 2):
            E(f"v_max3_u32 v{t}, v{t}, {regs[i]}, {regs[i+1]}")
            E(f"v_min3_u32 v{t+1}, v{t+1}, {regs[i]}, {regs[i+1]}")
        E(f"v_cmp_ne_u32 vcc, v{t}, v{t+1}")
    def maxall(regs, t):
        regs = list(regs)
        E(f"v_max3_u32 v{t}, v{regs[0]}, v{regs[1]}, v{regs[2]}")
        i = 3
        while i + 1 < len(regs):
            E(f"v_max3_u32 v{t}, v{t}, v{regs[i]}, v{regs[i+1]}"); i += 2
        if i < len(regs): E(f"v_max_u32 v{t}, v{t}, v{regs[i]}")
    def pollloop(name, load1, groups, tmp, sl):
        n = len(groups)
        E.label(f"L_poll{name}")
        E(f"s_waitcnt vmcnt(0)")
        for i, g in enumerate(groups): maxall(g, tmp+i)
        if n == 2: E(f"v_max_u32 v6, v{tmp}, v{tmp+1}")
        else: maxall(range(tmp, tmp+n), 6)
        E(f"v_cmp_eq_u32 vcc, -1, v6")
        E(f"s_cbranch_vccz L_got{name}")
        if sl: E(f"s_sleep {sl}")
        for i in range(n):
            E(f"v_cmp_eq_u32 vcc, -1, v{tmp+i}")
            E(f"s_mov_b64 exec, vcc")
            load1(i)
            E("s_mov_b64 exec, -1")
        spin_check(f"L_poll{name}")
        E.label(f"L_got{name}")
    def quickpoll(name, load1, firsts, back):
        n = len(firsts)
        mk = [f"s[{8+2*i}:{9+2*i}]" for i in range(n)]
        E.label(f"L_qp{name}")
        E("s_waitcnt vmcnt(0)")
        for i, r in enumerate(firsts): E(f"v_cmp_eq_u32 {mk[i]}, -1, v{r}")
        E(f"s_or_b64 vcc, {mk[0]}, {mk[1]}")
        for i in range(2, n): E(f"s_or_b64 vcc, vcc, {mk[i]}")
        E.raw(f"    s_cbranch_scc0 {back}"); E._push(None)
        for i in range(n):
            E(f"s_mov_b64 exec, {mk[i]}")
            load1(i)
        E("s_mov_b64 exec, -1")
        E(f"s_sub_u32 {sSPIN}, {sSPIN}, 1")
        E.raw(f"    s_cbranch_scc0 L_qp{name}"); E._push(None)
        E("s_branch L_end")
    def mktag():
        E("s_waitcnt lgkmcnt(0)")
        E(f"s_mul_i32 {sTAG}, {sEP}, 0x9E3779B1")
        E(f"s_add_u32 {sTAG}, {sTAG}, 0x7F4A7C15")
    def slice_dma(srd, rowb, soff, lds, n=2):
        if rowb & (rowb-1) == 0: E(f"v_lshl_add_u32 v{T2}, v{T0}, {rowb.bit_length()-1}, v{T1}")
        else:
            E(f"v_mul_u32_u24 v{T2}, {rowb}, v{T0}")
            E(f"v_add_u32 v{T2}, v{T2}, v{T1}")
        E(f"v_xor_b32 v{T3}, 64, v{T2}")
        E(f"s_mul_i32 {sT1}, {sW}, {8*n*rowb}")
        E(f"s_add_u32 {soff}, {soff}, {sT1}")
        E(f"s_mul_i32 {sT1}, {sW}, {1024*n}")
        E(f"s_add_u32 m0, {sT1}, {lds}")
        for i in range(n):
            E(f"buffer_load_dwordx4 v{T2 + i%2}, {srd}, {soff} offen {oflags} lds")
            if i < n-1:
                E(f"s_add_u32 {soff}, {soff}, {8*rowb}")
                E(f"s_add_u32 m0, m0, 1024")
    def part_rows(va, vt):
        E(f"v_lshrrev_b32 v{vt}, 4, {vLANE}")
        E(f"v_lshlrev_b32 v{va}, 13, v{vt}")
        E(f"v_and_b32 v{vt}, 15, {vLANE}")
        E(f"v_lshl_add_u32 v{va}, v{vt}, 8, v{va}")
        E(f"s_lshl_b32 {sT0}, {sG}, 15")
        E(f"s_lshr_b32 {sT1}, {sJ}, 4")
        E(f"s_lshl_b32 {sT1}, {sT1}, 12")
        E(f"s_add_u32 {sT0}, {sT0}, {sT1}")
        E(f"s_and_b32 {sT1}, {sJ}, 15")
        E(f"s_lshl_b32 {sT1}, {sT1}, 4")
        E(f"s_add_u32 {sT0}, {sT0}, {sT1}")
        E(f"s_add_u32 {sT0}, {sT0}, {WS_PART}")
    def slice_prep():
        E(f"v_lshrrev_b32 v{T0}, 3, {vLANE}")
        E(f"v_and_b32 v{T1}, 2, v{T0}")
        E(f"v_and_b32 v{T2}, 7, {vLANE}")
        E(f"v_xor_b32 v{T1}, v{T2}, v{T1}")
        E(f"v_lshlrev_b32 v{T1}, 4, v{T1}")

    hdr = []
    hdr.append("""; Fused adaLN + GQA decode attention + ReLU MLP in one launch: 256 workgroups (one per CU) x 8 waves.
;   d_ws as {data, tag} granules (tag = hash of an epoch word found in d_ws, advanced once per launch).
;   Hand-offs inside a group use plain stores only when every workgroup of the group reported the same die id.""")
    if aslist == 2: hdr.append(f"; @launch kernel=warm_kernel grid=(256,1,1) block=(64,1,1) lds=0")
    if aslist: hdr.append(f"; @launch kernel={KN} grid=(256,1,1) block=(512,1,1) lds={LDS_BYTES}")
    else: hdr.append(f"; @launch grid=(256,1,1) block=(512,1,1) lds={LDS_BYTES}")
    hdr.append('.amdgcn_target "amdgcn-amd-amdhsa--gfx950"\n.text')
    hdr.append(f".globl {KN}\n.p2align 8\n.type {KN},@function\n{KN}:")
    E.raw("\n".join(hdr))
    E("s_cmp_ge_u32 s2, 256")
    E("s_cbranch_scc1 L_end")
    if fixt or (stamps and "e" in stamps): E("s_memrealtime s[48:49]")
    E("s_load_dwordx2 s[8:9], s[0:1], 8")
    if codepf:
        if codepf < 32:
            E(f"s_cmp_ge_u32 s2, {8*codepf}" if pfirst else f"s_cmp_lt_u32 s2, {256-8*codepf}")
            E("s_cbranch_scc1 L_nopf")
        E("s_getpc_b64 s[88:89]")
        E.raw("L_pc:")
        E(f"v_lshlrev_b32 v6, 6, v0")
        E(f"v_min_u32 v6, L_end-L_pc, v6")
        E(f"v_mov_b32 v9, s89")
        E(f"v_add_co_u32 v8, vcc, s88, v6")
        E(f"v_addc_co_u32 v9, vcc, 0, v9, vcc")
        E(f"global_load_dword v24, v[8:9], off")
        E.label("L_nopf")
    E(f"s_and_b32 {sG}, s2, 7")
    if jperm:
        E(f"s_lshr_b32 {sJ}, s2, 4")
        E(f"s_bfe_u32 {sT0}, s2, 0x10003")
        E(f"s_lshl_b32 {sT0}, {sT0}, 4")
        E(f"s_or_b32 {sJ}, {sJ}, {sT0}")
    else: E(f"s_lshr_b32 {sJ}, s2, 3")
    sJE = sJ
    if esw:
        sJE = sT4
        E(f"s_mov_b32 {sJE}, {sJ}")
        for x, y in ((3, 31), (11, 30))[:esw]:
            E(f"s_cmp_eq_u32 {sJ}, {x}")
            E(f"s_cselect_b32 {sJE}, {y}, {sJE}")
            E(f"s_cmp_eq_u32 {sJ}, {y}")
            E(f"s_cselect_b32 {sJE}, {x}, {sJE}")
    if emap:
        E(f"s_and_b32 {sT1}, {sG}, 1")
        E(f"s_lshl_b32 {sT1}, {sT1}, 1")
        E(f"s_sub_u32 {sT0}, {sJE}, 8")
        E(f"s_add_u32 {sT0}, {sT0}, {sT1}")
        E(f"s_cmp_lt_u32 {sJE}, 16")
        E(f"s_cselect_b32 {sT0}, {sJE}, {sT0}")
        E(f"s_add_u32 {sA}, {sT0}, 2")
        E(f"s_mul_i32 {sA}, {sA}, 86")
        E(f"s_lshr_b32 {sA}, {sA}, 8")
        E(f"s_add_u32 {sT0}, {sT0}, {sA}")
        E(f"s_sub_u32 {sA}, {sJE}, 16")
        E(f"s_sub_u32 {sT1}, 8, {sT1}")
        E(f"s_cmp_lt_u32 {sA}, {sT1}")
        E(f"s_lshl_b32 {sA}, {sA}, 2")
        E(f"s_add_u32 {sA}, {sA}, 1")
        E(f"s_sub_u32 {sT3}, {sJE}, 16")
        E(f"s_cmp_lt_u32 {sT3}, {sT1}")
        E(f"s_cselect_b32 {sT0}, {sA}, {sT0}")
        E(f"s_lshl_b32 {sT0}, {sT0}, 2")
        E(f"s_lshr_b32 {sA}, {sG}, 1")
    else:
        E(f"s_lshr_b32 {sA}, {sG}, 1")
        E(f"s_lshl_b32 {sT0}, {sJE}, 2")
    E(f"s_add_u32 {sA}, {sA}, {sT0}")
    if swapq:
        if fmap == 0:
            E(f"s_cmp_lt_u32 {sA}, 96")
            E(f"s_cselect_b32 {sT0}, {sA}, 255")
        else:
            E(f"s_lshl_b32 {sT1}, {sJ}, 1")
            E(f"s_sub_u32 {sT1}, {sA}, {sT1}")
            E(f"s_bitcmp1_b32 {sJ}, 0")
            E(f"s_cselect_b32 {sT1}, 255, {sT1}")
            E(f"s_sub_u32 {sT0}, {sA}, 32")
            E(f"s_cmp_lt_u32 {sJ}, 16")
            E(f"s_cselect_b32 {sT0}, {sT1}, {sT0}")
        E(f"s_add_u32 {sA}, {sA}, 96")
    else: E(f"s_add_u32 {sT0}, {sA}, 128")
    E(f"s_bitcmp1_b32 {sG}, 0")
    E(f"s_cselect_b32 {sA}, {sT0}, {sA}")
    if "a" in dbg: E(f"s_mov_b32 {sA}, 255")
    if "g" in dbg:
        E(f"s_sub_u32 {sT0}, {sA}, 32")
        E(f"s_cmp_lt_u32 {sT0}, 64")
        E(f"s_cselect_b32 {sA}, 255, {sA}")
    E(f"s_cmp_lt_u32 {sA}, 96")
    E(f"s_cselect_b32 {sT0}, 72, 24")
    E(f"s_load_dwordx2 s[20:21], s[0:1], {sT0}")
    E("s_load_dwordx16 s[52:67], s[0:1], 0")
    E("s_load_dwordx8 s[68:75], s[0:1], 64")
    E("s_load_dwordx2 s[76:77], s[0:1], 96")
    E(f"s_cselect_b32 {sT4}, 48, 64")
    E(f"s_cselect_b32 {sT3}, 0, 48")
    E(f"v_lshrrev_b32 v4, 6, v0")
    E(f"v_and_b32 {vLANE}, 63, v0")
    E(f"v_readfirstlane_b32 {sW}, v4")
    slice_prep()
    E(f"s_lshl_b32 {sT4}, {sT4}, 7")
    E(f"s_lshl_b32 s22, {sT4}, 9")
    E(f"s_cmp_lt_u32 {sA}, 224")
    E(f"s_cselect_b32 s22, s22, 0")
    E(f"s_mov_b32 s23, 0x20000")
    E(f"s_lshr_b32 {sT0}, {sA}, 1")
    E(f"s_sub_u32 {sT3}, {sT0}, {sT3}")
    E(f"s_lshl_b32 {sT3}, {sT3}, 7")
    E(f"s_and_b32 {sT2}, {sA}, 1")
    E(f"s_lshl_b32 {sT0}, {sT2}, 3")
    E(f"s_add_u32 {sT0}, {sT0}, {sW}")
    E(f"s_lshl_b32 {sT0}, {sT0}, 5")
    E(f"s_mul_i32 {sT0}, {sT0}, {sT4}")
    E(f"s_add_u32 {sT3}, {sT3}, {sT0}")
    E(f"v_mul_u32_u24 v{T2}, {sT4}, v{T0}")
    E(f"v_add_u32 v{T2}, v{T2}, v{T1}")
    E(f"v_xor_b32 v{T3}, 64, v{T2}")
    E(f"s_lshl_b32 {sT4}, {sT4}, 3")
    E(f"s_lshl_b32 {sT0}, {sW}, 12")
    E(f"s_add_u32 m0, {sT0}, {L_WM}")
    E(f"v_and_b32 v4, 12, {vLANE}")
    E(f"v_lshlrev_b32 {vK}, 6, v4")
    E(f"v_lshrrev_b32 v4, 4, {vLANE}")
    E(f"v_lshl_add_u32 {vK}, v4, 6, {vK}")
    E(f"v_and_b32 v4, 3, {vLANE}")
    E(f"v_lshl_add_u32 {vK}, v4, 4, {vK}")
    E(f"s_lshl_b32 {sBASE}, {sG}, 23")
    E(f"s_andn2_b32 {sT0}, s2, 7")
    E(f"s_add_u32 {sT0}, {sT0}, {sW}")
    E(f"s_lshl_b32 {sT0}, {sT0}, 13")
    E(f"s_add_u32 {sBASE}, {sBASE}, {sT0}")
    E(f"s_mov_b32 s10, 0x4000000")
    E(f"s_mov_b32 s11, 0x20000")
    E(f"v_mov_b32 v5, {L_CNT}")
    for r in range(20, 24): E(f"v_mov_b32 v{r}, 0")
    E(f"ds_write_b128 v5, v[20:23]")
    E(f"ds_write_b64 v5, v[20:21] offset:16")
    E("s_setprio 3")
    E("s_waitcnt lgkmcnt(0)")
    if "4" in dbg:
        E(f"s_cmp_lg_u32 {sW}, 7")
        E("s_cbranch_scc1 L_nb")
        E("v_mov_b32 v6, s2")
        E("v_mov_b32 v7, 0x80")
        E("s_mov_b64 exec, 1")
        E("global_store_byte v6, v7, s[74:75] sc1")
        E("s_mov_b64 exec, -1")
        E.label("L_nb")
    for i in range(4):
        E(f"buffer_load_dwordx4 v{T2 + i%2}, {rWT}, {sT3} offen {eflags} lds")
        if i < 3:
            E(f"s_add_u32 m0, m0, 1024")
            E(f"s_add_u32 {sT3}, {sT3}, {sT4}")
    if "b" not in dbg: E("s_barrier")
    def srd_setup():
        E(f"s_load_dword {sEP}, s[76:77], {WS_EPOCH}")
        E(f"v_lshlrev_b32 {vV}, 4, {vLANE}")
        for d, sr in ((28, 52), (32, 68), (16, 76), (12, 56), (24, 66), (36, 72), (84, 60), (20, 64)):
            E(f"s_mov_b64 s[{d}:{d+1}], s[{sr}:{sr+1}]")
        for d, z in ((28, 1024), (32, 1024), (12, 0x4000000), (16, 0x10000000), (20, 512*1792*2), (24, 512*1792*2), (36, 1024)):
            E(f"s_mov_b32 s{d+2}, {z:#x}")
        for d in (28, 32, 12, 16, 24, 36): E(f"s_mov_b32 s{d+3}, 0x20000")
        stamp(0)
        if stamps and "e" in stamps: E(f"s_mov_b64 s[{52+2*stamps.index('e')}:{53+2*stamps.index('e')}], s[48:49]")
    def late_setup():
        E(f"s_mov_b32 {sSELLO}, 0x05040100")
        E(f"s_mov_b32 {sSELHI}, 0x07060302")
        E(f"s_mov_b32 {sC}, {f32bits(math.log2(math.e)):#x}")
        E(f"s_mov_b32 {sSPIN}, 0x40000")
        E(f"s_getreg_b32 {sXCC}, hwreg(HW_REG_XCC_ID)")
        E(f"s_sub_u32 {sT0}, {sJ}, {jml}")
        E(f"s_cmp_lt_u32 {sT0}, 7")
        E(f"s_cselect_b32 {sML}, 1, 0")
        E(f"s_mul_i32 {sM}, {sG}, 7")
        E(f"s_add_u32 {sM}, {sM}, {sT0}")
        E(f"s_lshl_b32 {sPUB}, {sM}, 11")
        E(f"s_add_u32 {sPUB}, {sPUB}, {WS_MO}")
        E(f"s_cmp_lt_u32 {sJ}, 16")
        E(f"s_cselect_b32 s86, {512*4096*2}, 0")
        E(f"s_mov_b32 s87, 0x20000")
        E(f"s_lshl_b32 {sAOP}, {sG}, 12")
        E(f"s_lshl_b32 {sT0}, {sJ}, 8")
        E(f"s_add_u32 {sAOP}, {sAOP}, {sT0}")
        E(f"s_add_u32 {sAOP}, {sAOP}, {WS_AO}")
    E(f"s_cmp_lt_u32 {sA}, 224")
    E(f"s_cselect_b32 {sT0}, {sW}, 1")
    E(f"s_cmp_eq_u32 {sT0}, 0")
    E("s_cbranch_scc1 L_aux")
    NPRE = 4
    if tlb:
        E(f"s_cmp_lg_u32 {sW}, 1")
        E("s_cbranch_scc1 L_notlb")
        if tlb < 32:
            E(f"s_cmp_ge_u32 {sJ}, {tlb}")
            E("s_cbranch_scc1 L_notlb")
        E(f"v_lshlrev_b32 v6, 21, {vLANE}")
        E(f"s_mov_b64 s[12:13], s[56:57]")
        E(f"s_mov_b32 s14, 0x4000000")
        E(f"s_mov_b32 s15, 0x20000")
        E("s_mov_b64 exec, 15")
        E(f"buffer_load_dword v25, v6, {rK}, {sBASE} offen nt")
        E(f"buffer_load_dword v25, v6, {rV}, {sBASE} offen nt")
        E("s_mov_b64 exec, 1")
        E(f"s_lshl_b32 {sT0}, {sG}, 19")
        E(f"v_mov_b32 v7, {sT0}")
        for pr in (60, 64, 66, 72, 76):
            E(f"global_load_dword v25, {'v7' if pr == 60 else 'v6'}, s[{pr}:{pr+1}]")
        E("s_mov_b64 exec, -1")
        E.label("L_notlb")
    load_tile("k", 0, 0, 0, "K0", hi=NPRE, setp=False)
    srd_setup()
    late_setup()
    E(f"v_mov_b32 v19, 1")
    E("s_mov_b64 exec, 1")
    E(f"s_waitcnt vmcnt({NPRE})")
    E(f"ds_add_u32 v5, v19 offset:4")
    E("s_mov_b64 exec, -1")
    stamp("d")
    E("s_branch L_stream")

    def flag(n):
        E(f"s_lshl_b32 {sT0}, {sJ}, 7")
        E(f"s_lshl_b32 {sT1}, {sG}, 12")
        E(f"s_add_u32 {sT0}, {sT0}, {sT1}")
        E(f"s_add_u32 {sT0}, {sT0}, {WS_CLR}")
        E(f"v_mov_b32 v{T0}, {sXCC}")
        E(f"v_mov_b32 v{T1}, {sTAG}")
        E(f"v_mov_b32 v{T2}, {sXCC}")
        E(f"v_mov_b32 v{T3}, {sTAG}")
        E("s_mov_b64 exec, 0xff")
        E(f"s_waitcnt vmcnt({n})")
        E(f"buffer_store_dwordx4 v[{T0}:{T3}], {vV}, {rWS}, {sT0} offen {'' if '5' in dbg else 'sc1'}")
        E("s_mov_b64 exec, -1")
    def w1_dma():
        E(f"v_lshrrev_b32 v{T0}, 2, {vLANE}")
        E(f"v_mul_u32_u24 v{T0}, 3584, v{T0}")
        E(f"v_and_b32 v{T1}, 3, {vLANE}")
        E(f"v_lshl_add_u32 v{T0}, v{T1}, 4, v{T0}")
        E(f"s_mul_i32 {sT0}, {sW}, {16*3584}")
        E(f"s_lshl_b32 {sT1}, {sM}, 6")
        E(f"s_add_u32 {sT0}, {sT0}, {sT1}")
        E(f"s_lshl_b32 {sT3}, {sW}, 13")
        E(f"s_add_u32 m0, {sT3}, {L_WT}")
        for i in range(4):
            E(f"buffer_load_dwordx4 v{T0}, {rWT}, {sT0} offen {wflags} lds")
            if i < 3:
                E(f"s_add_u32 {sT0}, {sT0}, {128*3584}")
                E(f"s_add_u32 m0, m0, 1024")
    def w2_dma():
        E(f"v_lshrrev_b32 v{T0}, 3, {vLANE}")
        E(f"v_and_b32 v{T1}, 7, {vLANE}")
        E(f"v_lshlrev_b32 v{T1}, 4, v{T1}")
        E(f"v_lshl_add_u32 v{T0}, v{T0}, 10, v{T1}")
        E(f"s_lshl_b32 {sT0}, {sM}, 15")
        E(f"s_lshl_b32 {sT1}, {sW}, 7")
        E(f"s_add_u32 {sT0}, {sT0}, {sT1}")
        E(f"s_lshl_b32 {sT3}, {sW}, 13")
        E(f"s_add_u32 m0, {sT3}, {L_WT + 4096}")
        for i in range(4):
            E(f"buffer_load_dwordx4 v{T0}, {rW2}, {sT0} offen {oflags} lds")
            if i < 3:
                E(f"s_add_u32 {sT0}, {sT0}, 8192")
                E(f"s_add_u32 m0, m0, 1024")
    def w1_pref(skip):
        E(f"s_sub_u32 {sT3}, {sJW}, 16")
        E(f"s_cmp_ge_u32 {sT3}, 8")
        E(f"s_cbranch_scc1 {skip}")
        E(f"v_lshrrev_b32 v{T0}, 5, {vLANE}")
        E(f"v_mul_u32_u24 v{T0}, 3584, v{T0}")
        E(f"v_and_b32 v{T1}, 31, {vLANE}")
        E(f"v_lshl_add_u32 v{T0}, v{T1}, 4, v{T0}")
        E(f"s_lshl_b32 {sT3}, {sT3}, 3")
        E(f"s_add_u32 {sT3}, {sT3}, {sW}")
        E(f"s_mul_i32 {sT0}, {sT3}, {8*3584}")
        E(f"s_mul_i32 {sT1}, {sG}, 448")
        E(f"s_and_b32 {sT1}, {sT1}, 0xffffff80")
        E(f"s_add_u32 {sT0}, {sT0}, {sT1}")
        E(f"s_mov_b32 m0, {L_WO}")
        for i in range(4):
            E(f"buffer_load_dwordx4 v{T0}, {rWT}, {sT0} offen lds")
            if i < 3: E(f"s_add_u32 {sT0}, {sT0}, {2*3584}")
    def wo_pref():
        u = len(E.L)
        E(f"s_cmp_lt_u32 {sJ}, 16")
        E(f"s_cbranch_scc1 L_wp{u}")
        E(f"v_lshrrev_b32 v{T0}, 3, {vLANE}")
        E(f"v_and_b32 v{T1}, 7, {vLANE}")
        E(f"v_lshlrev_b32 v{T1}, 4, v{T1}")
        E(f"v_lshl_add_u32 v{T0}, v{T0}, 10, v{T1}")
        E(f"s_lshl_b32 {sT0}, {sG}, 19")
        E(f"s_bfe_u32 {sT1}, {sJ}, 0x10003")
        E(f"s_lshl_b32 {sT1}, {sT1}, 18")
        E(f"s_add_u32 {sT0}, {sT0}, {sT1}")
        E(f"s_and_b32 {sT1}, {sJ}, 7")
        E(f"s_lshl_b32 {sT1}, {sT1}, 7")
        E(f"s_add_u32 {sT0}, {sT0}, {sT1}")
        E(f"s_lshl_b32 {sT1}, {sW}, 15")
        E(f"s_add_u32 {sT0}, {sT0}, {sT1}")
        E(f"s_mov_b32 s86, {512*4096*2}")
        E(f"s_mov_b32 m0, {L_WO}")
        for i in range(wopf):
            E(f"buffer_load_dwordx4 v{T0}, {rWO}, {sT0} offen lds")
            if i < wopf-1: E(f"s_add_u32 {sT0}, {sT0}, 8192")
        E(f"s_mov_b32 s86, 0")
        E.label(f"L_wp{u}")
    def tail_dma(pos):
        if tpwo != pos or "o" in dbg: return
        u = len(E.L)
        if mlearly:
            E(f"s_cmp_eq_u32 {sML}, 0")
            E(f"s_cbranch_scc1 L_ta{u}")
            (w1_dma if mlearly == 1 else w2_dma)()
            E(f"s_branch L_tb{u}")
            E.label(f"L_ta{u}")
        if w1pf == 1:
            w1_pref(f"L_tc{u}")
            E(f"s_branch L_tb{u}")
            E.label(f"L_tc{u}")
        slice_prep()
        E(f"s_lshl_b32 {sT0}, {sG}, 19")
        E(f"s_lshr_b32 {sT1}, {sJW}, 3")
        E(f"s_lshl_b32 {sT1}, {sT1}, 18")
        E(f"s_add_u32 {sT0}, {sT0}, {sT1}")
        E(f"s_and_b32 {sT1}, {sJW}, 7")
        E(f"s_lshl_b32 {sT1}, {sT1}, 7")
        E(f"s_add_u32 {sT0}, {sT0}, {sT1}")
        slice_dma(rWO, 1024, sT0, L_WO, 4)
        E.label(f"L_tb{u}")
        vm.extend(["WO"]*4)

    E.label("L_aux")
    srd_setup()
    CR = 8; XQ = 12; TRA = 16; XF = 20
    G6 = S[6]; AD = S[6] + 16
    E(f"v_and_b32 v4, 31, {vLANE}")
    E(f"v_lshlrev_b32 v4, 4, v4")
    E(f"v_lshlrev_b32 v6, 2, {vLANE}")
    E(f"s_lshl_b32 {sT0}, {sT2}, 9")
    E(f"s_cmp_ge_u32 {sA}, 96")
    E("s_cbranch_scc1 L_ax")
    E(f"buffer_load_dwordx4 v[{CR}:{CR+3}], v4, {rC}, {sT0} offen")
    E("s_branch L_ay")
    E.label("L_ax")
    E(f"buffer_load_dwordx4 v[{CR}:{CR+3}], {vV}, {rX}, 0 offen")
    E(f"buffer_load_dword v{XQ}, v6, {rX}, {sT0} offen")
    E(f"buffer_load_dword v{XQ+1}, v6, {rX}, {sT0} offen offset:256")
    E.label("L_ay")
    if nb: krange(0, 4, 0)
    late_setup()

    E(f"v_lshrrev_b32 v{T0}, 4, {vLANE}")
    E(f"v_bfe_u32 v{T1}, {vLANE}, 2, 2")
    E(f"v_lshl_add_u32 v{T2}, v{T0}, 3, v{T1}")
    E(f"v_lshlrev_b32 v{T2}, 7, v{T2}")
    E(f"v_and_b32 v{T3}, 3, {vLANE}")
    E(f"v_lshl_add_u32 v{T2}, v{T3}, 3, v{T2}")
    E(f"v_bfe_u32 v{T1}, {vLANE}, 3, 2")
    E(f"v_lshl_add_u32 v{TRA}, v{T1}, 5, v{T2}")
    for nt in range(1, 4): E(f"v_xor_b32 v{TRA+nt}, {nt*32}, v{TRA}")
    vAR = 7
    E(f"v_lshlrev_b32 v{vAR}, 4, v{T0}")
    E(f"s_waitcnt vmcnt({4 if nb else 0})")
    mktag()
    stamp("a0")
    for p in range(4):
        E(f"v_lshlrev_b32 v{XF+2*p}, 16, v{CR+p}")
        E(f"v_and_b32 v{XF+2*p+1}, 0xffff0000, v{CR+p}")
    E(f"s_cmp_ge_u32 {sA}, 96")
    E("s_cbranch_scc1 L_auxq")
    E(f"s_mov_b32 {sT0}, {f32bits(-math.log2(math.e)):#x}")
    for i in range(8): E(f"v_mul_f32 v{G6+i}, {sT0}, v{XF+i}")
    for i in range(8): E(f"v_exp_f32 v{G6+i}, v{G6+i}")
    for i in range(8): E(f"v_add_f32 v{G6+i}, 1.0, v{G6+i}")
    for i in range(8): E(f"v_rcp_f32 v{G6+i}, v{G6+i}")
    for i in range(8): E(f"v_mul_f32 v{XF+i}, v{XF+i}, v{G6+i}")
    for p in range(4): E(f"v_cvt_pk_bf16_f32 v{CR+p}, v{XF+2*p}, v{XF+2*p+1}")
    E(f"ds_write_b128 v4, v[{CR}:{CR+3}] offset:{L_ACT}")
    E("s_branch L_gemv")
    E.label("L_auxq")
    vm[:] = ["x"]*64
    if nb: krange(4, 8, da)
    else:
        for T in range(k1): load_tile("k", T, T, dburst, f"K{T}", setp=False)
    m, v, t = 8, 9, 10
    vals = list(range(XF, XF+8))
    E(f"v_add_f32 v{m}, v{vals[0]}, v{vals[1]}")
    for r in vals[2:]: E(f"v_add_f32 v{m}, v{m}, v{r}")
    red_ror("v_add_f32", [m], (1, 2, 4, 8)); red_rows("v_add_f32", [m], t)
    E(f"v_mul_f32 v{m}, {f32bits(1.0/512):#x}, v{m}")
    for i, r in enumerate(vals):
        E(f"v_sub_f32 v{t}, v{r}, v{m}")
        E(f"v_mul_f32 v{v}, v{t}, v{t}" if i == 0 else f"v_fmac_f32 v{v}, v{t}, v{t}")
    red_ror("v_add_f32", [v], (1, 2, 4, 8)); red_rows("v_add_f32", [v], t)
    E(f"v_mul_f32 v{v}, {f32bits(1.0/512):#x}, v{v}")
    rb2(m, v, m, v, t)
    E(f"v_add_f32 v{v}, {f32bits(1e-5):#x}, v{v}")
    rb1(v, v)
    E(f"v_sqrt_f32 v{v}, v{v}")
    rb1(v, v)
    E(f"v_rcp_f32 v{v}, v{v}")
    for u in range(2):
        n0, n1 = XF+2*u, XF+2*u+1
        E(f"v_lshlrev_b32 v{n0}, 16, v{XQ+u}")
        E(f"v_and_b32 v{n1}, 0xffff0000, v{XQ+u}")
        E(f"v_sub_f32 v{n0}, v{n0}, v{m}")
        E(f"v_sub_f32 v{n1}, v{n1}, v{m}")
        rb2(n0, n1, n0, n1, t)
        E(f"v_mul_f32 v{n0}, v{n0}, v{v}")
        E(f"v_mul_f32 v{n1}, v{n1}, v{v}")
        rb2(n0, n1, n0, n1, t)
    E(f"v_lshrrev_b32 v{T0}, 5, {vLANE}")
    E(f"v_lshl_add_u32 v4, v{T0}, 10, v4")
    E(f"s_lshl_b32 {sT4}, {sT2}, 12")
    E(f"s_add_u32 {sT4}, {sT4}, {WS_EP}")
    E(f"s_add_u32 {sT3}, {sT4}, 8192")
    def modpoll():
        for arr in range(2):
            for u in range(2):
                for part in range(2):
                    r = G6 + (arr*4 + u*2 + part)*4
                    E(f"buffer_load_dwordx4 v[{r}:{r+3}], v4, {rWS}, {sT3 if arr else sT4} offen offset:{u*2048 + part*512} sc1")
    if nb:
        krange(8, pa, da)
        modpoll()
        krange(pa, pa+la, da+8)
        E(f"s_waitcnt vmcnt({la})")
        tagcheck([G6+1+2*i for i in range(16)], T0)
        E("s_cbranch_vccz L_gotmod")
    E.label("L_pollmod")
    modpoll()
    E("s_waitcnt vmcnt(0)")
    tagcheck([G6+1+2*i for i in range(16)], T0)
    E("s_cbranch_vccz L_gotmod")
    if slp: E(f"s_sleep {slp}")
    spin_check("L_pollmod")
    E.label("L_gotmod")
    stamp(2)
    for u in range(2):
        n0, n1 = XF+2*u, XF+2*u+1
        s0 = G6 + u*8; s1 = s0+2; c0 = G6 + 16 + u*8; c1 = c0+2
        for r in (s0, s1, c0, c1): E(f"v_add_f32 v{r}, v{r}, v{r+4}")
        rb2(s0, s1, s0, s1, t); rb2(c0, c1, c0, c1, t)
        E(f"v_add_f32 v{c0}, 1.0, v{c0}")
        E(f"v_add_f32 v{c1}, 1.0, v{c1}")
        rb2(c0, c1, c0, c1, t)
        E(f"v_mul_f32 v{n0}, v{n0}, v{c0}")
        E(f"v_mul_f32 v{n1}, v{n1}, v{c1}")
        rb2(n0, n1, n0, n1, t)
        E(f"v_add_f32 v{n0}, v{n0}, v{s0}")
        E(f"v_add_f32 v{n1}, v{n1}, v{s1}")
        E(f"v_cvt_pk_bf16_f32 v{n0}, v{n0}, v{n1}")
        E(f"ds_write_b32 v6, v{n0} offset:{L_ACT + u*256}")
    E.label("L_gemv")
    E(f"ds_read_b32 v{T0}, v5 offset:4")
    E("s_waitcnt lgkmcnt(0)")
    E(f"v_readfirstlane_b32 {sT1}, v{T0}")
    E(f"s_cmp_lg_u32 {sT1}, 7")
    E(f"s_cbranch_scc1 L_gemv")
    stamp("a2")
    if stamps: E("s_waitcnt lgkmcnt(0)")
    def g_reads(st):
        b = S[4] + (st % 3)*20
        E(f"ds_read_b128 v[{b}:{b+3}], v{vAR} offset:{L_ACT + st*64}")
        for nt in range(4):
            for q in range(2):
                r = b + 4 + nt*4 + q*2
                E(f"ds_read_b64_tr_b16 v[{r}:{r+1}], v{TRA+nt} offset:{L_WM + st*4096 + q*512}")
    g_reads(0); g_reads(1)
    E(f"s_lshl_b32 {sT4}, {sA}, 9")
    E(f"s_add_u32 {sT4}, {sT4}, {WS_EP}")
    E(f"v_lshlrev_b32 v4, 3, {vLANE}")
    for st in range(8):
        E(f"s_waitcnt lgkmcnt({9 if st < 7 else 0})")
        if st + 2 < 8: g_reads(st+2)
        b = S[4] + (st % 3)*20
        for nt in range(4):
            d = AD + 4*nt
            c = "0" if st == 0 else f"v[{d}:{d+3}]"
            E(f"v_mfma_f32_16x16x32_bf16 v[{d}:{d+3}], v[{b}:{b+3}], v[{b+4+4*nt}:{b+7+4*nt}], {c}")
    E(f"v_mov_b32 v9, {sTAG}")
    for nt in range(1, 4):
        E(f"v_mov_b32_dpp v{AD}, v{AD+4*nt} quad_perm:[0,1,2,3] row_mask:{1<<nt:#x} bank_mask:0xf")
    E(f"v_mov_b32 v8, v{AD}")
    E(f"s_cmp_lt_u32 {sA}, 32")
    E(f"s_cselect_b32 {sT2}, 1, {sT2}")
    E(f"s_cmp_eq_u32 {sT2}, 0")
    E("s_cbranch_scc1 L_owner")
    E(f"buffer_store_dwordx2 v[8:9], v4, {rWS}, {sT4} offen sc1")
    stamp(1)
    E(f"s_cmp_ge_u32 {sA}, 96")
    E(f"s_cbranch_scc1 {(f'L_x{pa+la}' if ext else f'L_j{pa+la}') if nb else f'L_cu{k1}'}")
    E(("s_branch L_x4" if ext == 2 else "s_branch L_stream") if nb else "s_branch L_cu0")
    E.label("L_owner")
    E(f"s_cmp_ge_u32 {sA}, 96")
    E(f"s_cbranch_scc1 L_own2")

    def redpoll(): E(f"buffer_load_dwordx2 v[10:11], v4, {rWS}, {sT4} offen offset:512 sc1")
    if nb:
        krange(4, pa+la, da)
        E.label("L_own2")
        krange(pa+la, pb, da)
        redpoll()
        krange(pb, pb+lb, da+1)
        E(f"s_waitcnt vmcnt({lb})")
        E(f"v_cmp_ne_u32 vcc, {sTAG}, v11")
        E("s_cbranch_vccz L_gotred")
    else:
        vm[:] = ["x"]*64
        for T in range(k1): load_tile("k", T, T, dburst, f"K{T}", setp=False)
        E.label("L_own2")
        for T in range(k1, k2): load_tile("k", T, T, dburst, f"K{T}", setp=False)
    E.label("L_pollred")
    E(f"buffer_load_dwordx2 v[10:11], v4, {rWS}, {sT4} offen offset:512 sc1")
    E("s_waitcnt vmcnt(0)")
    E(f"v_cmp_ne_u32 vcc, {sTAG}, v11")
    E("s_cbranch_vccz L_gotred")
    spin_check("L_pollred")
    E.label("L_gotred")
    E(f"v_add_f32 v8, v8, v10")
    E(f"s_lshl_b32 {sT0}, {sA}, 7")
    E(f"s_add_u32 {sT0}, {sT0}, {WS_MODG}")
    E(f"v_mov_b32_dpp v10, v8 quad_perm:[1,1,3,3] {DPPM}")
    E(f"v_cvt_pk_bf16_f32 v8, v8, v10")
    E(f"s_mov_b32 exec_lo, 0x55555555")
    E(f"s_mov_b32 exec_hi, 0x55555555")
    E(f"buffer_store_dwordx2 v[8:9], v6, {rWS}, {sT0} offen sc1")
    E(f"s_mov_b64 exec, -1")
    stamp(3)
    E((f"s_branch L_x{pb+lb}" if ext else f"s_branch L_j{pb+lb}") if nb else f"s_branch L_cu{k2}")
    if nb and ext:
        for n0 in range(4 if ext == 2 else pa+la, 40, 4):
            E.label(f"L_x{n0}")
            krange(n0, n0+4, dx)
        E.label("L_x40")
        if prio == 3: E("s_setprio 2")
        E("s_branch L_v1")
    vm[:] = ["x"]*depth0
    for T in range(0 if nb else 4):
        E.label(f"L_cu{T}")
        if p0 != 3: E(f"s_setprio {p0}")
        if wmx and T >= wmx:
            E(f"s_cmp_lt_u32 {sA}, 96")
            E(f"s_cbranch_scc1 L_sk{T}")
        load_tile("k", T, T, depth0, f"K{T}", setp=False)
    E.label("L_cu4")
    assert tpwo != 2
    if not nb:
        load_tile("v", 0, 4, depth0, "V0", setp=False)
        setlight()
        E("s_branch L_v1")

    vm[:] = ["K0"]*NPRE
    E.label("L_stream")
    setlight(); light[0] = True
    load_tile("k", 0, 0, depth, "K0", lo=NPRE)
    E(f"s_cmp_lg_u32 {sW}, {99 if 'l' in dbg else fwave}")
    E("s_cbranch_scc1 L_sk1")
    for r in range(20, 24): E(f"v_mov_b32 v{r}, -1")
    E(f"s_cmp_ge_u32 {sJ}, 16")
    E("s_cbranch_scc1 L_noclr2")
    if rep:
        E(f"v_lshrrev_b32 v18, 4, {vLANE}")
        E(f"v_lshlrev_b32 v18, 15, v18")
        E(f"v_and_b32 v19, 15, {vLANE}")
        E(f"v_lshl_add_u32 v18, v19, 4, v18")
        E(f"buffer_store_dwordx4 v[20:23], v18, {rWS}, {sAOP} offen sc1")
        E(f"s_add_u32 {sT0}, {sAOP}, {4*32768}")
        E(f"buffer_store_dwordx4 v[20:23], v18, {rWS}, {sT0} offen sc1")
    else:
        E("s_mov_b64 exec, 0xffff")
        if "1" not in dbg: E(f"buffer_store_dwordx4 v[20:23], {vV}, {rWS}, {sAOP} offen sc1")
        E("s_mov_b64 exec, -1")
    E.label("L_noclr2")
    if mlite:
        E(f"s_sub_u32 {sT0}, {sJ}, 16")
        E(f"s_cmp_ge_u32 {sT0}, 7")
        E("s_cbranch_scc1 L_noclr0")
        E(f"s_add_u32 {sT0}, {sPUB}, {(jml-16)*2048}")
    else:
        E(f"s_cmp_eq_u32 {sML}, 0")
        E("s_cbranch_scc1 L_noclr0")
        E(f"s_mov_b32 {sT0}, {sPUB}")
    for i in range(0 if "2" in dbg else 2):
        E(f"buffer_store_dwordx4 v[20:23], {vV}, {rWS}, {sT0} offen offset:{1024*i} sc1")
    E.label("L_noclr0")
    if wb:
        sv = list(vm)
        load_tile("k", 1, 1, depth+wb, "K1")
        mktag()
        flag(8)
        load_tile("k", 2, 2, depth+wb, "K2")
        E("s_branch L_sk3")
        vm[:] = sv
    load_tile("k", 1, 1, depth, "K1", hi=4)
    mktag()
    if fpos < 0 and "3" not in dbg: flag(4)
    if fixw >= 0:
        E(f"s_cmp_lg_u32 s2, {fixw}")
        E("s_cbranch_scc1 L_nofw")
        E(f"v_mov_b32 v{T0}, s48")
        E(f"v_mov_b32 v{T2}, 0x800")
        E(f"buffer_store_dword v{T0}, v{T2}, {rWS}, 0 offen sc1")
        E.label("L_nofw")
    E("s_branch L_k1b")
    E.label("L_sk1")
    del vm[-4:]
    load_tile("k", 1, 1, depth, "K1", hi=4)
    mktag()
    E.label("L_k1b")
    E.raw("L_j12:")
    load_tile("k", 1, 1, depth, "K1", lo=4)
    if w1e:
        E(f"s_cmp_ge_u32 {sA}, 224")
        E(f"s_cselect_b32 {sT0}, {sML}, 0")
        E(f"s_cmp_eq_u32 {sT0}, 0")
        E("s_cbranch_scc1 L_sk2")
        w1_dma()
    E.label("L_sk2")
    E.raw("L_j16:")
    stamp("k2")
    load_tile("k", 2, 2, depth, "K2", hi=4)
    E.raw("L_j20:")
    load_tile("k", 2, 2, depth, "K2", lo=4)
    E.label("L_sk3")
    E.raw("L_j24:")
    load_tile("k", 3, 3, depth, "K3", hi=4)
    E.raw("L_j28:")
    load_tile("k", 3, 3, depth, "K3", lo=4)
    E.label("L_sk4")
    E.raw("L_j32:")
    stamp("k4")
    if nb and prio == 3: E("s_setprio 2")
    tail_dma(2)
    QP = 8
    def qloads():
        if "p" in dbg: return
        u = len(E.L)
        if not mlite:
            E(f"s_cmp_eq_u32 {sML}, 0")
            E(f"s_cbranch_scc1 L_nwf{u}")
            E(f"buffer_load_dwordx2 v[20:21], v17, {rWS}, 0 offen sc1")
            E(f"buffer_load_dwordx2 v[22:23], v17, {rWS}, 0 offen offset:1024 sc1")
            E.label(f"L_nwf{u}")
        E(f"buffer_load_dwordx4 v[{QP}:{QP+3}], v18, {rWS}, {sT2} offen sc1")
        E(f"buffer_load_dwordx4 v[{QP+4}:{QP+7}], v18, {rWS}, {sT2} offen offset:16 sc1")
        E(f"buffer_load_dwordx2 v[{T0}:{T1}], v19, {rWS}, 0 offen sc1")
    seq = [("v", 0, 4, i) for i in range(8)] + [("v", 1, 5, i) for i in range(8)] + [("v", 2, 6, i) for i in range(8)] + [("v", 3, 0, i) for i in range(8)]
    def issue(x): load_tile(x[0], x[1], x[2], (depthv if (depthv and x[1]*8+x[3] >= dvat) else depth), f"V{x[1]}", lo=x[3], hi=x[3]+1)
    for n_, x in enumerate(seq[:8]):
        if fpos == n_:
            E(f"s_cmp_lg_u32 {sW}, {fwave}")
            E("s_cbranch_scc1 L_nofl")
            flag(depth)
            E.label("L_nofl")
        if n_ == 4:
            E.raw("L_j36:")
            if nb and prio == 3: E("s_setprio 2")
        issue(x)
    E.label("L_v1")
    if wopf and wopos == 2: wo_pref()
    for x in seq[8:qat-1]: issue(x)
    E(f"v_mov_b32 v4, 1")
    E("s_mov_b64 exec, 1")
    E(f"ds_add_rtn_u32 v4, v5, v4 offset:12")
    E("s_mov_b64 exec, -1")
    issue(seq[qat-1])
    E(f"s_cmp_eq_u32 {sML}, 0")
    E("s_cbranch_scc1 L_nomdma")
    E(f"s_lshl_b32 {sT0}, {sW}, 10")
    E(f"s_add_u32 m0, {sT0}, {L_MOD}")
    E(f"s_add_u32 {sT0}, {sT0}, {WS_MODG + 4096}")
    E(f"buffer_load_dwordx4 {vV}, {rWS}, {sT0} offen sc1 lds")
    E.label("L_nomdma")
    E(f"v_lshlrev_b32 v18, 1, {vK}")
    E(f"s_lshl_b32 {sT2}, {sG}, 11")
    E(f"s_add_u32 {sT2}, {sT2}, {WS_QG}")
    E(f"v_and_b32 v19, 31, {vLANE}")
    E(f"s_lshl_b32 {sT0}, {sG}, 12")
    E(f"s_add_u32 {sT0}, {sT0}, {WS_CLR}")
    E(f"v_lshl_add_u32 v19, v19, 7, {sT0}")
    E(f"v_mov_b32 v21, {sTAG}")
    E(f"v_mov_b32 v23, {sTAG}")
    E(f"v_lshrrev_b32 v17, 3, {vLANE}")
    E(f"v_lshlrev_b32 v17, 12, v17")
    E(f"v_and_b32 v16, 7, {vLANE}")
    E(f"v_lshl_add_u32 v17, v16, 7, v17")
    E(f"v_add_u32 v17, {WS_CLR}, v17")
    E("s_waitcnt lgkmcnt(0)")
    E(f"v_readfirstlane_b32 {sSK}, v4")
    E(f"s_cmp_lg_u32 {sSK}, 0")
    E("s_cbranch_scc1 L_noqp")
    if dyn == 1:
        E(f"s_load_dwordx2 s[32:33], s[0:1], 88")
        E(f"s_mov_b32 s34, 256")
        E(f"s_lshl_b32 {sT0}, {sG}, 5")
        E(f"s_xor_b32 {sT1}, {sML}, 1")
        E(f"v_mov_b32 v24, {sT1}")
        E(f"v_mov_b32 v25, 0")
        E("s_waitcnt lgkmcnt(0)")
        E("s_mov_b64 exec, 1")
        E(f"buffer_atomic_add v24, v25, {rC}, {sT0} offen sc0 sc1")
        E("s_mov_b64 exec, -1")
    qloads()
    E.label("L_noqp")
    if dyn == 2:
        E(f"s_cmp_lg_u32 {sSK}, {dynt}")
        E("s_cbranch_scc1 L_notk")
        E(f"s_load_dwordx2 s[32:33], s[0:1], 88")
        E(f"s_mov_b32 s34, 256")
        E(f"s_lshl_b32 {sT0}, {sG}, 5")
        E(f"s_xor_b32 {sT1}, {sML}, 1")
        E(f"v_mov_b32 v24, {sT1}")
        E(f"v_mov_b32 v25, 0")
        E("s_waitcnt lgkmcnt(0)")
        E("s_mov_b64 exec, 1")
        E(f"buffer_atomic_add v24, v25, {rC}, {sT0} offen sc0 sc1")
        E("s_mov_b64 exec, -1")
        E.label("L_notk")
    for x in seq[qat:18]: issue(x)
    nxt = seq[18:]
    stamp("q0")
    if dyn == 2:
        E(f"s_cmp_lg_u32 {sSK}, {dynt}")
        E("s_cbranch_scc1 L_notk2")
        E(f"s_lshl_b32 {sT0}, {sML}, 6")
        E(f"s_add_u32 {sT0}, {sT0}, 1")
        E(f"s_waitcnt vmcnt({18-qat})")
        E(f"v_add_u32 v24, {sT0}, v24")
        E("s_mov_b64 exec, 1")
        E(f"ds_write_b32 v5, v24 offset:20")
        E("s_mov_b64 exec, -1")
        E.label("L_notk2")
    E(f"s_cmp_lg_u32 {sSK}, 0")
    E("s_cbranch_scc1 L_waitq")
    E(f"s_waitcnt vmcnt({18-qat})")
    QT = [QP+1, QP+3, QP+5, QP+7, T1, 21, 23]
    E.label("L_checkq")
    tagcheck(QT, 6)
    E("s_branch L_gotq" if "q" in dbg else "s_cbranch_vccz L_gotq")
    if slpq: E(f"s_sleep {slpq}")
    qloads()
    E("s_waitcnt vmcnt(0)")
    spin_check("L_checkq")
    E.label("L_gotq")
    E(f"v_cmp_ne_u32 vcc, {sXCC}, v{T0}")
    for i in range(4): E(f"v_mov_b32 v{Q0+i}, v{QP+2*i}")
    E(f"ds_write_b128 {vV}, v[{Q0}:{Q0+3}] offset:{L_Q}")
    E(f"s_cmp_eq_u64 vcc, 0")
    E(f"s_cselect_b32 {sPL}, {2 if fast else 1}, 1")
    if dyn == 1:
        E(f"v_readfirstlane_b32 {sJW}, v24")
        E(f"s_lshl_b32 {sT0}, {sML}, 6")
        E(f"s_or_b32 {sJW}, {sJW}, {sT0}")
        E(f"s_lshl_b32 {sT0}, {sJW}, 8")
        E(f"s_or_b32 {sT0}, {sT0}, {sPL}")
        E(f"v_mov_b32 v4, {sT0}")
    else: E(f"v_mov_b32 v4, {sPL}")
    E("s_waitcnt lgkmcnt(0)")
    E(f"ds_write_b32 v5, v4 offset:16")
    def gstore(text):
        if "s" in dbg: return
        if "f" in dbg: E(text); return
        u = len(E.L)
        E(f"s_cmp_eq_u32 {sPL}, 2")
        E(f"s_cbranch_scc1 L_gs{u}")
        E(text + " sc1")
        E(f"s_branch L_gt{u}")
        E.raw(f"L_gs{u}:")
        E(text)
        E.raw(f"L_gt{u}:")
    part_rows(6, 7)
    for r in (T0, T1, T2, T3): E(f"v_mov_b32 v{r}, -1")
    gstore(f"buffer_store_dwordx4 v[{T0}:{T3}], v6, {rWS}, {sT0} offen")
    E("s_branch L_haveq")
    E.label("L_waitq")
    E(f"ds_read_b32 v4, v5 offset:16")
    E("s_waitcnt lgkmcnt(0)")
    E(f"v_readfirstlane_b32 {sPL}, v4")
    E(f"s_cmp_lg_u32 {sPL}, 0")
    E("s_cbranch_scc1 L_readq")
    E("s_sleep 1")
    spin_check("L_waitq")
    E.label("L_readq")
    if dyn == 1:
        E(f"s_lshr_b32 {sJW}, {sPL}, 8")
        E(f"s_and_b32 {sPL}, {sPL}, 0xff")
    E(f"ds_read_b128 v[{Q0}:{Q0+3}], {vV} offset:{L_Q}")
    vmwait("K3")
    E("s_waitcnt lgkmcnt(0)")
    E.label("L_haveq")
    def role_setup():
        E(f"s_cmp_lt_u32 {sJW}, 16")
        E(f"s_cselect_b32 s86, {512*4096*2}, 0")
        E(f"s_lshl_b32 {sAOP}, {sG}, 12")
        E(f"s_lshl_b32 {sT0}, {sJW}, 8")
        E(f"s_add_u32 {sAOP}, {sAOP}, {sT0}")
        E(f"s_add_u32 {sAOP}, {sAOP}, {WS_AO}")
    if dyn == 1: role_setup()
    setlight()
    stamp(4)
    nq = len(vm)
    def sc(T, i): return 20 + i if T == 0 else S[1] + 4*i + (T-1)
    SCR = [sc(T, i) for T in range(4) for i in range(8)]
    def s_tile(T):
        for i in range(8):
            r = S[T] + 4*i
            E(f"v_mfma_f32_16x16x32_bf16 v[{r}:{r+3}], v[{r}:{r+3}], v[{Q0}:{Q0+3}], 0")
        for c in range(4):
            for i in range(8):
                r = S[T] + 4*i; d = sc(T, i)
                if c == 0: E(f"v_mov_b32_dpp v{d}, v{r} quad_perm:[0,0,0,0] {DPPM}")
                else: E(f"v_add_f32_dpp v{d}, v{r+c}, v{d} quad_perm:[{c},{c},{c},{c}] {DPPM}")
    def s_round(T):
        rs = SCR[8*T:8*T+8]
        for i in range(0, 8, 2): rb2(rs[i], rs[i+1], rs[i], rs[i+1], T0 + i//2)
        for r in rs: E(f"v_mul_f32 v{r}, {sT1}, v{r}")
        for i in range(0, 8, 2): rb2(rs[i], rs[i+1], rs[i], rs[i+1], T0 + i//2)
    E(f"s_mov_b32 {sT1}, {f32bits(128.0**-0.5):#x}")
    def more(n, leave=0):
        for _ in range(n*rate):
            if len(nxt) <= leave: return
            issue(nxt.pop(0))
    for T in range(4):
        s_tile(T); more(1)
        s_round(T); more(1 if T < 2 else 0)
    stamp("c0")
    MX, LS = 6, 7
    E(f"v_max3_f32 v{MX}, v{SCR[0]}, v{SCR[1]}, v{SCR[2]}")
    for i in range(3, 31, 2): E(f"v_max3_f32 v{MX}, v{MX}, v{SCR[i]}, v{SCR[i+1]}")
    E(f"v_max_f32 v{MX}, v{MX}, v{SCR[31]}")
    red_rows("v_max_f32", [MX], T0)
    E(f"v_mul_f32 v{MX}, {sC}, v{MX}")
    more(1)
    for r in SCR: E(f"v_fma_f32 v{r}, v{r}, {sC}, -v{MX}")
    more(1)
    for r in SCR: E(f"v_exp_f32 v{r}, v{r}")
    more(1)
    E(f"v_add_f32 v{LS}, v{SCR[0]}, v{SCR[1]}")
    E(f"v_add_f32 v{T0}, v{SCR[2]}, v{SCR[3]}")
    for i in range(4, 32, 2):
        E(f"v_add_f32 v{LS}, v{LS}, v{SCR[i]}")
        E(f"v_add_f32 v{T0}, v{T0}, v{SCR[i+1]}")
    E(f"v_add_f32 v{LS}, v{LS}, v{T0}")
    red_rows("v_add_f32", [LS], T0)
    E(f"v_and_b32 v{T0}, 12, {vLANE}")
    E(f"v_lshlrev_b32 v{T0}, 1, v{T0}")
    E(f"s_lshl_b32 {sT0}, {sW}, 5")
    E(f"v_add_u32 v{T0}, {sT0}, v{T0}")
    E(f"ds_write_b64 v{T0}, v[{MX}:{LS}] offset:{L_STATS}")
    E(f"v_mov_b32 v{T2}, 1")
    E(f"s_waitcnt vmcnt({len(vm) - nq}) lgkmcnt(0)")
    E("s_mov_b64 exec, 1")
    E(f"ds_add_rtn_u32 v{T2}, v5, v{T2}")
    E("s_mov_b64 exec, -1")
    PR = [8, 12, 20, 24]
    for T in range(4):
        for i in range(4): E(f"v_cvt_pk_bf16_f32 v{PR[T]+i}, v{SCR[8*T+2*i]}, v{SCR[8*T+2*i+1]}")
    more(1)
    E("s_waitcnt lgkmcnt(0)")
    E(f"v_readfirstlane_b32 {sLAST}, v{T2}")
    X = S[1]
    E(f"s_cmp_lg_u32 {sLAST}, 7")
    E("s_cbranch_scc1 L_nostat")
    E(f"v_and_b32 v{T0}, 31, {vLANE}")
    E(f"v_lshlrev_b32 v{T1}, 3, v{T0}")
    E(f"ds_read_b64 v[6:7], v{T1} offset:{L_STATS}")
    E(f"v_and_b32 v{T1}, 3, v{T0}")
    E(f"v_and_b32 v{T0}, 28, v{T0}")
    E(f"v_lshl_add_u32 v{T0}, v{T1}, 5, v{T0}")
    E(f"v_mov_b32 v{T2}, {sJ}")
    E(f"v_lshlrev_b32 v{T1}, 9, v{T1}")
    E(f"v_lshl_add_u32 v{T1}, v{T2}, 4, v{T1}")
    E("s_waitcnt lgkmcnt(0)")
    E(f"v_mov_b32 v16, v6")
    red_ror("v_max_f32", [16], (4, 8))
    E(f"v_mov_b32 v17, v16")
    E(f"v_permlane16_swap_b32 v16, v17")
    E(f"v_max_f32 v16, v16, v17")
    E(f"v_sub_f32 v6, v6, v16")
    E(f"v_exp_f32 v6, v6")
    E(f"v_mul_f32 v18, v6, v7")
    E(f"ds_write_b32 v{T0}, v6 offset:{L_FAC}")
    red_ror("v_add_f32", [18], (4, 8))
    E(f"v_mov_b32 v17, v18")
    E(f"v_permlane16_swap_b32 v18, v17")
    E(f"v_add_f32 v18, v17, v18")
    E(f"v_mov_b32 v17, {sTAG}")
    E(f"v_mov_b32 v19, {sTAG}")
    E(f"s_lshl_b32 {sT0}, {sG}, 11")
    E(f"s_add_u32 {sT0}, {sT0}, {WS_STAT}")
    E("s_mov_b64 exec, 15")
    gstore(f"buffer_store_dwordx4 v[16:19], v{T1}, {rWS}, {sT0} offen")
    E("s_mov_b64 exec, -1")
    E.label("L_nostat")
    stamp("c1")
    vGQ, vN, vCOL, vGAA, vCH, vU16, vOW, vT8, vL4, vGATH, vRR, vRW, vFR, vSTA, vWBW, vWBR = [X+i for i in range(16)]
    TRB = X+16; GA = X+20; GB = X+24; SP = X+24; XT = X+30; vWER = X+31
    def wcalc():
        E(f"v_mov_b32 v{T0}, v{SP}")
        red_ror("v_max_f32", [T0], (1, 2, 4, 8))
        E(f"v_mov_b32 v{T1}, v{T0}")
        E(f"v_permlane16_swap_b32 v{T0}, v{T1}")
        E(f"v_max_f32 v{T0}, v{T0}, v{T1}")
        E(f"v_sub_f32 v{SP}, v{SP}, v{T0}")
        E(f"v_exp_f32 v{SP}, v{SP}")
        E(f"v_mul_f32 v{T0}, v{SP}, v{SP+2}")
        red_ror("v_add_f32", [T0], (1, 2, 4, 8))
        E(f"v_mov_b32 v{T1}, v{T0}")
        E(f"v_permlane16_swap_b32 v{T0}, v{T1}")
        E(f"v_add_f32 v{T0}, v{T0}, v{T1}")
        E(f"v_rcp_f32 v{T0}, v{T0}")
        E(f"v_mul_f32 v{T0}, v{T0}, v{SP}")
    tail_dma(3)
    if wopf and wopos == 3: wo_pref()
    ACCO = S[2]; TP = S[3]
    first = [True]
    def pv_perm(slot, mm):
        for dw in range(4):
            a = S[slot] + (2*mm)*4 + dw; b = S[slot] + (2*mm+1)*4 + dw
            E(f"v_perm_b32 v{TP + (2*dw)*4 + mm}, v{b}, v{a}, {sSELLO}")
            E(f"v_perm_b32 v{TP + (2*dw+1)*4 + mm}, v{b}, v{a}, {sSELHI}")
    def pv_mfma(T):
        for e in range(8):
            c = "0" if first[0] else f"v[{ACCO+4*e}:{ACCO+4*e+3}]"
            E(f"v_mfma_f32_16x16x32_bf16 v[{ACCO+4*e}:{ACCO+4*e+3}], v[{PR[T]}:{PR[T]+3}], v[{TP+4*e}:{TP+4*e+3}], {c}")
        first[0] = False
    def pv(slot, T):
        for mm in range(4): pv_perm(slot, mm)
        pv_mfma(T)
    more(1)
    vmwait("V0"); pv(4, 0)
    more(1)
    vmwait("V1"); pv(5, 1)
    more(16, leave=2)
    if dyn == 2:
        E.label("L_tkw")
        E(f"ds_read_b32 v{T0}, v5 offset:20")
        E("s_waitcnt lgkmcnt(0)")
        E(f"v_readfirstlane_b32 {sJW}, v{T0}")
        E(f"s_cmp_eq_u32 {sJW}, 0")
        E("s_cbranch_scc1 L_tkw")
        E(f"s_sub_u32 {sJW}, {sJW}, 1")
        role_setup()
    if ewt:
        E(f"s_cmp_lt_u32 {sJW}, 16")
        E(f"s_cselect_b32 {sLAST}, {sLAST}, 0")
        E(f"s_cmp_lg_u32 {sLAST}, 7")
        E("s_cbranch_scc1 L_noes")
        E(f"s_lshl_b32 {sT0}, {sG}, 11")
        E(f"s_lshr_b32 {sT1}, {sJW}, 3")
        E(f"s_lshl_b32 {sT1}, {sT1}, 10")
        E(f"s_add_u32 {sT0}, {sT0}, {sT1}")
        E(f"s_add_u32 {sT0}, {sT0}, {WS_STAT}")
        E(f"buffer_load_dwordx4 v[{SP}:{SP+3}], {vV}, {rWS}, {sT0} offen sc1")
        E.label("L_noes")
        ewt_after = len(nxt)
    more(16)
    stamp("c3")
    if prio >= 2: E("s_setprio 0")
    tail_dma(4)
    if prio >= 2: E("s_setprio 3")
    vmwait("V2"); pv(6, 2)
    nyoung = len(vm) - 1 - [i for i, t in enumerate(vm) if t == "V3"][-1]
    WB = S[4]; SCF = S[5]; WT8 = S[5]; PK = S[5]+16; GBF = S[6]
    W1 = WB; W2 = S[3]+16
    E(f"v_lshrrev_b32 v{vGQ}, 4, {vLANE}")
    E(f"v_and_b32 v{vN}, 15, {vLANE}")
    E(f"s_lshl_b32 {sT0}, {sW}, 11")
    E(f"v_lshlrev_b32 v{vRR}, 5, {vLANE}")
    E(f"v_add_u32 v{vOW}, {sT0}, v{vRR}")
    E(f"v_lshlrev_b32 v{vT8}, 3, v0")
    E(f"v_lshlrev_b32 v{vL4}, 2, {vLANE}")
    E(f"s_lshl_b32 {sT1}, {sW}, 5")
    E(f"v_mov_b32 v{vFR}, {sT1}")
    E(f"v_bfe_u32 v{T1}, {vLANE}, 2, 2")
    E(f"v_lshl_add_u32 v{T2}, v{vGQ}, 3, v{T1}")
    E(f"v_lshlrev_b32 v{T2}, 7, v{T2}")
    E(f"v_and_b32 v{T3}, 3, {vLANE}")
    E(f"v_lshl_add_u32 v{T2}, v{T3}, 3, v{T2}")
    E(f"v_bfe_u32 v{T1}, {vLANE}, 3, 2")
    E(f"v_lshl_add_u32 v{T2}, v{T1}, 5, v{T2}")
    E(f"s_lshl_b32 {sT0}, {sW}, 12")
    E(f"s_add_u32 {sT0}, {sT0}, {L_WO}")
    E(f"v_add_u32 v{TRB}, {sT0}, v{T2}")
    for nt in range(1, 4): E(f"v_xor_b32 v{TRB+nt}, {nt*32}, v{TRB}")
    E(f"s_lshl_b32 {sT0}, {sG}, 2")
    E(f"s_add_u32 {sPP}, {sT0}, {sW}")
    E(f"s_lshl_b32 {sPP}, {sPP}, 13")
    E(f"s_lshr_b32 {sT1}, {sJ}, 4")
    E(f"s_lshl_b32 {sT1}, {sT1}, 12")
    E(f"s_add_u32 {sPP}, {sPP}, {sT1}")
    E(f"s_and_b32 {sT1}, {sJ}, 15")
    E(f"s_lshl_b32 {sT1}, {sT1}, 4")
    E(f"s_add_u32 {sPP}, {sPP}, {sT1}")
    E(f"s_add_u32 {sPP}, {sPP}, {WS_PART}")
    E(f"s_lshr_b32 {sT1}, {sJW}, 3")
    E(f"s_lshl_b32 {sT1}, {sT1}, 1")
    E(f"s_add_u32 {sGA0}, {sT0}, {sT1}")
    E(f"s_lshr_b32 {sT1}, {sW}, 2")
    E(f"s_add_u32 {sGA0}, {sGA0}, {sT1}")
    E(f"s_lshl_b32 {sT2}, {sGA0}, 9")
    E(f"s_add_u32 {sT2}, {sT2}, {WS_STAT}")
    E(f"s_lshl_b32 {sGA0}, {sGA0}, 13")
    E(f"s_and_b32 {sT1}, {sW}, 3")
    E(f"s_lshl_b32 {sT1}, {sT1}, 10")
    E(f"s_add_u32 {sGA0}, {sGA0}, {sT1}")
    E(f"s_add_u32 {sGA0}, {sGA0}, {WS_PART}")
    E(f"s_add_u32 {sGA1}, {sGA0}, 4096")
    E(f"v_and_b32 v{vSTA}, 31, {vLANE}")
    E(f"s_lshl_b32 {sT1}, {sW}, 7")
    E(f"v_lshl_add_u32 v{vWBW}, v{vSTA}, 2, {sT1}")
    E(f"v_lshl_add_u32 v{vWBR}, v{vGQ}, 4, {sT1}")
    E(f"v_lshlrev_b32 v{vSTA}, 4, v{vSTA}")
    E(f"s_lshr_b32 {sT1}, {sW}, 2")
    E(f"s_lshl_b32 {sT1}, {sT1}, 7")
    E(f"v_lshl_add_u32 v{vWER}, v{vGQ}, 4, {sT1}")
    E(f"v_lshrrev_b32 v{vGATH}, 2, {vLANE}")
    E(f"v_lshlrev_b32 v{vGATH}, 8, v{vGATH}")
    E(f"v_and_b32 v{T3}, 3, {vLANE}")
    E(f"v_lshl_add_u32 v{vGATH}, v{T3}, 2, v{vGATH}")
    E(f"s_lshl_b32 {sT1}, {sW}, 2")
    E(f"v_add_u32 v{vRW}, {sT1}, v{vRR}")
    E(f"s_waitcnt vmcnt({nyoung+4})")
    pv_perm(0, 0); pv_perm(0, 1)
    E(f"s_waitcnt vmcnt({nyoung+2})")
    pv_perm(0, 2)
    if ewt:
        E(f"s_cmp_lg_u32 {sLAST}, 7")
        E("s_cbranch_scc1 L_noew")
        if ewt_after < 2: E(f"s_waitcnt vmcnt({nyoung + ewt_after})")
        tagcheck([SP+1, SP+3], 6)
        E("s_cbranch_vccnz L_noew")
        wcalc()
        E(f"ds_write_b32 v{vL4}, v{T0} offset:{L_WE}")
        E(f"ds_write_b32 v5, v5 offset:8")
        E.label("L_noew")
    E(f"s_waitcnt vmcnt({nyoung})")
    stamp(5)
    pv_perm(0, 3)
    pv_mfma(3)
    for e in range(8): E(f"v_mov_b32 v{PK+e}, v{ACCO+4*e}")
    E(f"ds_write_b128 v{vOW}, v[{PK}:{PK+3}] offset:{L_ORED}")
    E(f"ds_write_b128 v{vOW}, v[{PK+4}:{PK+7}] offset:{L_ORED+16}")
    tail_dma(6)
    E("s_waitcnt lgkmcnt(0)")
    E("s_barrier")
    if hint:
        E(f"s_cmp_lg_u32 {sW}, 4")
        E("s_cbranch_scc1 L_nohint")
        E(f"s_lshl_b32 {sT0}, s2, 2")
        E(f"v_mov_b32 v{T0}, {WS_HB}")
        E(f"v_mov_b32 v{T1}, {sTAG}")
        E("s_mov_b64 exec, 1")
        E(f"buffer_store_dword v{T1}, v{T0}, {rWS}, {sT0} offen sc1")
        E("s_mov_b64 exec, -1")
        E.label("L_nohint")
    E(f"s_cmp_ge_u32 {sW}, 4")
    E("s_cbranch_scc1 L_nopart")
    R0 = S[2]; FC = S[2]+16
    E(f"ds_read_b128 v[{FC}:{FC+3}], v{vFR} offset:{L_FAC}")
    E(f"ds_read_b128 v[{FC+4}:{FC+7}], v{vFR} offset:{L_FAC+16}")
    for w in range(8): E(f"ds_read_b64 v[{R0+2*w}:{R0+2*w+1}], v{vT8} offset:{L_ORED + w*2048}")
    for w in range(8):
        if w % 2 == 0: E(f"s_waitcnt lgkmcnt({6-w})")
        a = PK + 2*(w % 2)
        op = "v_mul_f32" if w < 2 else "v_fmac_f32"
        E(f"{op} v{a}, v{R0+2*w}, v{FC+w}")
        E(f"{op} v{a+1}, v{R0+2*w+1}, v{FC+w}")
    E(f"v_pk_add_f32 v[{PK}:{PK+1}], v[{PK}:{PK+1}], v[{PK+2}:{PK+3}]")
    E(f"v_cvt_pk_bf16_f32 v{PK}, v{PK}, v{PK+1}")
    E(f"v_min_u32 v{PK}, -2, v{PK}")
    gstore(f"buffer_store_dword v{PK}, v{vGATH}, {rWS}, {sPP} offen")
    E.label("L_nopart")
    stamp(6)
    if "e" in dbg: E("s_branch L_fin")
    E(f"s_cmp_lg_u32 {sML}, 0")
    E("s_cbranch_scc1 L_stageb")
    if w1pf == 2:
        w1_pref("L_nopf2")
        E.label("L_nopf2")
    E(f"s_cmp_ge_u32 {sJW}, 16")
    E("s_cbranch_scc1 L_fin")
    tail_dma(5)
    if buddy:
        E(f"s_sub_u32 {sT0}, {sT0}, {3*8*1024}")
        E(f"s_xor_b32 {sT0}, {sT0}, {buddy}")
        E(f"s_mov_b32 m0, {L_WM}")
        for i in range(4):
            E(f"buffer_load_dwordx4 v{T2}, {rWO}, {sT0} offen lds")
            if i < 3: E(f"s_add_u32 {sT0}, {sT0}, {8*1024}")
    GA_ = S[3]
    def a_load(i): E(f"buffer_load_dwordx4 v[{GA_+4*i}:{GA_+4*i+3}], {vV}, {rWS}, {sGA1 if i else sGA0} offen {'nt' if 'n' in dbg else 'sc1'}")
    def a_loads(): a_load(0); a_load(1)
    if ewt:
        E(f"ds_read_b32 v{T0}, v5 offset:8")
        E(f"ds_read_b128 v[{WT8}:{WT8+3}], v{vWER} offset:{L_WE}")
        E(f"ds_read_b128 v[{WT8+4}:{WT8+7}], v{vWER} offset:{L_WE+64}")
        E("s_waitcnt lgkmcnt(0)")
        E(f"v_readfirstlane_b32 {sT0}, v{T0}")
        E(f"s_cmp_lg_u32 {sT0}, 0")
        E("s_cbranch_scc1 L_havew")
    E.label("L_statchk")
    E(f"buffer_load_dwordx4 v[{SP}:{SP+3}], v{vSTA}, {rWS}, {sT2} offen sc1")
    E("s_waitcnt vmcnt(0)")
    tagcheck([SP+1, SP+3], 6)
    E("s_cbranch_vccz L_gotstat")
    if slp: E(f"s_sleep {slp}")
    spin_check("L_statchk")
    E.label("L_gotstat")
    wcalc()
    E(f"ds_write_b32 v{vWBW}, v{T0} offset:{L_WB}")
    E("s_waitcnt lgkmcnt(0)")
    E(f"ds_read_b128 v[{WT8}:{WT8+3}], v{vWBR} offset:{L_WB}")
    E(f"ds_read_b128 v[{WT8+4}:{WT8+7}], v{vWBR} offset:{L_WB+64}")
    E.label("L_havew")
    if lead:
        E(f"s_and_b32 {sT0}, {sW}, 3")
        E("s_cbranch_scc0 L_lead")
        E("s_barrier")
        E.label("L_lead")
    a_loads()
    E("s_waitcnt vmcnt(2)")
    for nt in range(4):
        for q in range(2): E(f"ds_read_b64_tr_b16 v[{WB+4*nt+2*q}:{WB+4*nt+2*q+1}], v{TRB+nt} offset:{q*512}")
    stamp("w1")
    if rep:
        E(f"s_lshl_b32 {sT0}, {sW}, 15")
        E(f"s_add_u32 {sAOP}, {sAOP}, {sT0}")
    if quick: quickpoll("a", a_load, [GA_, GA_+4], "L_polla")
    pollloop("a", a_load, [range(GA_, GA_+4), range(GA_+4, GA_+8)], T0, slpa)
    if lead:
        E(f"s_and_b32 {sT0}, {sW}, 3")
        E("s_cbranch_scc1 L_lead2")
        E("s_barrier")
        E.label("L_lead2")
    stamp(7)
    E("s_waitcnt lgkmcnt(0)")
    D = S[2]
    for half in range(2):
        for nt in range(4):
            d = D + half*16 + 4*nt
            E(f"v_mfma_f32_16x16x32_bf16 v[{d}:{d+3}], v[{GA_+4*half}:{GA_+4*half+3}], v[{WB+4*nt}:{WB+4*nt+3}], 0")
    for nt in range(4): E(f"v_pk_mul_f32 v[{D+4*nt}:{D+4*nt+1}], v[{D+4*nt}:{D+4*nt+1}], v[{WT8}:{WT8+1}]")
    for nt in range(4): E(f"v_pk_fma_f32 v[{D+4*nt}:{D+4*nt+1}], v[{D+4*nt+2}:{D+4*nt+3}], v[{WT8+2}:{WT8+3}], v[{D+4*nt}:{D+4*nt+1}]")
    for nt in range(4): E(f"v_pk_fma_f32 v[{D+4*nt}:{D+4*nt+1}], v[{D+16+4*nt}:{D+16+4*nt+1}], v[{WT8+4}:{WT8+5}], v[{D+4*nt}:{D+4*nt+1}]")
    for nt in range(4): E(f"v_pk_fma_f32 v[{D+4*nt}:{D+4*nt+1}], v[{D+16+4*nt+2}:{D+16+4*nt+3}], v[{WT8+6}:{WT8+7}], v[{D+4*nt}:{D+4*nt+1}]")
    for nt in range(4): E(f"v_add_f32 v{D+4*nt}, v{D+4*nt}, v{D+4*nt+1}")
    tred4(D, D+4, D+8, D+12)
    E(f"ds_write_b32 v{vRW}, v{D} offset:{L_RED}")
    E("s_waitcnt lgkmcnt(0)")
    E("s_barrier")
    if not rep:
        E(f"s_cmp_lg_u32 {sW}, 0")
        E("s_cbranch_scc1 L_fin")
    D = PK
    E(f"ds_read_b128 v[{D}:{D+3}], v{vRR} offset:{L_RED}")
    E(f"ds_read_b128 v[{D+4}:{D+7}], v{vRR} offset:{L_RED+16}")
    E("s_waitcnt lgkmcnt(0)")
    E(f"v_pk_add_f32 v[{D}:{D+1}], v[{D}:{D+1}], v[{D+4}:{D+5}]")
    E(f"v_pk_add_f32 v[{D+2}:{D+3}], v[{D+2}:{D+3}], v[{D+6}:{D+7}]")
    E(f"v_pk_add_f32 v[{D}:{D+1}], v[{D}:{D+1}], v[{D+2}:{D+3}]")
    E(f"v_add_f32 v{D}, v{D}, v{D+1}")
    E(f"v_min_u32 v{D}, -2, v{D}")
    E(f"buffer_store_dword v{D}, v{vL4}, {rWS}, {sAOP} offen sc1")
    stamp(8)
    E("s_branch L_fin")
    E.label("L_stageb")
    if "x" in dbg: E("s_branch L_fin")
    if w1e:
        E(f"s_cmp_ge_u32 {sA}, 224")
        E("s_cbranch_scc1 L_now1")
    if mlearly != 2: w2_dma()
    if w1dl: E(f"s_sleep {w1dl}")
    if mlearly != 1: w1_dma()
    E.label("L_now1")
    GBR = S[3]
    E(f"v_lshlrev_b32 v{vSTA}, 11, v{vGQ}")
    E(f"v_lshl_add_u32 v{vSTA}, v{vN}, 4, v{vSTA}")
    E(f"s_lshl_b32 {sT0}, {sW}, 8")
    if rep:
        E(f"s_lshl_b32 {sT1}, {sG}, 15")
        E(f"s_add_u32 {sT0}, {sT0}, {sT1}")
    bs = ["s88", "s89", "s90", "s95"]
    for i in range(4): E(f"s_add_u32 {bs[i]}, {sT0}, {WS_AO + 8192*i}")
    def b_load(i): E(f"buffer_load_dwordx4 v[{S[3]+4*i}:{S[3]+4*i+3}], v{vSTA}, {rWS}, {bs[i]} offen sc1")
    def b_loads():
        for i in range(4): b_load(i)
    E(f"v_lshl_add_u32 v{vCOL}, v{vN}, 2, v{vGQ}")
    E(f"s_lshl_b32 {sT0}, {sW}, 6")
    E(f"v_add_u32 v{vCOL}, {sT0}, v{vCOL}")
    E(f"v_lshlrev_b32 v{vGAA}, 1, v{vCOL}")
    E(f"buffer_load_ushort v{XT}, v{vGAA}, {rX}, 0 offen")
    if mlite:
        E(f"v_lshrrev_b32 v{TRB}, 1, v{vN}")
        E(f"v_lshlrev_b32 v{TRB}, 12, v{TRB}")
        E(f"v_and_b32 v{TRB+1}, 1, v{vN}")
        E(f"v_lshl_add_u32 v{TRB}, v{TRB+1}, 10, v{TRB}")
        E(f"s_lshl_b32 {sT4}, {sW}, 7")
        E(f"s_add_u32 {sT4}, {sT4}, {WS_CLR}")
        E(f"buffer_load_dwordx2 v[{TRB+2}:{TRB+3}], v{TRB}, {rWS}, {sT4} offen sc1")
    if outpf: E(f"buffer_load_ushort v{TRB}, v{vGAA}, {rOUT}, 0 offen")
    E(f"v_and_b32 v{vGAA}, 0x1fe, v{vCOL}")
    E(f"v_lshlrev_b32 v{vGAA}, 2, v{vGAA}")
    E(f"s_mul_i32 {sU}, {sW}, 56")
    E(f"s_add_u32 {sU}, {sU}, {sM}")
    E(f"s_lshl_b32 {sU16}, {sU}, 4")
    E(f"s_and_b32 {sU16}, {sU16}, 0x7ff")
    E(f"v_mov_b32 v{vU16}, {sU16}")
    E(f"s_lshl_b32 {sT0}, {sW}, 2")
    E(f"v_add_u32 v{vCH}, {sT0}, v{vN}")
    E(f"v_and_b32 v{vCH}, 15, v{vCH}")
    E(f"v_lshl_add_u32 v{vCH}, v{vGQ}, 4, v{vCH}")
    E(f"v_lshlrev_b32 v{vCH}, 5, v{vCH}")
    SG = S[6]+8
    E(f"ds_read_b64 v[{GA}:{GA+1}], v{vGAA} offset:{L_MOD}")
    for i in range(4): E(f"ds_read_b128 v[{SG+4*i}:{SG+4*i+3}], v{vCH} offset:{L_MOD + 2048 + (i//2)*2048 + (i%2)*16}")
    E(f"ds_read_b128 v[{GB}:{GB+3}], v{vU16} offset:{L_MOD + 6144}")
    E(f"s_lshl_b32 {sT3}, {sW}, 13")
    E(f"s_add_u32 {sT3}, {sT3}, {L_WT}")
    E(f"v_bfe_u32 v{T0}, {vLANE}, 2, 2")
    E(f"v_and_b32 v{T1}, 3, {vLANE}")
    E(f"v_lshlrev_b32 v{T1}, 3, v{T1}")
    E(f"v_lshl_add_u32 v{T2}, v{T0}, 6, v{T1}")
    E(f"v_lshl_add_u32 v{T2}, v{vGQ}, 10, v{T2}")
    E(f"s_and_b32 {sT1}, {sW}, 3")
    E(f"s_lshl_b32 {sT1}, {sT1}, 14")
    E(f"s_add_u32 {sT1}, {sT1}, {L_WT}")
    E(f"v_add_u32 v{T2}, {sT1}, v{T2}")
    E(f"v_lshl_add_u32 v{T0}, v{T0}, 7, v{T1}")
    E(f"v_lshl_add_u32 v{T0}, v{vGQ}, 5, v{T0}")
    E(f"v_add_u32 v{T0}, {sT3}, v{T0}")
    E(f"v_lshlrev_b32 v{vRR}, 5, v{vN}")
    E(f"v_lshlrev_b32 v{vRW}, 4, v{vN}")
    E(f"s_lshl_b32 {sT1}, {sW}, 2")
    E(f"v_add_u32 v{vRW}, {sT1}, v{vRW}")
    E(f"v_lshlrev_b32 v{vGATH}, 2, v0")
    E(f"v_mov_b32 v{vWBR}, 0")
    E("s_waitcnt lgkmcnt(0)")
    E.label("L_modchk")
    tagcheck([GA+1, GB+1, GB+3] + [SG+1+2*i for i in range(8)], 6)
    E("s_cbranch_vccz L_gotmd")
    E(f"s_mov_b32 {sT0}, {WS_MODG + 4096}")
    E(f"buffer_load_dwordx2 v[{GA}:{GA+1}], v{vGAA}, {rWS}, {sT0} offen sc1")
    E(f"buffer_load_dwordx4 v[{SG}:{SG+3}], v{vCH}, {rWS}, {sT0} offen offset:2048 sc1")
    E(f"buffer_load_dwordx4 v[{SG+4}:{SG+7}], v{vCH}, {rWS}, {sT0} offen offset:2064 sc1")
    E(f"s_mov_b32 {sT0}, {WS_MODG + 8192}")
    E(f"buffer_load_dwordx4 v[{SG+8}:{SG+11}], v{vCH}, {rWS}, {sT0} offen sc1")
    E(f"buffer_load_dwordx4 v[{SG+12}:{SG+15}], v{vCH}, {rWS}, {sT0} offen offset:16 sc1")
    E(f"buffer_load_dwordx4 v[{GB}:{GB+3}], v{vU16}, {rWS}, {sT0} offen offset:2048 sc1")
    E("s_waitcnt vmcnt(0)")
    spin_check("L_modchk")
    E.label("L_gotmd")
    E(f"v_and_b32 v6, 1, v{vCOL}")
    E(f"v_lshlrev_b32 v{vCOL}, 2, v{vCOL}")
    E(f"v_cmp_eq_u32 vcc, 0, v6")
    E(f"v_lshlrev_b32 v6, 16, v{GA}")
    E(f"v_and_b32 v7, 0xffff0000, v{GA}")
    E(f"v_cndmask_b32 v{GA}, v7, v6, vcc")
    for i in range(4):
        c0, c1, s0, s1_ = SCF+2*i, SCF+2*i+1, SCF+8+2*i, SCF+8+2*i+1
        E(f"v_lshlrev_b32 v{s0}, 16, v{SG+2*i}")
        E(f"v_and_b32 v{s1_}, 0xffff0000, v{SG+2*i}")
        E(f"v_lshlrev_b32 v{c0}, 16, v{SG+8+2*i}")
        E(f"v_and_b32 v{c1}, 0xffff0000, v{SG+8+2*i}")
        E(f"v_add_f32 v{c0}, 1.0, v{c0}")
        E(f"v_add_f32 v{c1}, 1.0, v{c1}")
        rb2(c0, c1, c0, c1, 6)
    E(f"v_lshlrev_b32 v{GBF}, 16, v{GB}")
    E(f"v_and_b32 v{GBF+1}, 0xffff0000, v{GB}")
    E(f"v_lshlrev_b32 v{GBF+2}, 16, v{GB+2}")
    E(f"v_and_b32 v{GBF+3}, 0xffff0000, v{GB+2}")
    for r in range(1, 4):
        E(f"v_mov_b32_dpp v{GBF}, v{GBF+r} quad_perm:[0,1,2,3] row_mask:{1<<r:#x} bank_mask:0xf")
    E(f"v_lshl_add_u32 v{vU16}, v{vGQ}, 2, v{vU16}")
    E("s_waitcnt vmcnt(0)")
    if mlite:
        E.label("L_flchk")
        E(f"v_cmp_ne_u32 vcc, {sTAG}, v{TRB+3}")
        E("s_cbranch_vccz L_flok")
        E(f"buffer_load_dwordx2 v[{TRB+2}:{TRB+3}], v{TRB}, {rWS}, {sT4} offen sc1")
        E("s_waitcnt vmcnt(0)")
        spin_check("L_flchk")
        E.label("L_flok")
    if not hint: b_loads()
    stamp("w2")
    E("s_barrier")
    for nt in range(2):
        for q in range(8):
            r = W1 + nt*16 + q*2
            E(f"ds_read_b64_tr_b16 v[{r}:{r+1}], v{T2} offset:{(q>>2)*8192 + (q&3)*256 + nt*32}")
    for q in range(8):
        E(f"ds_read_b64_tr_b16 v[{W2+2*q}:{W2+2*q+1}], v{T0} offset:{4096 + q*512}")
    E(f"v_lshlrev_b32 v{XT}, 16, v{XT}")
    if touch:
        E("s_mov_b64 exec, 0")
        E("s_branch L_tb_0")
        E.label("L_tbret")
        E("s_mov_b64 exec, -1")
    G2 = S[0]
    if hint:
        if hint == 2:
            E(f"s_cmp_lg_u32 {sW}, 7")
            E("s_cbranch_scc1 L_goth")
        E(f"s_mov_b32 {sT0}, {WS_HB}")
        E.label("L_pollh")
        E(f"buffer_load_dwordx4 v[{G2}:{G2+3}], {vV}, {rWS}, {sT0} offen sc1")
        E("s_waitcnt vmcnt(0)")
        tagcheck([G2, G2+1, G2+2, G2+3], 6)
        E("s_cbranch_vccz L_goth")
        spin_check("L_pollh")
        E.label("L_goth")
        if hint == 2: E("s_barrier")
        stamp("h")
        if hdl: E(f"s_sleep {hdl}")
        b_loads()
    if quick: quickpoll("b", b_load, [GBR+4*i for i in range(4)], "L_pollb")
    E.label("L_pollb")
    E(f"s_waitcnt vmcnt(0)")
    for i in range(0, 8, 2): E(f"v_pk_add_f32 v[{G2+i}:{G2+i+1}], v[{GBR+i}:{GBR+i+1}], v[{GBR+8+i}:{GBR+8+i+1}]")
    for i in range(0, 4, 2): E(f"v_pk_add_f32 v[{G2+i}:{G2+i+1}], v[{G2+i}:{G2+i+1}], v[{G2+4+i}:{G2+4+i+1}]")
    E(f"v_pk_add_f32 v[{G2+4}:{G2+5}], v[{G2}:{G2+1}], v[{G2+2}:{G2+3}]")
    E(f"v_cmp_u_f32 vcc, v{G2+4}, v{G2+5}")
    E("s_cbranch_vccz L_gotb")
    for i in range(4): maxall(range(GBR+4*i, GBR+4*i+4), 16+i)
    maxall(range(16, 20), 6)
    E(f"v_cmp_eq_u32 vcc, -1, v6")
    E("s_cbranch_vccz L_gotb")
    if slpb: E(f"s_sleep {slpb}")
    for i in range(4):
        E(f"v_cmp_eq_u32 vcc, -1, v{16+i}")
        E(f"s_mov_b64 exec, vcc")
        b_load(i)
        E("s_mov_b64 exec, -1")
    spin_check("L_pollb")
    E.label("L_gotb")
    if touch: E.touch_begin("L_tb", touch)
    stamp(9)
    GBR = G2
    tred4(GBR, GBR+1, GBR+2, GBR+3)
    rb1(GBR, GBR)
    E(f"v_mul_f32 v{GBR}, v{GBR}, v{GA}")
    rb1(GBR, GBR)
    E(f"v_add_f32 v{GBR}, v{GBR}, v{XT}")
    rb1(GBR, GBR)
    E(f"ds_write_b32 v{vCOL}, v{GBR} offset:{L_X2}")
    E("s_waitcnt lgkmcnt(0)")
    E("s_barrier")
    stamp("b1")
    X2 = S[2]; X2F = S[2]+8; KS = S[2]+12
    if epe:
        E(f"s_cmp_lg_u32 {sU}, {7*56}")
        E("s_cbranch_scc1 L_noep")
        E(f"v_mov_b32 v7, {sTAG}")
        E("s_mov_b64 exec, 1")
        E(f"buffer_store_dword v7, v{vWBR}, {rWS}, 0 offen sc1")
        E("s_mov_b64 exec, -1")
        E.label("L_noep")
    E(f"s_cmp_ge_u32 {sW}, 4")
    E("s_cbranch_scc1 L_b4")
    E(f"ds_read_b32 v{KS}, v{vWBR} offset:{L_X2}")
    E(f"ds_read_b128 v[{X2}:{X2+3}], v{vCH} offset:{L_X2}")
    E(f"ds_read_b128 v[{X2+4}:{X2+7}], v{vCH} offset:{L_X2+16}")
    E(f"ds_read_b32 v{X2F}, v{vU16} offset:{L_X2}")
    E("s_waitcnt lgkmcnt(0)" if (stamps and "b1" in stamps) else "s_waitcnt lgkmcnt(1)")
    DD = S[2]+16
    NEGB = "op_sel_hi:[1,0] neg_lo:[0,1] neg_hi:[0,1]"
    for i in range(0, 8, 2): E(f"v_pk_add_f32 v[{DD+i}:{DD+i+1}], v[{X2+i}:{X2+i+1}], v[{KS}:{KS+1}] {NEGB}")
    s1, s2, s3 = 16, 18, T0
    E(f"v_pk_add_f32 v[{s1}:{s1+1}], v[{DD}:{DD+1}], v[{DD+2}:{DD+3}]")
    E(f"v_pk_mul_f32 v[{s2}:{s2+1}], v[{DD}:{DD+1}], v[{DD}:{DD+1}]")
    E(f"v_pk_add_f32 v[{s3}:{s3+1}], v[{DD+4}:{DD+5}], v[{DD+6}:{DD+7}]")
    E(f"v_pk_mul_f32 v[{s3+2}:{s3+3}], v[{DD+4}:{DD+5}], v[{DD+4}:{DD+5}]")
    E(f"v_pk_fma_f32 v[{s2}:{s2+1}], v[{DD+2}:{DD+3}], v[{DD+2}:{DD+3}], v[{s2}:{s2+1}]")
    E(f"v_pk_fma_f32 v[{s3+2}:{s3+3}], v[{DD+6}:{DD+7}], v[{DD+6}:{DD+7}], v[{s3+2}:{s3+3}]")
    E(f"v_pk_add_f32 v[{s1}:{s1+1}], v[{s1}:{s1+1}], v[{s3}:{s3+1}]")
    E(f"v_pk_add_f32 v[{s2}:{s2+1}], v[{s2}:{s2+1}], v[{s3+2}:{s3+3}]")
    E(f"v_permlane16_swap_b32 v{s1}, v{s2}")
    E(f"v_permlane16_swap_b32 v{s1+1}, v{s2+1}")
    E(f"v_pk_add_f32 v[{s1}:{s1+1}], v[{s1}:{s1+1}], v[{s2}:{s2+1}]")
    E(f"v_add_f32 v{s1}, v{s1}, v{s1+1}")
    E(f"v_mov_b32 v{s2}, v{s1}")
    E(f"v_permlane32_swap_b32 v{s1}, v{s2}")
    E(f"v_add_f32 v{s1}, v{s1}, v{s2}")
    red_ror("v_add_f32", [s1], (1, 2, 4, 8))
    E(f"v_mul_f32 v{s1}, {f32bits(1.0/512):#x}, v{s1}")
    E(f"v_mov_b32 v{s2}, v{s1}")
    E(f"v_permlane16_swap_b32 v{s1}, v{s2}")
    E(f"v_fma_f32 v{s2}, -v{s1}, v{s1}, v{s2}")
    E(f"v_add_f32 v{s1}, v{s1}, v{KS}")
    E(f"v_max_f32 v{s2}, 0, v{s2}")
    E(f"v_cvt_pk_bf16_f32 v{s3}, v{s1}, v{s2}")
    E(f"v_and_b32 v{s2}, 0xffff0000, v{s3}")
    E(f"v_lshlrev_b32 v{s1}, 16, v{s3}")
    E(f"v_add_f32 v{s2}, {f32bits(1e-5):#x}, v{s2}")
    E(f"v_pk_add_f32 v[{X2}:{X2+1}], v[{X2}:{X2+1}], v[{s1}:{s1+1}] {NEGB}")
    E(f"v_cvt_pk_bf16_f32 v{s2}, v{s2}, v{s2}")
    E(f"v_pk_add_f32 v[{X2+2}:{X2+3}], v[{X2+2}:{X2+3}], v[{s1}:{s1+1}] {NEGB}")
    E(f"v_lshlrev_b32 v{s2}, 16, v{s2}")
    E(f"v_pk_add_f32 v[{X2+4}:{X2+5}], v[{X2+4}:{X2+5}], v[{s1}:{s1+1}] {NEGB}")
    E(f"v_sqrt_f32 v{s2}, v{s2}")
    E(f"v_pk_add_f32 v[{X2+6}:{X2+7}], v[{X2+6}:{X2+7}], v[{s1}:{s1+1}] {NEGB}")
    E(f"v_pk_mul_f32 v[{X2}:{X2+1}], v[{X2}:{X2+1}], v[{SCF}:{SCF+1}]")
    E(f"v_cvt_pk_bf16_f32 v{s2}, v{s2}, v{s2}")
    E(f"v_pk_mul_f32 v[{X2+2}:{X2+3}], v[{X2+2}:{X2+3}], v[{SCF+2}:{SCF+3}]")
    E(f"v_lshlrev_b32 v{s2}, 16, v{s2}")
    E(f"v_pk_mul_f32 v[{X2+4}:{X2+5}], v[{X2+4}:{X2+5}], v[{SCF+4}:{SCF+5}]")
    E(f"v_rcp_f32 v{s2}, v{s2}")
    E(f"v_pk_mul_f32 v[{X2+6}:{X2+7}], v[{X2+6}:{X2+7}], v[{SCF+6}:{SCF+7}]")
    for i in range(0, 8, 2): E(f"v_pk_fma_f32 v[{X2+i}:{X2+i+1}], v[{X2+i}:{X2+i+1}], v[{s2}:{s2+1}], v[{SCF+8+i}:{SCF+8+i+1}] op_sel_hi:[1,0,1]")
    H2 = PK
    for p in range(4): E(f"v_cvt_pk_bf16_f32 v{H2+p}, v{X2+2*p}, v{X2+2*p+1}")
    DM = S[0]
    for s_ in range(4):
        for nt in range(2):
            d = DM + (nt*4+s_)*4; b = W1 + nt*16 + s_*4
            E(f"v_mfma_f32_16x16x32_bf16 v[{d}:{d+3}], v[{H2}:{H2+3}], v[{b}:{b+3}], 0")
    E("s_mov_b64 exec, 0xffff")
    for nt in range(2): E(f"v_add_f32 v{DM+16*nt}, v{DM+16*nt}, v{DM+16*nt+5}")
    for nt in range(2): E(f"v_add_f32 v{DM+16*nt}, v{DM+16*nt}, v{DM+16*nt+10}")
    for nt in range(2): E(f"v_add_f32 v{DM+16*nt}, v{DM+16*nt}, v{DM+16*nt+15}")
    E(f"ds_write2st64_b32 v{vRW}, v{DM}, v{DM+16} offset0:{L_RED//256} offset1:{L_RED//256+1}")
    E("s_mov_b64 exec, -1")
    E("s_waitcnt lgkmcnt(0)")
    E.label("L_b4")
    E(f"v_mov_b32 v{T0}, 0")
    E(f"v_mov_b32 v{T1}, 0")
    E("s_barrier")
    stamp("b2")
    D = S[0]
    E(f"ds_read_b128 v[{D}:{D+3}], v{vRR} offset:{L_RED}")
    E(f"ds_read_b128 v[{D+8}:{D+11}], v{vRR} offset:{L_RED+16}")
    E("s_waitcnt lgkmcnt(0)")
    for b in (D, D+8): E(f"v_pk_add_f32 v[{b}:{b+1}], v[{b}:{b+1}], v[{b+2}:{b+3}]")
    for b in (D, D+8): E(f"v_add_f32 v{b}, v{b}, v{b+1}")
    E(f"v_max_f32 v{D}, 0, v{D}")
    E(f"v_max_f32 v{D+8}, 0, v{D+8}")
    E(f"v_cvt_pk_bf16_f32 v{D}, v{D}, v{D+8}")
    for k in range(16):
        E(f"v_dot2c_f32_bf16_dpp v{T0+(k&1)}, v{D}, v{W2+k} row_newbcast:{k} {DPPM}")
    E(f"v_add_f32 v{T0}, v{T0}, v{T1}")
    E(f"v_min_u32 v{T0}, -2, v{T0}")
    E(f"buffer_store_dword v{T0}, v{vGATH}, {rWS}, {sPUB} offen sc1")
    stamp(10)
    E(f"s_cmp_ge_u32 {sU}, 128")
    E("s_cbranch_scc1 L_fin")
    C0 = S[0]+16
    E(f"v_lshlrev_b32 v{vSTA}, 11, {vLANE}")
    E(f"s_add_u32 {sT2}, {sU16}, {WS_MO}")
    for i in range(4): E(f"v_mov_b32 v{C0+i}, 0")
    def c_loads(): E(f"buffer_load_dwordx4 v[{C0}:{C0+3}], v{vSTA}, {rWS}, {sT2} offen sc1")
    if cdelay > 0: E(f"s_sleep {cdelay}")
    if cdelay < 0: E("s_waitcnt vmcnt(0)")
    E(f"s_mov_b32 {sSPIN}, 0x40000")
    E(f"s_mov_b32 exec_hi, 0xffffff")
    c_loads()
    E(f"s_mov_b64 exec, -1")
    E(f"s_lshl_b32 {sT0}, {sU}, 3")
    E(f"v_mov_b32 v6, 0")
    E(f"v_mov_b32 v7, {sTAG}")
    E(f"v_lshlrev_b32 v{T0}, 1, v{vGQ}")
    E.tpause = True
    E.label("L_pollc")
    E("s_waitcnt vmcnt(0)")
    maxall(range(C0, C0+4), T2)
    E(f"v_cmp_eq_u32 vcc, -1, v{T2}")
    E("s_cbranch_vccz L_gotc")
    E(f"s_mov_b64 exec, vcc")
    c_loads()
    E("s_mov_b64 exec, -1")
    spin_check("L_pollc")
    E.label("L_gotc")
    E.tpause = False
    if fixt:
        if fixw >= 0:
            E(f"v_mov_b32 v{T2}, 0x800")
            E(f"buffer_load_dword v{T3}, v{T2}, {rWS}, 0 offen sc1")
            E("s_waitcnt vmcnt(0)")
            E(f"v_readfirstlane_b32 s48, v{T3}")
        E.label("L_fix")
        E("s_memrealtime s[50:51]")
        E("s_waitcnt lgkmcnt(0)")
        E("s_sub_u32 s50, s50, s48")
        E(f"s_cmp_lt_u32 s50, {fixt*100}")
        E("s_cbranch_scc1 L_fix")
    stamp(11)
    tred4(C0, C0+1, C0+2, C0+3)
    red_ror("v_add_f32", [C0], (1, 2, 4, 8))
    rb1(C0, C0)
    E(f"v_mul_f32 v{C0}, v{C0}, v{GBF}")
    rb1(C0, C0)
    E(f"v_add_f32 v{C0}, v{C0}, v{X2F}")
    E(f"v_cvt_pk_bf16_f32 v{C0}, v{C0}, v{C0}")
    if touch: E.touch_end("L_tbret")
    E("s_mov_b32 exec_lo, 0x10001")
    E("s_mov_b32 exec_hi, 0x10001")
    E(f"buffer_store_short v{C0}, v{T0}, {rOUT}, {sT0} offen {outf}")
    if not epe:
        E("s_mov_b64 exec, 1")
        E(f"s_cmp_lg_u32 {sU}, 0")
        E("s_cbranch_scc1 L_fin")
        E(f"buffer_store_dword v7, v6, {rWS}, 0 offen sc1")
    E.label("L_fin")
    if stamps:
        stamp(12)
        E("s_mov_b64 exec, 1")
        E("s_waitcnt lgkmcnt(0)")
        E(f"s_lshl_b32 {sT0}, s2, 3")
        E(f"s_add_u32 {sT0}, {sT0}, {sW}")
        E(f"s_lshl_b32 {sT0}, {sT0}, 7")
        E(f"s_add_u32 {sT0}, {sT0}, {WS_STAMP}")
        if 1:
            E("s_sleep 127"); E("s_sleep 127"); E("s_sleep 127")
        E("v_mov_b32 v6, 0")
        for i in range(13):
            E(f"v_mov_b32 v8, s{52+2*i}")
            E(f"v_mov_b32 v9, s{53+2*i}")
            E(f"buffer_store_dwordx2 v[8:9], v6, {rWS}, {sT0} offen offset:{8*i}")
            E("s_nop 1")
        E(f"v_mov_b32 v8, {sSPIN}")
        E(f"v_mov_b32 v9, 0")
        E(f"buffer_store_dwordx2 v[8:9], v6, {rWS}, {sT0} offen offset:{8*13}")
    E.label("L_end")
    E("s_endpgm")
    if aslist == 2:
        E.raw(".globl warm_kernel\n.p2align 8\n.type warm_kernel,@function\nwarm_kernel:\n    s_endpgm")
        E.raw('.section .rodata,"a"\n.p2align 6\n.amdhsa_kernel warm_kernel\n  .amdhsa_next_free_vgpr 8\n  .amdhsa_next_free_sgpr 16\n  .amdhsa_accum_offset 8\n  .amdhsa_group_segment_fixed_size 0\n  .amdhsa_kernarg_size 104\n  .amdhsa_user_sgpr_count 2\n  .amdhsa_user_sgpr_kernarg_segment_ptr 1\n  .amdhsa_system_sgpr_workgroup_id_x 1\n.end_amdhsa_kernel')
    E.raw(f'.section .rodata,"a"\n.p2align 6\n.amdhsa_kernel {KN}')
    E.raw("  .amdhsa_next_free_vgpr 256\n  .amdhsa_next_free_sgpr 102\n  .amdhsa_accum_offset 256\n  .amdhsa_group_segment_fixed_size 0\n  .amdhsa_kernarg_size 104\n  .amdhsa_user_sgpr_count 2\n  .amdhsa_user_sgpr_kernarg_segment_ptr 1\n  .amdhsa_system_sgpr_workgroup_id_x 1\n  .amdhsa_float_denorm_mode_32 3\n.end_amdhsa_kernel")
    return E.text()

if __name__ == "__main__":
    import argparse, inspect
    ap = argparse.ArgumentParser()
    ap.add_argument("out")
    for n, p in inspect.signature(gen).parameters.items():
        if n == "stamps": ap.add_argument("--stamps", default="")
        else: ap.add_argument("--"+n, type=type(p.default), default=p.default)
    a = vars(ap.parse_args())
    out = a.pop("out")
    a["stamps"] = a["stamps"].split(",") if a["stamps"] else None
    open(out, "w").write(gen(**a))
```

```python
import sys, math, struct
from emit import Emit
KN = "adaLN_cond__gqa_block_cached__dense_activation_relu__decode_kernel"

WS_EPOCH = 0x0
WS_MODG  = 0x1000
WS_CLR   = 0x10000
WS_STAT  = 0x8000
WS_AO    = 0x100000
WS_PART  = 0x20000
WS_MO    = 0x60000
WS_HB    = 0x18000
WS_EP    = 0xC0000
WS_QG    = WS_MODG + 48*256
WS_STAMP = 0x8000000
L_STATS = 0
L_CNT   = 256
L_FAC   = 384
L_WB    = 512
L_WE    = 1536
L_X2    = 2048
L_RED   = 4096
L_ACT   = 6144
L_Q     = 7168
L_ORED  = 8192
L_MOD   = 24576
L_WM    = 32768
L_WT    = 65536

DPPM = "row_mask:0xf bank_mask:0xf"
def f32bits(x): return struct.unpack("<I", struct.pack("<f", x))[0]

def gen(depth=6, kvflags="nt", wflags="", stamps=None, swave=0, tpwo=4, mlearly=0, slp=2, slpa=0, slpb=0, codepf=2, dbg="",
        k1=2, k2=3, slpq=4, prio=3, fixt=0, jml=24, fast=1, rate=1, cdelay=-1, ewt=1, rot=0, qat=12, depth0=9, young="", depthe=0, emask=255, swapq=1, lead=0, touch=0, w1e=0, w1pf=2, rep=0, w1dl=0, buddy=0, wopf=0, wopos=3, fixw=-1, aslist=0, fpos=-1, fwave=1, dyn=0, pfirst=1, tlb=0, eflags="nt", oflags="nt", quick=1, epe=1, outpf=0, outf="", depthv=0, dvat=18, p0=3, dynt=7, wmx=3, dburst=0, wb=0, nb=0, pa=12, la=8, pb=24, lb=8, pc=12, da=8, ext=0, dx=8, fmap=0, jperm=0, mlite=0, emap=0, esw=0, hint=0, hdl=0, aost="sc1", aold="sc1", ml6=0, np0=0):
    E = Emit()
    L_WO = L_WT + 65536
    LDS_BYTES = max(L_WT + 65536, L_WO + 32768)
    sW, sG, sJ, sTAG, sSPIN = "s3", "s4", "s5", "s6", "s7"
    rK, rV, rWS, rWT, rW2, rX, rC, rOUT = [f"s[{i}:{i+3}]" for i in range(8, 40, 4)]
    rWO = "s[84:87]"
    sSELLO, sSELHI, sC, sBASE, sM, sT0, sT1, sT2 = "s78", "s79", "s80", "s81", "s82", "s83", "s100", "s101"
    sA, sPL, sPUB, sLAST, sU, sU16, sT3, sT4, sEP = "s40", "s41", "s42", "s95", "s98", "s99", "s96", "s97", "s93"
    sPP, sGA0, sGA1, sLD, sML, sXCC, sAOP, sSK = "s43", "s44", "s45", "s46", "s47", "s91", "s92", "s90"
    sJW = "s94" if dyn else sJ
    vLANE, vK, vV = "v1", "v2", "v3"
    Q0 = 16
    T0, T1, T2, T3 = 28, 29, 30, 31
    S = [32 + 32*i for i in range(7)]
    def stamp(i):
        if "j" in dbg and str(i) not in ("0", "b1", "a2"):
            u = len(E.L)
            E("s_memtime s[52:53]")
            E("s_waitcnt lgkmcnt(0)")
            E("s_mul_i32 s52, s52, 0x9E3779B1")
            E("s_lshr_b32 s52, s52, 26")
            E("s_cmp_lt_u32 s52, 48")
            E(f"s_cbranch_scc1 L_jt{u}")
            E(f"s_sub_u32 s52, s52, 47")
            E.label(f"L_ju{u}")
            E("s_sleep 32")
            E("s_sub_u32 s52, s52, 1")
            E("s_cmp_lg_u32 s52, 0")
            E(f"s_cbranch_scc1 L_ju{u}")
            E.label(f"L_jt{u}")
            return
        if stamps and str(i) in stamps:
            k = stamps.index(str(i))
            E(f"s_memrealtime s[{52+2*k}:{53+2*k}]")
    vm = []
    light = [False]
    def setlight():
        if depthe:
            if emask == 0: E(f"s_cmp_ge_u32 {sJ}, 16")
            else:
                E(f"s_lshr_b32 {sT0}, {emask}, {sW}")
                E(f"s_andn2_b32 {sT0}, {sT0}, {sG}")
                E(f"s_bitcmp1_b32 {sT0}, 0")
            E(f"s_cselect_b64 vcc, 1, 0")
    def vmop(tag, text):
        E(text); vm.append(tag)
    def vmwait(tag):
        idx = [i for i, t in enumerate(vm) if t == tag][-1]
        E(f"s_waitcnt vmcnt({min(len(vm) - 1 - idx, 62)})")
    def spin_check(lbl_loop):
        E(f"s_sub_u32 {sSPIN}, {sSPIN}, 1")
        E(f"s_cbranch_scc0 {lbl_loop}")
        E(f"s_branch L_end")
    PRI = {1: {("k",0):3, ("k",2):2, ("v",0):1, ("v",2):0}, 2: {("k",0):3, ("v",0):2, ("v",2):1}, 3: {("k",0):3, ("k",3):2, ("v",2):1}, 0: {},
           4: {("k",0):1, ("k",1):1, ("k",2):1, ("k",3):1, ("v",0):1, ("v",1):1, ("v",2):1, ("v",3):1}}[prio]
    def load_tile(kind, T, slot, dep, tag, mid=None, lo=0, hi=8, setp=True):
        srd = rK if kind == "k" else rV
        va = vK if (kind == "k" and "k" not in dbg) else vV
        if setp and lo == 0 and (kind, T) in PRI:
            E(f"s_setprio {PRI[(kind, T)]}")
        if setp and lo == 0 and f"{kind}{T}" in young.split(","):
            u = len(E.L)
            base = [v for k, v in PRI.items() if (k[0] == "k" and kind == "v") or (k[0] == kind and k[1] <= T)]
            b = min(base) if base else 1
            E(f"s_cmp_lt_u32 {sW}, 4")
            E(f"s_cbranch_scc1 L_yp{u}")
            E(f"s_setprio {min(3, b+1)}")
            E.raw(f"L_yp{u}:")
        for i in range(lo, hi):
            if i == 4 and mid: mid()
            if rot:
                E(f"s_xor_b32 {sLD}, {sBASE}, {T*0x200000 + i*1024}")
            elif i == 0 or i == 4 or hi - lo == 1 or i == lo: E(f"s_add_u32 {sLD}, {sBASE}, {T*0x200000 + (i//4)*4096}")
            if depthe and light[0] and dep and len(vm) >= depthe:
                u = len(E.L)
                E.raw(f"    s_cbranch_vccz L_lt{u}"); E._push(None)
                E(f"s_waitcnt vmcnt({depthe-1})")
                E.raw(f"L_lt{u}:")
            if dep and len(vm) >= dep: E(f"s_waitcnt vmcnt({dep-1})")
            r = S[slot] + i*4
            vmop(tag, f"buffer_load_dwordx4 v[{r}:{r+3}], {va}, {srd}, {sLD} offen offset:{0 if rot else (i%4)*1024} {kvflags}")
    def krange(a, b, dep):
        vm[:] = ["x"]*64
        for n_ in range(a, b):
            kind, T = ("k", n_//8) if n_ < 32 else ("v", n_//8 - 4)
            load_tile(kind, T, n_//8, dep, "K", lo=n_%8, hi=n_%8+1, setp=False)
    def red_rows(op, regs, tmp):
        for sw in ("v_permlane16_swap_b32", "v_permlane32_swap_b32"):
            for i, r in enumerate(regs): E(f"v_mov_b32 v{tmp+i}, v{r}")
            for i, r in enumerate(regs): E(f"{sw} v{r}, v{tmp+i}")
            for i, r in enumerate(regs): E(f"{op} v{r}, v{r}, v{tmp+i}")
    def red_ror(op, regs, rors):
        for k in rors:
            for r in regs: E(f"{op}_dpp v{r}, v{r}, v{r} row_ror:{k} {DPPM}")
    def tred4(a0, a1, a2, a3):
        E(f"v_permlane16_swap_b32 v{a0}, v{a1}")
        E(f"v_permlane16_swap_b32 v{a2}, v{a3}")
        E(f"v_add_f32 v{a0}, v{a0}, v{a1}")
        E(f"v_add_f32 v{a2}, v{a2}, v{a3}")
        E(f"v_permlane32_swap_b32 v{a0}, v{a2}")
        E(f"v_add_f32 v{a0}, v{a0}, v{a2}")
    def rb1(dst, src):
        E(f"v_cvt_pk_bf16_f32 v{dst}, v{src}, v{src}")
        E(f"v_lshlrev_b32 v{dst}, 16, v{dst}")
    def rb2(d0, d1, s0, s1, t):
        E(f"v_cvt_pk_bf16_f32 v{t}, v{s0}, v{s1}")
        E(f"v_lshlrev_b32 v{d0}, 16, v{t}")
        E(f"v_and_b32 v{d1}, 0xffff0000, v{t}")
    def tagcheck(regs, t):
        regs = [f"v{r}" for r in regs] + [sTAG]
        if len(regs) % 2 == 0: regs.insert(0, regs[0])
        E(f"v_max3_u32 v{t}, {regs[0]}, {regs[1]}, {regs[2]}")
        E(f"v_min3_u32 v{t+1}, {regs[0]}, {regs[1]}, {regs[2]}")
        for i in range(3, len(regs), 2):
            E(f"v_max3_u32 v{t}, v{t}, {regs[i]}, {regs[i+1]}")
            E(f"v_min3_u32 v{t+1}, v{t+1}, {regs[i]}, {regs[i+1]}")
        E(f"v_cmp_ne_u32 vcc, v{t}, v{t+1}")
    def maxall(regs, t):
        regs = list(regs)
        E(f"v_max3_u32 v{t}, v{regs[0]}, v{regs[1]}, v{regs[2]}")
        i = 3
        while i + 1 < len(regs):
            E(f"v_max3_u32 v{t}, v{t}, v{regs[i]}, v{regs[i+1]}"); i += 2
        if i < len(regs): E(f"v_max_u32 v{t}, v{t}, v{regs[i]}")
    def pollloop(name, load1, groups, tmp, sl):
        n = len(groups)
        E.label(f"L_poll{name}")
        E(f"s_waitcnt vmcnt(0)")
        for i, g in enumerate(groups): maxall(g, tmp+i)
        if n == 2: E(f"v_max_u32 v6, v{tmp}, v{tmp+1}")
        else: maxall(range(tmp, tmp+n), 6)
        E(f"v_cmp_eq_u32 vcc, -1, v6")
        E(f"s_cbranch_vccz L_got{name}")
        if sl: E(f"s_sleep {sl}")
        for i in range(n):
            E(f"v_cmp_eq_u32 vcc, -1, v{tmp+i}")
            E(f"s_mov_b64 exec, vcc")
            load1(i)
            E("s_mov_b64 exec, -1")
        spin_check(f"L_poll{name}")
        E.label(f"L_got{name}")
    def quickpoll(name, load1, firsts, back):
        n = len(firsts)
        mk = [f"s[{8+2*i}:{9+2*i}]" for i in range(n)]
        E.label(f"L_qp{name}")
        E("s_waitcnt vmcnt(0)")
        for i, r in enumerate(firsts): E(f"v_cmp_eq_u32 {mk[i]}, -1, v{r}")
        E(f"s_or_b64 vcc, {mk[0]}, {mk[1]}")
        for i in range(2, n): E(f"s_or_b64 vcc, vcc, {mk[i]}")
        E.raw(f"    s_cbranch_scc0 {back}"); E._push(None)
        for i in range(n):
            E(f"s_mov_b64 exec, {mk[i]}")
            load1(i)
        E("s_mov_b64 exec, -1")
        E(f"s_sub_u32 {sSPIN}, {sSPIN}, 1")
        E.raw(f"    s_cbranch_scc0 L_qp{name}"); E._push(None)
        E("s_branch L_end")
    def mktag():
        E("s_waitcnt lgkmcnt(0)")
        E(f"s_mul_i32 {sTAG}, {sEP}, 0x9E3779B1")
        E(f"s_add_u32 {sTAG}, {sTAG}, 0x7F4A7C15")
    def slice_dma(srd, rowb, soff, lds, n=2):
        if rowb & (rowb-1) == 0: E(f"v_lshl_add_u32 v{T2}, v{T0}, {rowb.bit_length()-1}, v{T1}")
        else:
            E(f"v_mul_u32_u24 v{T2}, {rowb}, v{T0}")
            E(f"v_add_u32 v{T2}, v{T2}, v{T1}")
        E(f"v_xor_b32 v{T3}, 64, v{T2}")
        E(f"s_mul_i32 {sT1}, {sW}, {8*n*rowb}")
        E(f"s_add_u32 {soff}, {soff}, {sT1}")
        E(f"s_mul_i32 {sT1}, {sW}, {1024*n}")
        E(f"s_add_u32 m0, {sT1}, {lds}")
        for i in range(n):
            E(f"buffer_load_dwordx4 v{T2 + i%2}, {srd}, {soff} offen {oflags} lds")
            if i < n-1:
                E(f"s_add_u32 {soff}, {soff}, {8*rowb}")
                E(f"s_add_u32 m0, m0, 1024")
    def part_rows(va, vt):
        E(f"v_lshrrev_b32 v{vt}, 4, {vLANE}")
        E(f"v_lshlrev_b32 v{va}, 13, v{vt}")
        E(f"v_and_b32 v{vt}, 15, {vLANE}")
        E(f"v_lshl_add_u32 v{va}, v{vt}, 8, v{va}")
        E(f"s_lshl_b32 {sT0}, {sG}, 15")
        E(f"s_lshr_b32 {sT1}, {sJ}, 4")
        E(f"s_lshl_b32 {sT1}, {sT1}, 12")
        E(f"s_add_u32 {sT0}, {sT0}, {sT1}")
        E(f"s_and_b32 {sT1}, {sJ}, 15")
        E(f"s_lshl_b32 {sT1}, {sT1}, 4")
        E(f"s_add_u32 {sT0}, {sT0}, {sT1}")
        E(f"s_add_u32 {sT0}, {sT0}, {WS_PART}")
    def slice_prep():
        E(f"v_lshrrev_b32 v{T0}, 3, {vLANE}")
        E(f"v_and_b32 v{T1}, 2, v{T0}")
        E(f"v_and_b32 v{T2}, 7, {vLANE}")
        E(f"v_xor_b32 v{T1}, v{T2}, v{T1}")
        E(f"v_lshlrev_b32 v{T1}, 4, v{T1}")

    hdr = []
    hdr.append("""; Fused adaLN + GQA decode attention + ReLU MLP in one launch: 256 workgroups (one per CU) x 8 waves.
;   d_ws as {data, tag} granules (tag = hash of an epoch word found in d_ws, advanced once per launch).
;   Hand-offs inside a group use plain stores only when every workgroup of the group reported the same die id.""")
    if aslist == 2: hdr.append(f"; @launch kernel=warm_kernel grid=(256,1,1) block=(64,1,1) lds=0")
    if aslist: hdr.append(f"; @launch kernel={KN} grid=(256,1,1) block=(512,1,1) lds={LDS_BYTES}")
    else: hdr.append(f"; @launch grid=(256,1,1) block=(512,1,1) lds={LDS_BYTES}")
    hdr.append('.amdgcn_target "amdgcn-amd-amdhsa--gfx950"\n.text')
    hdr.append(f".globl {KN}\n.p2align 8\n.type {KN},@function\n{KN}:")
    E.raw("\n".join(hdr))
    E("s_cmp_ge_u32 s2, 256")
    E("s_cbranch_scc1 L_end")
    if fixt or (stamps and "e" in stamps): E("s_memrealtime s[48:49]")
    E("s_load_dwordx2 s[8:9], s[0:1], 8")
    if codepf:
        if codepf < 32:
            E(f"s_cmp_ge_u32 s2, {8*codepf}" if pfirst else f"s_cmp_lt_u32 s2, {256-8*codepf}")
            E("s_cbranch_scc1 L_nopf")
        E("s_getpc_b64 s[88:89]")
        E.raw("L_pc:")
        E(f"v_lshlrev_b32 v6, 6, v0")
        E(f"v_min_u32 v6, L_end-L_pc, v6")
        E(f"v_mov_b32 v9, s89")
        E(f"v_add_co_u32 v8, vcc, s88, v6")
        E(f"v_addc_co_u32 v9, vcc, 0, v9, vcc")
        E(f"global_load_dword v24, v[8:9], off")
        E.label("L_nopf")
    def headA():
        E(f"v_lshrrev_b32 v4, 6, v0")
        E(f"v_and_b32 {vLANE}, 63, v0")
        E(f"v_readfirstlane_b32 {sW}, v4")
    def headB():
        E(f"v_and_b32 v4, 12, {vLANE}")
        E(f"v_lshlrev_b32 {vK}, 6, v4")
        E(f"v_lshrrev_b32 v4, 4, {vLANE}")
        E(f"v_lshl_add_u32 {vK}, v4, 6, {vK}")
        E(f"v_and_b32 v4, 3, {vLANE}")
        E(f"v_lshl_add_u32 {vK}, v4, 4, {vK}")
        E(f"s_lshl_b32 {sBASE}, {sG}, 23")
        E(f"s_andn2_b32 {sT0}, s2, 7")
        E(f"s_add_u32 {sT0}, {sT0}, {sW}")
        E(f"s_lshl_b32 {sT0}, {sT0}, 13")
        E(f"s_add_u32 {sBASE}, {sBASE}, {sT0}")
        E(f"s_mov_b32 s10, 0x4000000")
        E(f"s_mov_b32 s11, 0x20000")
    E(f"s_and_b32 {sG}, s2, 7")
    if np0:
        headA(); headB()
        E("s_waitcnt lgkmcnt(0)")
        load_tile("k", 0, 0, 0, "K0", hi=np0, setp=False)
    if jperm:
        E(f"s_lshr_b32 {sJ}, s2, 4")
        E(f"s_bfe_u32 {sT0}, s2, 0x10003")
        E(f"s_lshl_b32 {sT0}, {sT0}, 4")
        E(f"s_or_b32 {sJ}, {sJ}, {sT0}")
    else: E(f"s_lshr_b32 {sJ}, s2, 3")
    sJE = sJ
    if esw:
        sJE = sT4
        E(f"s_mov_b32 {sJE}, {sJ}")
        for x, y in ((3, 31), (11, 30))[:esw]:
            E(f"s_cmp_eq_u32 {sJ}, {x}")
            E(f"s_cselect_b32 {sJE}, {y}, {sJE}")
            E(f"s_cmp_eq_u32 {sJ}, {y}")
            E(f"s_cselect_b32 {sJE}, {x}, {sJE}")
    if emap:
        E(f"s_and_b32 {sT1}, {sG}, 1")
        E(f"s_lshl_b32 {sT1}, {sT1}, 1")
        E(f"s_sub_u32 {sT0}, {sJE}, 8")
        E(f"s_add_u32 {sT0}, {sT0}, {sT1}")
        E(f"s_cmp_lt_u32 {sJE}, 16")
        E(f"s_cselect_b32 {sT0}, {sJE}, {sT0}")
        E(f"s_add_u32 {sA}, {sT0}, 2")
        E(f"s_mul_i32 {sA}, {sA}, 86")
        E(f"s_lshr_b32 {sA}, {sA}, 8")
        E(f"s_add_u32 {sT0}, {sT0}, {sA}")
        E(f"s_sub_u32 {sA}, {sJE}, 16")
        E(f"s_sub_u32 {sT1}, 8, {sT1}")
        E(f"s_cmp_lt_u32 {sA}, {sT1}")
        E(f"s_lshl_b32 {sA}, {sA}, 2")
        E(f"s_add_u32 {sA}, {sA}, 1")
        E(f"s_sub_u32 {sT3}, {sJE}, 16")
        E(f"s_cmp_lt_u32 {sT3}, {sT1}")
        E(f"s_cselect_b32 {sT0}, {sA}, {sT0}")
        E(f"s_lshl_b32 {sT0}, {sT0}, 2")
        E(f"s_lshr_b32 {sA}, {sG}, 1")
    else:
        E(f"s_lshr_b32 {sA}, {sG}, 1")
        E(f"s_lshl_b32 {sT0}, {sJE}, 2")
    E(f"s_add_u32 {sA}, {sA}, {sT0}")
    if swapq:
        if fmap == 0:
            E(f"s_cmp_lt_u32 {sA}, 96")
            E(f"s_cselect_b32 {sT0}, {sA}, 255")
        else:
            E(f"s_lshl_b32 {sT1}, {sJ}, 1")
            E(f"s_sub_u32 {sT1}, {sA}, {sT1}")
            E(f"s_bitcmp1_b32 {sJ}, 0")
            E(f"s_cselect_b32 {sT1}, 255, {sT1}")
            E(f"s_sub_u32 {sT0}, {sA}, 32")
            E(f"s_cmp_lt_u32 {sJ}, 16")
            E(f"s_cselect_b32 {sT0}, {sT1}, {sT0}")
        E(f"s_add_u32 {sA}, {sA}, 96")
    else: E(f"s_add_u32 {sT0}, {sA}, 128")
    E(f"s_bitcmp1_b32 {sG}, 0")
    E(f"s_cselect_b32 {sA}, {sT0}, {sA}")
    if "a" in dbg: E(f"s_mov_b32 {sA}, 255")
    if "g" in dbg:
        E(f"s_sub_u32 {sT0}, {sA}, 32")
        E(f"s_cmp_lt_u32 {sT0}, 64")
        E(f"s_cselect_b32 {sA}, 255, {sA}")
    E(f"s_cmp_lt_u32 {sA}, 96")
    E(f"s_cselect_b32 {sT0}, 72, 24")
    E(f"s_load_dwordx2 s[20:21], s[0:1], {sT0}")
    E("s_load_dwordx16 s[52:67], s[0:1], 0")
    E("s_load_dwordx8 s[68:75], s[0:1], 64")
    E("s_load_dwordx2 s[76:77], s[0:1], 96")
    E(f"s_cselect_b32 {sT4}, 48, 64")
    E(f"s_cselect_b32 {sT3}, 0, 48")
    if not np0: headA()
    slice_prep()
    E(f"s_lshl_b32 {sT4}, {sT4}, 7")
    E(f"s_lshl_b32 s22, {sT4}, 9")
    E(f"s_cmp_lt_u32 {sA}, 224")
    E(f"s_cselect_b32 s22, s22, 0")
    E(f"s_mov_b32 s23, 0x20000")
    E(f"s_lshr_b32 {sT0}, {sA}, 1")
    E(f"s_sub_u32 {sT3}, {sT0}, {sT3}")
    E(f"s_lshl_b32 {sT3}, {sT3}, 7")
    E(f"s_and_b32 {sT2}, {sA}, 1")
    E(f"s_lshl_b32 {sT0}, {sT2}, 3")
    E(f"s_add_u32 {sT0}, {sT0}, {sW}")
    E(f"s_lshl_b32 {sT0}, {sT0}, 5")
    E(f"s_mul_i32 {sT0}, {sT0}, {sT4}")
    E(f"s_add_u32 {sT3}, {sT3}, {sT0}")
    E(f"v_mul_u32_u24 v{T2}, {sT4}, v{T0}")
    E(f"v_add_u32 v{T2}, v{T2}, v{T1}")
    E(f"v_xor_b32 v{T3}, 64, v{T2}")
    E(f"s_lshl_b32 {sT4}, {sT4}, 3")
    E(f"s_lshl_b32 {sT0}, {sW}, 12")
    E(f"s_add_u32 m0, {sT0}, {L_WM}")
    if not np0: headB()
    E(f"v_mov_b32 v5, {L_CNT}")
    for r in range(20, 24): E(f"v_mov_b32 v{r}, 0")
    E(f"ds_write_b128 v5, v[20:23]")
    E(f"ds_write_b64 v5, v[20:21] offset:16")
    E("s_setprio 3")
    if stamps and "p0" in stamps: E("s_memrealtime s[78:79]")
    E("s_waitcnt lgkmcnt(0)")
    if stamps and "p0" in stamps: E("s_memrealtime s[98:99]")
    if "4" in dbg:
        E(f"s_cmp_lg_u32 {sW}, 7")
        E("s_cbranch_scc1 L_nb")
        E("v_mov_b32 v6, s2")
        E("v_mov_b32 v7, 0x80")
        E("s_mov_b64 exec, 1")
        E("global_store_byte v6, v7, s[74:75] sc1")
        E("s_mov_b64 exec, -1")
        E.label("L_nb")
    for i in range(4):
        E(f"buffer_load_dwordx4 v{T2 + i%2}, {rWT}, {sT3} offen {eflags} lds")
        if i < 3:
            E(f"s_add_u32 m0, m0, 1024")
            E(f"s_add_u32 {sT3}, {sT3}, {sT4}")
    if "b" not in dbg: E("s_barrier")
    def srd_setup():
        E(f"s_load_dword {sEP}, s[76:77], {WS_EPOCH}")
        E(f"v_lshlrev_b32 {vV}, 4, {vLANE}")
        for d, sr in ((28, 52), (32, 68), (16, 76), (12, 56), (24, 66), (36, 72), (84, 60), (20, 64)):
            E(f"s_mov_b64 s[{d}:{d+1}], s[{sr}:{sr+1}]")
        for d, z in ((28, 1024), (32, 1024), (12, 0x4000000), (16, 0x10000000), (20, 512*1792*2), (24, 512*1792*2), (36, 1024)):
            E(f"s_mov_b32 s{d+2}, {z:#x}")
        for d in (28, 32, 12, 16, 24, 36): E(f"s_mov_b32 s{d+3}, 0x20000")
        stamp(0)
        if stamps and "p0" in stamps:
            E("s_waitcnt lgkmcnt(0)")
            E(f"s_mov_b64 s[{52+2*stamps.index('p0')}:{53+2*stamps.index('p0')}], s[78:79]")
            E(f"s_mov_b64 s[{52+2*stamps.index('p1')}:{53+2*stamps.index('p1')}], s[98:99]")
        if stamps and "e" in stamps: E(f"s_mov_b64 s[{52+2*stamps.index('e')}:{53+2*stamps.index('e')}], s[48:49]")
    def late_setup():
        E(f"s_mov_b32 {sSELLO}, 0x05040100")
        E(f"s_mov_b32 {sSELHI}, 0x07060302")
        E(f"s_mov_b32 {sC}, {f32bits(math.log2(math.e)):#x}")
        E(f"s_mov_b32 {sSPIN}, 0x40000")
        E(f"s_getreg_b32 {sXCC}, hwreg(HW_REG_XCC_ID)")
        E(f"s_sub_u32 {sT0}, {sJ}, {jml}")
        E(f"s_cmp_lt_u32 {sT0}, 7")
        E(f"s_cselect_b32 {sML}, 1, 0")
        E(f"s_mul_i32 {sM}, {sG}, 7")
        E(f"s_add_u32 {sM}, {sM}, {sT0}")
        E(f"s_lshl_b32 {sPUB}, {sM}, 11")
        E(f"s_add_u32 {sPUB}, {sPUB}, {WS_MO}")
        E(f"s_cmp_lt_u32 {sJ}, 16")
        E(f"s_cselect_b32 s86, {512*4096*2}, 0")
        E(f"s_mov_b32 s87, 0x20000")
        E(f"s_lshl_b32 {sAOP}, {sG}, 12")
        E(f"s_lshl_b32 {sT0}, {sJ}, 8")
        E(f"s_add_u32 {sAOP}, {sAOP}, {sT0}")
        E(f"s_add_u32 {sAOP}, {sAOP}, {WS_AO}")
    E(f"s_cmp_lt_u32 {sA}, 224")
    E(f"s_cselect_b32 {sT0}, {sW}, 1")
    E(f"s_cmp_eq_u32 {sT0}, 0")
    E("s_cbranch_scc1 L_aux")
    NPRE = 4
    if tlb:
        E(f"s_cmp_lg_u32 {sW}, 1")
        E("s_cbranch_scc1 L_notlb")
        if tlb < 32:
            E(f"s_cmp_ge_u32 {sJ}, {tlb}")
            E("s_cbranch_scc1 L_notlb")
        E(f"v_lshlrev_b32 v6, 21, {vLANE}")
        E(f"s_mov_b64 s[12:13], s[56:57]")
        E(f"s_mov_b32 s14, 0x4000000")
        E(f"s_mov_b32 s15, 0x20000")
        E("s_mov_b64 exec, 15")
        E(f"buffer_load_dword v25, v6, {rK}, {sBASE} offen nt")
        E(f"buffer_load_dword v25, v6, {rV}, {sBASE} offen nt")
        E("s_mov_b64 exec, 1")
        E(f"s_lshl_b32 {sT0}, {sG}, 19")
        E(f"v_mov_b32 v7, {sT0}")
        for pr in (60, 64, 66, 72, 76):
            E(f"global_load_dword v25, {'v7' if pr == 60 else 'v6'}, s[{pr}:{pr+1}]")
        E("s_mov_b64 exec, -1")
        E.label("L_notlb")
    if np0 < NPRE: load_tile("k", 0, 0, 0, "K0", lo=np0, hi=NPRE, setp=False)
    srd_setup()
    late_setup()
    E(f"v_mov_b32 v19, 1")
    E("s_mov_b64 exec, 1")
    E(f"s_waitcnt vmcnt({NPRE-np0})")
    E(f"ds_add_u32 v5, v19 offset:4")
    E("s_mov_b64 exec, -1")
    stamp("d")
    E("s_branch L_stream")

    def flag(n):
        E(f"s_lshl_b32 {sT0}, {sJ}, 7")
        E(f"s_lshl_b32 {sT1}, {sG}, 12")
        E(f"s_add_u32 {sT0}, {sT0}, {sT1}")
        E(f"s_add_u32 {sT0}, {sT0}, {WS_CLR}")
        E(f"v_mov_b32 v{T0}, {sXCC}")
        E(f"v_mov_b32 v{T1}, {sTAG}")
        E(f"v_mov_b32 v{T2}, {sXCC}")
        E(f"v_mov_b32 v{T3}, {sTAG}")
        E("s_mov_b64 exec, 0xff")
        E(f"s_waitcnt vmcnt({n})")
        E(f"buffer_store_dwordx4 v[{T0}:{T3}], {vV}, {rWS}, {sT0} offen {'' if '5' in dbg else 'sc1'}")
        E("s_mov_b64 exec, -1")
    def w1_dma():
        E(f"v_lshrrev_b32 v{T0}, 2, {vLANE}")
        E(f"v_mul_u32_u24 v{T0}, 3584, v{T0}")
        E(f"v_and_b32 v{T1}, 3, {vLANE}")
        E(f"v_lshl_add_u32 v{T0}, v{T1}, 4, v{T0}")
        E(f"s_mul_i32 {sT0}, {sW}, {16*3584}")
        E(f"s_lshl_b32 {sT1}, {sM}, 6")
        E(f"s_add_u32 {sT0}, {sT0}, {sT1}")
        E(f"s_lshl_b32 {sT3}, {sW}, 13")
        E(f"s_add_u32 m0, {sT3}, {L_WT}")
        for i in range(4):
            E(f"buffer_load_dwordx4 v{T0}, {rWT}, {sT0} offen {wflags} lds")
            if i < 3:
                E(f"s_add_u32 {sT0}, {sT0}, {128*3584}")
                E(f"s_add_u32 m0, m0, 1024")
    def w2_dma():
        E(f"v_lshrrev_b32 v{T0}, 3, {vLANE}")
        E(f"v_and_b32 v{T1}, 7, {vLANE}")
        E(f"v_lshlrev_b32 v{T1}, 4, v{T1}")
        E(f"v_lshl_add_u32 v{T0}, v{T0}, 10, v{T1}")
        E(f"s_lshl_b32 {sT0}, {sM}, 15")
        E(f"s_lshl_b32 {sT1}, {sW}, 7")
        E(f"s_add_u32 {sT0}, {sT0}, {sT1}")
        E(f"s_lshl_b32 {sT3}, {sW}, 13")
        E(f"s_add_u32 m0, {sT3}, {L_WT + 4096}")
        for i in range(4):
            E(f"buffer_load_dwordx4 v{T0}, {rW2}, {sT0} offen {oflags} lds")
            if i < 3:
                E(f"s_add_u32 {sT0}, {sT0}, 8192")
                E(f"s_add_u32 m0, m0, 1024")
    def w1_pref(skip):
        E(f"s_sub_u32 {sT3}, {sJW}, 16")
        E(f"s_cmp_ge_u32 {sT3}, 8")
        E(f"s_cbranch_scc1 {skip}")
        E(f"v_lshrrev_b32 v{T0}, 5, {vLANE}")
        E(f"v_mul_u32_u24 v{T0}, 3584, v{T0}")
        E(f"v_and_b32 v{T1}, 31, {vLANE}")
        E(f"v_lshl_add_u32 v{T0}, v{T1}, 4, v{T0}")
        E(f"s_lshl_b32 {sT3}, {sT3}, 3")
        E(f"s_add_u32 {sT3}, {sT3}, {sW}")
        E(f"s_mul_i32 {sT0}, {sT3}, {8*3584}")
        E(f"s_mul_i32 {sT1}, {sG}, 448")
        E(f"s_and_b32 {sT1}, {sT1}, 0xffffff80")
        E(f"s_add_u32 {sT0}, {sT0}, {sT1}")
        E(f"s_mov_b32 m0, {L_WO}")
        for i in range(4):
            E(f"buffer_load_dwordx4 v{T0}, {rWT}, {sT0} offen lds")
            if i < 3: E(f"s_add_u32 {sT0}, {sT0}, {2*3584}")
    def wo_pref():
        u = len(E.L)
        E(f"s_cmp_lt_u32 {sJ}, 16")
        E(f"s_cbranch_scc1 L_wp{u}")
        E(f"v_lshrrev_b32 v{T0}, 3, {vLANE}")
        E(f"v_and_b32 v{T1}, 7, {vLANE}")
        E(f"v_lshlrev_b32 v{T1}, 4, v{T1}")
        E(f"v_lshl_add_u32 v{T0}, v{T0}, 10, v{T1}")
        E(f"s_lshl_b32 {sT0}, {sG}, 19")
        E(f"s_bfe_u32 {sT1}, {sJ}, 0x10003")
        E(f"s_lshl_b32 {sT1}, {sT1}, 18")
        E(f"s_add_u32 {sT0}, {sT0}, {sT1}")
        E(f"s_and_b32 {sT1}, {sJ}, 7")
        E(f"s_lshl_b32 {sT1}, {sT1}, 7")
        E(f"s_add_u32 {sT0}, {sT0}, {sT1}")
        E(f"s_lshl_b32 {sT1}, {sW}, 15")
        E(f"s_add_u32 {sT0}, {sT0}, {sT1}")
        E(f"s_mov_b32 s86, {512*4096*2}")
        E(f"s_mov_b32 m0, {L_WO}")
        for i in range(wopf):
            E(f"buffer_load_dwordx4 v{T0}, {rWO}, {sT0} offen lds")
            if i < wopf-1: E(f"s_add_u32 {sT0}, {sT0}, 8192")
        E(f"s_mov_b32 s86, 0")
        E.label(f"L_wp{u}")
    def tail_dma(pos):
        if tpwo != pos or "o" in dbg: return
        u = len(E.L)
        if mlearly:
            E(f"s_cmp_eq_u32 {sML}, 0")
            E(f"s_cbranch_scc1 L_ta{u}")
            (w1_dma if mlearly == 1 else w2_dma)()
            E(f"s_branch L_tb{u}")
            E.label(f"L_ta{u}")
        if w1pf == 1:
            w1_pref(f"L_tc{u}")
            E(f"s_branch L_tb{u}")
            E.label(f"L_tc{u}")
        slice_prep()
        E(f"s_lshl_b32 {sT0}, {sG}, 19")
        E(f"s_lshr_b32 {sT1}, {sJW}, 3")
        E(f"s_lshl_b32 {sT1}, {sT1}, 18")
        E(f"s_add_u32 {sT0}, {sT0}, {sT1}")
        E(f"s_and_b32 {sT1}, {sJW}, 7")
        E(f"s_lshl_b32 {sT1}, {sT1}, 7")
        E(f"s_add_u32 {sT0}, {sT0}, {sT1}")
        slice_dma(rWO, 1024, sT0, L_WO, 4)
        E.label(f"L_tb{u}")
        vm.extend(["WO"]*4)

    E.label("L_aux")
    srd_setup()
    CR = 8; XQ = 12; TRA = 16; XF = 20
    G6 = S[6]; AD = S[6] + 16
    E(f"v_and_b32 v4, 31, {vLANE}")
    E(f"v_lshlrev_b32 v4, 4, v4")
    E(f"v_lshlrev_b32 v6, 2, {vLANE}")
    E(f"s_lshl_b32 {sT0}, {sT2}, 9")
    E(f"s_cmp_ge_u32 {sA}, 96")
    E("s_cbranch_scc1 L_ax")
    E(f"buffer_load_dwordx4 v[{CR}:{CR+3}], v4, {rC}, {sT0} offen")
    E("s_branch L_ay")
    E.label("L_ax")
    E(f"buffer_load_dwordx4 v[{CR}:{CR+3}], {vV}, {rX}, 0 offen")
    E(f"buffer_load_dword v{XQ}, v6, {rX}, {sT0} offen")
    E(f"buffer_load_dword v{XQ+1}, v6, {rX}, {sT0} offen offset:256")
    E.label("L_ay")
    if nb: krange(0, 4, 0)
    late_setup()

    E(f"v_lshrrev_b32 v{T0}, 4, {vLANE}")
    E(f"v_bfe_u32 v{T1}, {vLANE}, 2, 2")
    E(f"v_lshl_add_u32 v{T2}, v{T0}, 3, v{T1}")
    E(f"v_lshlrev_b32 v{T2}, 7, v{T2}")
    E(f"v_and_b32 v{T3}, 3, {vLANE}")
    E(f"v_lshl_add_u32 v{T2}, v{T3}, 3, v{T2}")
    E(f"v_bfe_u32 v{T1}, {vLANE}, 3, 2")
    E(f"v_lshl_add_u32 v{TRA}, v{T1}, 5, v{T2}")
    for nt in range(1, 4): E(f"v_xor_b32 v{TRA+nt}, {nt*32}, v{TRA}")
    vAR = 7
    E(f"v_lshlrev_b32 v{vAR}, 4, v{T0}")
    E(f"s_waitcnt vmcnt({4 if nb else 0})")
    mktag()
    stamp("a0")
    for p in range(4):
        E(f"v_lshlrev_b32 v{XF+2*p}, 16, v{CR+p}")
        E(f"v_and_b32 v{XF+2*p+1}, 0xffff0000, v{CR+p}")
    E(f"s_cmp_ge_u32 {sA}, 96")
    E("s_cbranch_scc1 L_auxq")
    E(f"s_mov_b32 {sT0}, {f32bits(-math.log2(math.e)):#x}")
    for i in range(8): E(f"v_mul_f32 v{G6+i}, {sT0}, v{XF+i}")
    for i in range(8): E(f"v_exp_f32 v{G6+i}, v{G6+i}")
    for i in range(8): E(f"v_add_f32 v{G6+i}, 1.0, v{G6+i}")
    for i in range(8): E(f"v_rcp_f32 v{G6+i}, v{G6+i}")
    for i in range(8): E(f"v_mul_f32 v{XF+i}, v{XF+i}, v{G6+i}")
    for p in range(4): E(f"v_cvt_pk_bf16_f32 v{CR+p}, v{XF+2*p}, v{XF+2*p+1}")
    E(f"ds_write_b128 v4, v[{CR}:{CR+3}] offset:{L_ACT}")
    E("s_branch L_gemv")
    E.label("L_auxq")
    vm[:] = ["x"]*64
    if nb: krange(4, 8, da)
    else:
        for T in range(k1): load_tile("k", T, T, dburst, f"K{T}", setp=False, lo=(np0 if T == 0 else 0))
    m, v, t = 8, 9, 10
    vals = list(range(XF, XF+8))
    E(f"v_add_f32 v{m}, v{vals[0]}, v{vals[1]}")
    for r in vals[2:]: E(f"v_add_f32 v{m}, v{m}, v{r}")
    red_ror("v_add_f32", [m], (1, 2, 4, 8)); red_rows("v_add_f32", [m], t)
    E(f"v_mul_f32 v{m}, {f32bits(1.0/512):#x}, v{m}")
    for i, r in enumerate(vals):
        E(f"v_sub_f32 v{t}, v{r}, v{m}")
        E(f"v_mul_f32 v{v}, v{t}, v{t}" if i == 0 else f"v_fmac_f32 v{v}, v{t}, v{t}")
    red_ror("v_add_f32", [v], (1, 2, 4, 8)); red_rows("v_add_f32", [v], t)
    E(f"v_mul_f32 v{v}, {f32bits(1.0/512):#x}, v{v}")
    rb2(m, v, m, v, t)
    E(f"v_add_f32 v{v}, {f32bits(1e-5):#x}, v{v}")
    rb1(v, v)
    E(f"v_sqrt_f32 v{v}, v{v}")
    rb1(v, v)
    E(f"v_rcp_f32 v{v}, v{v}")
    for u in range(2):
        n0, n1 = XF+2*u, XF+2*u+1
        E(f"v_lshlrev_b32 v{n0}, 16, v{XQ+u}")
        E(f"v_and_b32 v{n1}, 0xffff0000, v{XQ+u}")
        E(f"v_sub_f32 v{n0}, v{n0}, v{m}")
        E(f"v_sub_f32 v{n1}, v{n1}, v{m}")
        rb2(n0, n1, n0, n1, t)
        E(f"v_mul_f32 v{n0}, v{n0}, v{v}")
        E(f"v_mul_f32 v{n1}, v{n1}, v{v}")
        rb2(n0, n1, n0, n1, t)
    E(f"v_lshrrev_b32 v{T0}, 5, {vLANE}")
    E(f"v_lshl_add_u32 v4, v{T0}, 10, v4")
    E(f"s_lshl_b32 {sT4}, {sT2}, 12")
    E(f"s_add_u32 {sT4}, {sT4}, {WS_EP}")
    E(f"s_add_u32 {sT3}, {sT4}, 8192")
    def modpoll():
        for arr in range(2):
            for u in range(2):
                for part in range(2):
                    r = G6 + (arr*4 + u*2 + part)*4
                    E(f"buffer_load_dwordx4 v[{r}:{r+3}], v4, {rWS}, {sT3 if arr else sT4} offen offset:{u*2048 + part*512} sc1")
    if nb:
        krange(8, pa, da)
        modpoll()
        krange(pa, pa+la, da+8)
        E(f"s_waitcnt vmcnt({la})")
        tagcheck([G6+1+2*i for i in range(16)], T0)
        E("s_cbranch_vccz L_gotmod")
    E.label("L_pollmod")
    modpoll()
    E("s_waitcnt vmcnt(0)")
    tagcheck([G6+1+2*i for i in range(16)], T0)
    E("s_cbranch_vccz L_gotmod")
    if slp: E(f"s_sleep {slp}")
    spin_check("L_pollmod")
    E.label("L_gotmod")
    stamp(2)
    for u in range(2):
        n0, n1 = XF+2*u, XF+2*u+1
        s0 = G6 + u*8; s1 = s0+2; c0 = G6 + 16 + u*8; c1 = c0+2
        for r in (s0, s1, c0, c1): E(f"v_add_f32 v{r}, v{r}, v{r+4}")
        rb2(s0, s1, s0, s1, t); rb2(c0, c1, c0, c1, t)
        E(f"v_add_f32 v{c0}, 1.0, v{c0}")
        E(f"v_add_f32 v{c1}, 1.0, v{c1}")
        rb2(c0, c1, c0, c1, t)
        E(f"v_mul_f32 v{n0}, v{n0}, v{c0}")
        E(f"v_mul_f32 v{n1}, v{n1}, v{c1}")
        rb2(n0, n1, n0, n1, t)
        E(f"v_add_f32 v{n0}, v{n0}, v{s0}")
        E(f"v_add_f32 v{n1}, v{n1}, v{s1}")
        E(f"v_cvt_pk_bf16_f32 v{n0}, v{n0}, v{n1}")
        E(f"ds_write_b32 v6, v{n0} offset:{L_ACT + u*256}")
    E.label("L_gemv")
    E(f"ds_read_b32 v{T0}, v5 offset:4")
    E("s_waitcnt lgkmcnt(0)")
    E(f"v_readfirstlane_b32 {sT1}, v{T0}")
    E(f"s_cmp_lg_u32 {sT1}, 7")
    E(f"s_cbranch_scc1 L_gemv")
    stamp("a2")
    if stamps: E("s_waitcnt lgkmcnt(0)")
    def g_reads(st):
        b = S[4] + (st % 3)*20
        E(f"ds_read_b128 v[{b}:{b+3}], v{vAR} offset:{L_ACT + st*64}")
        for nt in range(4):
            for q in range(2):
                r = b + 4 + nt*4 + q*2
                E(f"ds_read_b64_tr_b16 v[{r}:{r+1}], v{TRA+nt} offset:{L_WM + st*4096 + q*512}")
    g_reads(0); g_reads(1)
    E(f"s_lshl_b32 {sT4}, {sA}, 9")
    E(f"s_add_u32 {sT4}, {sT4}, {WS_EP}")
    E(f"v_lshlrev_b32 v4, 3, {vLANE}")
    for st in range(8):
        E(f"s_waitcnt lgkmcnt({9 if st < 7 else 0})")
        if st + 2 < 8: g_reads(st+2)
        b = S[4] + (st % 3)*20
        for nt in range(4):
            d = AD + 4*nt
            c = "0" if st == 0 else f"v[{d}:{d+3}]"
            E(f"v_mfma_f32_16x16x32_bf16 v[{d}:{d+3}], v[{b}:{b+3}], v[{b+4+4*nt}:{b+7+4*nt}], {c}")
    E(f"v_mov_b32 v9, {sTAG}")
    for nt in range(1, 4):
        E(f"v_mov_b32_dpp v{AD}, v{AD+4*nt} quad_perm:[0,1,2,3] row_mask:{1<<nt:#x} bank_mask:0xf")
    E(f"v_mov_b32 v8, v{AD}")
    E(f"s_cmp_lt_u32 {sA}, 32")
    E(f"s_cselect_b32 {sT2}, 1, {sT2}")
    E(f"s_cmp_eq_u32 {sT2}, 0")
    E("s_cbranch_scc1 L_owner")
    E(f"buffer_store_dwordx2 v[8:9], v4, {rWS}, {sT4} offen sc1")
    stamp(1)
    E(f"s_cmp_ge_u32 {sA}, 96")
    E(f"s_cbranch_scc1 {(f'L_x{pa+la}' if ext else f'L_j{pa+la}') if nb else f'L_cu{k1}'}")
    E(("s_branch L_x4" if ext == 2 else "s_branch L_stream") if nb else "s_branch L_cu0")
    E.label("L_owner")
    E(f"s_cmp_ge_u32 {sA}, 96")
    E(f"s_cbranch_scc1 L_own2")

    def redpoll(): E(f"buffer_load_dwordx2 v[10:11], v4, {rWS}, {sT4} offen offset:512 sc1")
    if nb:
        krange(4, pa+la, da)
        E.label("L_own2")
        krange(pa+la, pb, da)
        redpoll()
        krange(pb, pb+lb, da+1)
        E(f"s_waitcnt vmcnt({lb})")
        E(f"v_cmp_ne_u32 vcc, {sTAG}, v11")
        E("s_cbranch_vccz L_gotred")
    else:
        vm[:] = ["x"]*64
        for T in range(k1): load_tile("k", T, T, dburst, f"K{T}", setp=False, lo=(np0 if T == 0 else 0))
        E.label("L_own2")
        for T in range(k1, k2): load_tile("k", T, T, dburst, f"K{T}", setp=False, lo=(np0 if T == 0 else 0))
    E.label("L_pollred")
    E(f"buffer_load_dwordx2 v[10:11], v4, {rWS}, {sT4} offen offset:512 sc1")
    E("s_waitcnt vmcnt(0)")
    E(f"v_cmp_ne_u32 vcc, {sTAG}, v11")
    E("s_cbranch_vccz L_gotred")
    spin_check("L_pollred")
    E.label("L_gotred")
    E(f"v_add_f32 v8, v8, v10")
    E(f"s_lshl_b32 {sT0}, {sA}, 7")
    E(f"s_add_u32 {sT0}, {sT0}, {WS_MODG}")
    E(f"v_mov_b32_dpp v10, v8 quad_perm:[1,1,3,3] {DPPM}")
    E(f"v_cvt_pk_bf16_f32 v8, v8, v10")
    E(f"s_mov_b32 exec_lo, 0x55555555")
    E(f"s_mov_b32 exec_hi, 0x55555555")
    E(f"buffer_store_dwordx2 v[8:9], v6, {rWS}, {sT0} offen sc1")
    E(f"s_mov_b64 exec, -1")
    stamp(3)
    E((f"s_branch L_x{pb+lb}" if ext else f"s_branch L_j{pb+lb}") if nb else f"s_branch L_cu{k2}")
    if nb and ext:
        for n0 in range(4 if ext == 2 else pa+la, 40, 4):
            E.label(f"L_x{n0}")
            krange(n0, n0+4, dx)
        E.label("L_x40")
        if prio == 3: E("s_setprio 2")
        E("s_branch L_v1")
    vm[:] = ["x"]*depth0
    for T in range(0 if nb else 4):
        E.label(f"L_cu{T}")
        if p0 != 3: E(f"s_setprio {p0}")
        if wmx and T >= wmx:
            E(f"s_cmp_lt_u32 {sA}, 96")
            E(f"s_cbranch_scc1 L_sk{T}")
        load_tile("k", T, T, depth0, f"K{T}", setp=False, lo=(np0 if T == 0 else 0))
    E.label("L_cu4")
    assert tpwo != 2
    if not nb:
        load_tile("v", 0, 4, depth0, "V0", setp=False)
        setlight()
        E("s_branch L_v1")

    vm[:] = ["K0"]*NPRE
    E.label("L_stream")
    setlight(); light[0] = True
    load_tile("k", 0, 0, depth, "K0", lo=NPRE)
    E(f"s_cmp_lg_u32 {sW}, {99 if 'l' in dbg else fwave}")
    E("s_cbranch_scc1 L_sk1")
    for r in range(20, 24): E(f"v_mov_b32 v{r}, -1")
    E(f"s_cmp_ge_u32 {sJ}, 16")
    E("s_cbranch_scc1 L_noclr2")
    if rep:
        E(f"v_lshrrev_b32 v18, 4, {vLANE}")
        E(f"v_lshlrev_b32 v18, 15, v18")
        E(f"v_and_b32 v19, 15, {vLANE}")
        E(f"v_lshl_add_u32 v18, v19, 4, v18")
        E(f"buffer_store_dwordx4 v[20:23], v18, {rWS}, {sAOP} offen sc1")
        E(f"s_add_u32 {sT0}, {sAOP}, {4*32768}")
        E(f"buffer_store_dwordx4 v[20:23], v18, {rWS}, {sT0} offen sc1")
    else:
        E("s_mov_b64 exec, 0xffff")
        if "1" not in dbg: E(f"buffer_store_dwordx4 v[20:23], {vV}, {rWS}, {sAOP} offen sc1")
        E("s_mov_b64 exec, -1")
    E.label("L_noclr2")
    if mlite:
        E(f"s_sub_u32 {sT0}, {sJ}, 16")
        E(f"s_cmp_ge_u32 {sT0}, 7")
        E("s_cbranch_scc1 L_noclr0")
        E(f"s_add_u32 {sT0}, {sPUB}, {(jml-16)*2048}")
    else:
        E(f"s_cmp_eq_u32 {sML}, 0")
        E("s_cbranch_scc1 L_noclr0")
        E(f"s_mov_b32 {sT0}, {sPUB}")
    for i in range(0 if "2" in dbg else 2):
        E(f"buffer_store_dwordx4 v[20:23], {vV}, {rWS}, {sT0} offen offset:{1024*i} sc1")
    E.label("L_noclr0")
    if wb:
        sv = list(vm)
        load_tile("k", 1, 1, depth+wb, "K1")
        mktag()
        flag(8)
        load_tile("k", 2, 2, depth+wb, "K2")
        E("s_branch L_sk3")
        vm[:] = sv
    load_tile("k", 1, 1, depth, "K1", hi=4)
    mktag()
    if fpos < 0 and "3" not in dbg: flag(4)
    if fixw >= 0:
        E(f"s_cmp_lg_u32 s2, {fixw}")
        E("s_cbranch_scc1 L_nofw")
        E(f"v_mov_b32 v{T0}, s48")
        E(f"v_mov_b32 v{T2}, 0x800")
        E(f"buffer_store_dword v{T0}, v{T2}, {rWS}, 0 offen sc1")
        E.label("L_nofw")
    E("s_branch L_k1b")
    E.label("L_sk1")
    del vm[-4:]
    load_tile("k", 1, 1, depth, "K1", hi=4)
    mktag()
    E.label("L_k1b")
    E.raw("L_j12:")
    load_tile("k", 1, 1, depth, "K1", lo=4)
    if w1e:
        E(f"s_cmp_ge_u32 {sA}, 224")
        E(f"s_cselect_b32 {sT0}, {sML}, 0")
        E(f"s_cmp_eq_u32 {sT0}, 0")
        E("s_cbranch_scc1 L_sk2")
        w1_dma()
    E.label("L_sk2")
    E.raw("L_j16:")
    stamp("k2")
    load_tile("k", 2, 2, depth, "K2", hi=4)
    E.raw("L_j20:")
    load_tile("k", 2, 2, depth, "K2", lo=4)
    E.label("L_sk3")
    E.raw("L_j24:")
    load_tile("k", 3, 3, depth, "K3", hi=4)
    E.raw("L_j28:")
    load_tile("k", 3, 3, depth, "K3", lo=4)
    E.label("L_sk4")
    E.raw("L_j32:")
    stamp("k4")
    if nb and prio == 3: E("s_setprio 2")
    tail_dma(2)
    QP = 8
    def qloads():
        if "p" in dbg: return
        u = len(E.L)
        if not mlite:
            E(f"s_cmp_eq_u32 {sML}, 0")
            E(f"s_cbranch_scc1 L_nwf{u}")
            E(f"buffer_load_dwordx2 v[20:21], v17, {rWS}, 0 offen sc1")
            E(f"buffer_load_dwordx2 v[22:23], v17, {rWS}, 0 offen offset:1024 sc1")
            E.label(f"L_nwf{u}")
        E(f"buffer_load_dwordx4 v[{QP}:{QP+3}], v18, {rWS}, {sT2} offen sc1")
        E(f"buffer_load_dwordx4 v[{QP+4}:{QP+7}], v18, {rWS}, {sT2} offen offset:16 sc1")
        E(f"buffer_load_dwordx2 v[{T0}:{T1}], v19, {rWS}, 0 offen sc1")
    seq = [("v", 0, 4, i) for i in range(8)] + [("v", 1, 5, i) for i in range(8)] + [("v", 2, 6, i) for i in range(8)] + [("v", 3, 0, i) for i in range(8)]
    def issue(x): load_tile(x[0], x[1], x[2], (depthv if (depthv and x[1]*8+x[3] >= dvat) else depth), f"V{x[1]}", lo=x[3], hi=x[3]+1)
    for n_, x in enumerate(seq[:8]):
        if fpos == n_:
            E(f"s_cmp_lg_u32 {sW}, {fwave}")
            E("s_cbranch_scc1 L_nofl")
            flag(depth)
            E.label("L_nofl")
        if n_ == 4:
            E.raw("L_j36:")
            if nb and prio == 3: E("s_setprio 2")
        issue(x)
    E.label("L_v1")
    if wopf and wopos == 2: wo_pref()
    for x in seq[8:qat-1]: issue(x)
    E(f"v_mov_b32 v4, 1")
    E("s_mov_b64 exec, 1")
    E(f"ds_add_rtn_u32 v4, v5, v4 offset:12")
    E("s_mov_b64 exec, -1")
    issue(seq[qat-1])
    E(f"s_cmp_eq_u32 {sML}, 0")
    E("s_cbranch_scc1 L_nomdma")
    E(f"s_lshl_b32 {sT0}, {sW}, 10")
    E(f"s_add_u32 m0, {sT0}, {L_MOD}")
    E(f"s_add_u32 {sT0}, {sT0}, {WS_MODG + 4096}")
    E(f"buffer_load_dwordx4 {vV}, {rWS}, {sT0} offen sc1 lds")
    E.label("L_nomdma")
    E(f"v_lshlrev_b32 v18, 1, {vK}")
    E(f"s_lshl_b32 {sT2}, {sG}, 11")
    E(f"s_add_u32 {sT2}, {sT2}, {WS_QG}")
    E(f"v_and_b32 v19, 31, {vLANE}")
    E(f"s_lshl_b32 {sT0}, {sG}, 12")
    E(f"s_add_u32 {sT0}, {sT0}, {WS_CLR}")
    E(f"v_lshl_add_u32 v19, v19, 7, {sT0}")
    E(f"v_mov_b32 v21, {sTAG}")
    E(f"v_mov_b32 v23, {sTAG}")
    E(f"v_lshrrev_b32 v17, 3, {vLANE}")
    E(f"v_lshlrev_b32 v17, 12, v17")
    E(f"v_and_b32 v16, 7, {vLANE}")
    E(f"v_lshl_add_u32 v17, v16, 7, v17")
    E(f"v_add_u32 v17, {WS_CLR}, v17")
    E("s_waitcnt lgkmcnt(0)")
    E(f"v_readfirstlane_b32 {sSK}, v4")
    E(f"s_cmp_lg_u32 {sSK}, 0")
    E("s_cbranch_scc1 L_noqp")
    if dyn == 1:
        E(f"s_load_dwordx2 s[32:33], s[0:1], 88")
        E(f"s_mov_b32 s34, 256")
        E(f"s_lshl_b32 {sT0}, {sG}, 5")
        E(f"s_xor_b32 {sT1}, {sML}, 1")
        E(f"v_mov_b32 v24, {sT1}")
        E(f"v_mov_b32 v25, 0")
        E("s_waitcnt lgkmcnt(0)")
        E("s_mov_b64 exec, 1")
        E(f"buffer_atomic_add v24, v25, {rC}, {sT0} offen sc0 sc1")
        E("s_mov_b64 exec, -1")
    qloads()
    E.label("L_noqp")
    if dyn == 2:
        E(f"s_cmp_lg_u32 {sSK}, {dynt}")
        E("s_cbranch_scc1 L_notk")
        E(f"s_load_dwordx2 s[32:33], s[0:1], 88")
        E(f"s_mov_b32 s34, 256")
        E(f"s_lshl_b32 {sT0}, {sG}, 5")
        E(f"s_xor_b32 {sT1}, {sML}, 1")
        E(f"v_mov_b32 v24, {sT1}")
        E(f"v_mov_b32 v25, 0")
        E("s_waitcnt lgkmcnt(0)")
        E("s_mov_b64 exec, 1")
        E(f"buffer_atomic_add v24, v25, {rC}, {sT0} offen sc0 sc1")
        E("s_mov_b64 exec, -1")
        E.label("L_notk")
    for x in seq[qat:18]: issue(x)
    nxt = seq[18:]
    stamp("q0")
    if dyn == 2:
        E(f"s_cmp_lg_u32 {sSK}, {dynt}")
        E("s_cbranch_scc1 L_notk2")
        E(f"s_lshl_b32 {sT0}, {sML}, 6")
        E(f"s_add_u32 {sT0}, {sT0}, 1")
        E(f"s_waitcnt vmcnt({18-qat})")
        E(f"v_add_u32 v24, {sT0}, v24")
        E("s_mov_b64 exec, 1")
        E(f"ds_write_b32 v5, v24 offset:20")
        E("s_mov_b64 exec, -1")
        E.label("L_notk2")
    E(f"s_cmp_lg_u32 {sSK}, 0")
    E("s_cbranch_scc1 L_waitq")
    E(f"s_waitcnt vmcnt({18-qat})")
    QT = [QP+1, QP+3, QP+5, QP+7, T1, 21, 23]
    E.label("L_checkq")
    tagcheck(QT, 6)
    E("s_branch L_gotq" if "q" in dbg else "s_cbranch_vccz L_gotq")
    if slpq: E(f"s_sleep {slpq}")
    qloads()
    E("s_waitcnt vmcnt(0)")
    spin_check("L_checkq")
    E.label("L_gotq")
    E(f"v_cmp_ne_u32 vcc, {sXCC}, v{T0}")
    for i in range(4): E(f"v_mov_b32 v{Q0+i}, v{QP+2*i}")
    E(f"ds_write_b128 {vV}, v[{Q0}:{Q0+3}] offset:{L_Q}")
    E(f"s_cmp_eq_u64 vcc, 0")
    E(f"s_cselect_b32 {sPL}, {2 if fast else 1}, 1")
    if dyn == 1:
        E(f"v_readfirstlane_b32 {sJW}, v24")
        E(f"s_lshl_b32 {sT0}, {sML}, 6")
        E(f"s_or_b32 {sJW}, {sJW}, {sT0}")
        E(f"s_lshl_b32 {sT0}, {sJW}, 8")
        E(f"s_or_b32 {sT0}, {sT0}, {sPL}")
        E(f"v_mov_b32 v4, {sT0}")
    else: E(f"v_mov_b32 v4, {sPL}")
    E("s_waitcnt lgkmcnt(0)")
    E(f"ds_write_b32 v5, v4 offset:16")
    def gstore(text):
        if "s" in dbg: return
        if "f" in dbg: E(text); return
        u = len(E.L)
        E(f"s_cmp_eq_u32 {sPL}, 2")
        E(f"s_cbranch_scc1 L_gs{u}")
        E(text + " sc1")
        E(f"s_branch L_gt{u}")
        E.raw(f"L_gs{u}:")
        E(text)
        E.raw(f"L_gt{u}:")
    part_rows(6, 7)
    for r in (T0, T1, T2, T3): E(f"v_mov_b32 v{r}, -1")
    gstore(f"buffer_store_dwordx4 v[{T0}:{T3}], v6, {rWS}, {sT0} offen")
    E("s_branch L_haveq")
    E.label("L_waitq")
    E(f"ds_read_b32 v4, v5 offset:16")
    E("s_waitcnt lgkmcnt(0)")
    E(f"v_readfirstlane_b32 {sPL}, v4")
    E(f"s_cmp_lg_u32 {sPL}, 0")
    E("s_cbranch_scc1 L_readq")
    E("s_sleep 1")
    spin_check("L_waitq")
    E.label("L_readq")
    if dyn == 1:
        E(f"s_lshr_b32 {sJW}, {sPL}, 8")
        E(f"s_and_b32 {sPL}, {sPL}, 0xff")
    E(f"ds_read_b128 v[{Q0}:{Q0+3}], {vV} offset:{L_Q}")
    vmwait("K3")
    E("s_waitcnt lgkmcnt(0)")
    E.label("L_haveq")
    def role_setup():
        E(f"s_cmp_lt_u32 {sJW}, 16")
        E(f"s_cselect_b32 s86, {512*4096*2}, 0")
        E(f"s_lshl_b32 {sAOP}, {sG}, 12")
        E(f"s_lshl_b32 {sT0}, {sJW}, 8")
        E(f"s_add_u32 {sAOP}, {sAOP}, {sT0}")
        E(f"s_add_u32 {sAOP}, {sAOP}, {WS_AO}")
    if dyn == 1: role_setup()
    setlight()
    stamp(4)
    nq = len(vm)
    def sc(T, i): return 20 + i if T == 0 else S[1] + 4*i + (T-1)
    SCR = [sc(T, i) for T in range(4) for i in range(8)]
    def s_tile(T):
        for i in range(8):
            r = S[T] + 4*i
            E(f"v_mfma_f32_16x16x32_bf16 v[{r}:{r+3}], v[{r}:{r+3}], v[{Q0}:{Q0+3}], 0")
        for c in range(4):
            for i in range(8):
                r = S[T] + 4*i; d = sc(T, i)
                if c == 0: E(f"v_mov_b32_dpp v{d}, v{r} quad_perm:[0,0,0,0] {DPPM}")
                else: E(f"v_add_f32_dpp v{d}, v{r+c}, v{d} quad_perm:[{c},{c},{c},{c}] {DPPM}")
    def s_round(T):
        rs = SCR[8*T:8*T+8]
        for i in range(0, 8, 2): rb2(rs[i], rs[i+1], rs[i], rs[i+1], T0 + i//2)
        for r in rs: E(f"v_mul_f32 v{r}, {sT1}, v{r}")
        for i in range(0, 8, 2): rb2(rs[i], rs[i+1], rs[i], rs[i+1], T0 + i//2)
    E(f"s_mov_b32 {sT1}, {f32bits(128.0**-0.5):#x}")
    def more(n, leave=0):
        for _ in range(n*rate):
            if len(nxt) <= leave: return
            issue(nxt.pop(0))
    for T in range(4):
        s_tile(T); more(1)
        s_round(T); more(1 if T < 2 else 0)
    stamp("c0")
    MX, LS = 6, 7
    E(f"v_max3_f32 v{MX}, v{SCR[0]}, v{SCR[1]}, v{SCR[2]}")
    for i in range(3, 31, 2): E(f"v_max3_f32 v{MX}, v{MX}, v{SCR[i]}, v{SCR[i+1]}")
    E(f"v_max_f32 v{MX}, v{MX}, v{SCR[31]}")
    red_rows("v_max_f32", [MX], T0)
    E(f"v_mul_f32 v{MX}, {sC}, v{MX}")
    more(1)
    for r in SCR: E(f"v_fma_f32 v{r}, v{r}, {sC}, -v{MX}")
    more(1)
    for r in SCR: E(f"v_exp_f32 v{r}, v{r}")
    more(1)
    E(f"v_add_f32 v{LS}, v{SCR[0]}, v{SCR[1]}")
    E(f"v_add_f32 v{T0}, v{SCR[2]}, v{SCR[3]}")
    for i in range(4, 32, 2):
        E(f"v_add_f32 v{LS}, v{LS}, v{SCR[i]}")
        E(f"v_add_f32 v{T0}, v{T0}, v{SCR[i+1]}")
    E(f"v_add_f32 v{LS}, v{LS}, v{T0}")
    red_rows("v_add_f32", [LS], T0)
    E(f"v_and_b32 v{T0}, 12, {vLANE}")
    E(f"v_lshlrev_b32 v{T0}, 1, v{T0}")
    E(f"s_lshl_b32 {sT0}, {sW}, 5")
    E(f"v_add_u32 v{T0}, {sT0}, v{T0}")
    E(f"ds_write_b64 v{T0}, v[{MX}:{LS}] offset:{L_STATS}")
    E(f"v_mov_b32 v{T2}, 1")
    E(f"s_waitcnt vmcnt({len(vm) - nq}) lgkmcnt(0)")
    E("s_mov_b64 exec, 1")
    E(f"ds_add_rtn_u32 v{T2}, v5, v{T2}")
    E("s_mov_b64 exec, -1")
    PR = [8, 12, 20, 24]
    for T in range(4):
        for i in range(4): E(f"v_cvt_pk_bf16_f32 v{PR[T]+i}, v{SCR[8*T+2*i]}, v{SCR[8*T+2*i+1]}")
    more(1)
    E("s_waitcnt lgkmcnt(0)")
    E(f"v_readfirstlane_b32 {sLAST}, v{T2}")
    X = S[1]
    E(f"s_cmp_lg_u32 {sLAST}, 7")
    E("s_cbranch_scc1 L_nostat")
    E(f"v_and_b32 v{T0}, 31, {vLANE}")
    E(f"v_lshlrev_b32 v{T1}, 3, v{T0}")
    E(f"ds_read_b64 v[6:7], v{T1} offset:{L_STATS}")
    E(f"v_and_b32 v{T1}, 3, v{T0}")
    E(f"v_and_b32 v{T0}, 28, v{T0}")
    E(f"v_lshl_add_u32 v{T0}, v{T1}, 5, v{T0}")
    E(f"v_mov_b32 v{T2}, {sJ}")
    E(f"v_lshlrev_b32 v{T1}, 9, v{T1}")
    E(f"v_lshl_add_u32 v{T1}, v{T2}, 4, v{T1}")
    E("s_waitcnt lgkmcnt(0)")
    E(f"v_mov_b32 v16, v6")
    red_ror("v_max_f32", [16], (4, 8))
    E(f"v_mov_b32 v17, v16")
    E(f"v_permlane16_swap_b32 v16, v17")
    E(f"v_max_f32 v16, v16, v17")
    E(f"v_sub_f32 v6, v6, v16")
    E(f"v_exp_f32 v6, v6")
    E(f"v_mul_f32 v18, v6, v7")
    E(f"ds_write_b32 v{T0}, v6 offset:{L_FAC}")
    red_ror("v_add_f32", [18], (4, 8))
    E(f"v_mov_b32 v17, v18")
    E(f"v_permlane16_swap_b32 v18, v17")
    E(f"v_add_f32 v18, v17, v18")
    E(f"v_mov_b32 v17, {sTAG}")
    E(f"v_mov_b32 v19, {sTAG}")
    E(f"s_lshl_b32 {sT0}, {sG}, 11")
    E(f"s_add_u32 {sT0}, {sT0}, {WS_STAT}")
    E("s_mov_b64 exec, 15")
    gstore(f"buffer_store_dwordx4 v[16:19], v{T1}, {rWS}, {sT0} offen")
    E("s_mov_b64 exec, -1")
    E.label("L_nostat")
    stamp("c1")
    vGQ, vN, vCOL, vGAA, vCH, vU16, vOW, vT8, vL4, vGATH, vRR, vRW, vFR, vSTA, vWBW, vWBR = [X+i for i in range(16)]
    TRB = X+16; GA = X+20; GB = X+24; SP = X+24; XT = X+30; vWER = X+31
    def wcalc():
        E(f"v_mov_b32 v{T0}, v{SP}")
        red_ror("v_max_f32", [T0], (1, 2, 4, 8))
        E(f"v_mov_b32 v{T1}, v{T0}")
        E(f"v_permlane16_swap_b32 v{T0}, v{T1}")
        E(f"v_max_f32 v{T0}, v{T0}, v{T1}")
        E(f"v_sub_f32 v{SP}, v{SP}, v{T0}")
        E(f"v_exp_f32 v{SP}, v{SP}")
        E(f"v_mul_f32 v{T0}, v{SP}, v{SP+2}")
        red_ror("v_add_f32", [T0], (1, 2, 4, 8))
        E(f"v_mov_b32 v{T1}, v{T0}")
        E(f"v_permlane16_swap_b32 v{T0}, v{T1}")
        E(f"v_add_f32 v{T0}, v{T0}, v{T1}")
        E(f"v_rcp_f32 v{T0}, v{T0}")
        E(f"v_mul_f32 v{T0}, v{T0}, v{SP}")
    tail_dma(3)
    if wopf and wopos == 3: wo_pref()
    ACCO = S[2]; TP = S[3]
    first = [True]
    def pv_perm(slot, mm):
        for dw in range(4):
            a = S[slot] + (2*mm)*4 + dw; b = S[slot] + (2*mm+1)*4 + dw
            E(f"v_perm_b32 v{TP + (2*dw)*4 + mm}, v{b}, v{a}, {sSELLO}")
            E(f"v_perm_b32 v{TP + (2*dw+1)*4 + mm}, v{b}, v{a}, {sSELHI}")
    def pv_mfma(T):
        for e in range(8):
            c = "0" if first[0] else f"v[{ACCO+4*e}:{ACCO+4*e+3}]"
            E(f"v_mfma_f32_16x16x32_bf16 v[{ACCO+4*e}:{ACCO+4*e+3}], v[{PR[T]}:{PR[T]+3}], v[{TP+4*e}:{TP+4*e+3}], {c}")
        first[0] = False
    def pv(slot, T):
        for mm in range(4): pv_perm(slot, mm)
        pv_mfma(T)
    more(1)
    vmwait("V0"); pv(4, 0)
    more(1)
    vmwait("V1"); pv(5, 1)
    more(16, leave=2)
    if dyn == 2:
        E.label("L_tkw")
        E(f"ds_read_b32 v{T0}, v5 offset:20")
        E("s_waitcnt lgkmcnt(0)")
        E(f"v_readfirstlane_b32 {sJW}, v{T0}")
        E(f"s_cmp_eq_u32 {sJW}, 0")
        E("s_cbranch_scc1 L_tkw")
        E(f"s_sub_u32 {sJW}, {sJW}, 1")
        role_setup()
    if ewt:
        E(f"s_cmp_lt_u32 {sJW}, 16")
        E(f"s_cselect_b32 {sLAST}, {sLAST}, 0")
        E(f"s_cmp_lg_u32 {sLAST}, 7")
        E("s_cbranch_scc1 L_noes")
        E(f"s_lshl_b32 {sT0}, {sG}, 11")
        E(f"s_lshr_b32 {sT1}, {sJW}, 3")
        E(f"s_lshl_b32 {sT1}, {sT1}, 10")
        E(f"s_add_u32 {sT0}, {sT0}, {sT1}")
        E(f"s_add_u32 {sT0}, {sT0}, {WS_STAT}")
        E(f"buffer_load_dwordx4 v[{SP}:{SP+3}], {vV}, {rWS}, {sT0} offen sc1")
        E.label("L_noes")
        ewt_after = len(nxt)
    more(16)
    stamp("c3")
    if prio >= 2: E("s_setprio 0")
    tail_dma(4)
    if prio >= 2: E("s_setprio 3")
    vmwait("V2"); pv(6, 2)
    nyoung = len(vm) - 1 - [i for i, t in enumerate(vm) if t == "V3"][-1]
    WB = S[4]; SCF = S[5]; WT8 = S[5]; PK = S[5]+16; GBF = S[6]
    W1 = WB; W2 = S[3]+16
    E(f"v_lshrrev_b32 v{vGQ}, 4, {vLANE}")
    E(f"v_and_b32 v{vN}, 15, {vLANE}")
    E(f"s_lshl_b32 {sT0}, {sW}, 11")
    E(f"v_lshlrev_b32 v{vRR}, 5, {vLANE}")
    E(f"v_add_u32 v{vOW}, {sT0}, v{vRR}")
    E(f"v_lshlrev_b32 v{vT8}, 3, v0")
    E(f"v_lshlrev_b32 v{vL4}, 2, {vLANE}")
    E(f"s_lshl_b32 {sT1}, {sW}, 5")
    E(f"v_mov_b32 v{vFR}, {sT1}")
    E(f"v_bfe_u32 v{T1}, {vLANE}, 2, 2")
    E(f"v_lshl_add_u32 v{T2}, v{vGQ}, 3, v{T1}")
    E(f"v_lshlrev_b32 v{T2}, 7, v{T2}")
    E(f"v_and_b32 v{T3}, 3, {vLANE}")
    E(f"v_lshl_add_u32 v{T2}, v{T3}, 3, v{T2}")
    E(f"v_bfe_u32 v{T1}, {vLANE}, 3, 2")
    E(f"v_lshl_add_u32 v{T2}, v{T1}, 5, v{T2}")
    E(f"s_lshl_b32 {sT0}, {sW}, 12")
    E(f"s_add_u32 {sT0}, {sT0}, {L_WO}")
    E(f"v_add_u32 v{TRB}, {sT0}, v{T2}")
    for nt in range(1, 4): E(f"v_xor_b32 v{TRB+nt}, {nt*32}, v{TRB}")
    E(f"s_lshl_b32 {sT0}, {sG}, 2")
    E(f"s_add_u32 {sPP}, {sT0}, {sW}")
    E(f"s_lshl_b32 {sPP}, {sPP}, 13")
    E(f"s_lshr_b32 {sT1}, {sJ}, 4")
    E(f"s_lshl_b32 {sT1}, {sT1}, 12")
    E(f"s_add_u32 {sPP}, {sPP}, {sT1}")
    E(f"s_and_b32 {sT1}, {sJ}, 15")
    E(f"s_lshl_b32 {sT1}, {sT1}, 4")
    E(f"s_add_u32 {sPP}, {sPP}, {sT1}")
    E(f"s_add_u32 {sPP}, {sPP}, {WS_PART}")
    E(f"s_lshr_b32 {sT1}, {sJW}, 3")
    E(f"s_lshl_b32 {sT1}, {sT1}, 1")
    E(f"s_add_u32 {sGA0}, {sT0}, {sT1}")
    E(f"s_lshr_b32 {sT1}, {sW}, 2")
    E(f"s_add_u32 {sGA0}, {sGA0}, {sT1}")
    E(f"s_lshl_b32 {sT2}, {sGA0}, 9")
    E(f"s_add_u32 {sT2}, {sT2}, {WS_STAT}")
    E(f"s_lshl_b32 {sGA0}, {sGA0}, 13")
    E(f"s_and_b32 {sT1}, {sW}, 3")
    E(f"s_lshl_b32 {sT1}, {sT1}, 10")
    E(f"s_add_u32 {sGA0}, {sGA0}, {sT1}")
    E(f"s_add_u32 {sGA0}, {sGA0}, {WS_PART}")
    E(f"s_add_u32 {sGA1}, {sGA0}, 4096")
    E(f"v_and_b32 v{vSTA}, 31, {vLANE}")
    E(f"s_lshl_b32 {sT1}, {sW}, 7")
    E(f"v_lshl_add_u32 v{vWBW}, v{vSTA}, 2, {sT1}")
    E(f"v_lshl_add_u32 v{vWBR}, v{vGQ}, 4, {sT1}")
    E(f"v_lshlrev_b32 v{vSTA}, 4, v{vSTA}")
    E(f"s_lshr_b32 {sT1}, {sW}, 2")
    E(f"s_lshl_b32 {sT1}, {sT1}, 7")
    E(f"v_lshl_add_u32 v{vWER}, v{vGQ}, 4, {sT1}")
    E(f"v_lshrrev_b32 v{vGATH}, 2, {vLANE}")
    E(f"v_lshlrev_b32 v{vGATH}, 8, v{vGATH}")
    E(f"v_and_b32 v{T3}, 3, {vLANE}")
    E(f"v_lshl_add_u32 v{vGATH}, v{T3}, 2, v{vGATH}")
    E(f"s_lshl_b32 {sT1}, {sW}, 2")
    E(f"v_add_u32 v{vRW}, {sT1}, v{vRR}")
    E(f"s_waitcnt vmcnt({nyoung+4})")
    pv_perm(0, 0); pv_perm(0, 1)
    E(f"s_waitcnt vmcnt({nyoung+2})")
    pv_perm(0, 2)
    if ewt:
        E(f"s_cmp_lg_u32 {sLAST}, 7")
        E("s_cbranch_scc1 L_noew")
        if ewt_after < 2: E(f"s_waitcnt vmcnt({nyoung + ewt_after})")
        tagcheck([SP+1, SP+3], 6)
        E("s_cbranch_vccnz L_noew")
        wcalc()
        E(f"ds_write_b32 v{vL4}, v{T0} offset:{L_WE}")
        E(f"ds_write_b32 v5, v5 offset:8")
        E.label("L_noew")
    E(f"s_waitcnt vmcnt({nyoung})")
    stamp(5)
    pv_perm(0, 3)
    pv_mfma(3)
    for e in range(8): E(f"v_mov_b32 v{PK+e}, v{ACCO+4*e}")
    E(f"ds_write_b128 v{vOW}, v[{PK}:{PK+3}] offset:{L_ORED}")
    E(f"ds_write_b128 v{vOW}, v[{PK+4}:{PK+7}] offset:{L_ORED+16}")
    tail_dma(6)
    if ml6:
        E(f"s_cmp_eq_u32 {sML}, 0")
        E("s_cbranch_scc1 L_no6")
        E("s_setprio 0")
        w2_dma()
        if ml6 == 2: w1_dma()
        E("s_setprio 3")
        E.label("L_no6")
    E("s_waitcnt lgkmcnt(0)")
    E("s_barrier")
    if hint:
        E(f"s_cmp_lg_u32 {sW}, 4")
        E("s_cbranch_scc1 L_nohint")
        E(f"s_lshl_b32 {sT0}, s2, 2")
        E(f"v_mov_b32 v{T0}, {WS_HB}")
        E(f"v_mov_b32 v{T1}, {sTAG}")
        E("s_mov_b64 exec, 1")
        E(f"buffer_store_dword v{T1}, v{T0}, {rWS}, {sT0} offen sc1")
        E("s_mov_b64 exec, -1")
        E.label("L_nohint")
    E(f"s_cmp_ge_u32 {sW}, 4")
    E("s_cbranch_scc1 L_nopart")
    R0 = S[2]; FC = S[2]+16
    E(f"ds_read_b128 v[{FC}:{FC+3}], v{vFR} offset:{L_FAC}")
    E(f"ds_read_b128 v[{FC+4}:{FC+7}], v{vFR} offset:{L_FAC+16}")
    for w in range(8): E(f"ds_read_b64 v[{R0+2*w}:{R0+2*w+1}], v{vT8} offset:{L_ORED + w*2048}")
    for w in range(8):
        if w % 2 == 0: E(f"s_waitcnt lgkmcnt({6-w})")
        a = PK + 2*(w % 2)
        op = "v_mul_f32" if w < 2 else "v_fmac_f32"
        E(f"{op} v{a}, v{R0+2*w}, v{FC+w}")
        E(f"{op} v{a+1}, v{R0+2*w+1}, v{FC+w}")
    E(f"v_pk_add_f32 v[{PK}:{PK+1}], v[{PK}:{PK+1}], v[{PK+2}:{PK+3}]")
    E(f"v_cvt_pk_bf16_f32 v{PK}, v{PK}, v{PK+1}")
    E(f"v_min_u32 v{PK}, -2, v{PK}")
    gstore(f"buffer_store_dword v{PK}, v{vGATH}, {rWS}, {sPP} offen")
    E.label("L_nopart")
    stamp(6)
    if "e" in dbg: E("s_branch L_fin")
    E(f"s_cmp_lg_u32 {sML}, 0")
    E("s_cbranch_scc1 L_stageb")
    if w1pf == 2:
        w1_pref("L_nopf2")
        E.label("L_nopf2")
    E(f"s_cmp_ge_u32 {sJW}, 16")
    E("s_cbranch_scc1 L_fin")
    tail_dma(5)
    if buddy:
        E(f"s_sub_u32 {sT0}, {sT0}, {3*8*1024}")
        E(f"s_xor_b32 {sT0}, {sT0}, {buddy}")
        E(f"s_mov_b32 m0, {L_WM}")
        for i in range(4):
            E(f"buffer_load_dwordx4 v{T2}, {rWO}, {sT0} offen lds")
            if i < 3: E(f"s_add_u32 {sT0}, {sT0}, {8*1024}")
    GA_ = S[3]
    def a_load(i): E(f"buffer_load_dwordx4 v[{GA_+4*i}:{GA_+4*i+3}], {vV}, {rWS}, {sGA1 if i else sGA0} offen {'nt' if 'n' in dbg else 'sc1'}")
    def a_loads(): a_load(0); a_load(1)
    if ewt:
        E(f"ds_read_b32 v{T0}, v5 offset:8")
        E(f"ds_read_b128 v[{WT8}:{WT8+3}], v{vWER} offset:{L_WE}")
        E(f"ds_read_b128 v[{WT8+4}:{WT8+7}], v{vWER} offset:{L_WE+64}")
        E("s_waitcnt lgkmcnt(0)")
        E(f"v_readfirstlane_b32 {sT0}, v{T0}")
        E(f"s_cmp_lg_u32 {sT0}, 0")
        E("s_cbranch_scc1 L_havew")
    E.label("L_statchk")
    E(f"buffer_load_dwordx4 v[{SP}:{SP+3}], v{vSTA}, {rWS}, {sT2} offen sc1")
    E("s_waitcnt vmcnt(0)")
    tagcheck([SP+1, SP+3], 6)
    E("s_cbranch_vccz L_gotstat")
    if slp: E(f"s_sleep {slp}")
    spin_check("L_statchk")
    E.label("L_gotstat")
    wcalc()
    E(f"ds_write_b32 v{vWBW}, v{T0} offset:{L_WB}")
    E("s_waitcnt lgkmcnt(0)")
    E(f"ds_read_b128 v[{WT8}:{WT8+3}], v{vWBR} offset:{L_WB}")
    E(f"ds_read_b128 v[{WT8+4}:{WT8+7}], v{vWBR} offset:{L_WB+64}")
    E.label("L_havew")
    if lead:
        E(f"s_and_b32 {sT0}, {sW}, 3")
        E("s_cbranch_scc0 L_lead")
        E("s_barrier")
        E.label("L_lead")
    a_loads()
    E("s_waitcnt vmcnt(2)")
    for nt in range(4):
        for q in range(2): E(f"ds_read_b64_tr_b16 v[{WB+4*nt+2*q}:{WB+4*nt+2*q+1}], v{TRB+nt} offset:{q*512}")
    stamp("w1")
    if rep:
        E(f"s_lshl_b32 {sT0}, {sW}, 15")
        E(f"s_add_u32 {sAOP}, {sAOP}, {sT0}")
    if quick: quickpoll("a", a_load, [GA_, GA_+4], "L_polla")
    pollloop("a", a_load, [range(GA_, GA_+4), range(GA_+4, GA_+8)], T0, slpa)
    if lead:
        E(f"s_and_b32 {sT0}, {sW}, 3")
        E("s_cbranch_scc1 L_lead2")
        E("s_barrier")
        E.label("L_lead2")
    stamp(7)
    E("s_waitcnt lgkmcnt(0)")
    D = S[2]
    for half in range(2):
        for nt in range(4):
            d = D + half*16 + 4*nt
            E(f"v_mfma_f32_16x16x32_bf16 v[{d}:{d+3}], v[{GA_+4*half}:{GA_+4*half+3}], v[{WB+4*nt}:{WB+4*nt+3}], 0")
    for nt in range(4): E(f"v_pk_mul_f32 v[{D+4*nt}:{D+4*nt+1}], v[{D+4*nt}:{D+4*nt+1}], v[{WT8}:{WT8+1}]")
    for nt in range(4): E(f"v_pk_fma_f32 v[{D+4*nt}:{D+4*nt+1}], v[{D+4*nt+2}:{D+4*nt+3}], v[{WT8+2}:{WT8+3}], v[{D+4*nt}:{D+4*nt+1}]")
    for nt in range(4): E(f"v_pk_fma_f32 v[{D+4*nt}:{D+4*nt+1}], v[{D+16+4*nt}:{D+16+4*nt+1}], v[{WT8+4}:{WT8+5}], v[{D+4*nt}:{D+4*nt+1}]")
    for nt in range(4): E(f"v_pk_fma_f32 v[{D+4*nt}:{D+4*nt+1}], v[{D+16+4*nt+2}:{D+16+4*nt+3}], v[{WT8+6}:{WT8+7}], v[{D+4*nt}:{D+4*nt+1}]")
    for nt in range(4): E(f"v_add_f32 v{D+4*nt}, v{D+4*nt}, v{D+4*nt+1}")
    tred4(D, D+4, D+8, D+12)
    E(f"ds_write_b32 v{vRW}, v{D} offset:{L_RED}")
    E("s_waitcnt lgkmcnt(0)")
    E("s_barrier")
    if not rep:
        E(f"s_cmp_lg_u32 {sW}, 0")
        E("s_cbranch_scc1 L_fin")
    D = PK
    E(f"ds_read_b128 v[{D}:{D+3}], v{vRR} offset:{L_RED}")
    E(f"ds_read_b128 v[{D+4}:{D+7}], v{vRR} offset:{L_RED+16}")
    E("s_waitcnt lgkmcnt(0)")
    E(f"v_pk_add_f32 v[{D}:{D+1}], v[{D}:{D+1}], v[{D+4}:{D+5}]")
    E(f"v_pk_add_f32 v[{D+2}:{D+3}], v[{D+2}:{D+3}], v[{D+6}:{D+7}]")
    E(f"v_pk_add_f32 v[{D}:{D+1}], v[{D}:{D+1}], v[{D+2}:{D+3}]")
    E(f"v_add_f32 v{D}, v{D}, v{D+1}")
    E(f"v_min_u32 v{D}, -2, v{D}")
    E(f"buffer_store_dword v{D}, v{vL4}, {rWS}, {sAOP} offen {aost}")
    stamp(8)
    E("s_branch L_fin")
    E.label("L_stageb")
    if "x" in dbg: E("s_branch L_fin")
    if w1e:
        E(f"s_cmp_ge_u32 {sA}, 224")
        E("s_cbranch_scc1 L_now1")
    if mlearly != 2 and not ml6: w2_dma()
    if w1dl: E(f"s_sleep {w1dl}")
    if mlearly != 1 and ml6 != 2: w1_dma()
    E.label("L_now1")
    GBR = S[3]
    E(f"v_lshlrev_b32 v{vSTA}, 11, v{vGQ}")
    E(f"v_lshl_add_u32 v{vSTA}, v{vN}, 4, v{vSTA}")
    E(f"s_lshl_b32 {sT0}, {sW}, 8")
    if rep:
        E(f"s_lshl_b32 {sT1}, {sG}, 15")
        E(f"s_add_u32 {sT0}, {sT0}, {sT1}")
    bs = ["s88", "s89", "s90", "s95"]
    for i in range(4): E(f"s_add_u32 {bs[i]}, {sT0}, {WS_AO + 8192*i}")
    def b_load(i): E(f"buffer_load_dwordx4 v[{S[3]+4*i}:{S[3]+4*i+3}], v{vSTA}, {rWS}, {bs[i]} offen {aold}")
    def b_loads():
        for i in range(4): b_load(i)
    E(f"v_lshl_add_u32 v{vCOL}, v{vN}, 2, v{vGQ}")
    E(f"s_lshl_b32 {sT0}, {sW}, 6")
    E(f"v_add_u32 v{vCOL}, {sT0}, v{vCOL}")
    E(f"v_lshlrev_b32 v{vGAA}, 1, v{vCOL}")
    E(f"buffer_load_ushort v{XT}, v{vGAA}, {rX}, 0 offen")
    if mlite:
        E(f"v_lshrrev_b32 v{TRB}, 1, v{vN}")
        E(f"v_lshlrev_b32 v{TRB}, 12, v{TRB}")
        E(f"v_and_b32 v{TRB+1}, 1, v{vN}")
        E(f"v_lshl_add_u32 v{TRB}, v{TRB+1}, 10, v{TRB}")
        E(f"s_lshl_b32 {sT4}, {sW}, 7")
        E(f"s_add_u32 {sT4}, {sT4}, {WS_CLR}")
        E(f"buffer_load_dwordx2 v[{TRB+2}:{TRB+3}], v{TRB}, {rWS}, {sT4} offen sc1")
    if outpf: E(f"buffer_load_ushort v{TRB}, v{vGAA}, {rOUT}, 0 offen")
    E(f"v_and_b32 v{vGAA}, 0x1fe, v{vCOL}")
    E(f"v_lshlrev_b32 v{vGAA}, 2, v{vGAA}")
    E(f"s_mul_i32 {sU}, {sW}, 56")
    E(f"s_add_u32 {sU}, {sU}, {sM}")
    E(f"s_lshl_b32 {sU16}, {sU}, 4")
    E(f"s_and_b32 {sU16}, {sU16}, 0x7ff")
    E(f"v_mov_b32 v{vU16}, {sU16}")
    E(f"s_lshl_b32 {sT0}, {sW}, 2")
    E(f"v_add_u32 v{vCH}, {sT0}, v{vN}")
    E(f"v_and_b32 v{vCH}, 15, v{vCH}")
    E(f"v_lshl_add_u32 v{vCH}, v{vGQ}, 4, v{vCH}")
    E(f"v_lshlrev_b32 v{vCH}, 5, v{vCH}")
    SG = S[6]+8
    E(f"ds_read_b64 v[{GA}:{GA+1}], v{vGAA} offset:{L_MOD}")
    for i in range(4): E(f"ds_read_b128 v[{SG+4*i}:{SG+4*i+3}], v{vCH} offset:{L_MOD + 2048 + (i//2)*2048 + (i%2)*16}")
    E(f"ds_read_b128 v[{GB}:{GB+3}], v{vU16} offset:{L_MOD + 6144}")
    E(f"s_lshl_b32 {sT3}, {sW}, 13")
    E(f"s_add_u32 {sT3}, {sT3}, {L_WT}")
    E(f"v_bfe_u32 v{T0}, {vLANE}, 2, 2")
    E(f"v_and_b32 v{T1}, 3, {vLANE}")
    E(f"v_lshlrev_b32 v{T1}, 3, v{T1}")
    E(f"v_lshl_add_u32 v{T2}, v{T0}, 6, v{T1}")
    E(f"v_lshl_add_u32 v{T2}, v{vGQ}, 10, v{T2}")
    E(f"s_and_b32 {sT1}, {sW}, 3")
    E(f"s_lshl_b32 {sT1}, {sT1}, 14")
    E(f"s_add_u32 {sT1}, {sT1}, {L_WT}")
    E(f"v_add_u32 v{T2}, {sT1}, v{T2}")
    E(f"v_lshl_add_u32 v{T0}, v{T0}, 7, v{T1}")
    E(f"v_lshl_add_u32 v{T0}, v{vGQ}, 5, v{T0}")
    E(f"v_add_u32 v{T0}, {sT3}, v{T0}")
    E(f"v_lshlrev_b32 v{vRR}, 5, v{vN}")
    E(f"v_lshlrev_b32 v{vRW}, 4, v{vN}")
    E(f"s_lshl_b32 {sT1}, {sW}, 2")
    E(f"v_add_u32 v{vRW}, {sT1}, v{vRW}")
    E(f"v_lshlrev_b32 v{vGATH}, 2, v0")
    E(f"v_mov_b32 v{vWBR}, 0")
    E("s_waitcnt lgkmcnt(0)")
    E.label("L_modchk")
    tagcheck([GA+1, GB+1, GB+3] + [SG+1+2*i for i in range(8)], 6)
    E("s_cbranch_vccz L_gotmd")
    E(f"s_mov_b32 {sT0}, {WS_MODG + 4096}")
    E(f"buffer_load_dwordx2 v[{GA}:{GA+1}], v{vGAA}, {rWS}, {sT0} offen sc1")
    E(f"buffer_load_dwordx4 v[{SG}:{SG+3}], v{vCH}, {rWS}, {sT0} offen offset:2048 sc1")
    E(f"buffer_load_dwordx4 v[{SG+4}:{SG+7}], v{vCH}, {rWS}, {sT0} offen offset:2064 sc1")
    E(f"s_mov_b32 {sT0}, {WS_MODG + 8192}")
    E(f"buffer_load_dwordx4 v[{SG+8}:{SG+11}], v{vCH}, {rWS}, {sT0} offen sc1")
    E(f"buffer_load_dwordx4 v[{SG+12}:{SG+15}], v{vCH}, {rWS}, {sT0} offen offset:16 sc1")
    E(f"buffer_load_dwordx4 v[{GB}:{GB+3}], v{vU16}, {rWS}, {sT0} offen offset:2048 sc1")
    E("s_waitcnt vmcnt(0)")
    spin_check("L_modchk")
    E.label("L_gotmd")
    E(f"v_and_b32 v6, 1, v{vCOL}")
    E(f"v_lshlrev_b32 v{vCOL}, 2, v{vCOL}")
    E(f"v_cmp_eq_u32 vcc, 0, v6")
    E(f"v_lshlrev_b32 v6, 16, v{GA}")
    E(f"v_and_b32 v7, 0xffff0000, v{GA}")
    E(f"v_cndmask_b32 v{GA}, v7, v6, vcc")
    for i in range(4):
        c0, c1, s0, s1_ = SCF+2*i, SCF+2*i+1, SCF+8+2*i, SCF+8+2*i+1
        E(f"v_lshlrev_b32 v{s0}, 16, v{SG+2*i}")
        E(f"v_and_b32 v{s1_}, 0xffff0000, v{SG+2*i}")
        E(f"v_lshlrev_b32 v{c0}, 16, v{SG+8+2*i}")
        E(f"v_and_b32 v{c1}, 0xffff0000, v{SG+8+2*i}")
        E(f"v_add_f32 v{c0}, 1.0, v{c0}")
        E(f"v_add_f32 v{c1}, 1.0, v{c1}")
        rb2(c0, c1, c0, c1, 6)
    E(f"v_lshlrev_b32 v{GBF}, 16, v{GB}")
    E(f"v_and_b32 v{GBF+1}, 0xffff0000, v{GB}")
    E(f"v_lshlrev_b32 v{GBF+2}, 16, v{GB+2}")
    E(f"v_and_b32 v{GBF+3}, 0xffff0000, v{GB+2}")
    for r in range(1, 4):
        E(f"v_mov_b32_dpp v{GBF}, v{GBF+r} quad_perm:[0,1,2,3] row_mask:{1<<r:#x} bank_mask:0xf")
    E(f"v_lshl_add_u32 v{vU16}, v{vGQ}, 2, v{vU16}")
    E("s_waitcnt vmcnt(0)")
    if mlite:
        E.label("L_flchk")
        E(f"v_cmp_ne_u32 vcc, {sTAG}, v{TRB+3}")
        E("s_cbranch_vccz L_flok")
        E(f"buffer_load_dwordx2 v[{TRB+2}:{TRB+3}], v{TRB}, {rWS}, {sT4} offen sc1")
        E("s_waitcnt vmcnt(0)")
        spin_check("L_flchk")
        E.label("L_flok")
    if not hint: b_loads()
    stamp("w2")
    E("s_barrier")
    for nt in range(2):
        for q in range(8):
            r = W1 + nt*16 + q*2
            E(f"ds_read_b64_tr_b16 v[{r}:{r+1}], v{T2} offset:{(q>>2)*8192 + (q&3)*256 + nt*32}")
    for q in range(8):
        E(f"ds_read_b64_tr_b16 v[{W2+2*q}:{W2+2*q+1}], v{T0} offset:{4096 + q*512}")
    E(f"v_lshlrev_b32 v{XT}, 16, v{XT}")
    if touch:
        E("s_mov_b64 exec, 0")
        E("s_branch L_tb_0")
        E.label("L_tbret")
        E("s_mov_b64 exec, -1")
    G2 = S[0]
    if hint:
        if hint == 2:
            E(f"s_cmp_lg_u32 {sW}, 7")
            E("s_cbranch_scc1 L_goth")
        E(f"s_mov_b32 {sT0}, {WS_HB}")
        E.label("L_pollh")
        E(f"buffer_load_dwordx4 v[{G2}:{G2+3}], {vV}, {rWS}, {sT0} offen sc1")
        E("s_waitcnt vmcnt(0)")
        tagcheck([G2, G2+1, G2+2, G2+3], 6)
        E("s_cbranch_vccz L_goth")
        spin_check("L_pollh")
        E.label("L_goth")
        if hint == 2: E("s_barrier")
        stamp("h")
        if hdl: E(f"s_sleep {hdl}")
        b_loads()
    if quick: quickpoll("b", b_load, [GBR+4*i for i in range(4)], "L_pollb")
    E.label("L_pollb")
    E(f"s_waitcnt vmcnt(0)")
    for i in range(0, 8, 2): E(f"v_pk_add_f32 v[{G2+i}:{G2+i+1}], v[{GBR+i}:{GBR+i+1}], v[{GBR+8+i}:{GBR+8+i+1}]")
    for i in range(0, 4, 2): E(f"v_pk_add_f32 v[{G2+i}:{G2+i+1}], v[{G2+i}:{G2+i+1}], v[{G2+4+i}:{G2+4+i+1}]")
    E(f"v_pk_add_f32 v[{G2+4}:{G2+5}], v[{G2}:{G2+1}], v[{G2+2}:{G2+3}]")
    E(f"v_cmp_u_f32 vcc, v{G2+4}, v{G2+5}")
    E("s_cbranch_vccz L_gotb")
    for i in range(4): maxall(range(GBR+4*i, GBR+4*i+4), 16+i)
    maxall(range(16, 20), 6)
    E(f"v_cmp_eq_u32 vcc, -1, v6")
    E("s_cbranch_vccz L_gotb")
    if slpb: E(f"s_sleep {slpb}")
    for i in range(4):
        E(f"v_cmp_eq_u32 vcc, -1, v{16+i}")
        E(f"s_mov_b64 exec, vcc")
        b_load(i)
        E("s_mov_b64 exec, -1")
    spin_check("L_pollb")
    E.label("L_gotb")
    if touch: E.touch_begin("L_tb", touch)
    stamp(9)
    GBR = G2
    tred4(GBR, GBR+1, GBR+2, GBR+3)
    rb1(GBR, GBR)
    E(f"v_mul_f32 v{GBR}, v{GBR}, v{GA}")
    rb1(GBR, GBR)
    E(f"v_add_f32 v{GBR}, v{GBR}, v{XT}")
    rb1(GBR, GBR)
    E(f"ds_write_b32 v{vCOL}, v{GBR} offset:{L_X2}")
    E("s_waitcnt lgkmcnt(0)")
    E("s_barrier")
    stamp("b1")
    X2 = S[2]; X2F = S[2]+8; KS = S[2]+12
    if epe:
        E(f"s_cmp_lg_u32 {sU}, {7*56}")
        E("s_cbranch_scc1 L_noep")
        E(f"v_mov_b32 v7, {sTAG}")
        E("s_mov_b64 exec, 1")
        E(f"buffer_store_dword v7, v{vWBR}, {rWS}, 0 offen sc1")
        E("s_mov_b64 exec, -1")
        E.label("L_noep")
    E(f"s_cmp_ge_u32 {sW}, 4")
    E("s_cbranch_scc1 L_b4")
    E(f"ds_read_b32 v{KS}, v{vWBR} offset:{L_X2}")
    E(f"ds_read_b128 v[{X2}:{X2+3}], v{vCH} offset:{L_X2}")
    E(f"ds_read_b128 v[{X2+4}:{X2+7}], v{vCH} offset:{L_X2+16}")
    E(f"ds_read_b32 v{X2F}, v{vU16} offset:{L_X2}")
    E("s_waitcnt lgkmcnt(0)" if (stamps and "b1" in stamps) else "s_waitcnt lgkmcnt(1)")
    DD = S[2]+16
    NEGB = "op_sel_hi:[1,0] neg_lo:[0,1] neg_hi:[0,1]"
    for i in range(0, 8, 2): E(f"v_pk_add_f32 v[{DD+i}:{DD+i+1}], v[{X2+i}:{X2+i+1}], v[{KS}:{KS+1}] {NEGB}")
    s1, s2, s3 = 16, 18, T0
    E(f"v_pk_add_f32 v[{s1}:{s1+1}], v[{DD}:{DD+1}], v[{DD+2}:{DD+3}]")
    E(f"v_pk_mul_f32 v[{s2}:{s2+1}], v[{DD}:{DD+1}], v[{DD}:{DD+1}]")
    E(f"v_pk_add_f32 v[{s3}:{s3+1}], v[{DD+4}:{DD+5}], v[{DD+6}:{DD+7}]")
    E(f"v_pk_mul_f32 v[{s3+2}:{s3+3}], v[{DD+4}:{DD+5}], v[{DD+4}:{DD+5}]")
    E(f"v_pk_fma_f32 v[{s2}:{s2+1}], v[{DD+2}:{DD+3}], v[{DD+2}:{DD+3}], v[{s2}:{s2+1}]")
    E(f"v_pk_fma_f32 v[{s3+2}:{s3+3}], v[{DD+6}:{DD+7}], v[{DD+6}:{DD+7}], v[{s3+2}:{s3+3}]")
    E(f"v_pk_add_f32 v[{s1}:{s1+1}], v[{s1}:{s1+1}], v[{s3}:{s3+1}]")
    E(f"v_pk_add_f32 v[{s2}:{s2+1}], v[{s2}:{s2+1}], v[{s3+2}:{s3+3}]")
    E(f"v_permlane16_swap_b32 v{s1}, v{s2}")
    E(f"v_permlane16_swap_b32 v{s1+1}, v{s2+1}")
    E(f"v_pk_add_f32 v[{s1}:{s1+1}], v[{s1}:{s1+1}], v[{s2}:{s2+1}]")
    E(f"v_add_f32 v{s1}, v{s1}, v{s1+1}")
    E(f"v_mov_b32 v{s2}, v{s1}")
    E(f"v_permlane32_swap_b32 v{s1}, v{s2}")
    E(f"v_add_f32 v{s1}, v{s1}, v{s2}")
    red_ror("v_add_f32", [s1], (1, 2, 4, 8))
    E(f"v_mul_f32 v{s1}, {f32bits(1.0/512):#x}, v{s1}")
    E(f"v_mov_b32 v{s2}, v{s1}")
    E(f"v_permlane16_swap_b32 v{s1}, v{s2}")
    E(f"v_fma_f32 v{s2}, -v{s1}, v{s1}, v{s2}")
    E(f"v_add_f32 v{s1}, v{s1}, v{KS}")
    E(f"v_max_f32 v{s2}, 0, v{s2}")
    E(f"v_cvt_pk_bf16_f32 v{s3}, v{s1}, v{s2}")
    E(f"v_and_b32 v{s2}, 0xffff0000, v{s3}")
    E(f"v_lshlrev_b32 v{s1}, 16, v{s3}")
    E(f"v_add_f32 v{s2}, {f32bits(1e-5):#x}, v{s2}")
    E(f"v_pk_add_f32 v[{X2}:{X2+1}], v[{X2}:{X2+1}], v[{s1}:{s1+1}] {NEGB}")
    E(f"v_cvt_pk_bf16_f32 v{s2}, v{s2}, v{s2}")
    E(f"v_pk_add_f32 v[{X2+2}:{X2+3}], v[{X2+2}:{X2+3}], v[{s1}:{s1+1}] {NEGB}")
    E(f"v_lshlrev_b32 v{s2}, 16, v{s2}")
    E(f"v_pk_add_f32 v[{X2+4}:{X2+5}], v[{X2+4}:{X2+5}], v[{s1}:{s1+1}] {NEGB}")
    E(f"v_sqrt_f32 v{s2}, v{s2}")
    E(f"v_pk_add_f32 v[{X2+6}:{X2+7}], v[{X2+6}:{X2+7}], v[{s1}:{s1+1}] {NEGB}")
    E(f"v_pk_mul_f32 v[{X2}:{X2+1}], v[{X2}:{X2+1}], v[{SCF}:{SCF+1}]")
    E(f"v_cvt_pk_bf16_f32 v{s2}, v{s2}, v{s2}")
    E(f"v_pk_mul_f32 v[{X2+2}:{X2+3}], v[{X2+2}:{X2+3}], v[{SCF+2}:{SCF+3}]")
    E(f"v_lshlrev_b32 v{s2}, 16, v{s2}")
    E(f"v_pk_mul_f32 v[{X2+4}:{X2+5}], v[{X2+4}:{X2+5}], v[{SCF+4}:{SCF+5}]")
    E(f"v_rcp_f32 v{s2}, v{s2}")
    E(f"v_pk_mul_f32 v[{X2+6}:{X2+7}], v[{X2+6}:{X2+7}], v[{SCF+6}:{SCF+7}]")
    for i in range(0, 8, 2): E(f"v_pk_fma_f32 v[{X2+i}:{X2+i+1}], v[{X2+i}:{X2+i+1}], v[{s2}:{s2+1}], v[{SCF+8+i}:{SCF+8+i+1}] op_sel_hi:[1,0,1]")
    H2 = PK
    for p in range(4): E(f"v_cvt_pk_bf16_f32 v{H2+p}, v{X2+2*p}, v{X2+2*p+1}")
    DM = S[0]
    for s_ in range(4):
        for nt in range(2):
            d = DM + (nt*4+s_)*4; b = W1 + nt*16 + s_*4
            E(f"v_mfma_f32_16x16x32_bf16 v[{d}:{d+3}], v[{H2}:{H2+3}], v[{b}:{b+3}], 0")
    E("s_mov_b64 exec, 0xffff")
    for nt in range(2): E(f"v_add_f32 v{DM+16*nt}, v{DM+16*nt}, v{DM+16*nt+5}")
    for nt in range(2): E(f"v_add_f32 v{DM+16*nt}, v{DM+16*nt}, v{DM+16*nt+10}")
    for nt in range(2): E(f"v_add_f32 v{DM+16*nt}, v{DM+16*nt}, v{DM+16*nt+15}")
    E(f"ds_write2st64_b32 v{vRW}, v{DM}, v{DM+16} offset0:{L_RED//256} offset1:{L_RED//256+1}")
    E("s_mov_b64 exec, -1")
    E("s_waitcnt lgkmcnt(0)")
    E.label("L_b4")
    E(f"v_mov_b32 v{T0}, 0")
    E(f"v_mov_b32 v{T1}, 0")
    E("s_barrier")
    stamp("b2")
    D = S[0]
    E(f"ds_read_b128 v[{D}:{D+3}], v{vRR} offset:{L_RED}")
    E(f"ds_read_b128 v[{D+8}:{D+11}], v{vRR} offset:{L_RED+16}")
    E("s_waitcnt lgkmcnt(0)")
    for b in (D, D+8): E(f"v_pk_add_f32 v[{b}:{b+1}], v[{b}:{b+1}], v[{b+2}:{b+3}]")
    for b in (D, D+8): E(f"v_add_f32 v{b}, v{b}, v{b+1}")
    E(f"v_max_f32 v{D}, 0, v{D}")
    E(f"v_max_f32 v{D+8}, 0, v{D+8}")
    E(f"v_cvt_pk_bf16_f32 v{D}, v{D}, v{D+8}")
    for k in range(16):
        E(f"v_dot2c_f32_bf16_dpp v{T0+(k&1)}, v{D}, v{W2+k} row_newbcast:{k} {DPPM}")
    E(f"v_add_f32 v{T0}, v{T0}, v{T1}")
    E(f"v_min_u32 v{T0}, -2, v{T0}")
    E(f"buffer_store_dword v{T0}, v{vGATH}, {rWS}, {sPUB} offen sc1")
    stamp(10)
    E(f"s_cmp_ge_u32 {sU}, 128")
    E("s_cbranch_scc1 L_fin")
    C0 = S[0]+16
    E(f"v_lshlrev_b32 v{vSTA}, 11, {vLANE}")
    E(f"s_add_u32 {sT2}, {sU16}, {WS_MO}")
    for i in range(4): E(f"v_mov_b32 v{C0+i}, 0")
    def c_loads(): E(f"buffer_load_dwordx4 v[{C0}:{C0+3}], v{vSTA}, {rWS}, {sT2} offen sc1")
    if cdelay > 0: E(f"s_sleep {cdelay}")
    if cdelay < 0: E("s_waitcnt vmcnt(0)")
    E(f"s_mov_b32 {sSPIN}, 0x40000")
    E(f"s_mov_b32 exec_hi, 0xffffff")
    c_loads()
    E(f"s_mov_b64 exec, -1")
    E(f"s_lshl_b32 {sT0}, {sU}, 3")
    E(f"v_mov_b32 v6, 0")
    E(f"v_mov_b32 v7, {sTAG}")
    E(f"v_lshlrev_b32 v{T0}, 1, v{vGQ}")
    E.tpause = True
    E.label("L_pollc")
    E("s_waitcnt vmcnt(0)")
    maxall(range(C0, C0+4), T2)
    E(f"v_cmp_eq_u32 vcc, -1, v{T2}")
    E("s_cbranch_vccz L_gotc")
    E(f"s_mov_b64 exec, vcc")
    c_loads()
    E("s_mov_b64 exec, -1")
    spin_check("L_pollc")
    E.label("L_gotc")
    E.tpause = False
    if fixt:
        if fixw >= 0:
            E(f"v_mov_b32 v{T2}, 0x800")
            E(f"buffer_load_dword v{T3}, v{T2}, {rWS}, 0 offen sc1")
            E("s_waitcnt vmcnt(0)")
            E(f"v_readfirstlane_b32 s48, v{T3}")
        E.label("L_fix")
        E("s_memrealtime s[50:51]")
        E("s_waitcnt lgkmcnt(0)")
        E("s_sub_u32 s50, s50, s48")
        E(f"s_cmp_lt_u32 s50, {fixt*100}")
        E("s_cbranch_scc1 L_fix")
    stamp(11)
    tred4(C0, C0+1, C0+2, C0+3)
    red_ror("v_add_f32", [C0], (1, 2, 4, 8))
    rb1(C0, C0)
    E(f"v_mul_f32 v{C0}, v{C0}, v{GBF}")
    rb1(C0, C0)
    E(f"v_add_f32 v{C0}, v{C0}, v{X2F}")
    E(f"v_cvt_pk_bf16_f32 v{C0}, v{C0}, v{C0}")
    if touch: E.touch_end("L_tbret")
    E("s_mov_b32 exec_lo, 0x10001")
    E("s_mov_b32 exec_hi, 0x10001")
    E(f"buffer_store_short v{C0}, v{T0}, {rOUT}, {sT0} offen {outf}")
    if not epe:
        E("s_mov_b64 exec, 1")
        E(f"s_cmp_lg_u32 {sU}, 0")
        E("s_cbranch_scc1 L_fin")
        E(f"buffer_store_dword v7, v6, {rWS}, 0 offen sc1")
    E.label("L_fin")
    if stamps:
        stamp(12)
        E("s_mov_b64 exec, 1")
        E("s_waitcnt lgkmcnt(0)")
        E(f"s_lshl_b32 {sT0}, s2, 3")
        E(f"s_add_u32 {sT0}, {sT0}, {sW}")
        E(f"s_lshl_b32 {sT0}, {sT0}, 7")
        E(f"s_add_u32 {sT0}, {sT0}, {WS_STAMP}")
        if 1:
            E("s_sleep 127"); E("s_sleep 127"); E("s_sleep 127")
        E("v_mov_b32 v6, 0")
        for i in range(13):
            E(f"v_mov_b32 v8, s{52+2*i}")
            E(f"v_mov_b32 v9, s{53+2*i}")
            E(f"buffer_store_dwordx2 v[8:9], v6, {rWS}, {sT0} offen offset:{8*i}")
            E("s_nop 1")
        E(f"v_mov_b32 v8, {sSPIN}")
        E(f"v_mov_b32 v9, 0")
        E(f"buffer_store_dwordx2 v[8:9], v6, {rWS}, {sT0} offen offset:{8*13}")
    E.label("L_end")
    E("s_endpgm")
    if aslist == 2:
        E.raw(".globl warm_kernel\n.p2align 8\n.type warm_kernel,@function\nwarm_kernel:\n    s_endpgm")
        E.raw('.section .rodata,"a"\n.p2align 6\n.amdhsa_kernel warm_kernel\n  .amdhsa_next_free_vgpr 8\n  .amdhsa_next_free_sgpr 16\n  .amdhsa_accum_offset 8\n  .amdhsa_group_segment_fixed_size 0\n  .amdhsa_kernarg_size 104\n  .amdhsa_user_sgpr_count 2\n  .amdhsa_user_sgpr_kernarg_segment_ptr 1\n  .amdhsa_system_sgpr_workgroup_id_x 1\n.end_amdhsa_kernel')
    E.raw(f'.section .rodata,"a"\n.p2align 6\n.amdhsa_kernel {KN}')
    E.raw("  .amdhsa_next_free_vgpr 256\n  .amdhsa_next_free_sgpr 102\n  .amdhsa_accum_offset 256\n  .amdhsa_group_segment_fixed_size 0\n  .amdhsa_kernarg_size 104\n  .amdhsa_user_sgpr_count 2\n  .amdhsa_user_sgpr_kernarg_segment_ptr 1\n  .amdhsa_system_sgpr_workgroup_id_x 1\n  .amdhsa_float_denorm_mode_32 3\n.end_amdhsa_kernel")
    return E.text()

if __name__ == "__main__":
    import argparse, inspect
    ap = argparse.ArgumentParser()
    ap.add_argument("out")
    for n, p in inspect.signature(gen).parameters.items():
        if n == "stamps": ap.add_argument("--stamps", default="")
        else: ap.add_argument("--"+n, type=type(p.default), default=p.default)
    a = vars(ap.parse_args())
    out = a.pop("out")
    a["stamps"] = a["stamps"].split(",") if a["stamps"] else None
    open(out, "w").write(gen(**a))
```
